```python
import torch

def _softmax(x, axis=-1):
    return torch.softmax(x, dim=axis)
def _gelu(x):
    return torch.nn.functional.gelu(x, approximate="tanh")
def _silu(x):
    return torch.nn.functional.silu(x)
def _sigmoid(x):
    return torch.sigmoid(x)
def _layernorm(x, axis=-1, eps=1e-5):
    m = x.mean(dim=axis, keepdim=True)
    v = x.var(dim=axis, keepdim=True, unbiased=False)
    return (x - m) / torch.sqrt(v + eps)
def _scatter_add(tgt, idx, src, axis=0):
    return tgt.clone().index_add_(axis, idx, src)
def _segment_sum(src, seg, n):
    out = torch.zeros((n,) + src.shape[1:], dtype=src.dtype)
    return out.index_add_(0, seg, src)
def _pad(x, pw):
    flat = tuple(v for pair in reversed(pw) for v in pair)
    return torch.nn.functional.pad(x, flat)

kernel_name = 'gated_mix__ssm_conv_s4d__glu_gated_reglu__prompt'

def setup_inputs():

    _w = (lambda a: (lambda t: t.to(torch.bfloat16) if t.is_floating_point() else t)(torch.as_tensor(a)))
    def _A_setup():
        Bsz, L, D, N = 1, 2048, 512, 128
        return {
            "u": _w((lambda *s: torch.randn(*s, dtype=torch.bfloat16) * 0.05)(Bsz, L, D)),
            "log_A_real": _w((lambda *s: torch.randn(*s, dtype=torch.bfloat16) * 3.2)(D, N) * 0.5),
            "A_imag": _w((lambda *s: torch.randn(*s, dtype=torch.bfloat16) * 0.05)(D, N) * 3.14),
            "C_real": _w((lambda *s: torch.randn(*s, dtype=torch.bfloat16) * 0.05)(D, N) / N ** 0.5),
            "C_imag": _w((lambda *s: torch.randn(*s, dtype=torch.bfloat16) * 0.1)(D, N) / N ** 0.5),
            "log_dt": _w((lambda *s: torch.randn(*s, dtype=torch.bfloat16) * 0.05)(D) * 0.5 - 4.0),
            "D_skip": _w((lambda *s: torch.randn(*s, dtype=torch.bfloat16) * 0.05)(D)),
        }
    _A_in = _A_setup()

    def _B_setup():
        B, S, D, F = 1, 2048, 512, 1792
        return {
            "x": _w((lambda *s: torch.randn(*s, dtype=torch.bfloat16) * 0.05)(B, S, D)),
            "W_gate": _w((lambda *s: torch.randn(*s, dtype=torch.bfloat16) * 0.8)(D, F) * (2.0 / D) ** 0.5),
            "W_up": _w((lambda *s: torch.randn(*s, dtype=torch.bfloat16) * 0.8)(D, F) * (2.0 / D) ** 0.5),
            "W_down": _w((lambda *s: torch.randn(*s, dtype=torch.bfloat16) * 0.8)(F, D) * (1.0 / F) ** 0.5),
        }
    _B_in = _B_setup()

    return {
        "A_u": _A_in["u"],
        "A_log_A_real": _A_in["log_A_real"],
        "A_A_imag": _A_in["A_imag"],
        "A_C_real": _A_in["C_real"],
        "A_C_imag": _A_in["C_imag"],
        "A_log_dt": _A_in["log_dt"],
        "A_D_skip": _A_in["D_skip"],
        "B_x": _B_in["x"],
        "B_W_gate": _B_in["W_gate"],
        "B_W_up": _B_in["W_up"],
        "B_W_down": _B_in["W_down"],
        "gate_w": _w((lambda *s: torch.randn(*s, dtype=torch.bfloat16) * 0.05)(512) * 16.0),
    }

def reference(A_u, A_log_A_real, A_A_imag, A_C_real, A_C_imag, A_log_dt, A_D_skip, B_x, B_W_gate, B_W_up, B_W_down, gate_w):
    def _A_ref(u, log_A_real, A_imag, C_real, C_imag, log_dt, D_skip):
        L = u.shape[1]
        dt = torch.exp(log_dt)
        A = -torch.exp(log_A_real) + 1j * A_imag
        C = (C_real + 1j * C_imag) * dt[:, None]
        pos = (lambda x, dt: x.to(dt))(torch.arange(L), log_dt.dtype)
        P = torch.exp((A * dt[:, None])[:, :, None] * pos[None, None, :])
        K = 2.0 * torch.einsum("dn,dnl->dl", C, P).real
        L2 = 2 * L
        u_t = (lambda x, *d: x.permute(*d))(u, 0, 2, 1)
        Kf = (lambda x, *a, **k: torch.fft.rfft(x.float(), *a, **k))(K, L2)
        Uf = (lambda x, *a, **k: torch.fft.rfft(x.float(), *a, **k))(u_t, L2)
        y = (lambda x, *a, **k: torch.fft.irfft(x, *a, **k).to(torch.bfloat16))(Uf * Kf[None, :, :], L2)[:, :, :L]
        y = (lambda x, *d: x.permute(*d))(y, 0, 2, 1)
        return y + u * D_skip[None, None, :]

    def _B_ref(x, W_gate, W_up, W_down):
        gate = torch.einsum("bsd,df->bsf", x, W_gate)
        up = torch.einsum("bsd,df->bsf", x, W_up)
        gate = gate * (lambda x, dt: x.to(dt))(gate > 0, gate.dtype)
        h = gate * up
        return torch.einsum("bsf,fd->bsd", h, W_down)

    x = A_u
    g = _sigmoid((x * gate_w).sum(-1, keepdims=True))
    a = _A_ref(x, A_log_A_real, A_A_imag, A_C_real, A_C_imag, A_log_dt, A_D_skip)
    b = _B_ref(x, B_W_gate, B_W_up, B_W_down)
    return g * a + (1 - g) * b
```

```python
import re, copy
RE_RANGE = re.compile(r'^(-|\|)?([vas])\[(\d+):(\d+)\]\|?$')
RE_ONE = re.compile(r'^(-|\|)?\|?([vas])(\d+)\|?$')
TRANS = ('v_exp_f32', 'v_log_f32', 'v_rcp_f32', 'v_rsq_f32', 'v_sqrt_f32', 'v_sin_f32', 'v_cos_f32', 'v_rcp_iflag_f32')

def regs(op):
    op = op.strip()
    if op.startswith('neg(') or op.startswith('abs('): op = op[4:-1]
    m = RE_RANGE.match(op)
    if m: return [(m.group(2), i) for i in range(int(m.group(3)), int(m.group(4)) + 1)]
    m = RE_ONE.match(op)
    if m: return [(m.group(2), int(m.group(3)))]
    if op == 'vcc': return [('s', 'vcc_lo'), ('s', 'vcc_hi')]
    if op in ('vcc_lo', 'vcc_hi'): return [('s', op)]
    if op == 'exec': return [('s', 'exec_lo'), ('s', 'exec_hi')]
    if op in ('exec_lo', 'exec_hi'): return [('s', op)]
    if op == 'm0': return [('s', 'm0')]
    return []

def split_ops(s):
    out, depth, cur = [], 0, ''
    for ch in s:
        if ch in '[(': depth += 1
        if ch in '])': depth -= 1
        if ch == ',' and depth == 0: out.append(cur.strip()); cur = ''
        else: cur += ch
    if cur.strip(): out.append(cur.strip())
    return out

class Ins:
    __slots__ = ('text', 'op', 'kind', 'rd', 'wr', 'srcc', 'ab', 'passes', 'tag', 'wide', 'data', 'mods', 'dpp', 'target', 'sdwa_out', 'sconst')
    def __init__(s, text, tag=None):
        s.text = text; s.tag = tag; s.rd = set(); s.wr = set(); s.srcc = None; s.ab = set(); s.passes = 0
        s.wide = False; s.data = set(); s.dpp = False; s.target = None; s.sdwa_out = False; s.sconst = set()
        t = text.split(';')[0].strip()
        if t.endswith(':'): s.kind = 'label'; s.op = t[:-1]; return
        sp = t.split(None, 1); s.op = op = sp[0]; rest = sp[1] if len(sp) > 1 else ''
        ops = split_ops(rest)
        mods = ''
        if ops:
            parts = ops[-1].split(None, 1)
            if len(parts) > 1 and not ops[-1].startswith('hwreg'): ops[-1] = parts[0]; mods = parts[1]
        s.mods = mods
        R = lambda i: regs(ops[i]) if i < len(ops) else []
        allr = lambda a: [r for o in ops[a:] for r in regs(o)]
        if op.startswith('v_mfma'):
            s.kind = 'mfma'; s.wr = set(R(0)); s.ab = set(R(1) + R(2)); s.srcc = R(3); s.rd = s.ab | set(s.srcc)
            s.passes = 8 if '32x32x16' in op else 4 if '16x16x32' in op else None
            assert s.passes, op
        elif op.startswith('v_'):
            s.kind = 'valu'
            base = op.replace('_e32', '').replace('_e64', '').replace('_dpp', '').replace('_sdwa', '')
            s.dpp = ('quad_perm' in mods or 'row_' in mods or 'wave_' in mods or op.endswith('_dpp'))
            if base.startswith('v_cmpx'): s.wr = set(regs('exec')) | set(R(0)); s.rd = set(allr(1))
            elif base.startswith('v_cmp'): s.wr = set(R(0)); s.rd = set(allr(1))
            elif base in ('v_permlane16_swap_b32', 'v_permlane32_swap_b32', 'v_swap_b32'):
                s.wr = set(R(0) + R(1)); s.rd = set(s.wr)
            elif base in ('v_add_co_u32', 'v_sub_co_u32', 'v_addc_co_u32', 'v_subb_co_u32', 'v_div_scale_f32', 'v_mad_u64_u32'):
                s.wr = set(R(0) + R(1)); s.rd = set(allr(2))
            elif base == 'v_nop': pass
            else:
                s.wr = set(R(0)); s.rd = set(allr(1))
                if base.startswith(('v_fmac', 'v_mac', 'v_dot2c', 'v_pk_fmac', 'v_writelane')) or s.dpp or 'UNUSED_PRESERVE' in mods: s.rd |= s.wr
                if base == 'v_cndmask_b32' and len(ops) == 3: s.rd |= set(regs('vcc'))
                if 'dst_sel:WORD' in mods or 'dst_sel:BYTE' in mods: s.sdwa_out = True
            s.sconst = {r for r in s.rd if r[0] == 's'}
        elif op.startswith('ds_'):
            s.kind = 'ds'
            if op.startswith(('ds_read', 'ds_bpermute', 'ds_permute', 'ds_swizzle')):
                s.wr = set(R(0)); s.rd = set(allr(1))
                if 'd16' in op: s.rd |= s.wr
            else: s.rd = set(allr(0))
            if 'addtid' in op: s.rd |= {('s', 'm0')}; s.target = 'dma'
        elif op.startswith(('buffer_', 'global_')):
            s.kind = 'vm'
            toks = mods.split()
            if 'lds' in toks or '_lds_' in op: s.rd = set(allr(0)) | {('s', 'm0')}; s.kind = 'vm'; s.dpp = False; s.target = 'dma'
            elif '_load' in op:
                s.wr = set(R(0)); s.rd = set(allr(1))
                if 'd16' in op: s.rd |= s.wr
            elif '_store' in op:
                s.rd = set(allr(0)); di = 1 if op.startswith('global_') else 0
                s.data = set(R(di)); s.wide = op.endswith(('x3', 'x4'))
            elif '_atomic' in op:
                s.rd = set(allr(0))
                if 'sc0' in toks: s.wr = set(R(0))
            else: raise Exception(text)
        elif op.startswith(('s_load', 's_buffer_load', 's_memtime', 's_memrealtime')):
            s.kind = 'smem'; s.wr = set(R(0)); s.rd = set(allr(1))
        elif op == 's_waitcnt': s.kind = 'wait'
        elif op == 's_nop': s.kind = 'nop'
        elif op in ('s_branch',) or op.startswith('s_cbranch'):
            s.kind = 'branch'; s.target = ops[0]
            if 'vcc' in op: s.rd = set(regs('vcc'))
            if 'exec' in op: s.rd = set(regs('exec'))
        elif op in ('s_barrier', 's_endpgm', 's_setprio', 's_sleep'): s.kind = 'misc'
        elif op.startswith('s_'):
            s.kind = 'salu'
            if op.startswith(('s_cmp', 's_bitcmp')): s.rd = set(allr(0))
            else:
                s.wr = set(R(0)); s.rd = set(allr(1))
                if 'saveexec' in op: s.wr |= set(regs('exec')); s.rd |= set(regs('exec'))
                if op.startswith(('s_addk', 's_mulk', 's_cmov', 's_bitset')): s.rd |= s.wr
        elif op == 'WAITVM' or op == 'WAITLG': s.kind = 'pseudo'; s.target = rest.strip()
        else: raise Exception('unknown ' + text)

class Prog:
    UID = 0
    def __init__(s):
        s.ins = []; s.uid = 0
    def __call__(s, text, tag=None):
        last = None
        for x in text.split('\n'):
            x = x.strip()
            if not x or x.startswith(';'): continue
            last = Ins(x); s.ins.append(last)
        if tag is not None: last.tag = tag
        return last
    def label(s, base):
        Prog.UID += 1; return f'L_{base}_{Prog.UID}'
    def waitvm(s, tag): s.ins.append(Ins(f'WAITVM {tag}'))
    def waitlg(s, tag): s.ins.append(Ins(f'WAITLG {tag}'))
    def extend(s, lst):
        for x in lst:
            if isinstance(x, Ins): s.ins.append(x)
            elif isinstance(x, tuple): s(x[0], x[1])
            else: s(x)

    def _waits(s):
        out = []; vm = []; lg = []; saved = {}; stats = dict(vm=0, lg=0)
        prev_uncond = False
        def emit_wait(nvm, nlg):
            nonlocal vm, lg
            parts = []
            if nvm is not None and nvm < len(vm):
                n = min(nvm, 63); parts.append(f'vmcnt({n})'); vm = vm[len(vm) - n:] if n else []
            if nlg is not None and nlg < len(lg):
                n = min(nlg, 15)
                keep = lg[len(lg) - n:] if n else []
                if any(k[0] == 'smem' for k in lg): n = 0; keep = []
                parts.append(f'lgkmcnt({n})'); lg = keep
            if parts: out.append(Ins('s_waitcnt ' + ' '.join(parts)))
        for I in s.ins:
            if I.kind == 'label':
                if I.op in saved:
                    svm, slg = saved[I.op]
                    if prev_uncond: vm, lg = list(svm), list(slg)
                    else:
                        assert (not svm and not slg) or (svm == vm and slg == lg), f'merge at {I.op} with outstanding ops on jumping path'
                out.append(I); prev_uncond = False; continue
            if I.kind == 'pseudo':
                q = vm if I.op == 'WAITVM' else lg
                idx = [i for i, e in enumerate(q) if e[2] == I.target]
                if idx:
                    n = len(q) - 1 - idx[-1]
                    if I.op == 'WAITVM': emit_wait(n, None)
                    else: emit_wait(None, n)
                continue
            if I.kind == 'wait':
                m = re.search(r'vmcnt\((\d+)\)', I.text)
                if m:
                    n = int(m.group(1)); vm = vm[max(0, len(vm) - n):] if n else []
                m = re.search(r'lgkmcnt\((\d+)\)', I.text)
                if m:
                    n = int(m.group(1))
                    if n == 0: lg = []
                    elif not any(k[0] == 'smem' for k in lg): lg = lg[max(0, len(lg) - n):]
                out.append(I); prev_uncond = False; continue
            touch = I.rd | I.wr
            nvm = nlg = None
            for i, e in enumerate(vm):
                if e[1] & touch: nvm = len(vm) - 1 - i
            for i, e in enumerate(lg):
                if e[1] & touch:
                    if I.kind == 'ds' and e[0] == 'ds' and not (e[1] & (I.rd - I.wr)) and not ('d16' not in I.op and e[1] & I.rd): continue
                    nlg = len(lg) - 1 - i
            if nvm is not None or nlg is not None: emit_wait(nvm, nlg)
            if I.kind == 'vm':
                vm.append(('vm', set(I.wr), I.tag))
                if len(vm) > 63 + 64: pass
            elif I.kind == 'ds': lg.append(('ds', set(I.wr), I.tag))
            elif I.kind == 'smem': lg.append(('smem', set(I.wr), I.tag))
            if I.kind == 'branch':
                if I.target not in saved: saved[I.target] = (list(vm), list(lg))
            prev_uncond = I.op in ('s_branch', 's_endpgm')
            out.append(I)
        return out

    def _hazards(s, ins):
        out = []; hist = []
        pos = 0; nops = 0
        for I in ins:
            if I.kind == 'label':
                out.append(I); continue
            need = 0
            for P, pp in reversed(hist):
                d = pos - pp - 1
                if d >= 20: break
                w = req(P, I)
                if w > d: need = max(need, w - d)
            while need > 0:
                n = min(need, 16); N = Ins(f's_nop {n-1}'); out.append(N); pos += n; need -= n; nops += n
            out.append(I); hist.append((I, pos))
            if len(hist) > 40: hist = hist[-24:]
            pos += (int(I.text.split()[1]) + 1) if I.kind == 'nop' else 1
        s.nops = nops
        return out
    def text(s):
        ins = s._hazards(s._waits())
        s.final = ins
        return '\n'.join((i.text if i.kind == 'label' else '    ' + i.text) for i in ins) + '\n'

def isvec(r): return r[0] in 'va'
EXEC = {('s', 'exec_lo'), ('s', 'exec_hi')}
def req(P, I):
    w = 0
    if P.kind == 'mfma':
        if I.kind == 'mfma':
            if P.wr & I.ab: w = P.passes + 4
            c = set(I.srcc)
            if P.wr & c and not (c == P.wr and P.passes == I.passes): w = max(w, P.passes + 2)
            if P.wr & I.wr and not (I.wr == P.wr and P.passes == I.passes): w = max(w, P.passes + 4)
        elif I.kind in ('valu', 'vm', 'ds'):
            if P.wr & (I.rd | I.wr): w = P.passes + 4
            if I.kind == 'valu' and set(P.srcc) & I.wr: w = max(w, P.passes - 1)
    elif P.kind == 'valu':
        vw = {r for r in P.wr if isvec(r)}; sw = P.wr - vw
        if I.kind == 'mfma':
            if vw & I.rd: w = 3 if P.op.startswith('v_dot') else 2
            if sw & EXEC: w = max(w, 4)
        elif I.kind == 'valu':
            if vw & I.rd:
                if I.dpp or I.op.startswith('v_permlane'): w = 2
                elif I.op.startswith(('v_readlane', 'v_readfirstlane')): w = 1
                if P.op.startswith(TRANS): w = max(w, 1)
                if P.sdwa_out: w = max(w, 1)
            if P.op.startswith('v_dot') and vw & (I.rd | I.wr):
                if not (I.op == P.op and vw == I.wr): w = max(w, 3)
            if P.sdwa_out and vw & I.wr: w = max(w, 1)
            if sw & I.sconst: w = max(w, 4 if I.op.startswith(('v_readlane', 'v_writelane')) else 2)
            if sw & EXEC:
                if I.dpp: w = max(w, 5)
                if I.op.startswith(('v_readlane', 'v_readfirstlane', 'v_writelane', 'v_permlane')): w = max(w, 4)
        elif I.kind == 'vm':
            if sw & I.rd: w = 5
            if P.op.startswith('v_dot') and vw & I.rd: w = max(w, 3)
        elif I.kind == 'ds':
            if P.op.startswith('v_dot') and vw & I.rd: w = max(w, 3)
        elif I.kind == 'branch':
            if sw & I.rd: w = 5
    elif P.kind == 'salu':
        if ('s', 'm0') in P.wr and I.kind in ('vm', 'ds') and I.target == 'dma': w = 1
    elif P.kind == 'vm':
        if P.wide and P.data & I.wr: w = 2
    return w

def kernel_file(header, kernels):
    o = [header.rstrip('\n'), '.amdgcn_target "amdgcn-amd-amdhsa--gfx950"', '.text']
    for k in kernels:
        o += [f'.globl {k["name"]}', '.p2align 8', f'.type {k["name"]},@function', f'{k["name"]}:', k['body'].rstrip('\n')]
    o += ['.section .rodata,"a"']
    for k in kernels:
        o += ['.p2align 6', f'.amdhsa_kernel {k["name"]}',
              f'  .amdhsa_next_free_vgpr {k.get("nfv", 512)}', f'  .amdhsa_next_free_sgpr 102',
              f'  .amdhsa_accum_offset {k.get("acc", 256)}', '  .amdhsa_group_segment_fixed_size 0',
              '  .amdhsa_kernarg_size 120', '  .amdhsa_user_sgpr_count 2',
              '  .amdhsa_user_sgpr_kernarg_segment_ptr 1', '  .amdhsa_system_sgpr_workgroup_id_x 1',
              '.end_amdhsa_kernel']
    return '\n'.join(o) + '\n'

def weave(p, main, *fills, start=0, end=None):
    n = len(main); end = n if end is None else end
    for m, x in enumerate(main):
        p.extend([x])
        if start <= m < end:
            for f in fills:
                k = end - start
                p.extend(f[len(f) * (m - start) // k: len(f) * (m - start + 1) // k])
```

```python
import sys
from core import *
KN = 'gated_mix__ssm_conv_s4d__glu_gated_reglu__prompt'
WS_WDT, WS_UT, WS_G, WS_H, WS_AT = 0x100000, 0x300000, 0x500000, 0x600000, 0xD00000
S_X, S_WG, S_WU, S_WS, S_OUT, S_P, S_DBG = 36, 40, 44, 48, 52, 56, 60
sXCD, sJ, sW, sMI, sFI, sST, sDT, sROT, sKX, sKW, sXM, sWM, sSI, sPI = range(64, 78)
sT0, sT1, sT2, sT3, sT4, sT5 = range(80, 86)
sSP = 86
def srd(i): return f's[{i}:{i+3}]'
def vr(a, n=1): return f'v{a}' if n == 1 else f'v[{a}:{a+n-1}]'
def ar(a, n=1): return f'a{a}' if n == 1 else f'a[{a}:{a+n-1}]'
vL = 255

def mk_srd(p, d, ptr, size):
    p(f's_mov_b32 s{d}, s{ptr}\ns_mov_b32 s{d+1}, s{ptr+1}\ns_mov_b32 s{d+2}, {hex(size)}\ns_mov_b32 s{d+3}, 0x00020000')

def prologue(p):
    L = p.label('go')
    p(f'''s_cmp_lt_u32 s2, 256
    s_cbranch_scc1 {L}
    s_endpgm
    {L}:
    s_load_dwordx16 s[4:19], s[0:1], 0
    s_load_dwordx8 s[20:27], s[0:1], 64
    s_load_dwordx4 s[28:31], s[0:1], 96
    s_load_dwordx2 s[32:33], s[0:1], 112
    v_lshrrev_b32 v1, 6, v0
    v_and_b32 v{vL}, 63, v0
    v_readfirstlane_b32 s{sW}, v1
    s_and_b32 s{sXCD}, s2, 7
    s_lshr_b32 s{sJ}, s2, 3
    s_and_b32 s{sT0}, s{sJ}, 3
    s_lshr_b32 s{sDT}, s{sJ}, 2
    s_lshr_b32 s{sT1}, s{sXCD}, 2
    s_lshl_b32 s{sT1}, s{sT1}, 2
    s_add_u32 s{sMI}, s{sT1}, s{sT0}
    s_and_b32 s{sT1}, s{sXCD}, 3
    s_mul_i32 s{sT1}, s{sT1}, 7
    s_add_u32 s{sFI}, s{sT1}, s{sDT}
    s_lshl_b32 s{sT1}, s{sXCD}, 2
    s_add_u32 s{sST}, s{sT1}, s{sT0}
    s_lshl_b32 s{sT2}, s{sT0}, 1
    s_add_u32 s{sROT}, s{sT2}, s{sDT}
    s_and_b32 s{sROT}, s{sROT}, 7
    s_mov_b32 s{sSI}, s{sST}
    s_lshl_b32 s{sPI}, s{sXCD}, 5
    s_add_u32 s{sPI}, s{sPI}, s{sJ}''')
    mk_srd(p, S_X, 4, 2048 * 1024); mk_srd(p, S_WG, 20, 512 * 3584); mk_srd(p, S_WU, 22, 512 * 3584)
    mk_srd(p, S_WS, 32, 0x10000000); mk_srd(p, S_OUT, 28, 2048 * 1024); mk_srd(p, S_DBG, 30, 256)

G1_B, G1_A, G1_XR, G1_WR, G1_DX, G1_DW = 128, 144, 176, 180, 182, 190
def acc1(st, mat, ft): return 16 * (4 * st + 2 * mat + ft)
def g1_setup(p):
    t0, t1, t2, t3 = 192, 193, 194, 195
    p(f'''v_lshrrev_b32 v{t0}, 3, v{vL}
    v_and_b32 v{t1}, 7, v{vL}
    v_lshrrev_b32 v{t2}, 1, v{t0}
    v_xor_b32 v{t3}, v{t1}, v{t2}
    v_lshlrev_b32 v{t3}, 4, v{t3}
    v_lshl_add_u32 v{t3}, v{t0}, 10, v{t3}
    s_lshl_b32 s{sT0}, s{sMI}, 2
    s_add_u32 s{sT0}, s{sT0}, s{sW}
    s_lshl_b32 s{sT0}, s{sT0}, 16
    v_add_u32 v{G1_DX}, s{sT0}, v{t3}
    v_xor_b32 v{G1_DX+1}, 64, v{G1_DX}''')
    for i in range(7, 0, -1):
        p(f'v_add_u32 v{G1_DX+i}, {8192*i - 1024*(i&3)}, v{G1_DX+(i&1)}')
    p(f'''v_and_b32 v{t2}, 1, v{t2}
    v_lshlrev_b32 v{t2}, 2, v{t2}
    v_xor_b32 v{t2}, v{t1}, v{t2}
    v_lshlrev_b32 v{t2}, 4, v{t2}
    v_mul_u32_u24 v{t0}, 3584, v{t0}
    s_mul_i32 s{sT0}, s{sW}, {16*3584}
    s_lshl_b32 s{sT1}, s{sFI}, 7
    s_add_u32 s{sT0}, s{sT0}, s{sT1}
    v_add3_u32 v{G1_DW}, v{t0}, v{t2}, s{sT0}
    v_add_u32 v{G1_DW+1}, {8*3584-1024}, v{G1_DW}
    s_mul_i32 s{sXM}, s{sW}, 24576
    s_lshl_b32 s{sWM}, s{sW}, 11
    s_add_u32 s{sWM}, s{sWM}, 98304''')
def g1_dma(t):
    sl = t % 3; o = []
    o.append(f's_add_u32 s{sT0}, s{sROT}, {t}\ns_and_b32 s{sT0}, s{sT0}, 7\ns_lshl_b32 s{sKX}, s{sT0}, 7\ns_mul_i32 s{sKW}, s{sT0}, {64*3584}')
    for mat, S in ((0, S_WG), (1, S_WU)):
        o.append(f's_add_u32 m0, s{sWM}, {sl*16384 + mat*8192}')
        for i in range(2): o.append(f'buffer_load_dwordx4 v{G1_DW+i}, {srd(S)}, s{sKW} offen offset:{1024*i} lds')
    for i in range(8):
        if i % 4 == 0: o.append(f's_add_u32 m0, s{sXM}, {sl*8192 + 1024*i}')
        o.append(f'buffer_load_dwordx4 v{G1_DX+i}, {srd(S_X)}, s{sKX} offen offset:{1024*(i&3)} lds')
    o[-1] = (o[-1], f'dma{t}')
    return o
def g1_setup2(p):
    t0, t1, t2, t3 = 192, 193, 194, 195
    p(f'''v_and_b32 v{t0}, 31, v{vL}
    v_lshrrev_b32 v{t1}, 5, v{vL}
    v_bfe_u32 v{t2}, v{vL}, 1, 3
    v_xor_b32 v{t2}, v{t2}, v{t1}
    v_lshlrev_b32 v{t2}, 4, v{t2}
    v_lshl_add_u32 v{t2}, v{t0}, 7, v{t2}
    v_add_u32 v{G1_XR}, s{sXM}, v{t2}''')
    for s in range(1, 4): p(f'v_xor_b32 v{G1_XR+s}, {32*s}, v{G1_XR}')
    p(f'''v_bfe_u32 v{t0}, v{vL}, 2, 2
    v_lshl_add_u32 v{t0}, v{t1}, 3, v{t0}
    v_bfe_u32 v{t1}, v{vL}, 4, 1
    v_bfe_u32 v{t2}, v{vL}, 1, 1
    v_lshl_add_u32 v{t1}, v{t1}, 1, v{t2}
    v_bfe_u32 v{t2}, v{vL}, 3, 1
    v_lshl_add_u32 v{t1}, v{t2}, 2, v{t1}
    v_and_b32 v{t2}, 1, v{vL}
    v_lshlrev_b32 v{t2}, 3, v{t2}
    v_lshl_add_u32 v{t2}, v{t1}, 4, v{t2}
    v_lshl_add_u32 v{t2}, v{t0}, 7, v{t2}
    v_add_u32 v{G1_WR}, 98304, v{t2}
    v_xor_b32 v{G1_WR+1}, 64, v{G1_WR}''')
def g1_reads(t, s):
    b = (4 * t + s) & 1; sl = t % 3; o = []
    B = lambda st: f'ds_read_b128 {vr(G1_B + 8*b + 4*st, 4)}, v{G1_XR+s} offset:{sl*8192 + st*4096}'
    o.append(B(0))
    for mat in range(2):
        for ft in range(2):
            r = G1_A + 16 * b + 4 * (2 * mat + ft)
            for h in range(2):
                o.append(f'ds_read_b64_tr_b16 {vr(r+2*h, 2)}, v{G1_WR+ft} offset:{sl*16384 + mat*8192 + s*2048 + h*512}')
    o.append(B(1))
    return o
def g1_mfmas(t, s):
    b = (4 * t + s) & 1; o = []
    for st in range(2):
        for mat in range(2):
            for ft in range(2):
                c = acc1(st, mat, ft)
                src = '0' if (t == 0 and s == 0) else vr(c, 16)
                o.append(f'v_mfma_f32_32x32x16_bf16 {vr(c,16)}, {vr(G1_A + 16*b + 4*(2*mat+ft), 4)}, {vr(G1_B + 8*b + 4*st, 4)}, {src}')
    return o
def g1_main(p, extra=None):
    extra = extra or {}
    p.waitvm('dma0'); p('s_barrier')
    p.extend(g1_reads(0, 0))
    pend = []
    for t in range(8):
        for s in range(4):
            mf = g1_mfmas(t, s)
            slots = [[] for _ in range(8)]
            if s < 3:
                rd = g1_reads(t, s + 1)
                for i, x in enumerate(rd): slots[i // 2].append(x)
            elif t < 7:
                slots[1] += [Ins('s_waitcnt lgkmcnt(0)'), Ins(f'WAITVM dma{t+1}'), 's_barrier']
                rd = g1_reads(t + 1, 0)
                for i, x in enumerate(rd): slots[1 + i // 2].append(x)
                if t + 3 < 8: pend = g1_dma(t + 3)
            lo = 6 if s == 3 else 5 if s < 2 else 0
            if s == 3: n = min(len(pend), 4)
            elif s < 2: n = min(len(pend), 7)
            else: n = len(pend)
            for i in range(n): slots[lo + i * (8 - lo) // max(n, 1)].append(pend.pop(0))
            ex = extra.get((t, s), [])
            for i, x in enumerate(ex): slots[i * 8 // len(ex)].append(x)
            for m in range(8):
                p(mf[m]); p.extend(slots[m])
    assert not pend
def g1_epilogue(p):
    H, va = 128, 192
    p(f'''s_lshl_b32 s{sT0}, s{sMI}, 2
    s_add_u32 s{sT0}, s{sT0}, s{sW}
    s_lshl_b32 s{sT0}, s{sT0}, 10
    s_lshl_b32 s{sT1}, s{sFI}, 18
    s_add_u32 s{sT0}, s{sT0}, s{sT1}
    s_add_u32 s{sT0}, s{sT0}, {WS_H}
    v_lshlrev_b32 v{va}, 4, v{vL}''')
    for ft in range(2):
        for q in range(4):
            R = H + 4 * (4 * ft + q)
            for st in range(2):
                g = acc1(st, 0, ft) + 4 * q; u = acc1(st, 1, ft) + 4 * q
                for e in range(4): p(f'v_max_f32 v{g+e}, 0, v{g+e}')
                for e in (0, 2): p(f'v_pk_mul_f32 {vr(g+e,2)}, {vr(g+e,2)}, {vr(u+e,2)}')
                for e in (0, 2): p(f'v_cvt_pk_bf16_f32 v{R + 2*st + e//2}, v{g+e}, v{g+e+1}')
            p(f'v_permlane32_swap_b32 v{R}, v{R+2}\nv_permlane32_swap_b32 v{R+1}, v{R+3}')
            p(f'buffer_store_dwordx4 {vr(R,4)}, v{va}, {srd(S_WS)}, s{sT0} offen sc1', 'hst')
            if (ft, q) != (1, 3): p(f's_add_u32 s{sT0}, s{sT0}, 32768')

def k_gemm1():
    p = Prog(); prologue(p)
    L = p.label('main')
    p(f's_cmp_lt_u32 s{sJ}, 28\ns_cbranch_scc1 {L}\ns_endpgm\n{L}:')
    g1_setup(p)
    for t in range(3): p.extend(g1_dma(t))
    g1_setup2(p)
    g1_main(p); g1_epilogue(p)
    p('s_endpgm')
    return p

SP_X = 0
SP_W = 73728
def spare_issue(p):
    t0, t1, t2, t3, vw, vx = 1, 2, 3, 4, 8, 10
    mk_srd(p, S_P, 24, 1792 * 1024)
    p(f'''s_lshr_b32 s{sT0}, s{sSI}, 3
    s_lshl_b32 s{sT0}, s{sT0}, 2
    s_add_u32 s{sT0}, s{sT0}, s{sW}
    s_mul_i32 s{sT0}, s{sT0}, {112*1024}
    s_and_b32 s{sT1}, s{sSI}, 7
    s_lshl_b32 s{sT1}, s{sT1}, 7
    s_add_u32 s{sT0}, s{sT0}, s{sT1}
    v_lshrrev_b32 v{t0}, 3, v{vL}
    v_and_b32 v{t1}, 7, v{vL}
    v_bfe_u32 v{t2}, v{vL}, 4, 1
    v_lshlrev_b32 v{t2}, 2, v{t2}
    v_xor_b32 v{t2}, v{t1}, v{t2}
    v_lshlrev_b32 v{t2}, 4, v{t2}
    v_lshl_add_u32 v{vw}, v{t0}, 10, v{t2}
    s_mul_i32 s{sWM}, s{sW}, 14336
    s_add_u32 s{sWM}, s{sWM}, {SP_W}''')
    for i in range(14):
        p(f's_add_u32 m0, s{sWM}, {1024*i}')
        p(f'buffer_load_dwordx4 v{vw}, {srd(S_P)}, s{sT0} offen lds', 'wdma')
        if i < 13: p(f's_add_u32 s{sT0}, s{sT0}, 8192')
    p(f'''s_lshl_b32 s{sT1}, s{sW}, 2
    s_and_b32 s{sT1}, s{sT1}, 7
    v_xor_b32 v{t0}, s{sT1}, v{vL}
    v_lshlrev_b32 v{vx}, 4, v{t0}
    v_xor_b32 v{vx+1}, 16, v{vx}
    v_xor_b32 v{vx+2}, 32, v{vx}
    v_xor_b32 v{vx+3}, 48, v{vx}
    s_lshl_b32 s{sT0}, s{sSI}, 2
    s_add_u32 s{sT0}, s{sT0}, s{sW}
    s_lshl_b32 s{sT0}, s{sT0}, 14
    s_mul_i32 s{sXM}, s{sW}, {16*1152}''')
    for i in range(16):
        p(f's_add_u32 m0, s{sXM}, {SP_X + 1152*i}')
        p(f'buffer_load_dwordx4 v{vx + 2*(i>>3) + ((i>>1)&1)}, {srd(S_X)}, s{sT0} offen lds', 'xdma')
        if i < 15: p(f's_add_u32 s{sT0}, s{sT0}, 1024')
    mk_srd(p, S_WG, 26, 1024)
    p(f'v_and_b32 v{t0}, 3, v{vL}\nv_lshlrev_b32 v{t0}, 4, v{t0}')
    for i in range(16): p(f'buffer_load_dwordx4 {vr(128+4*i,4)}, v{t0}, {srd(S_WG)}, 0 offen offset:{64*i}')
def spare_wd(p):
    t0, t1, t2, ra, va = 1, 2, 3, 8, 14
    p(f'''v_lshrrev_b32 v{t1}, 5, v{vL}
    v_bfe_u32 v{t0}, v{vL}, 2, 2
    v_lshl_add_u32 v{t0}, v{t1}, 3, v{t0}
    v_bfe_u32 v{t1}, v{vL}, 4, 1
    v_bfe_u32 v{t2}, v{vL}, 1, 1
    v_lshl_add_u32 v{t1}, v{t1}, 1, v{t2}
    v_bfe_u32 v{t2}, v{vL}, 3, 1
    v_lshl_add_u32 v{t1}, v{t2}, 2, v{t1}
    v_and_b32 v{t2}, 1, v{vL}
    v_lshlrev_b32 v{t2}, 3, v{t2}
    v_lshl_add_u32 v{t2}, v{t1}, 4, v{t2}
    v_lshl_add_u32 v{t2}, v{t0}, 7, v{t2}
    v_add_u32 v{ra}, s{sWM}, v{t2}
    v_xor_b32 v{ra+1}, 64, v{ra}
    v_lshlrev_b32 v{va}, 4, v{vL}
    s_and_b32 s{sT0}, s{sSI}, 7
    s_lshl_b32 s{sT0}, s{sT0}, 2
    s_lshr_b32 s{sT1}, s{sSI}, 3
    s_add_u32 s{sT0}, s{sT0}, s{sT1}
    s_lshl_b32 s{sT0}, s{sT0}, 2
    s_add_u32 s{sT0}, s{sT0}, s{sW}
    s_mul_i32 s{sT0}, s{sT0}, 14336
    s_add_u32 s{sT0}, s{sT0}, {WS_WDT}''')
    p.waitvm('wdma')
    for s in range(7):
        for d in range(2):
            r = 16 + 4 * (2 * s + d)
            for h in range(2): p(f'ds_read_b64_tr_b16 {vr(r+2*h,2)}, v{ra+d} offset:{s*2048 + h*512}')
    for i in range(14):
        p(f'buffer_store_dwordx4 {vr(16+4*i,4)}, v{va}, {srd(S_WS)}, s{sT0} offen offset:{1024*(i&3)} sc1', 'wst')
        if i & 3 == 3: p(f's_add_u32 s{sT0}, s{sT0}, 4096')
def spare_ut(p):
    t0, t1, t2, t3, ra, va = 1, 2, 3, 4, 72, 14
    p(f'''v_and_b32 v{t0}, 3, v{vL}
    v_lshrrev_b32 v{t1}, 5, v{vL}
    v_lshl_add_u32 v{t1}, v{t1}, 2, v{t0}
    v_bfe_u32 v{t2}, v{vL}, 2, 2
    v_lshl_add_u32 v{t1}, v{t1}, 3, v{t2}
    v_mul_u32_u24 v{t1}, 1152, v{t1}
    v_bfe_u32 v{t2}, v{vL}, 3, 1
    v_lshl_add_u32 v{t0}, v{t0}, 1, v{t2}
    v_lshl_add_u32 v{t1}, v{t0}, 4, v{t1}
    v_bfe_u32 v{t2}, v{vL}, 4, 1
    v_lshl_add_u32 v{t1}, v{t2}, 3, v{t1}
    s_lshl_b32 s{sT0}, s{sW}, 8
    v_add_u32 v{ra}, s{sT0}, v{t1}''')
    for k in range(1, 8): p(f'v_xor_b32 v{ra+k}, {16*k}, v{ra}')
    p(f'''v_and_b32 v{t0}, 15, v{vL}
    v_lshlrev_b32 v{t0}, 4, v{t0}
    v_lshrrev_b32 v{t1}, 5, v{vL}
    v_lshl_add_u32 v{t0}, v{t1}, 8, v{t0}
    v_lshl_add_u32 v{va}, v{t2}, 14, v{t0}
    s_lshl_b32 s{sT0}, s{sW}, 19
    s_lshl_b32 s{sT1}, s{sSI}, 9
    s_add_u32 s{sT0}, s{sT0}, s{sT1}
    s_add_u32 s{sT0}, s{sT0}, {WS_UT}''')
    p.waitvm('xdma'); p('s_barrier')
    for k in range(16):
        r = 192 + 4 * (k % 8) if k < 8 else 80 + 4 * (k % 8)
        for h in range(2): p(f'ds_read_b64_tr_b16 {vr(r+2*h,2)}, v{ra+(k&7)} offset:{SP_X + (k>>3)*128 + h*4608}')
    for k in range(16):
        r = 192 + 4 * (k % 8) if k < 8 else 80 + 4 * (k % 8)
        p(f'buffer_store_dwordx4 {vr(r,4)}, v{va}, {srd(S_WS)}, s{sT0} offen sc1', 'ust')
        if k < 15: p(f's_add_u32 s{sT0}, s{sT0}, 32768')
def spare_g(p):
    t0, t1, t2, ra, ac = 1, 2, 3, 8, 10
    p(f'''s_lshl_b32 s{sT0}, s{sW}, 4
    v_lshrrev_b32 v{t0}, 2, v{vL}
    v_add_u32 v{t0}, s{sT0}, v{t0}
    v_bfe_u32 v{t1}, v{t0}, 3, 2
    v_bfe_u32 v{t2}, v{t0}, 1, 1
    v_lshl_add_u32 v{t1}, v{t1}, 1, v{t2}
    v_and_b32 v{t2}, 3, v{vL}
    v_xor_b32 v{t1}, v{t1}, v{t2}
    v_mul_u32_u24 v{ra}, 1152, v{t0}
    v_lshl_add_u32 v{ra}, v{t1}, 4, v{ra}
    v_xor_b32 v{ra+1}, 64, v{ra}''')
    for i in range(16): p(f'ds_read_b128 {vr(16+4*i,4)}, v{ra+(i&1)} offset:{SP_X + (i>>1)*128}')
    for e in range(4): p(f'v_mov_b32 v{ac+e}, 0')
    for i in range(16):
        for e in range(4): p(f'v_dot2c_f32_bf16 v{ac+e}, v{16+4*i+e}, v{128+4*i+e}')
    p(f'''v_add_f32 v{ac}, v{ac}, v{ac+1}
    v_add_f32 v{ac+2}, v{ac+2}, v{ac+3}
    v_add_f32 v{ac}, v{ac}, v{ac+2}
    v_add_f32_dpp v{ac+1}, v{ac}, v{ac} quad_perm:[1,0,3,2] row_mask:0xf bank_mask:0xf
    v_add_f32_dpp v{ac}, v{ac+1}, v{ac+1} quad_perm:[2,3,0,1] row_mask:0xf bank_mask:0xf
    v_cvt_pk_bf16_f32 v{ac}, v{ac}, v{ac}
    v_and_b32 v{ac}, 0xffff0000, v{ac}
    v_mul_f32 v{ac}, 0xbfb8aa3b, v{ac}
    v_exp_f32 v{ac}, v{ac}
    v_add_f32 v{ac}, 1.0, v{ac}
    v_rcp_f32 v{ac}, v{ac}
    v_cvt_pk_bf16_f32 v{ac}, v{ac}, v{ac}
    v_and_b32 v{ac}, 0xffff0000, v{ac}
    s_lshl_b32 s{sT0}, s{sSI}, 8
    s_add_u32 s{sT0}, s{sT0}, {WS_G}
    v_lshlrev_b32 v{t0}, 2, v{t0}''')
    p(f'buffer_store_dword v{ac}, v{t0}, {srd(S_WS)}, s{sT0} offen sc1', 'gst')

def k_spare():
    p = Prog(); prologue(p)
    L = p.label('main')
    p(f's_cmp_ge_u32 s{sJ}, 28\ns_cbranch_scc1 {L}\ns_endpgm\n{L}:')
    spare_issue(p); spare_wd(p); spare_ut(p); spare_g(p)
    p('s_endpgm')
    return p

KT, KTS = 0, 34816
TL, TLS = 69632, 2064
IMG, IMS = 73760, 8320
UIM, UIS = 90400, 4672
RED = 0
AS = 99840
P2 = 108032
vPAR = 196
vGA = 202
vTA = 219
vZA = 222
vDM = 223
def par_loads(p):
    t0, t1 = 192, 193
    p(f'''s_lshl_b32 s{sT0}, s{sPI}, 2
    s_add_u32 s{sT0}, s{sT0}, s{sW}
    s_lshl_b32 s{sT1}, s{sT0}, 7
    v_lshl_add_u32 v{t0}, v{vL}, 1, s{sT1}
    s_lshr_b32 s{sT0}, s{sT0}, 1
    s_lshl_b32 s{sT0}, s{sT0}, 1
    v_mov_b32 v{t1}, s{sT0}''')
    for i in range(4): p(f'global_load_short_d16_hi v{vPAR+i}, v{t0}, s[{6+2*i}:{7+2*i}]')
    for i in range(2): p(f'global_load_short_d16_hi v{vPAR+4+i}, v{t1}, s[{14+2*i}:{15+2*i}]')
def par_zero(p):
    for i in range(6): p(f'v_mov_b32 v{vPAR+i}, 0')
def rne_off(s, e):
    q, r = divmod(e, 1 << s); h = (1 << s) // 2
    if s and (r > h or (r == h and q & 1)): q += 1
    return q
def tail_setup(p):
    t0, t1, t2, t3, t4 = 192, 193, 194, 195, 234
    p(f'''s_lshr_b32 s{sT0}, s{sW}, 1
    s_and_b32 s{sT1}, s{sW}, 1
    s_mul_i32 s{sT2}, s{sT0}, {TLS}
    s_add_u32 s{sT2}, s{sT2}, {TL}
    s_lshl_b32 s{sT3}, s{sT1}, 6
    s_sub_u32 s{sT3}, 127, s{sT3}
    v_sub_u32 v{t0}, s{sT3}, v{vL}
    v_lshlrev_b32 v{t1}, 4, v{t0}''')
    def idx(dst, src):
        p(f'''v_cvt_f32_u32 v{t3}, v{src}
        v_cvt_pk_bf16_f32 v{t3}, v{t3}, v{t3}
        v_and_b32 v{t3}, 0xffff, v{t3}
        v_subrev_u32 v{t3}, 17024, v{t3}
        v_min_i32 v{t4}, 128, v{src}
        v_max_i32 v{t3}, v{t3}, v{t4}
        v_lshl_add_u32 v{dst}, v{t3}, 1, s{sT2}''')
    idx(vGA + 1, t1)
    p(f'v_subrev_u32 v{t2}, 1, v{t1}\nv_max_i32 v{t2}, 0, v{t2}')
    idx(vGA, t2)
    p(f'''s_add_u32 s{sT3}, s{sT2}, 2048
    v_mov_b32 v{t2}, s{sT3}
    v_cmp_eq_u32 vcc, 0, v{t0}
    v_cndmask_b32 v{vGA}, v{vGA}, v{t2}, vcc
    v_ffbh_u32 v{t2}, v{t0}
    v_min_u32 v{t2}, 28, v{t2}
    v_sub_u32 v{t2}, 28, v{t2}
    v_lshlrev_b32 v{t2}, 3, v{t2}''')
    for e in range(1, 16):
        k = sum((2 * rne_off(s, e)) << (8 * s) for s in range(4))
        p(f's_mov_b32 s{sT3}, {hex(k)}\nv_bfe_u32 v{t3}, s{sT3}, v{t2}, 8\nv_add_u32 v{vGA+1+e}, v{vGA+1}, v{t3}')
    p(f'''v_and_b32 v{t0}, 15, v{vL}
    s_lshl_b32 s{sT3}, s{sT1}, 4
    v_add_u32 v{t0}, s{sT3}, v{t0}
    v_lshrrev_b32 v{t1}, 4, v{vL}
    v_lshlrev_b32 v{t2}, 3, v{t1}
    v_lshl_add_u32 v{t2}, v{t0}, 4, v{t2}
    v_lshlrev_b32 v{t3}, 3, v{t0}
    v_add_u32 v{t3}, 512, v{t3}
    v_cmp_eq_u32 vcc, 2, v{t1}
    v_cndmask_b32 v{t2}, v{t2}, v{t3}, vcc
    v_lshlrev_b32 v{t3}, 2, v{t0}
    v_add_u32 v{t3}, 768, v{t3}
    v_mov_b32 v{t4}, 4
    v_mov_b32 v{vTA+1}, 128
    v_cmp_eq_u32 vcc, 3, v{t1}
    v_cndmask_b32 v{t2}, v{t2}, v{t3}, vcc
    v_cndmask_b32 v{t4}, v{t4}, v{vTA+1}, vcc
    v_add_u32 v{vTA}, s{sT2}, v{t2}
    v_add_u32 v{vTA+1}, v{vTA}, v{t4}
    v_lshlrev_b32 v{t2}, 8, v{t1}
    v_lshl_add_u32 v{t2}, v{t0}, 1, v{t2}
    v_add_u32 v{vTA+2}, s{sT2}, v{t2}
    v_or_b32 v{t2}, v{t0}, v{t1}
    v_mov_b32 v{t3}, 0
    v_cmp_eq_u32 vcc, 0, v{t2}
    v_cndmask_b32 v{vDM}, v{t3}, 1.0, vcc''')
    p(f'''v_lshrrev_b32 v{t0}, 5, v{vL}
    v_mul_u32_u24 v{t0}, {UIS}, v{t0}
    v_and_b32 v{t1}, 31, v{vL}
    v_lshl_add_u32 v{t0}, v{t1}, 4, v{t0}
    v_add_u32 v{t0}, {UIM}, v{t0}
    v_bfe_u32 v{t1}, v{vL}, 1, 2
    v_mul_u32_u24 v{t1}, 4160, v{t1}
    v_and_b32 v{t2}, 1, v{vL}
    v_lshl_add_u32 v{t1}, v{t2}, 4, v{t1}
    v_add_u32 v{t1}, {IMG + 4096}, v{t1}
    v_mul_u32_u24 v{t2}, {TLS}, v{t2}
    v_add_u32 v{t2}, {TL + 2048}, v{t2}
    v_and_b32 v{t3}, 8, v{vL}
    v_cmp_eq_u32 vcc, 0, v{t3}
    v_cndmask_b32 v{t1}, v{t2}, v{t1}, vcc
    s_cmp_eq_u32 s{sW}, 0
    s_cselect_b64 vcc, -1, 0
    v_cndmask_b32 v{vZA}, v{t1}, v{t0}, vcc''')
HI = [0,1,2,3,4,5,6,7,256,258,260,262,512,516,768,772,1024,1280,1536,1792,2048]
def merge(chains):
    out = []; ch = [list(c) for c in chains]
    while any(ch):
        for c in ch:
            if c: out.append(c.pop(0))
    return out
def cmul(D, X, Y):
    return [f'v_pk_mul_f32 {vr(D,2)}, {vr(X,2)}, {vr(Y,2)} op_sel:[0,0] op_sel_hi:[0,1]',
            f'v_pk_fma_f32 {vr(D,2)}, {vr(X,2)}, {vr(Y,2)}, {vr(D,2)} op_sel:[1,1,0] op_sel_hi:[1,0,1] neg_lo:[0,1,0]']
def kgen_valu(p):
    lar, aim, cre, cim, ldt, dsk = range(vPAR, vPAR + 6)
    def expbf(x, t):
        return [f'v_mul_f32 v{t}, 0x3fb8aa3b, v{x}', f'v_fma_f32 v{t+1}, v{x}, s{sT2}, -v{t}', f'v_fmac_f32 v{t+1}, 0x32a57060, v{x}',
                f'v_exp_f32 v{t}, v{t}', f'v_mul_f32 v{t+1}, 0x3f317218, v{t+1}', f'v_fmac_f32 v{t}, v{t}, v{t+1}',
                f'v_cvt_pk_bf16_f32 v{t}, v{t}, v{t}', f'v_and_b32 v{x}, 0xffff0000, v{t}']
    p(f'''s_mov_b32 s{sT2}, 0x3fb8aa3b
    s_lshr_b32 s{sT0}, s{sW}, 1
    s_mul_i32 s{sT0}, s{sT0}, {KTS}
    s_and_b32 s{sT1}, s{sW}, 1
    s_lshl_b32 s{sT1}, s{sT1}, 8
    s_add_u32 m0, s{sT0}, s{sT1}
    v_mov_b32 v8, 0
    v_mov_b32 v9, 0
    v_mov_b32 v10, 0
    v_mov_b32 v11, 0
    v_mov_b32 v12, 0x3f80''')
    p(f'ds_write_b128 v{vZA}, v[8:11]\nds_write_addtid_b32 v12 offset:{KT + 32*544}')
    p.extend(merge([expbf(ldt, 0), expbf(lar, 2)]))
    a2, b2 = 4, 5
    Hreg = {h: 16 + 2 * i for i, h in enumerate(HI)}
    Lreg = {k: 58 + 2 * k for k in range(1, 32)}
    Z1, Z2, Z4, Z256 = 122, 124, 126, 128
    p(f'''v_mul_f32 v{a2}, v{lar}, v{ldt}
    v_mul_f32 v{b2}, v{aim}, v{ldt}
    v_mul_f32 v6, v{cre}, v{ldt}
    v_mul_f32 v7, v{cim}, v{ldt}
    v_mul_f32 v{a2}, 0xbfb8aa3b, v{a2}
    v_mul_f32 v{b2}, 0x3e22f983, v{b2}
    v_add_f32 v{Hreg[0]}, v6, v6
    v_add_f32 v{Hreg[0]+1}, v7, v7
    v_mul_f32 v{vDM}, v{vDM}, v{dsk}''')
    def direct(D, pw, t):
        o = []
        if pw != 1: o += [f'v_mul_f32 v{t}, {float(pw)}, v{a2}', f'v_mul_f32 v{t+1}, {float(pw)}, v{b2}', f'v_exp_f32 v{t}, v{t}', f'v_fract_f32 v{t+1}, v{t+1}']
        else: o += [f'v_exp_f32 v{t}, v{a2}', f'v_fract_f32 v{t+1}, v{b2}']
        o += [f'v_cos_f32 v{D}, v{t+1}', f'v_sin_f32 v{D+1}, v{t+1}', f'v_mul_f32 v{D}, v{D}, v{t}', f'v_mul_f32 v{D+1}, v{D+1}, v{t}']
        return o
    p.extend(merge([direct(Lreg[1], 8, 0), direct(Z256, 256, 2), direct(Z1, 1, 8)]))
    cv = [130]
    def put(reg, row, neg):
        t = cv[0]
        return [f'v_cvt_pk_bf16_f32 v{t}, v{reg}, {"-" if neg else ""}v{reg+1}', f'ds_write_addtid_b32 v{t} offset:{KT + row*544}']
    ph = lambda h: put(Hreg[h], HI.index(h), True)
    pl = lambda k: put(Lreg[k], 32 + k, False)
    cv[0] = 130
    c1 = cmul(Lreg[2], Lreg[1], Lreg[1]) + pl(1) + cmul(Lreg[4], Lreg[2], Lreg[2]) + pl(2)
    cv[0] = 131
    c2 = cmul(Z2, Z1, Z1) + ph(0) + cmul(Lreg[3], Lreg[2], Lreg[1]) + cmul(Z4, Z2, Z2)
    cv[0] = 132
    c3 = cmul(Hreg[256], Hreg[0], Z256) + cmul(Hreg[1], Hreg[0], Z1) + ph(256) + ph(1)
    p.extend(merge([c1, c2, c3]))
    chains = []
    for k0 in range(1, 5):
        c = []; cv[0] = 132 + k0
        for k in range(k0, 32, 4):
            if k + 4 < 32: c += cmul(Lreg[k + 4], Lreg[k], Lreg[4])
            if k > 2: c += pl(k)
        chains.append(c)
    c = []; cv[0] = 137
    for h in range(2, 8): c += cmul(Hreg[h], Hreg[h - 1], Z1) + ph(h)
    for h in (258, 260, 262): c += cmul(Hreg[h], Hreg[h - 2], Z2) + ph(h)
    chains.append(c)
    c = []; cv[0] = 138
    for h in range(512, 2049, 256):
        c += cmul(Hreg[h], Hreg[h - 256], Z256) + ph(h)
        if h in (512, 768): c += cmul(Hreg[h + 4], Hreg[h], Z4) + ph(h + 4)
    chains.append(c)
    p.extend(merge(chains))
def kgen_mfma(p):
    ra, rb, t0, t1 = 0, 1, 2, 3
    p(f'''s_lshr_b32 s{sT0}, s{sW}, 1
    s_mul_i32 s{sT0}, s{sT0}, {KTS}
    s_and_b32 s{sT1}, s{sW}, 1
    s_mul_i32 s{sT1}, s{sT1}, {16*544}
    s_add_u32 s{sT1}, s{sT1}, {32*544}
    v_and_b32 v{t0}, 15, v{vL}
    v_mul_u32_u24 v{t0}, 544, v{t0}
    v_lshrrev_b32 v{t1}, 4, v{vL}
    v_lshl_add_u32 v{t0}, v{t1}, 4, v{t0}
    v_add_u32 v{ra}, s{sT0}, v{t0}
    v_add_u32 v{rb}, s{sT1}, v{ra}
    s_waitcnt lgkmcnt(0)
    s_barrier''')
    F = lambda ks, i: 16 + 12 * ks + 4 * i
    for ks in range(8):
        p(f'ds_read_b128 {vr(F(ks,0),4)}, v{rb} offset:{KT + 64*ks}')
        p(f'ds_read_b128 {vr(F(ks,1),4)}, v{ra} offset:{KT + 64*ks}')
        p(f'ds_read_b128 {vr(F(ks,2),4)}, v{ra} offset:{KT + 64*ks + 16*544}')
        if ks >= 3:
            k = ks - 3
            for mt in range(2): p(f'v_mfma_f32_16x16x32_bf16 {vr(4+4*mt,4)}, {vr(F(k,1+mt),4)}, {vr(F(k,0),4)}, {"0" if k == 0 else vr(4+4*mt,4)}')
    for k in range(5, 8):
        for mt in range(2): p(f'v_mfma_f32_16x16x32_bf16 {vr(4+4*mt,4)}, {vr(F(k,1+mt),4)}, {vr(F(k,0),4)}, {vr(4+4*mt,4)}')
    p(f'''v_add_f32 v4, v4, v{vDM}
    v_cvt_pk_bf16_f32 v5, v4, v5
    v_cvt_pk_bf16_f32 v6, v6, v7
    v_cvt_pk_bf16_f32 v8, v8, v9
    v_cvt_pk_bf16_f32 v10, v10, v11
    ds_write_b32 v{vTA}, v5
    ds_write_b32 v{vTA+1}, v6
    ds_write_b16 v{vTA+2}, v8 offset:1024
    ds_write_b16_d16_hi v{vTA+2}, v8 offset:1088
    ds_write_b16 v{vTA+2}, v10 offset:1152
    ds_write_b16_d16_hi v{vTA+2}, v10 offset:1216''')
def expand(p):
    A, B, wa = 16, 28, 0
    p(f'''s_lshr_b32 s{sT0}, s{sW}, 1
    s_mul_i32 s{sT0}, s{sT0}, {IMS}
    s_and_b32 s{sT1}, s{sW}, 1
    s_lshl_b32 s{sT1}, s{sT1}, 11
    s_add_u32 s{sT0}, s{sT0}, s{sT1}
    s_add_u32 s{sT0}, s{sT0}, {IMG}
    v_lshl_add_u32 v{wa}, v{vL}, 5, s{sT0}
    s_waitcnt lgkmcnt(0)
    s_barrier''')
    for k in range(8):
        p(f'ds_read_u16 v{A+k}, v{vGA + 1 + 15 - 2*k}\nds_read_u16 v{B+k}, v{vGA + 1 + 14 - 2*k}')
    p(f'ds_read_u16 v{A+8}, v{vGA}')
    for k in range(8):
        p(f'v_lshl_or_b32 v{40+k}, v{B+k}, 16, v{A+k}\nv_lshl_or_b32 v{B+k}, v{A+k+1}, 16, v{B+k}')
        if k == 3: p(f'ds_write_b128 v{wa}, {vr(40,4)}\nds_write_b128 v{wa}, {vr(B,4)} offset:4160')
    p(f'ds_write_b128 v{wa}, {vr(44,4)} offset:16\nds_write_b128 v{wa}, {vr(B+4,4)} offset:4176')
    return
    for k in range(8):
        p(f'v_alignbit_b32 v{B+k}, v{A+k+1}, v{A+k}, 16')
        if k == 3: p(f'ds_write_b128 v{wa}, {vr(A,4)}\nds_write_b128 v{wa}, {vr(B,4)} offset:4160')
    p(f'ds_write_b128 v{wa}, {vr(A+4,4)} offset:16\nds_write_b128 v{wa}, {vr(B+4,4)} offset:4176')
vU = 224
def u_loads(p):
    t0, t1 = 232, 233
    p(f'''s_lshr_b32 s{sT0}, s{sPI}, 1
    s_lshl_b32 s{sT0}, s{sT0}, 14
    s_and_b32 s{sT1}, s{sPI}, 1
    s_lshl_b32 s{sT1}, s{sT1}, 5
    s_add_u32 s{sT0}, s{sT0}, s{sT1}
    s_lshl_b32 s{sT1}, s{sW}, 11
    s_add_u32 s{sT0}, s{sT0}, s{sT1}
    s_add_u32 s{sT0}, s{sT0}, {WS_UT}
    s_add_u32 s{sT1}, s{sT0}, 8192
    v_lshrrev_b32 v{t0}, 1, v{vL}
    v_and_b32 v{t1}, 1, v{vL}
    v_lshlrev_b32 v{t1}, 4, v{t1}
    v_lshl_add_u32 v{t0}, v{t0}, 6, v{t1}
    buffer_load_dwordx4 {vr(vU,4)}, v{t0}, {srd(S_WS)}, s{sT0} offen sc1
    buffer_load_dwordx4 {vr(vU+4,4)}, v{t0}, {srd(S_WS)}, s{sT1} offen sc1''')
def u_put(p):
    t0, t1 = 232, 233
    p(f'''s_lshl_b32 s{sT0}, s{sW}, 9
    s_add_u32 s{sT0}, s{sT0}, {UIM + 512}
    v_lshrrev_b32 v{t0}, 1, v{vL}
    v_and_b32 v{t1}, 1, v{vL}
    v_mul_u32_u24 v{t1}, {UIS}, v{t1}
    v_lshl_add_u32 v{t0}, v{t0}, 4, v{t1}
    v_add_u32 v{t0}, s{sT0}, v{t0}
    ds_write_b128 v{t0}, {vr(vU,4)}
    ds_write_b128 v{t0}, {vr(vU+4,4)} offset:2048''')
def conv(p, extra=None):
    AR, BR, t0, t1, t2, t3 = 160, 164, 166, 167, 168, 169
    CA = lambda b, a: 32 + 64 * b + 4 * a
    CB = lambda b, j: 64 + 64 * b + 4 * j
    p(f'''s_lshr_b32 s{sT0}, s{sW}, 1
    s_and_b32 s{sT1}, s{sW}, 1
    s_lshl_b32 s{sT1}, s{sT1}, 8
    s_mul_i32 s{sT2}, s{sT0}, {IMS}
    s_sub_u32 s{sT2}, s{sT2}, s{sT1}
    s_add_u32 s{sT2}, s{sT2}, {IMG + 8220 - 192 - 512}
    s_mul_i32 s{sT3}, s{sT0}, {UIS}
    s_sub_u32 s{sT3}, s{sT3}, s{sT1}
    s_add_u32 s{sT3}, s{sT3}, {UIM + 480 - 192}
    v_and_b32 v{t0}, 15, v{vL}
    v_lshrrev_b32 v{t1}, 4, v{vL}
    v_lshlrev_b32 v{t1}, 4, v{t1}
    v_lshl_add_u32 v{t2}, v{t0}, 5, v{t1}
    v_add_u32 v{BR}, s{sT3}, v{t2}
    v_and_b32 v{t2}, 1, v{vL}
    v_mul_u32_u24 v{t2}, 4158, v{t2}
    v_lshl_add_u32 v{t2}, v{t0}, 1, v{t2}
    v_sub_u32 v{t2}, v{t1}, v{t2}
    v_add_u32 v{AR}, s{sT2}, v{t2}
    v_subrev_u32 v{AR+1}, 1024, v{AR}
    v_subrev_u32 v{AR+2}, 2048, v{AR}
    v_subrev_u32 v{AR+3}, 3072, v{AR}
    s_waitcnt lgkmcnt(0)
    s_barrier''')
    def reads(d):
        b = d & 1; o = []
        def A(a):
            off = 16 * (3 - d) + (128 if a % 2 == 0 else 0)
            return [f'ds_read2_b32 {vr(CA(b,a)+2*h,2)}, v{AR+a//2} offset0:{off+2*h} offset1:{off+2*h+1}' for h in range(2)]
        o += A(0)
        for j in range(8): o.append(f'ds_read_b128 {vr(CB(b,j),4)}, v{BR} offset:{512*j + 64*(3-d)}')
        for a in range(1, 8): o += A(a)
        return o
    p.extend(reads(0)[:12]); rest0 = reads(0)[12:]
    for d in range(4):
        b = d & 1; mf = []
        for a in range(8):
            for j in range(a, 8):
                mf.append(f'v_mfma_f32_16x16x32_bf16 {vr(4*j,4)}, {vr(CA(b,a),4)}, {vr(CB(b,j-a),4)}, {"0" if d == 0 and a == 0 else vr(4*j,4)}')
        fill = (rest0 if d == 0 else []) + (reads(d + 1) if d < 3 else [])
        weave(p, mf, fill, (extra or {}).get(d, []), end=34)
def conv_out(p):
    wa, ra, va, t0, t1 = 160, 161, 162, 166, 167
    p(f'''s_lshl_b32 s{sT0}, s{sW}, 13
    v_lshrrev_b32 v{t0}, 5, v{vL}
    v_lshlrev_b32 v{t0}, 3, v{t0}
    v_xor_b32 v{t0}, v{t0}, v{vL}
    v_lshl_add_u32 v{wa}, v{t0}, 4, s{sT0}
    s_lshr_b32 s{sT0}, s{sW}, 1
    s_lshl_b32 s{sT0}, s{sT0}, 14
    s_and_b32 s{sT1}, s{sW}, 1
    s_lshl_b32 s{sT1}, s{sT1}, 12
    s_add_u32 s{sT0}, s{sT0}, s{sT1}
    v_and_b32 v{t0}, 1, v{vL}
    v_bfe_u32 v{t1}, v{vL}, 1, 4
    v_lshl_add_u32 v{t1}, v{t0}, 5, v{t1}
    v_lshlrev_b32 v{t0}, 3, v{t0}
    v_xor_b32 v{t1}, v{t1}, v{t0}
    v_lshrrev_b32 v{t0}, 5, v{vL}
    v_lshl_add_u32 v{t1}, v{t0}, 6, v{t1}
    v_lshl_add_u32 v{ra}, v{t1}, 4, s{sT0}
    v_lshlrev_b32 v{va}, 4, v{vL}
    s_lshl_b32 s{sT0}, s{sPI}, 2
    s_add_u32 s{sT0}, s{sT0}, s{sW}
    s_lshl_b32 s{sT0}, s{sT0}, 11
    s_add_u32 s{sT0}, s{sT0}, {WS_AT}''')
    for j in range(8): p(f'ds_write_b128 v{wa}, {vr(4*j,4)} offset:{RED + 1024*j}')
    p('s_waitcnt lgkmcnt(0)\ns_barrier')
    R = lambda i, h, k: 32 + 16 * i + 8 * k + 4 * h
    for i in range(2):
        for h in range(2):
            for k in range(2): p(f'ds_read_b128 {vr(R(i,h,k),4)}, v{ra} offset:{RED + 8192*k + 2048*i + 256*h}')
    for i in range(2):
        for e in range(0, 8, 2): p(f'v_pk_add_f32 {vr(R(i,0,0)+e,2)}, {vr(R(i,0,0)+e,2)}, {vr(R(i,0,1)+e,2)}')
        for e in range(4): p(f'v_cvt_pk_bf16_f32 v{64+4*i+e}, v{R(i,0,0)+2*e}, v{R(i,0,0)+2*e+1}')
        p(f'buffer_store_dwordx4 {vr(64+4*i,4)}, v{va}, {srd(S_WS)}, s{sT0} offen offset:{1024*i} sc1', 'ast')

def k_conv(dbg=False):
    p = Prog(); prologue(p)
    par_zero(p); par_loads(p); u_loads(p); tail_setup(p)
    kgen_valu(p); kgen_mfma(p); u_put(p); expand(p); conv(p); conv_out(p)
    if dbg:
        p(f's_barrier\nv_lshl_add_u32 v0, s{sW}, 6, v{vL}\nv_lshlrev_b32 v0, 4, v0\ns_lshl_b32 s{sT0}, s2, 15\ns_add_u32 s{sT0}, s{sT0}, 0x2000000\nv_add_u32 v1, {TL}, v0')
        for i in range(8):
            p(f'ds_read_b128 v[4:7], v1 offset:{4096*i}\nbuffer_store_dwordx4 v[4:7], v0, {srd(S_WS)}, s{sT0} offen\ns_add_u32 s{sT0}, s{sT0}, 4096\ns_nop 1')
    p('s_endpgm')
    return p

vWA = 236
def wd_setup(p):
    p(f'''s_lshl_b32 s{sT0}, s{sDT}, 2
    s_add_u32 s{sT0}, s{sT0}, s{sW}
    s_mul_i32 s{sT0}, s{sT0}, 57344
    s_add_u32 s{sKW}, s{sT0}, {WS_WDT}
    s_and_b32 s{sT1}, s{sW}, 1
    s_lshl_b32 s{sT1}, s{sT1}, 10
    v_lshl_add_u32 v{vWA}, v{vL}, 4, s{sT1}
    v_xor_b32 v{vWA+1}, 1024, v{vWA}''')
def wd_loads():
    o = []
    for s in range(28):
        for al in range(2):
            o.append(f'buffer_load_dwordx4 {ar(8*s+4*al,4)}, v{vWA+al}, {srd(S_WS)}, s{sKW} offen offset:{2048*(s&1)} sc1')
        if s & 1 and s < 27: o[-1] += f'\ns_add_u32 s{sKW}, s{sKW}, 4096'
    return o
NB = 12
vHB, vHA, vGAa, vG, vAT = 64, 160, 164, 180, 184
def acc2(al, be): return 16 * (al + 2 * be)
def h_setup(p):
    t0, t1 = 182, 183
    p(f'''s_mul_i32 s{sT0}, s{sW}, {56*32768}
    s_lshl_b32 s{sT1}, s{sST}, 10
    s_add_u32 s{sT0}, s{sT0}, s{sT1}
    s_add_u32 s{sKX}, s{sT0}, {WS_H}
    s_lshr_b32 s{sT1}, s{sW}, 1
    s_lshl_b32 s{sT1}, s{sT1}, 9
    v_lshrrev_b32 v{t0}, 5, v{vL}
    v_and_b32 v{t1}, 31, v{vL}
    v_lshl_add_u32 v{t1}, v{t1}, 4, s{sT1}
    v_lshl_add_u32 v{vHA}, v{t0}, 15, v{t1}
    v_xor_b32 v{vHA+1}, 512, v{vHA}''')
def h_loads(s):
    o = [f'buffer_load_dwordx4 {vr(vHB + 8*(s%NB) + 4*be, 4)}, v{vHA+be}, {srd(S_WS)}, s{sKX} offen sc1' for be in range(2)]
    if s < 27: o[-1] += f'\ns_add_u32 s{sKX}, s{sKX}, 65536'
    return o
def a_loads():
    t0, t1 = 182, 183
    return [f'''s_and_b32 s{sT0}, s{sW}, 1
    s_lshl_b32 s{sT1}, s{sDT}, 1
    s_add_u32 s{sT0}, s{sT0}, s{sT1}
    s_lshl_b32 s{sT0}, s{sT0}, 17
    s_lshr_b32 s{sT1}, s{sW}, 1
    s_lshl_b32 s{sT2}, s{sST}, 1
    s_add_u32 s{sT1}, s{sT1}, s{sT2}
    s_lshl_b32 s{sT2}, s{sT1}, 6
    s_add_u32 s{sT0}, s{sT0}, s{sT2}
    s_add_u32 s{sT0}, s{sT0}, {WS_AT}
    s_add_u32 s{sT2}, s{sT0}, 65536''',
    f'''v_lshrrev_b32 v{t0}, 2, v{vL}
    v_and_b32 v{t1}, 3, v{vL}
    v_lshlrev_b32 v{t1}, 4, v{t1}
    v_lshl_add_u32 v{t0}, v{t0}, 12, v{t1}''',
    f'buffer_load_dwordx4 {vr(vAT,4)}, v{t0}, {srd(S_WS)}, s{sT0} offen sc1',
    f'buffer_load_dwordx4 {vr(vAT+4,4)}, v{t0}, {srd(S_WS)}, s{sT2} offen sc1']
def g_load(p):
    t0 = 182
    p(f'''s_lshr_b32 s{sT1}, s{sW}, 1
    s_lshl_b32 s{sT2}, s{sST}, 1
    s_add_u32 s{sT1}, s{sT1}, s{sT2}
    s_lshl_b32 s{sT1}, s{sT1}, 7
    s_add_u32 s{sT1}, s{sT1}, {WS_G}
    v_and_b32 v{t0}, 31, v{vL}
    v_lshlrev_b32 v{t0}, 2, v{t0}
    buffer_load_dword v{vG}, v{t0}, {srd(S_WS)}, s{sT1} offen sc1''')
def a_use():
    t0, t1, t2 = 182, 183, 162
    o = [f'''s_lshl_b32 s{sT0}, s{sW}, 11
    s_add_u32 s{sT0}, s{sT0}, {AS}
    v_lshl_add_u32 v{t0}, v{vL}, 4, s{sT0}''',
    f'''v_lshrrev_b32 v{t1}, 5, v{vL}
    v_bfe_u32 v{t2}, v{vL}, 2, 2
    v_lshl_add_u32 v{t1}, v{t1}, 2, v{t2}''',
    f'''v_bfe_u32 v{t2}, v{vL}, 4, 1
    v_lshl_add_u32 v{t1}, v{t1}, 1, v{t2}
    v_and_b32 v{t2}, 3, v{vL}''',
    f'''v_lshl_add_u32 v{t1}, v{t1}, 2, v{t2}
    v_lshl_add_u32 v{t1}, v{t1}, 3, s{sT0}''',
    f'ds_write_b128 v{t0}, {vr(vAT,4)}', (f'ds_write_b128 v{t0}, {vr(vAT+4,4)} offset:1024', 'aw')]
    for q in range(4): o.append(f'ds_read_b64_tr_b16 {vr(vAT+2*q,2)}, v{t1} offset:{512*q}')
    o.append(f'v_sub_f32 v{vG+1}, 1.0, v{vG}\nv_cvt_pk_bf16_f32 v{vG+1}, v{vG+1}, v{vG+1}\nv_and_b32 v{vG+1}, 0xffff0000, v{vG+1}')
    for i in range(8):
        o.append(f'v_lshlrev_b32 v{vGAa+2*i}, 16, v{vAT+i}\nv_and_b32 v{vGAa+2*i+1}, 0xffff0000, v{vAT+i}')
        o.append(f'v_mul_f32 v{vGAa+2*i}, v{vG}, v{vGAa+2*i}\nv_mul_f32 v{vGAa+2*i+1}, v{vG}, v{vGAa+2*i+1}')
    return o
def gemm2(p, extra=None, pre=0):
    extra = extra or {}
    PW, PR, ti = 192, 195, 162
    M = lambda s, al, be: f'v_mfma_f32_32x32x16_bf16 {vr(acc2(al,be),16)}, {ar(8*s+4*al,4)}, {vr(vHB+8*(s%NB)+4*be,4)}, {"0" if s == 0 else vr(acc2(al,be),16)}'
    for s in range(pre, NB): p.extend(h_loads(s))
    for k in range(1, 4):
        p(f's_xor_b32 s{sT0}, s{sW}, {k}\ns_mul_i32 s{sT0}, s{sT0}, 12288\ns_add_u32 s{sT0}, s{sT0}, {P2 + 4096*(k-1)}\nv_lshl_add_u32 v{PW+k-1}, v{vL}, 4, s{sT0}')
    p(f's_mul_i32 s{sT0}, s{sW}, 12288\ns_add_u32 s{sT0}, s{sT0}, {P2}\nv_lshl_add_u32 v{PR}, v{vL}, 4, s{sT0}')
    for s in range(24):
        mf = [M(s, 0, 0), M(s, 1, 0), M(s, 0, 1), M(s, 1, 1)]
        ld = h_loads(s + NB) if s + NB < 28 else [[], []]
        ex = extra.get(s, [])
        for m in range(4):
            p(mf[m]); p.extend(ex[len(ex) * m // 4: len(ex) * (m + 1) // 4])
            if m == 1 and ld[0]: p(ld[0])
            if m == 3 and ld[1]: p(ld[1])
    prev = []
    for k in (3, 1, 2, 0):
        al, be = k & 1, k >> 1
        mf = [M(s, al, be) for s in range(24, 28)]
        for m in range(4):
            p(mf[m])
            if m >= 1: p.extend(prev[(m - 1) * 2: m * 2])
        prev = [f'ds_write_b128 v{PW+k-1}, {vr(acc2(al,be)+4*q,4)} offset:{1024*q}' for q in range(4)] if k else []
    t0, t1, va = 182, 183, 196
    p(f'''s_lshr_b32 s{sT1}, s{sW}, 1
    s_lshl_b32 s{sT2}, s{sST}, 1
    s_add_u32 s{sT1}, s{sT1}, s{sT2}
    s_lshl_b32 s{sT1}, s{sT1}, 15
    s_and_b32 s{sT0}, s{sW}, 1
    s_lshl_b32 s{sT2}, s{sDT}, 1
    s_add_u32 s{sT0}, s{sT0}, s{sT2}
    s_lshl_b32 s{sT0}, s{sT0}, 6
    s_add_u32 s{sT0}, s{sT0}, s{sT1}
    v_and_b32 v{t0}, 31, v{vL}
    v_lshrrev_b32 v{t1}, 5, v{vL}
    v_lshlrev_b32 v{t1}, 4, v{t1}
    v_lshl_add_u32 v{va}, v{t0}, 10, v{t1}
    s_waitcnt lgkmcnt(0)
    s_barrier''')
    Q = lambda k, q: 64 + 16 * k + 4 * q
    for q in range(4):
        for k in range(3): p(f'ds_read_b128 {vr(Q(k,q),4)}, v{PR} offset:{4096*k + 1024*q}')
    for q in range(4):
        for e in (0, 2):
            r = 4 * q + e
            p(f'''v_pk_add_f32 {vr(r,2)}, {vr(r,2)}, {vr(Q(0,q)+e,2)}
            v_pk_add_f32 {vr(Q(1,q)+e,2)}, {vr(Q(1,q)+e,2)}, {vr(Q(2,q)+e,2)}''')
        for e in (0, 2):
            r = 4 * q + e
            p(f'v_pk_add_f32 {vr(r,2)}, {vr(r,2)}, {vr(Q(1,q)+e,2)}')
        for e in (0, 2):
            r = 4 * q + e
            p(f'v_pk_fma_f32 {vr(r,2)}, {vr(r,2)}, {vr(vG,2)}, {vr(vGAa+r,2)} op_sel:[0,1,0] op_sel_hi:[1,1,1]')
        for e in (0, 2):
            r = 4 * q + e
            p(f'v_cvt_pk_bf16_f32 v{16 + 2*q + e//2}, v{r}, v{r+1}')
        if q & 1:
            R = 16 + 2 * (q - 1)
            p(f'v_permlane32_swap_b32 v{R}, v{R+2}\nv_permlane32_swap_b32 v{R+1}, v{R+3}')
            p(f'buffer_store_dwordx4 {vr(R,4)}, v{va}, {srd(S_OUT)}, s{sT0} offen offset:{16*(q-1)}')

def spread(lst, a, b):
    n = b - a
    return {a + i: lst[len(lst) * i // n: len(lst) * (i + 1) // n] for i in range(n)}
def k_g2():
    p = Prog(); prologue(p)
    wd_setup(p); p.extend(wd_loads()); g_load(p); h_setup(p)
    ex = spread(a_loads(), 2, 4); ex.update(spread(a_use(), 12, 22))
    gemm2(p, ex)
    p('s_endpgm')
    return p
```

```python
from t_sp import *
def check_conv(env, ref, dbg=False):
    import numpy as np
    from harness import bf2f
    D = bf2f(ref['A_D_skip']); u = bf2f(ref['A_u'][0])
    if dbg:
        L = env.read(env.ws, np.uint16, 256 * 16384, 0x2000000).reshape(256, 16384)
        K = ref['K'].copy(); K[:, 0] += D
        worst = 0
        KA = np.zeros((512, 2048), np.float32); KB = np.zeros((512, 2048), np.float32)
        for g in range(256):
            pi = (g & 7) * 32 + (g >> 3)
            for c in range(2):
                o = (IMG - TL + c * IMS) // 2
                A = bf2f(L[g, o:o + 2064]); B = bf2f(L[g, o + 2080 - 2:o + 2080 + 2062])
                KA[2 * pi + c] = A[:2048][::-1]; KB[2 * pi + c, :2047] = B[2:2049][::-1]
                if g == 0: print('tails', A[2048:], B[2049:])
        print('K rel A', np.linalg.norm(KA - K) / np.linalg.norm(K), 'A==B', (KA[:, :2047] == KB[:, :2047]).mean())
        K2 = K[:, 1:]; print('K rel (no tap0)', np.linalg.norm(KA[:, 1:] - K2) / np.linalg.norm(K2))
    A = bf2f(env.read(env.ws, np.uint16, 512 * 2048, WS_AT).reshape(512, 2048))
    r = ref['yT'] + (u * D).T
    print('a rel', np.linalg.norm(A - r) / np.linalg.norm(r), 'max', np.abs(A - r).max(), np.abs(r).max())
if __name__ == '__main__':
    build_file('cv.s', [('sp', k_spare()), ('cv', k_conv(True))])
    if len(sys.argv) > 1: sys.exit()
    from harness import *
    ref = np.load('ref0.npz'); env = Env(ref)
    k, g, b, lds = build('cv.s', 'sp_kernel')
    env.cold(); env.launch(k, g, b, lds, 0); env.sync()
    check_spare(env, ref); check_conv(env, ref, True)
```

```python
import sys; sys.path.insert(0, 'work'); sys.path.insert(0, 'gen')
from kern import *
def build_file(fn, progs):
    hdr = '\n'.join(f'; @launch kernel={n}_kernel grid=(256,1,1) block=(256,1,1) lds=163840' for n, _ in progs)
    if len(progs) == 1: hdr = '; @launch grid=(256,1,1) block=(256,1,1) lds=163840'
    open(fn, 'w').write(kernel_file(hdr, [dict(name=n + '_kernel', body=p.text()) for n, p in progs]))
if __name__ == '__main__':
    build_file('g1.s', [('g1', k_gemm1())])
    if len(sys.argv) > 1: sys.exit()
    from harness import *
    ref = np.load('ref0.npz'); env = Env(ref)
    k, g, b, lds = build('g1.s', 'g1_kernel')
    env.cold(); env.launch(k, g, b, lds, 3); env.sync()
    H = env.read(env.ws, np.uint16, 224 * 2048 * 8, WS_H).reshape(224, 2048, 8).transpose(1, 0, 2).reshape(2048, 1792)
    h = bf2f(H); r = bf2f(ref['h'])
    print('h rel', np.linalg.norm(h - r) / np.linalg.norm(r), 'max', np.abs(h - r).max(), np.abs(r).max())
    print(env.timed(k, g, b, lds, 8)); print(env.timed(k, g, b, lds, 8, cold=False))
```

```python
from t_g1 import *
def check_spare(env, ref):
    import numpy as np
    from harness import bf2f
    W = env.read(env.ws, np.uint16, 1792 * 512, WS_WDT).reshape(8, 4, 28, 2, 2, 32, 8)
    Wd = W.transpose(1, 2, 4, 6, 0, 3, 5).reshape(1792, 512)
    print('wdt ok', (Wd == ref['B_W_down']).mean())
    U = env.read(env.ws, np.uint16, 2048 * 512, WS_UT).reshape(128, 256, 4, 8).transpose(1, 3, 0, 2).reshape(2048, 512)
    print('ut ok', (U == ref['A_u'][0]).mean())
    G = env.read(env.ws, np.float32, 2048, WS_G); r = bf2f(ref['g'])
    print('g err', np.abs(G - r).max(), (G == r).mean())
if __name__ == '__main__':
    build_file('sp.s', [('sp', k_spare())])
    if len(sys.argv) > 1: sys.exit()
    from harness import *
    ref = np.load('ref0.npz'); env = Env(ref)
    k, g, b, lds = build('sp.s', 'sp_kernel')
    env.cold(); env.launch(k, g, b, lds, 3); env.sync()
    check_spare(env, ref)
```

```python
from t_cv import *
def check_out(env, ref):
    import numpy as np
    from harness import bf2f
    o = bf2f(env.read(env.out, np.uint16, 2048 * 512)); r = bf2f(ref['out']).ravel()
    e = np.abs(o - r)
    print('out rel', np.linalg.norm(o - r) / np.linalg.norm(r), 'max', e.max(), 'nan', np.isnan(o).sum())
if __name__ == '__main__':
    build_file('all4.s', [('g1', k_gemm1()), ('sp', k_spare()), ('cv', k_conv()), (KN, k_g2())])
    if len(sys.argv) > 1: sys.exit()
    from harness import *
    ref = np.load('ref0.npz'); env = Env(ref)
    k, g, b, lds = build('all4.s', KN + '_kernel')
    env.cold(); env.launch(k, g, b, lds, 0); env.sync()
    check_spare(env, ref); check_conv(env, ref); check_out(env, ref)
```

```python
import re, copy
RE_RANGE = re.compile(r'^(-|\|)?([vas])\[(\d+):(\d+)\]\|?$')
RE_ONE = re.compile(r'^(-|\|)?\|?([vas])(\d+)\|?$')
TRANS = ('v_exp_f32', 'v_log_f32', 'v_rcp_f32', 'v_rsq_f32', 'v_sqrt_f32', 'v_sin_f32', 'v_cos_f32', 'v_rcp_iflag_f32')

def regs(op):
    op = op.strip()
    if op.startswith('neg(') or op.startswith('abs('): op = op[4:-1]
    m = RE_RANGE.match(op)
    if m: return [(m.group(2), i) for i in range(int(m.group(3)), int(m.group(4)) + 1)]
    m = RE_ONE.match(op)
    if m: return [(m.group(2), int(m.group(3)))]
    if op == 'vcc': return [('s', 'vcc_lo'), ('s', 'vcc_hi')]
    if op in ('vcc_lo', 'vcc_hi'): return [('s', op)]
    if op == 'exec': return [('s', 'exec_lo'), ('s', 'exec_hi')]
    if op in ('exec_lo', 'exec_hi'): return [('s', op)]
    if op == 'm0': return [('s', 'm0')]
    return []

def split_ops(s):
    out, depth, cur = [], 0, ''
    for ch in s:
        if ch in '[(': depth += 1
        if ch in '])': depth -= 1
        if ch == ',' and depth == 0: out.append(cur.strip()); cur = ''
        else: cur += ch
    if cur.strip(): out.append(cur.strip())
    return out

JUNK = {('v', 250), ('v', 251), ('v', 252), ('v', 254)}
class Ins:
    __slots__ = ('text', 'op', 'kind', 'rd', 'wr', 'srcc', 'ab', 'passes', 'tag', 'wide', 'data', 'mods', 'dpp', 'target', 'sdwa_out', 'sconst')
    def __init__(s, text, tag=None):
        s.text = text; s.tag = tag; s.rd = set(); s.wr = set(); s.srcc = None; s.ab = set(); s.passes = 0
        s.wide = False; s.data = set(); s.dpp = False; s.target = None; s.sdwa_out = False; s.sconst = set()
        t = text.split(';')[0].strip()
        if t.endswith(':'): s.kind = 'label'; s.op = t[:-1]; return
        sp = t.split(None, 1); s.op = op = sp[0]; rest = sp[1] if len(sp) > 1 else ''
        ops = split_ops(rest)
        mods = ''
        if ops:
            parts = ops[-1].split(None, 1)
            if len(parts) > 1 and not ops[-1].startswith('hwreg'): ops[-1] = parts[0]; mods = parts[1]
        s.mods = mods
        R = lambda i: regs(ops[i]) if i < len(ops) else []
        allr = lambda a: [r for o in ops[a:] for r in regs(o)]
        if op.startswith('v_mfma'):
            s.kind = 'mfma'; s.wr = set(R(0)); s.ab = set(R(1) + R(2)); s.srcc = R(3); s.rd = s.ab | set(s.srcc)
            s.passes = 8 if '32x32x16' in op else 4 if '16x16x32' in op else None
            assert s.passes, op
        elif op.startswith('v_'):
            s.kind = 'valu'
            base = op.replace('_e32', '').replace('_e64', '').replace('_dpp', '').replace('_sdwa', '')
            s.dpp = ('quad_perm' in mods or 'row_' in mods or 'wave_' in mods or op.endswith('_dpp'))
            if base.startswith('v_cmpx'): s.wr = set(regs('exec')) | set(R(0)); s.rd = set(allr(1))
            elif base.startswith('v_cmp'): s.wr = set(R(0)); s.rd = set(allr(1))
            elif base in ('v_permlane16_swap_b32', 'v_permlane32_swap_b32', 'v_swap_b32'):
                s.wr = set(R(0) + R(1)); s.rd = set(s.wr)
            elif base in ('v_add_co_u32', 'v_sub_co_u32', 'v_addc_co_u32', 'v_subb_co_u32', 'v_div_scale_f32', 'v_mad_u64_u32'):
                s.wr = set(R(0) + R(1)); s.rd = set(allr(2))
            elif base == 'v_nop': pass
            else:
                s.wr = set(R(0)); s.rd = set(allr(1))
                if base.startswith(('v_fmac', 'v_mac', 'v_dot2c', 'v_pk_fmac', 'v_writelane')) or s.dpp or 'UNUSED_PRESERVE' in mods: s.rd |= s.wr
                if base == 'v_cndmask_b32' and len(ops) == 3: s.rd |= set(regs('vcc'))
                if 'dst_sel:WORD' in mods or 'dst_sel:BYTE' in mods: s.sdwa_out = True
            s.sconst = {r for r in s.rd if r[0] == 's'}
        elif op.startswith('ds_'):
            s.kind = 'ds'
            if op.startswith(('ds_read', 'ds_bpermute', 'ds_permute', 'ds_swizzle')):
                s.wr = set(R(0)); s.rd = set(allr(1))
                if 'd16' in op: s.rd |= s.wr
            else: s.rd = set(allr(0))
            if 'addtid' in op: s.rd |= {('s', 'm0')}; s.target = 'dma'
        elif op.startswith(('buffer_', 'global_')):
            s.kind = 'vm'
            toks = mods.split()
            if 'lds' in toks or '_lds_' in op: s.rd = set(allr(0)) | {('s', 'm0')}; s.kind = 'vm'; s.dpp = False; s.target = 'dma'
            elif '_load' in op:
                s.wr = set(R(0)); s.rd = set(allr(1))
                if 'd16' in op: s.rd |= s.wr
            elif '_store' in op:
                s.rd = set(allr(0)); di = 1 if op.startswith('global_') else 0
                s.data = set(R(di)); s.wide = op.endswith(('x3', 'x4'))
            elif '_atomic' in op:
                s.rd = set(allr(0))
                if 'sc0' in toks: s.wr = set(R(0))
            else: raise Exception(text)
        elif op.startswith(('s_load', 's_buffer_load', 's_memtime', 's_memrealtime')):
            s.kind = 'smem'; s.wr = set(R(0)); s.rd = set(allr(1))
        elif op == 's_waitcnt': s.kind = 'wait'
        elif op == 's_nop': s.kind = 'nop'
        elif op in ('s_branch',) or op.startswith('s_cbranch'):
            s.kind = 'branch'; s.target = ops[0]
            if 'vcc' in op: s.rd = set(regs('vcc'))
            if 'exec' in op: s.rd = set(regs('exec'))
        elif op in ('s_barrier', 's_endpgm', 's_setprio', 's_sleep'): s.kind = 'misc'
        elif op.startswith('s_'):
            s.kind = 'salu'
            if op.startswith(('s_cmp', 's_bitcmp')): s.rd = set(allr(0))
            else:
                s.wr = set(R(0)); s.rd = set(allr(1))
                if 'saveexec' in op: s.wr |= set(regs('exec')); s.rd |= set(regs('exec'))
                if op.startswith(('s_addk', 's_mulk', 's_cmov', 's_bitset')): s.rd |= s.wr
        elif op in ('WAITVM', 'WAITLG', 'FORGETVM'): s.kind = 'pseudo'; s.target = rest.strip()
        else: raise Exception('unknown ' + text)

class Prog:
    UID = 0
    def __init__(s):
        s.ins = []; s.uid = 0
    def __call__(s, text, tag=None):
        last = None
        for x in text.split('\n'):
            x = x.strip()
            if not x or x.startswith(';'): continue
            last = Ins(x); s.ins.append(last)
        if tag is not None: last.tag = tag
        return last
    def label(s, base):
        Prog.UID += 1; return f'L_{base}_{Prog.UID}'
    def waitvm(s, tag): s.ins.append(Ins(f'WAITVM {tag}'))
    def waitlg(s, tag): s.ins.append(Ins(f'WAITLG {tag}'))
    def extend(s, lst):
        for x in lst:
            if isinstance(x, Ins): s.ins.append(x)
            elif isinstance(x, list): s.extend(x)
            elif isinstance(x, tuple): s(x[0], x[1])
            else: s(x)

    def _waits(s):
        out = []; vm = []; lg = []; saved = {}; stats = dict(vm=0, lg=0)
        prev_uncond = False
        def emit_wait(nvm, nlg):
            nonlocal vm, lg
            parts = []
            if nvm is not None and nvm < len(vm):
                n = min(nvm, 63); parts.append(f'vmcnt({n})'); vm = vm[len(vm) - n:] if n else []
            if nlg is not None and nlg < len(lg):
                n = min(nlg, 15)
                keep = lg[len(lg) - n:] if n else []
                if any(k[0] == 'smem' for k in lg): n = 0; keep = []
                parts.append(f'lgkmcnt({n})'); lg = keep
            if parts: out.append(Ins('s_waitcnt ' + ' '.join(parts)))
        for I in s.ins:
            if I.kind == 'label':
                if I.op in saved:
                    svm, slg = saved[I.op]
                    if prev_uncond: vm, lg = list(svm), list(slg)
                    else:
                        assert (not svm or svm == vm or not vm) and (not slg or slg == lg or not lg), f'merge at {I.op} with outstanding ops on jumping path'
                        if not vm: vm = list(svm)
                        if not lg: lg = list(slg)
                out.append(I); prev_uncond = False; continue
            if I.kind == 'pseudo':
                if I.op == 'FORGETVM': vm = []; continue
                q = vm if I.op == 'WAITVM' else lg
                idx = [i for i, e in enumerate(q) if e[2] == I.target]
                if idx:
                    n = len(q) - 1 - idx[-1]
                    if I.op == 'WAITVM': emit_wait(n, None)
                    else: emit_wait(None, n)
                continue
            if I.kind == 'wait':
                m = re.search(r'vmcnt\((\d+)\)', I.text)
                if m:
                    n = int(m.group(1)); vm = vm[max(0, len(vm) - n):] if n else []
                m = re.search(r'lgkmcnt\((\d+)\)', I.text)
                if m:
                    n = int(m.group(1))
                    if n == 0: lg = []
                    elif not any(k[0] == 'smem' for k in lg): lg = lg[max(0, len(lg) - n):]
                out.append(I); prev_uncond = False; continue
            touch = (I.rd | I.wr) - JUNK
            nvm = nlg = None
            for i, e in enumerate(vm):
                if e[1] & touch: nvm = len(vm) - 1 - i
            for i, e in enumerate(lg):
                if e[1] & touch:
                    if I.kind == 'ds' and e[0] == 'ds' and not (e[1] & (I.rd - I.wr)) and not ('d16' not in I.op and e[1] & I.rd): continue
                    nlg = len(lg) - 1 - i
            if nvm is not None or nlg is not None: emit_wait(nvm, nlg)
            if I.tag == 'untracked': pass
            elif I.kind == 'vm':
                vm.append(('vm', set(I.wr), I.tag))
                if len(vm) > 63 + 64: pass
            elif I.kind == 'ds': lg.append(('ds', set(I.wr), I.tag))
            elif I.kind == 'smem': lg.append(('smem', set(I.wr), I.tag))
            if I.kind == 'branch':
                if I.target not in saved: saved[I.target] = (list(vm), list(lg))
            prev_uncond = I.op in ('s_branch', 's_endpgm')
            out.append(I)
        return out

    def _hazards(s, ins):
        out = []; hist = []
        pos = 0; nops = 0
        for I in ins:
            if I.kind == 'label':
                out.append(I); continue
            need = 0
            for P, pp in reversed(hist):
                d = pos - pp - 1
                if d >= 20: break
                w = req(P, I)
                if w > d: need = max(need, w - d)
            while need > 0:
                n = min(need, 16); N = Ins(f's_nop {n-1}'); out.append(N); pos += n; need -= n; nops += n
            out.append(I); hist.append((I, pos))
            if len(hist) > 40: hist = hist[-24:]
            pos += (int(I.text.split()[1]) + 1) if I.kind == 'nop' else 1
        s.nops = nops
        return out
    def text(s):
        ins = s._hazards(s._waits())
        s.final = ins
        return '\n'.join((i.text if i.kind == 'label' else '    ' + i.text) for i in ins) + '\n'

def isvec(r): return r[0] in 'va'
EXEC = {('s', 'exec_lo'), ('s', 'exec_hi')}
def req(P, I):
    w = 0
    if P.kind == 'mfma':
        if I.kind == 'mfma':
            if P.wr & I.ab: w = P.passes + 4
            c = set(I.srcc)
            if P.wr & c and not (c == P.wr and P.passes == I.passes): w = max(w, P.passes + 2)
            if P.wr & I.wr and not (I.wr == P.wr and P.passes == I.passes): w = max(w, P.passes + 4)
        elif I.kind in ('valu', 'vm', 'ds'):
            if P.wr & (I.rd | I.wr): w = P.passes + 4
            if I.kind == 'valu' and set(P.srcc) & I.wr: w = max(w, P.passes - 1)
    elif P.kind == 'valu':
        vw = {r for r in P.wr if isvec(r)}; sw = P.wr - vw
        if I.kind == 'mfma':
            if vw & I.rd: w = 3 if P.op.startswith('v_dot') else 2
            if sw & EXEC: w = max(w, 4)
        elif I.kind == 'valu':
            if vw & I.rd:
                if I.dpp or I.op.startswith('v_permlane'): w = 2
                elif I.op.startswith(('v_readlane', 'v_readfirstlane')): w = 1
                if P.op.startswith(TRANS): w = max(w, 1)
                if P.sdwa_out: w = max(w, 1)
            if P.op.startswith('v_dot') and vw & (I.rd | I.wr):
                if not (I.op == P.op and vw == I.wr): w = max(w, 3)
            if P.sdwa_out and vw & I.wr: w = max(w, 1)
            if sw & I.sconst: w = max(w, 4 if I.op.startswith(('v_readlane', 'v_writelane')) else 2)
            if sw & EXEC:
                if I.dpp: w = max(w, 5)
                if I.op.startswith(('v_readlane', 'v_readfirstlane', 'v_writelane', 'v_permlane')): w = max(w, 4)
        elif I.kind == 'vm':
            if sw & I.rd: w = 5
            if P.op.startswith('v_dot') and vw & I.rd: w = max(w, 3)
        elif I.kind == 'ds':
            if P.op.startswith('v_dot') and vw & I.rd: w = max(w, 3)
        elif I.kind == 'branch':
            if sw & I.rd: w = 5
    elif P.kind == 'salu':
        if ('s', 'm0') in P.wr and I.kind in ('vm', 'ds') and I.target == 'dma': w = 1
    elif P.kind == 'vm':
        if P.wide and P.data & I.wr: w = 2
    return w

def kernel_file(header, kernels):
    o = [header.rstrip('\n'), '.amdgcn_target "amdgcn-amd-amdhsa--gfx950"', '.text']
    for k in kernels:
        o += [f'.globl {k["name"]}', '.p2align 8', f'.type {k["name"]},@function', f'{k["name"]}:', k['body'].rstrip('\n')]
    o += ['.section .rodata,"a"']
    for k in kernels:
        o += ['.p2align 6', f'.amdhsa_kernel {k["name"]}',
              f'  .amdhsa_next_free_vgpr {k.get("nfv", 512)}', f'  .amdhsa_next_free_sgpr 102',
              f'  .amdhsa_accum_offset {k.get("acc", 256)}', '  .amdhsa_group_segment_fixed_size 0',
              '  .amdhsa_kernarg_size 120', '  .amdhsa_user_sgpr_count 2',
              '  .amdhsa_user_sgpr_kernarg_segment_ptr 1', '  .amdhsa_system_sgpr_workgroup_id_x 1',
              '.end_amdhsa_kernel']
    return '\n'.join(o) + '\n'

def weave(p, main, *fills, start=0, end=None):
    n = len(main); end = n if end is None else end
    for m, x in enumerate(main):
        p.extend([x])
        if start <= m < end:
            for f in fills:
                k = end - start
                p.extend(f[len(f) * (m - start) // k: len(f) * (m - start + 1) // k])
```

```python
import sys
from core import *
KN = 'gated_mix__ssm_conv_s4d__glu_gated_reglu__prompt'
WS_WDT, WS_UT, WS_G, WS_H, WS_AT = 0x100000, 0x300000, 0x500000, 0x600000, 0xD00000
S_X, S_WG, S_WU, S_WS, S_OUT, S_P, S_DBG = 36, 40, 44, 48, 52, 56, 60
sXCD, sJ, sW, sMI, sFI, sST, sDT, sROT, sKX, sKW, sXM, sWM, sSI, sPI = range(64, 78)
sT0, sT1, sT2, sT3, sT4, sT5 = range(80, 86)
sSP = 86
def srd(i): return f's[{i}:{i+3}]'
def vr(a, n=1): return f'v{a}' if n == 1 else f'v[{a}:{a+n-1}]'
def ar(a, n=1): return f'a{a}' if n == 1 else f'a[{a}:{a+n-1}]'
vL = 255

def mk_srd(p, d, ptr, size):
    p(f's_mov_b32 s{d}, s{ptr}\ns_mov_b32 s{d+1}, s{ptr+1}\ns_mov_b32 s{d+2}, {hex(size)}\ns_mov_b32 s{d+3}, 0x00020000')

def prologue(p):
    L = p.label('go')
    p(f'''s_cmp_lt_u32 s2, 256
    s_cbranch_scc1 {L}
    s_endpgm
    {L}:
    s_load_dwordx16 s[4:19], s[0:1], 0
    s_load_dwordx8 s[20:27], s[0:1], 64
    s_load_dwordx4 s[28:31], s[0:1], 96
    s_load_dwordx2 s[32:33], s[0:1], 112
    v_lshrrev_b32 v1, 6, v0
    v_and_b32 v{vL}, 63, v0
    v_readfirstlane_b32 s{sW}, v1
    s_and_b32 s{sXCD}, s2, 7
    s_lshr_b32 s{sJ}, s2, 3
    s_and_b32 s{sT0}, s{sJ}, 3
    s_lshr_b32 s{sDT}, s{sJ}, 2
    s_lshr_b32 s{sT1}, s{sXCD}, 2
    s_lshl_b32 s{sT1}, s{sT1}, 2
    s_add_u32 s{sMI}, s{sT1}, s{sT0}
    s_and_b32 s{sT1}, s{sXCD}, 3
    s_mul_i32 s{sT1}, s{sT1}, 7
    s_add_u32 s{sFI}, s{sT1}, s{sDT}
    s_lshl_b32 s{sT1}, s{sXCD}, 2
    s_add_u32 s{sST}, s{sT1}, s{sT0}
    s_lshl_b32 s{sT2}, s{sT0}, 1
    s_add_u32 s{sROT}, s{sT2}, s{sDT}
    s_and_b32 s{sROT}, s{sROT}, 7
    s_mov_b32 s{sSI}, s{sST}
    s_lshl_b32 s{sPI}, s{sXCD}, 5
    s_add_u32 s{sPI}, s{sPI}, s{sJ}''')
    mk_srd(p, S_X, 4, 2048 * 1024); mk_srd(p, S_WG, 20, 512 * 3584); mk_srd(p, S_WU, 22, 512 * 3584)
    mk_srd(p, S_WS, 32, 0x10000000); mk_srd(p, S_OUT, 28, 2048 * 1024); mk_srd(p, S_DBG, 30, 256)

G1_B, G1_A, G1_XR, G1_WR, G1_DX, G1_DW = 128, 144, 176, 180, 182, 190
def acc1(st, mat, ft): return 16 * (4 * st + 2 * mat + ft)
def g1_setup(p):
    t0, t1, t2, t3 = 192, 193, 194, 195
    p(f'''v_lshrrev_b32 v{t0}, 3, v{vL}
    v_and_b32 v{t1}, 7, v{vL}
    v_lshrrev_b32 v{t2}, 1, v{t0}
    v_xor_b32 v{t3}, v{t1}, v{t2}
    v_lshlrev_b32 v{t3}, 4, v{t3}
    v_lshl_add_u32 v{t3}, v{t0}, 10, v{t3}
    s_lshl_b32 s{sT0}, s{sMI}, 2
    s_add_u32 s{sT0}, s{sT0}, s{sW}
    s_lshl_b32 s{sT0}, s{sT0}, 16
    v_add_u32 v{G1_DX}, s{sT0}, v{t3}
    v_xor_b32 v{G1_DX+1}, 64, v{G1_DX}''')
    for i in range(7, 0, -1):
        p(f'v_add_u32 v{G1_DX+i}, {8192*i - 1024*(i&3)}, v{G1_DX+(i&1)}')
    p(f'''v_and_b32 v{t2}, 1, v{t2}
    v_lshlrev_b32 v{t2}, 2, v{t2}
    v_xor_b32 v{t2}, v{t1}, v{t2}
    v_lshlrev_b32 v{t2}, 4, v{t2}
    v_mul_u32_u24 v{t0}, 3584, v{t0}
    s_mul_i32 s{sT0}, s{sW}, {16*3584}
    s_lshl_b32 s{sT1}, s{sFI}, 7
    s_add_u32 s{sT0}, s{sT0}, s{sT1}
    v_add3_u32 v{G1_DW}, v{t0}, v{t2}, s{sT0}
    v_add_u32 v{G1_DW+1}, {8*3584-1024}, v{G1_DW}
    s_mul_i32 s{sXM}, s{sW}, 24576
    s_lshl_b32 s{sWM}, s{sW}, 11
    s_add_u32 s{sWM}, s{sWM}, 98304''')
def g1_dma(t):
    sl = t % 3; o = []
    o.append(f's_add_u32 s{sT0}, s{sROT}, {t}\ns_and_b32 s{sT0}, s{sT0}, 7\ns_lshl_b32 s{sKX}, s{sT0}, 7\ns_mul_i32 s{sKW}, s{sT0}, {64*3584}')
    for mat, S in ((0, S_WG), (1, S_WU)):
        o.append(f's_add_u32 m0, s{sWM}, {sl*16384 + mat*8192}')
        for i in range(2): o.append(f'buffer_load_dwordx4 v{G1_DW+i}, {srd(S)}, s{sKW} offen offset:{1024*i} lds')
    for i in range(8):
        if i % 4 == 0: o.append(f's_add_u32 m0, s{sXM}, {sl*8192 + 1024*i}')
        o.append(f'buffer_load_dwordx4 v{G1_DX+i}, {srd(S_X)}, s{sKX} offen offset:{1024*(i&3)} lds')
    o[-1] = (o[-1], f'dma{t}')
    return o
def g1_setup2(p):
    t0, t1, t2, t3 = 192, 193, 194, 195
    p(f'''v_and_b32 v{t0}, 31, v{vL}
    v_lshrrev_b32 v{t1}, 5, v{vL}
    v_bfe_u32 v{t2}, v{vL}, 1, 3
    v_xor_b32 v{t2}, v{t2}, v{t1}
    v_lshlrev_b32 v{t2}, 4, v{t2}
    v_lshl_add_u32 v{t2}, v{t0}, 7, v{t2}
    v_add_u32 v{G1_XR}, s{sXM}, v{t2}''')
    for s in range(1, 4): p(f'v_xor_b32 v{G1_XR+s}, {32*s}, v{G1_XR}')
    p(f'''v_bfe_u32 v{t0}, v{vL}, 2, 2
    v_lshl_add_u32 v{t0}, v{t1}, 3, v{t0}
    v_bfe_u32 v{t1}, v{vL}, 4, 1
    v_bfe_u32 v{t2}, v{vL}, 1, 1
    v_lshl_add_u32 v{t1}, v{t1}, 1, v{t2}
    v_bfe_u32 v{t2}, v{vL}, 3, 1
    v_lshl_add_u32 v{t1}, v{t2}, 2, v{t1}
    v_and_b32 v{t2}, 1, v{vL}
    v_lshlrev_b32 v{t2}, 3, v{t2}
    v_lshl_add_u32 v{t2}, v{t1}, 4, v{t2}
    v_lshl_add_u32 v{t2}, v{t0}, 7, v{t2}
    v_add_u32 v{G1_WR}, 98304, v{t2}
    v_xor_b32 v{G1_WR+1}, 64, v{G1_WR}''')
def g1_reads(t, s):
    b = (4 * t + s) & 1; sl = t % 3; o = []
    B = lambda st: f'ds_read_b128 {vr(G1_B + 8*b + 4*st, 4)}, v{G1_XR+s} offset:{sl*8192 + st*4096}'
    o.append(B(0))
    for mat in range(2):
        for ft in range(2):
            r = G1_A + 16 * b + 4 * (2 * mat + ft)
            for h in range(2):
                o.append(f'ds_read_b64_tr_b16 {vr(r+2*h, 2)}, v{G1_WR+ft} offset:{sl*16384 + mat*8192 + s*2048 + h*512}')
    o.append(B(1))
    return o
def g1_mfmas(t, s):
    b = (4 * t + s) & 1; o = []
    for st in range(2):
        for mat in range(2):
            for ft in range(2):
                c = acc1(st, mat, ft)
                src = '0' if (t == 0 and s == 0) else vr(c, 16)
                o.append(f'v_mfma_f32_32x32x16_bf16 {vr(c,16)}, {vr(G1_A + 16*b + 4*(2*mat+ft), 4)}, {vr(G1_B + 8*b + 4*st, 4)}, {src}')
    return o
def g1_main(p, extra=None, post=None):
    extra = extra or {}; post = post or {}
    p.waitvm('dma0'); p('s_barrier')
    p.extend(g1_reads(0, 0))
    pend = []
    for t in range(8):
        for s in range(4):
            mf = g1_mfmas(t, s)
            slots = [[] for _ in range(8)]
            if s < 3:
                rd = g1_reads(t, s + 1)
                for i, x in enumerate(rd): slots[i // 2].append(x)
            elif t < 7:
                slots[1] += [Ins('s_waitcnt lgkmcnt(0)'), Ins(f'WAITVM dma{t+1}'), 's_barrier']
                rd = g1_reads(t + 1, 0)
                for i, x in enumerate(rd): slots[1 + i // 2].append(x)
                slots[1] += post.get(t, [])
                if t + 3 < 8: pend = g1_dma(t + 3)
            else:
                slots[1] += [Ins('s_waitcnt lgkmcnt(0)'), 's_barrier'] + post.get(t, [])
            lo = 6 if s == 3 else 5 if s < 2 else 0
            if s == 3: n = min(len(pend), 4)
            elif s < 2: n = min(len(pend), 7)
            else: n = len(pend)
            for i in range(n): slots[lo + i * (8 - lo) // max(n, 1)].append(pend.pop(0))
            ex = extra.get((t, s), [])
            for i, x in enumerate(ex): slots[i * 8 // len(ex)].append(x)
            for m in range(8):
                p(mf[m]); p.extend(slots[m])
    assert not pend
def g1_epilogue(p):
    H, va = 128, 192
    p(f'''s_lshl_b32 s{sT0}, s{sMI}, 2
    s_add_u32 s{sT0}, s{sT0}, s{sW}
    s_lshl_b32 s{sT0}, s{sT0}, 10
    s_lshl_b32 s{sT1}, s{sFI}, 18
    s_add_u32 s{sT0}, s{sT0}, s{sT1}
    s_add_u32 s{sT0}, s{sT0}, {WS_H}
    v_lshlrev_b32 v{va}, 4, v{vL}''')
    for ft in range(2):
        for q in range(4):
            R = H + 4 * (4 * ft + q)
            for st in range(2):
                g = acc1(st, 0, ft) + 4 * q; u = acc1(st, 1, ft) + 4 * q
                for e in range(4): p(f'v_max_f32 v{g+e}, 0, v{g+e}')
                for e in (0, 2): p(f'v_pk_mul_f32 {vr(g+e,2)}, {vr(g+e,2)}, {vr(u+e,2)}')
                for e in (0, 2): p(f'v_cvt_pk_bf16_f32 v{R + 2*st + e//2}, v{g+e}, v{g+e+1}')
            p(f'v_permlane32_swap_b32 v{R}, v{R+2}\nv_permlane32_swap_b32 v{R+1}, v{R+3}')
            p(f'buffer_store_dwordx4 {vr(R,4)}, v{va}, {srd(S_WS)}, s{sT0} offen sc1', 'hst')
            if (ft, q) != (1, 3): p(f's_add_u32 s{sT0}, s{sT0}, 32768')

def k_gemm1():
    p = Prog(); prologue(p)
    L = p.label('main')
    p(f's_cmp_lt_u32 s{sJ}, 28\ns_cbranch_scc1 {L}\ns_endpgm\n{L}:')
    g1_setup(p)
    for t in range(3): p.extend(g1_dma(t))
    g1_setup2(p)
    g1_main(p); g1_epilogue(p)
    p('s_endpgm')
    return p

SP_X = 0
SP_W = 73728
def spare_issue(p):
    t0, t1, t2, t3, vw, vx = 1, 2, 3, 4, 8, 10
    mk_srd(p, S_P, 24, 1792 * 1024)
    p(f'''s_lshr_b32 s{sT0}, s{sSI}, 3
    s_lshl_b32 s{sT0}, s{sT0}, 2
    s_add_u32 s{sT0}, s{sT0}, s{sW}
    s_mul_i32 s{sT0}, s{sT0}, {112*1024}
    s_and_b32 s{sT1}, s{sSI}, 7
    s_lshl_b32 s{sT1}, s{sT1}, 7
    s_add_u32 s{sT0}, s{sT0}, s{sT1}
    v_lshrrev_b32 v{t0}, 3, v{vL}
    v_and_b32 v{t1}, 7, v{vL}
    v_bfe_u32 v{t2}, v{vL}, 4, 1
    v_lshlrev_b32 v{t2}, 2, v{t2}
    v_xor_b32 v{t2}, v{t1}, v{t2}
    v_lshlrev_b32 v{t2}, 4, v{t2}
    v_lshl_add_u32 v{vw}, v{t0}, 10, v{t2}
    s_mul_i32 s{sWM}, s{sW}, 14336
    s_add_u32 s{sWM}, s{sWM}, {SP_W}''')
    for i in range(14):
        p(f's_add_u32 m0, s{sWM}, {1024*i}')
        p(f'buffer_load_dwordx4 v{vw}, {srd(S_P)}, s{sT0} offen lds', 'wdma')
        if i < 13: p(f's_add_u32 s{sT0}, s{sT0}, 8192')
    p(f'''s_lshl_b32 s{sT1}, s{sW}, 2
    s_and_b32 s{sT1}, s{sT1}, 7
    v_xor_b32 v{t0}, s{sT1}, v{vL}
    v_lshlrev_b32 v{vx}, 4, v{t0}
    v_xor_b32 v{vx+1}, 16, v{vx}
    v_xor_b32 v{vx+2}, 32, v{vx}
    v_xor_b32 v{vx+3}, 48, v{vx}
    s_lshl_b32 s{sT0}, s{sSI}, 2
    s_add_u32 s{sT0}, s{sT0}, s{sW}
    s_lshl_b32 s{sT0}, s{sT0}, 14
    s_mul_i32 s{sXM}, s{sW}, {16*1152}''')
    for i in range(16):
        p(f's_add_u32 m0, s{sXM}, {SP_X + 1152*i}')
        p(f'buffer_load_dwordx4 v{vx + 2*(i>>3) + ((i>>1)&1)}, {srd(S_X)}, s{sT0} offen lds', 'xdma')
        if i < 15: p(f's_add_u32 s{sT0}, s{sT0}, 1024')
    mk_srd(p, S_WG, 26, 1024)
    p(f'v_and_b32 v{t0}, 3, v{vL}\nv_lshlrev_b32 v{t0}, 4, v{t0}')
    for i in range(16): p(f'buffer_load_dwordx4 {vr(128+4*i,4)}, v{t0}, {srd(S_WG)}, 0 offen offset:{64*i}')
def spare_wd(p):
    t0, t1, t2, ra, va = 1, 2, 3, 8, 14
    p(f'''v_lshrrev_b32 v{t1}, 5, v{vL}
    v_bfe_u32 v{t0}, v{vL}, 2, 2
    v_lshl_add_u32 v{t0}, v{t1}, 3, v{t0}
    v_bfe_u32 v{t1}, v{vL}, 4, 1
    v_bfe_u32 v{t2}, v{vL}, 1, 1
    v_lshl_add_u32 v{t1}, v{t1}, 1, v{t2}
    v_bfe_u32 v{t2}, v{vL}, 3, 1
    v_lshl_add_u32 v{t1}, v{t2}, 2, v{t1}
    v_and_b32 v{t2}, 1, v{vL}
    v_lshlrev_b32 v{t2}, 3, v{t2}
    v_lshl_add_u32 v{t2}, v{t1}, 4, v{t2}
    v_lshl_add_u32 v{t2}, v{t0}, 7, v{t2}
    v_add_u32 v{ra}, s{sWM}, v{t2}
    v_xor_b32 v{ra+1}, 64, v{ra}
    v_lshlrev_b32 v{va}, 4, v{vL}
    s_and_b32 s{sT0}, s{sSI}, 7
    s_lshl_b32 s{sT0}, s{sT0}, 2
    s_lshr_b32 s{sT1}, s{sSI}, 3
    s_add_u32 s{sT0}, s{sT0}, s{sT1}
    s_lshl_b32 s{sT0}, s{sT0}, 2
    s_add_u32 s{sT0}, s{sT0}, s{sW}
    s_mul_i32 s{sT0}, s{sT0}, 14336
    s_add_u32 s{sT0}, s{sT0}, {WS_WDT}''')
    p.waitvm('wdma')
    for s in range(7):
        for d in range(2):
            r = 16 + 4 * (2 * s + d)
            for h in range(2): p(f'ds_read_b64_tr_b16 {vr(r+2*h,2)}, v{ra+d} offset:{s*2048 + h*512}')
    for i in range(14):
        p(f'buffer_store_dwordx4 {vr(16+4*i,4)}, v{va}, {srd(S_WS)}, s{sT0} offen offset:{1024*(i&3)} sc1', 'wst')
        if i & 3 == 3: p(f's_add_u32 s{sT0}, s{sT0}, 4096')
def spare_ut(p):
    t0, t1, t2, t3, ra, va = 1, 2, 3, 4, 72, 14
    p(f'''v_and_b32 v{t0}, 3, v{vL}
    v_lshrrev_b32 v{t1}, 5, v{vL}
    v_lshl_add_u32 v{t1}, v{t1}, 2, v{t0}
    v_bfe_u32 v{t2}, v{vL}, 2, 2
    v_lshl_add_u32 v{t1}, v{t1}, 3, v{t2}
    v_mul_u32_u24 v{t1}, 1152, v{t1}
    v_bfe_u32 v{t2}, v{vL}, 3, 1
    v_lshl_add_u32 v{t0}, v{t0}, 1, v{t2}
    v_lshl_add_u32 v{t1}, v{t0}, 4, v{t1}
    v_bfe_u32 v{t2}, v{vL}, 4, 1
    v_lshl_add_u32 v{t1}, v{t2}, 3, v{t1}
    s_lshl_b32 s{sT0}, s{sW}, 8
    v_add_u32 v{ra}, s{sT0}, v{t1}''')
    for k in range(1, 8): p(f'v_xor_b32 v{ra+k}, {16*k}, v{ra}')
    p(f'''v_and_b32 v{t0}, 15, v{vL}
    v_lshlrev_b32 v{t0}, 4, v{t0}
    v_lshrrev_b32 v{t1}, 5, v{vL}
    v_lshl_add_u32 v{t0}, v{t1}, 8, v{t0}
    v_lshl_add_u32 v{va}, v{t2}, 14, v{t0}
    s_lshl_b32 s{sT0}, s{sW}, 19
    s_lshl_b32 s{sT1}, s{sSI}, 9
    s_add_u32 s{sT0}, s{sT0}, s{sT1}
    s_add_u32 s{sT0}, s{sT0}, {WS_UT}''')
    p.waitvm('xdma'); p('s_barrier')
    for k in range(16):
        r = 16 + 4 * (k % 8) if k < 8 else 80 + 4 * (k % 8)
        for h in range(2): p(f'ds_read_b64_tr_b16 {vr(r+2*h,2)}, v{ra+(k&7)} offset:{SP_X + (k>>3)*128 + h*4608}')
    for k in range(16):
        r = 16 + 4 * (k % 8) if k < 8 else 80 + 4 * (k % 8)
        p(f'buffer_store_dwordx4 {vr(r,4)}, v{va}, {srd(S_WS)}, s{sT0} offen sc1', 'ust')
        if k < 15: p(f's_add_u32 s{sT0}, s{sT0}, 32768')
def spare_g(p):
    t0, t1, t2, ra, ac = 1, 2, 3, 8, 10
    p(f'''s_lshl_b32 s{sT0}, s{sW}, 4
    v_lshrrev_b32 v{t0}, 2, v{vL}
    v_add_u32 v{t0}, s{sT0}, v{t0}
    v_bfe_u32 v{t1}, v{t0}, 3, 2
    v_bfe_u32 v{t2}, v{t0}, 1, 1
    v_lshl_add_u32 v{t1}, v{t1}, 1, v{t2}
    v_and_b32 v{t2}, 3, v{vL}
    v_xor_b32 v{t1}, v{t1}, v{t2}
    v_mul_u32_u24 v{ra}, 1152, v{t0}
    v_lshl_add_u32 v{ra}, v{t1}, 4, v{ra}
    v_xor_b32 v{ra+1}, 64, v{ra}''')
    for i in range(16): p(f'ds_read_b128 {vr(16+4*i,4)}, v{ra+(i&1)} offset:{SP_X + (i>>1)*128}')
    for e in range(4): p(f'v_mov_b32 v{ac+e}, 0')
    for i in range(16):
        for e in range(4): p(f'v_dot2c_f32_bf16 v{ac+e}, v{16+4*i+e}, v{128+4*i+e}')
    p(f'''v_add_f32 v{ac}, v{ac}, v{ac+1}
    v_add_f32 v{ac+2}, v{ac+2}, v{ac+3}
    v_add_f32 v{ac}, v{ac}, v{ac+2}
    v_add_f32_dpp v{ac+1}, v{ac}, v{ac} quad_perm:[1,0,3,2] row_mask:0xf bank_mask:0xf
    v_add_f32_dpp v{ac}, v{ac+1}, v{ac+1} quad_perm:[2,3,0,1] row_mask:0xf bank_mask:0xf
    v_cvt_pk_bf16_f32 v{ac}, v{ac}, v{ac}
    v_and_b32 v{ac}, 0xffff0000, v{ac}
    v_mul_f32 v{ac}, 0xbfb8aa3b, v{ac}
    v_exp_f32 v{ac}, v{ac}
    v_add_f32 v{ac}, 1.0, v{ac}
    v_rcp_f32 v{ac}, v{ac}
    v_cvt_pk_bf16_f32 v{ac}, v{ac}, v{ac}
    v_and_b32 v{ac}, 0xffff0000, v{ac}
    s_lshl_b32 s{sT0}, s{sSI}, 8
    s_add_u32 s{sT0}, s{sT0}, {WS_G}
    v_lshlrev_b32 v{t0}, 2, v{t0}''')
    p(f'buffer_store_dword v{ac}, v{t0}, {srd(S_WS)}, s{sT0} offen sc1', 'gst')

def k_spare():
    p = Prog(); prologue(p)
    L = p.label('main')
    p(f's_cmp_ge_u32 s{sJ}, 28\ns_cbranch_scc1 {L}\ns_endpgm\n{L}:')
    spare_issue(p); spare_wd(p); spare_ut(p); spare_g(p)
    p('s_endpgm')
    return p

KT, KTS = 0, 34816
TL, TLS = 69632, 2064
IMG, IMS = 73760, 8320
UIM, UIS = 90400, 4672
RED = 0
AS = 99840
P2 = 108032
vPAR = 196
vGA = 202
vTA = 219
vZA = 222
vDM = 223
def par_loads(p):
    t0, t1 = 192, 193
    p(f'''s_lshl_b32 s{sT0}, s{sPI}, 2
    s_add_u32 s{sT0}, s{sT0}, s{sW}
    s_lshl_b32 s{sT1}, s{sT0}, 7
    v_lshl_add_u32 v{t0}, v{vL}, 1, s{sT1}
    s_lshr_b32 s{sT0}, s{sT0}, 1
    s_lshl_b32 s{sT0}, s{sT0}, 1
    v_mov_b32 v{t1}, s{sT0}''')
    for i in range(4): p(f'global_load_short_d16_hi v{vPAR+i}, v{t0}, s[{6+2*i}:{7+2*i}]')
    for i in range(2): p(f'global_load_short_d16_hi v{vPAR+4+i}, v{t1}, s[{14+2*i}:{15+2*i}]')
def par_zero(p):
    for i in range(6): p(f'v_mov_b32 v{vPAR+i}, 0')
def rne_off(s, e):
    q, r = divmod(e, 1 << s); h = (1 << s) // 2
    if s and (r > h or (r == h and q & 1)): q += 1
    return q
def tail_setup(p):
    t0, t1, t2, t3, t4 = 192, 193, 194, 195, 234
    p(f'''s_lshr_b32 s{sT0}, s{sW}, 1
    s_and_b32 s{sT1}, s{sW}, 1
    s_mul_i32 s{sT2}, s{sT0}, {TLS}
    s_add_u32 s{sT2}, s{sT2}, {TL}
    s_lshl_b32 s{sT3}, s{sT1}, 6
    s_sub_u32 s{sT3}, 127, s{sT3}
    v_sub_u32 v{t0}, s{sT3}, v{vL}
    v_lshlrev_b32 v{t1}, 4, v{t0}''')
    def idx(dst, src):
        p(f'''v_cvt_f32_u32 v{t3}, v{src}
        v_cvt_pk_bf16_f32 v{t3}, v{t3}, v{t3}
        v_and_b32 v{t3}, 0xffff, v{t3}
        v_subrev_u32 v{t3}, 17024, v{t3}
        v_min_i32 v{t4}, 128, v{src}
        v_max_i32 v{t3}, v{t3}, v{t4}
        v_lshl_add_u32 v{dst}, v{t3}, 1, s{sT2}''')
    idx(vGA + 1, t1)
    p(f'v_subrev_u32 v{t2}, 1, v{t1}\nv_max_i32 v{t2}, 0, v{t2}')
    idx(vGA, t2)
    p(f'''s_add_u32 s{sT3}, s{sT2}, 2048
    v_mov_b32 v{t2}, s{sT3}
    v_cmp_eq_u32 vcc, 0, v{t0}
    v_cndmask_b32 v{vGA}, v{vGA}, v{t2}, vcc
    v_ffbh_u32 v{t2}, v{t0}
    v_min_u32 v{t2}, 28, v{t2}
    v_sub_u32 v{t2}, 28, v{t2}
    v_lshlrev_b32 v{t2}, 3, v{t2}''')
    for e in range(1, 16):
        k = sum((2 * rne_off(s, e)) << (8 * s) for s in range(4))
        p(f's_mov_b32 s{sT3}, {hex(k)}\nv_bfe_u32 v{t3}, s{sT3}, v{t2}, 8\nv_add_u32 v{vGA+1+e}, v{vGA+1}, v{t3}')
    p(f'''v_and_b32 v{t0}, 15, v{vL}
    s_lshl_b32 s{sT3}, s{sT1}, 4
    v_add_u32 v{t0}, s{sT3}, v{t0}
    v_lshrrev_b32 v{t1}, 4, v{vL}
    v_lshlrev_b32 v{t2}, 3, v{t1}
    v_lshl_add_u32 v{t2}, v{t0}, 4, v{t2}
    v_lshlrev_b32 v{t3}, 3, v{t0}
    v_add_u32 v{t3}, 512, v{t3}
    v_cmp_eq_u32 vcc, 2, v{t1}
    v_cndmask_b32 v{t2}, v{t2}, v{t3}, vcc
    v_lshlrev_b32 v{t3}, 2, v{t0}
    v_add_u32 v{t3}, 768, v{t3}
    v_mov_b32 v{t4}, 4
    v_mov_b32 v{vTA+1}, 128
    v_cmp_eq_u32 vcc, 3, v{t1}
    v_cndmask_b32 v{t2}, v{t2}, v{t3}, vcc
    v_cndmask_b32 v{t4}, v{t4}, v{vTA+1}, vcc
    v_add_u32 v{vTA}, s{sT2}, v{t2}
    v_add_u32 v{vTA+1}, v{vTA}, v{t4}
    v_lshlrev_b32 v{t2}, 8, v{t1}
    v_lshl_add_u32 v{t2}, v{t0}, 1, v{t2}
    v_add_u32 v{vTA+2}, s{sT2}, v{t2}
    v_or_b32 v{t2}, v{t0}, v{t1}
    v_mov_b32 v{t3}, 0
    v_cmp_eq_u32 vcc, 0, v{t2}
    v_cndmask_b32 v{vDM}, v{t3}, 1.0, vcc''')
    p(f'''v_lshrrev_b32 v{t0}, 5, v{vL}
    v_mul_u32_u24 v{t0}, {UIS}, v{t0}
    v_and_b32 v{t1}, 31, v{vL}
    v_lshl_add_u32 v{t0}, v{t1}, 4, v{t0}
    v_add_u32 v{t0}, {UIM}, v{t0}
    v_bfe_u32 v{t1}, v{vL}, 1, 2
    v_mul_u32_u24 v{t1}, 4160, v{t1}
    v_and_b32 v{t2}, 1, v{vL}
    v_lshl_add_u32 v{t1}, v{t2}, 4, v{t1}
    v_add_u32 v{t1}, {IMG + 4096}, v{t1}
    v_mul_u32_u24 v{t2}, {TLS}, v{t2}
    v_add_u32 v{t2}, {TL + 2048}, v{t2}
    v_and_b32 v{t3}, 8, v{vL}
    v_cmp_eq_u32 vcc, 0, v{t3}
    v_cndmask_b32 v{t1}, v{t2}, v{t1}, vcc
    s_cmp_eq_u32 s{sW}, 0
    s_cselect_b64 vcc, -1, 0
    v_cndmask_b32 v{vZA}, v{t1}, v{t0}, vcc''')
HI = [0,1,2,3,4,5,6,7,256,258,260,262,512,516,768,772,1024,1280,1536,1792,2048]
def merge(chains):
    out = []; ch = [list(c) for c in chains]
    while any(ch):
        for c in ch:
            if c: out.append(c.pop(0))
    return out
def cmul(D, X, Y):
    return [f'v_pk_mul_f32 {vr(D,2)}, {vr(X,2)}, {vr(Y,2)} op_sel:[0,0] op_sel_hi:[0,1]',
            f'v_pk_fma_f32 {vr(D,2)}, {vr(X,2)}, {vr(Y,2)}, {vr(D,2)} op_sel:[1,1,0] op_sel_hi:[1,0,1] neg_lo:[0,1,0]']
def kgen_valu(p):
    lar, aim, cre, cim, ldt, dsk = range(vPAR, vPAR + 6)
    def expbf(x, t):
        return [f'v_mul_f32 v{t}, 0x3fb8aa3b, v{x}', f'v_fma_f32 v{t+1}, v{x}, s{sT2}, -v{t}', f'v_fmac_f32 v{t+1}, 0x32a57060, v{x}',
                f'v_exp_f32 v{t}, v{t}', f'v_mul_f32 v{t+1}, 0x3f317218, v{t+1}', f'v_fmac_f32 v{t}, v{t}, v{t+1}',
                f'v_cvt_pk_bf16_f32 v{t}, v{t}, v{t}', f'v_and_b32 v{x}, 0xffff0000, v{t}']
    p(f'''s_mov_b32 s{sT2}, 0x3fb8aa3b
    s_lshr_b32 s{sT0}, s{sW}, 1
    s_mul_i32 s{sT0}, s{sT0}, {KTS}
    s_and_b32 s{sT1}, s{sW}, 1
    s_lshl_b32 s{sT1}, s{sT1}, 8
    s_add_u32 m0, s{sT0}, s{sT1}
    v_mov_b32 v8, 0
    v_mov_b32 v9, 0
    v_mov_b32 v10, 0
    v_mov_b32 v11, 0
    v_mov_b32 v12, 0x3f80''')
    p(f'ds_write_b128 v{vZA}, v[8:11]\nds_write_addtid_b32 v12 offset:{KT + 32*544}')
    p.extend(merge([expbf(ldt, 0), expbf(lar, 2)]))
    a2, b2 = 4, 5
    Hreg = {h: 16 + 2 * i for i, h in enumerate(HI)}
    Lreg = {k: 58 + 2 * k for k in range(1, 32)}
    Z1, Z2, Z4, Z256 = 122, 124, 126, 128
    p(f'''v_mul_f32 v{a2}, v{lar}, v{ldt}
    v_mul_f32 v{b2}, v{aim}, v{ldt}
    v_mul_f32 v6, v{cre}, v{ldt}
    v_mul_f32 v7, v{cim}, v{ldt}
    v_mul_f32 v{a2}, 0xbfb8aa3b, v{a2}
    v_mul_f32 v{b2}, 0x3e22f983, v{b2}
    v_add_f32 v{Hreg[0]}, v6, v6
    v_add_f32 v{Hreg[0]+1}, v7, v7
    v_mul_f32 v{vDM}, v{vDM}, v{dsk}''')
    def direct(D, pw, t):
        o = []
        if pw != 1: o += [f'v_mul_f32 v{t}, {float(pw)}, v{a2}', f'v_mul_f32 v{t+1}, {float(pw)}, v{b2}', f'v_exp_f32 v{t}, v{t}', f'v_fract_f32 v{t+1}, v{t+1}']
        else: o += [f'v_exp_f32 v{t}, v{a2}', f'v_fract_f32 v{t+1}, v{b2}']
        o += [f'v_cos_f32 v{D}, v{t+1}', f'v_sin_f32 v{D+1}, v{t+1}', f'v_mul_f32 v{D}, v{D}, v{t}', f'v_mul_f32 v{D+1}, v{D+1}, v{t}']
        return o
    p.extend(merge([direct(Lreg[1], 8, 0), direct(Z256, 256, 2), direct(Z1, 1, 8)]))
    cv = [130]
    def put(reg, row, neg):
        t = cv[0]
        return [f'v_cvt_pk_bf16_f32 v{t}, v{reg}, {"-" if neg else ""}v{reg+1}', f'ds_write_addtid_b32 v{t} offset:{KT + row*544}']
    ph = lambda h: put(Hreg[h], HI.index(h), True)
    pl = lambda k: put(Lreg[k], 32 + k, False)
    cv[0] = 130
    c1 = cmul(Lreg[2], Lreg[1], Lreg[1]) + pl(1) + cmul(Lreg[4], Lreg[2], Lreg[2]) + pl(2)
    cv[0] = 131
    c2 = cmul(Z2, Z1, Z1) + ph(0) + cmul(Lreg[3], Lreg[2], Lreg[1]) + cmul(Z4, Z2, Z2)
    cv[0] = 132
    c3 = cmul(Hreg[256], Hreg[0], Z256) + cmul(Hreg[1], Hreg[0], Z1) + ph(256) + ph(1)
    p.extend(merge([c1, c2, c3]))
    chains = []
    for k0 in range(1, 5):
        c = []; cv[0] = 132 + k0
        for k in range(k0, 32, 4):
            if k + 4 < 32: c += cmul(Lreg[k + 4], Lreg[k], Lreg[4])
            if k > 2: c += pl(k)
        chains.append(c)
    c = []; cv[0] = 137
    for h in range(2, 8): c += cmul(Hreg[h], Hreg[h - 1], Z1) + ph(h)
    for h in (258, 260, 262): c += cmul(Hreg[h], Hreg[h - 2], Z2) + ph(h)
    chains.append(c)
    c = []; cv[0] = 138
    for h in range(512, 2049, 256):
        c += cmul(Hreg[h], Hreg[h - 256], Z256) + ph(h)
        if h in (512, 768): c += cmul(Hreg[h + 4], Hreg[h], Z4) + ph(h + 4)
    chains.append(c)
    p.extend(merge(chains))
def kgen_mfma(p):
    ra, rb, t0, t1 = 0, 1, 2, 3
    p(f'''s_lshr_b32 s{sT0}, s{sW}, 1
    s_mul_i32 s{sT0}, s{sT0}, {KTS}
    s_and_b32 s{sT1}, s{sW}, 1
    s_mul_i32 s{sT1}, s{sT1}, {16*544}
    s_add_u32 s{sT1}, s{sT1}, {32*544}
    v_and_b32 v{t0}, 15, v{vL}
    v_mul_u32_u24 v{t0}, 544, v{t0}
    v_lshrrev_b32 v{t1}, 4, v{vL}
    v_lshl_add_u32 v{t0}, v{t1}, 4, v{t0}
    v_add_u32 v{ra}, s{sT0}, v{t0}
    v_add_u32 v{rb}, s{sT1}, v{ra}
    s_waitcnt lgkmcnt(0)
    s_barrier''')
    F = lambda ks, i: 16 + 12 * ks + 4 * i
    for ks in range(8):
        p(f'ds_read_b128 {vr(F(ks,0),4)}, v{rb} offset:{KT + 64*ks}')
        p(f'ds_read_b128 {vr(F(ks,1),4)}, v{ra} offset:{KT + 64*ks}')
        p(f'ds_read_b128 {vr(F(ks,2),4)}, v{ra} offset:{KT + 64*ks + 16*544}')
        if ks >= 3:
            k = ks - 3
            for mt in range(2): p(f'v_mfma_f32_16x16x32_bf16 {vr(4+4*mt,4)}, {vr(F(k,1+mt),4)}, {vr(F(k,0),4)}, {"0" if k == 0 else vr(4+4*mt,4)}')
    for k in range(5, 8):
        for mt in range(2): p(f'v_mfma_f32_16x16x32_bf16 {vr(4+4*mt,4)}, {vr(F(k,1+mt),4)}, {vr(F(k,0),4)}, {vr(4+4*mt,4)}')
    p(f'''v_add_f32 v4, v4, v{vDM}
    v_cvt_pk_bf16_f32 v5, v4, v5
    v_cvt_pk_bf16_f32 v6, v6, v7
    v_cvt_pk_bf16_f32 v8, v8, v9
    v_cvt_pk_bf16_f32 v10, v10, v11
    ds_write_b32 v{vTA}, v5
    ds_write_b32 v{vTA+1}, v6
    ds_write_b16 v{vTA+2}, v8 offset:1024
    ds_write_b16_d16_hi v{vTA+2}, v8 offset:1088
    ds_write_b16 v{vTA+2}, v10 offset:1152
    ds_write_b16_d16_hi v{vTA+2}, v10 offset:1216''')
def expand(p):
    A, B, wa = 16, 28, 0
    p(f'''s_lshr_b32 s{sT0}, s{sW}, 1
    s_mul_i32 s{sT0}, s{sT0}, {IMS}
    s_and_b32 s{sT1}, s{sW}, 1
    s_lshl_b32 s{sT1}, s{sT1}, 11
    s_add_u32 s{sT0}, s{sT0}, s{sT1}
    s_add_u32 s{sT0}, s{sT0}, {IMG}
    v_lshl_add_u32 v{wa}, v{vL}, 5, s{sT0}
    s_waitcnt lgkmcnt(0)
    s_barrier''')
    for k in range(8):
        p(f'ds_read_u16 v{A+k}, v{vGA + 1 + 15 - 2*k}\nds_read_u16 v{B+k}, v{vGA + 1 + 14 - 2*k}')
    p(f'ds_read_u16 v{A+8}, v{vGA}')
    for k in range(8):
        p(f'v_lshl_or_b32 v{40+k}, v{B+k}, 16, v{A+k}\nv_lshl_or_b32 v{B+k}, v{A+k+1}, 16, v{B+k}')
        if k == 3: p(f'ds_write_b128 v{wa}, {vr(40,4)}\nds_write_b128 v{wa}, {vr(B,4)} offset:4160')
    p(f'ds_write_b128 v{wa}, {vr(44,4)} offset:16\nds_write_b128 v{wa}, {vr(B+4,4)} offset:4176')
    return
    for k in range(8):
        p(f'v_alignbit_b32 v{B+k}, v{A+k+1}, v{A+k}, 16')
        if k == 3: p(f'ds_write_b128 v{wa}, {vr(A,4)}\nds_write_b128 v{wa}, {vr(B,4)} offset:4160')
    p(f'ds_write_b128 v{wa}, {vr(A+4,4)} offset:16\nds_write_b128 v{wa}, {vr(B+4,4)} offset:4176')
vU = 224
def u_loads(p):
    t0, t1 = 232, 233
    p(f'''s_lshr_b32 s{sT0}, s{sPI}, 1
    s_lshl_b32 s{sT0}, s{sT0}, 14
    s_and_b32 s{sT1}, s{sPI}, 1
    s_lshl_b32 s{sT1}, s{sT1}, 5
    s_add_u32 s{sT0}, s{sT0}, s{sT1}
    s_lshl_b32 s{sT1}, s{sW}, 11
    s_add_u32 s{sT0}, s{sT0}, s{sT1}
    s_add_u32 s{sT0}, s{sT0}, {WS_UT}
    s_add_u32 s{sT1}, s{sT0}, 8192
    v_lshrrev_b32 v{t0}, 1, v{vL}
    v_and_b32 v{t1}, 1, v{vL}
    v_lshlrev_b32 v{t1}, 4, v{t1}
    v_lshl_add_u32 v{t0}, v{t0}, 6, v{t1}
    buffer_load_dwordx4 {vr(vU,4)}, v{t0}, {srd(S_WS)}, s{sT0} offen sc1
    buffer_load_dwordx4 {vr(vU+4,4)}, v{t0}, {srd(S_WS)}, s{sT1} offen sc1''')
def u_put(p):
    t0, t1 = 232, 233
    p(f'''s_lshl_b32 s{sT0}, s{sW}, 9
    s_add_u32 s{sT0}, s{sT0}, {UIM + 512}
    v_lshrrev_b32 v{t0}, 1, v{vL}
    v_and_b32 v{t1}, 1, v{vL}
    v_mul_u32_u24 v{t1}, {UIS}, v{t1}
    v_lshl_add_u32 v{t0}, v{t0}, 4, v{t1}
    v_add_u32 v{t0}, s{sT0}, v{t0}
    ds_write_b128 v{t0}, {vr(vU,4)}
    ds_write_b128 v{t0}, {vr(vU+4,4)} offset:2048''')
def conv(p, extra=None):
    AR, BR, t0, t1, t2, t3 = 160, 164, 166, 167, 168, 169
    CA = lambda b, a: 32 + 64 * b + 4 * a
    CB = lambda b, j: 64 + 64 * b + 4 * j
    p(f'''s_lshr_b32 s{sT0}, s{sW}, 1
    s_and_b32 s{sT1}, s{sW}, 1
    s_lshl_b32 s{sT1}, s{sT1}, 8
    s_mul_i32 s{sT2}, s{sT0}, {IMS}
    s_sub_u32 s{sT2}, s{sT2}, s{sT1}
    s_add_u32 s{sT2}, s{sT2}, {IMG + 8220 - 192 - 512}
    s_mul_i32 s{sT3}, s{sT0}, {UIS}
    s_sub_u32 s{sT3}, s{sT3}, s{sT1}
    s_add_u32 s{sT3}, s{sT3}, {UIM + 480 - 192}
    v_and_b32 v{t0}, 15, v{vL}
    v_lshrrev_b32 v{t1}, 4, v{vL}
    v_lshlrev_b32 v{t1}, 4, v{t1}
    v_lshl_add_u32 v{t2}, v{t0}, 5, v{t1}
    v_add_u32 v{BR}, s{sT3}, v{t2}
    v_and_b32 v{t2}, 1, v{vL}
    v_mul_u32_u24 v{t2}, 4158, v{t2}
    v_lshl_add_u32 v{t2}, v{t0}, 1, v{t2}
    v_sub_u32 v{t2}, v{t1}, v{t2}
    v_add_u32 v{AR}, s{sT2}, v{t2}
    v_subrev_u32 v{AR+1}, 1024, v{AR}
    v_subrev_u32 v{AR+2}, 2048, v{AR}
    v_subrev_u32 v{AR+3}, 3072, v{AR}
    s_waitcnt lgkmcnt(0)
    s_barrier''')
    def reads(d):
        b = d & 1; o = []
        def A(a):
            off = 16 * (3 - d) + (128 if a % 2 == 0 else 0)
            return [f'ds_read2_b32 {vr(CA(b,a)+2*h,2)}, v{AR+a//2} offset0:{off+2*h} offset1:{off+2*h+1}' for h in range(2)]
        o += A(0)
        for j in range(8): o.append(f'ds_read_b128 {vr(CB(b,j),4)}, v{BR} offset:{512*j + 64*(3-d)}')
        for a in range(1, 8): o += A(a)
        return o
    p.extend(reads(0)[:12]); rest0 = reads(0)[12:]
    for d in range(4):
        b = d & 1; mf = []
        for a in range(8):
            for j in range(a, 8):
                mf.append(f'v_mfma_f32_16x16x32_bf16 {vr(4*j,4)}, {vr(CA(b,a),4)}, {vr(CB(b,j-a),4)}, {"0" if d == 0 and a == 0 else vr(4*j,4)}')
        fill = (rest0 if d == 0 else []) + (reads(d + 1) if d < 3 else [])
        weave(p, mf, fill, (extra or {}).get(d, []), end=34)
def conv_out(p, pre=()):
    wa, ra, va, t0, t1 = 163, 164, 165, 166, 167
    p(f'''s_lshl_b32 s{sT0}, s{sW}, 13
    v_lshrrev_b32 v{t0}, 5, v{vL}
    v_lshlrev_b32 v{t0}, 3, v{t0}
    v_xor_b32 v{t0}, v{t0}, v{vL}
    v_lshl_add_u32 v{wa}, v{t0}, 4, s{sT0}
    s_lshr_b32 s{sT0}, s{sW}, 1
    s_lshl_b32 s{sT0}, s{sT0}, 14
    s_and_b32 s{sT1}, s{sW}, 1
    s_lshl_b32 s{sT1}, s{sT1}, 12
    s_add_u32 s{sT0}, s{sT0}, s{sT1}
    v_and_b32 v{t0}, 1, v{vL}
    v_bfe_u32 v{t1}, v{vL}, 1, 4
    v_lshl_add_u32 v{t1}, v{t0}, 5, v{t1}
    v_lshlrev_b32 v{t0}, 3, v{t0}
    v_xor_b32 v{t1}, v{t1}, v{t0}
    v_lshrrev_b32 v{t0}, 5, v{vL}
    v_lshl_add_u32 v{t1}, v{t0}, 6, v{t1}
    v_lshl_add_u32 v{ra}, v{t1}, 4, s{sT0}
    v_lshlrev_b32 v{va}, 4, v{vL}
    s_lshl_b32 s{sT0}, s{sPI}, 2
    s_add_u32 s{sT0}, s{sT0}, s{sW}
    s_lshl_b32 s{sT0}, s{sT0}, 11
    s_add_u32 s{sT0}, s{sT0}, {WS_AT}''')
    for j in range(8): p(f'ds_write_b128 v{wa}, {vr(4*j,4)} offset:{RED + 1024*j}')
    p.extend(pre)
    p('s_waitcnt lgkmcnt(0)\ns_barrier')
    R = lambda i, h, k: 32 + 16 * i + 8 * k + 4 * h
    for i in range(2):
        for h in range(2):
            for k in range(2): p(f'ds_read_b128 {vr(R(i,h,k),4)}, v{ra} offset:{RED + 8192*k + 2048*i + 256*h}')
    for i in range(2):
        for e in range(0, 8, 2): p(f'v_pk_add_f32 {vr(R(i,0,0)+e,2)}, {vr(R(i,0,0)+e,2)}, {vr(R(i,0,1)+e,2)}')
        for e in range(4): p(f'v_cvt_pk_bf16_f32 v{4*i+e}, v{R(i,0,0)+2*e}, v{R(i,0,0)+2*e+1}')
        p(f'buffer_store_dwordx4 {vr(4*i,4)}, v{va}, {srd(S_WS)}, s{sT0} offen offset:{1024*i} sc1', 'ast')

def k_conv(dbg=False):
    p = Prog(); prologue(p)
    par_zero(p); par_loads(p); u_loads(p); tail_setup(p)
    kgen_valu(p); kgen_mfma(p); u_put(p); expand(p); conv(p); conv_out(p)
    if dbg:
        p(f's_barrier\nv_lshl_add_u32 v0, s{sW}, 6, v{vL}\nv_lshlrev_b32 v0, 4, v0\ns_lshl_b32 s{sT0}, s2, 15\ns_add_u32 s{sT0}, s{sT0}, 0x2000000\nv_add_u32 v1, {TL}, v0')
        for i in range(8):
            p(f'ds_read_b128 v[4:7], v1 offset:{4096*i}\nbuffer_store_dwordx4 v[4:7], v0, {srd(S_WS)}, s{sT0} offen\ns_add_u32 s{sT0}, s{sT0}, 4096\ns_nop 1')
    p('s_endpgm')
    return p

vWA = 236
def wd_setup(p):
    p(f'''s_lshl_b32 s{sT0}, s{sDT}, 2
    s_add_u32 s{sT0}, s{sT0}, s{sW}
    s_mul_i32 s{sT0}, s{sT0}, 57344
    s_add_u32 s{sKW}, s{sT0}, {WS_WDT}
    s_and_b32 s{sT1}, s{sW}, 1
    s_lshl_b32 s{sT1}, s{sT1}, 10
    v_lshl_add_u32 v{vWA}, v{vL}, 4, s{sT1}
    v_xor_b32 v{vWA+1}, 1024, v{vWA}''')
def wd_loads():
    o = []
    for s in range(28):
        for al in range(2):
            o.append(f'buffer_load_dwordx4 {ar(8*s+4*al,4)}, v{vWA+al}, {srd(S_WS)}, s{sKW} offen offset:{2048*(s&1)} sc1')
        if s & 1 and s < 27: o[-1] += f'\ns_add_u32 s{sKW}, s{sKW}, 4096'
    return o
NB = 12
vHB, vHA, vGAa, vG, vAT = 64, 160, 164, 246, 184
def acc2(al, be): return 16 * (al + 2 * be)
def h_setup(p):
    t0, t1 = 182, 183
    p(f'''s_mul_i32 s{sT0}, s{sW}, {56*32768}
    s_lshl_b32 s{sT1}, s{sST}, 10
    s_add_u32 s{sT0}, s{sT0}, s{sT1}
    s_add_u32 s{sKX}, s{sT0}, {WS_H}
    s_lshr_b32 s{sT1}, s{sW}, 1
    s_lshl_b32 s{sT1}, s{sT1}, 9
    v_lshrrev_b32 v{t0}, 5, v{vL}
    v_and_b32 v{t1}, 31, v{vL}
    v_lshl_add_u32 v{t1}, v{t1}, 4, s{sT1}
    v_lshl_add_u32 v{vHA}, v{t0}, 15, v{t1}
    v_xor_b32 v{vHA+1}, 512, v{vHA}''')
def h_loads(s):
    o = [f'buffer_load_dwordx4 {vr(vHB + 8*(s%NB) + 4*be, 4)}, v{vHA+be}, {srd(S_WS)}, s{sKX} offen sc1' for be in range(2)]
    if s < 27: o[-1] += f'\ns_add_u32 s{sKX}, s{sKX}, 65536'
    return o
def a_loads():
    t0, t1 = 182, 183
    return [f'''s_and_b32 s{sT0}, s{sW}, 1
    s_lshl_b32 s{sT1}, s{sDT}, 1
    s_add_u32 s{sT0}, s{sT0}, s{sT1}
    s_lshl_b32 s{sT0}, s{sT0}, 17
    s_lshr_b32 s{sT1}, s{sW}, 1
    s_lshl_b32 s{sT2}, s{sST}, 1
    s_add_u32 s{sT1}, s{sT1}, s{sT2}
    s_lshl_b32 s{sT2}, s{sT1}, 6
    s_add_u32 s{sT0}, s{sT0}, s{sT2}
    s_add_u32 s{sT0}, s{sT0}, {WS_AT}
    s_add_u32 s{sT2}, s{sT0}, 65536''',
    f'''v_lshrrev_b32 v{t0}, 2, v{vL}
    v_and_b32 v{t1}, 3, v{vL}
    v_lshlrev_b32 v{t1}, 4, v{t1}
    v_lshl_add_u32 v{t0}, v{t0}, 12, v{t1}''',
    f'buffer_load_dwordx4 {vr(vAT,4)}, v{t0}, {srd(S_WS)}, s{sT0} offen sc1',
    f'buffer_load_dwordx4 {vr(vAT+4,4)}, v{t0}, {srd(S_WS)}, s{sT2} offen sc1']
def g_load(p):
    t0 = 235
    p(f'''s_lshr_b32 s{sT1}, s{sW}, 1
    s_lshl_b32 s{sT2}, s{sST}, 1
    s_add_u32 s{sT1}, s{sT1}, s{sT2}
    s_lshl_b32 s{sT1}, s{sT1}, 7
    s_add_u32 s{sT1}, s{sT1}, {WS_G}
    v_and_b32 v{t0}, 31, v{vL}
    v_lshlrev_b32 v{t0}, 2, v{t0}
    buffer_load_dword v{vG}, v{t0}, {srd(S_WS)}, s{sT1} offen sc1''')
def a_use():
    t0, t1, t2 = 182, 183, 162
    o = [f'''s_lshl_b32 s{sT0}, s{sW}, 11
    s_add_u32 s{sT0}, s{sT0}, {AS}
    v_lshl_add_u32 v{t0}, v{vL}, 4, s{sT0}''',
    f'''v_lshrrev_b32 v{t1}, 5, v{vL}
    v_bfe_u32 v{t2}, v{vL}, 2, 2
    v_lshl_add_u32 v{t1}, v{t1}, 2, v{t2}''',
    f'''v_bfe_u32 v{t2}, v{vL}, 4, 1
    v_lshl_add_u32 v{t1}, v{t1}, 1, v{t2}
    v_and_b32 v{t2}, 3, v{vL}''',
    f'''v_lshl_add_u32 v{t1}, v{t1}, 2, v{t2}
    v_lshl_add_u32 v{t1}, v{t1}, 3, s{sT0}''',
    f'ds_write_b128 v{t0}, {vr(vAT,4)}', (f'ds_write_b128 v{t0}, {vr(vAT+4,4)} offset:1024', 'aw')]
    for q in range(4): o.append(f'ds_read_b64_tr_b16 {vr(vAT+2*q,2)}, v{t1} offset:{512*q}')
    o.append(f'v_sub_f32 v{vG+1}, 1.0, v{vG}\nv_cvt_pk_bf16_f32 v{vG+1}, v{vG+1}, v{vG+1}\nv_and_b32 v{vG+1}, 0xffff0000, v{vG+1}')
    for i in range(8):
        o.append(f'v_lshlrev_b32 v{vGAa+2*i}, 16, v{vAT+i}\nv_and_b32 v{vGAa+2*i+1}, 0xffff0000, v{vAT+i}')
        o.append(f'v_mul_f32 v{vGAa+2*i}, v{vG}, v{vGAa+2*i}\nv_mul_f32 v{vGAa+2*i+1}, v{vG}, v{vGAa+2*i+1}')
    return o
def gemm2(p, extra=None, pre=0, late=(), mark=lambda: []):
    extra = extra or {}
    PW, PR, ti = 192, 195, 162
    M = lambda s, al, be: f'v_mfma_f32_32x32x16_bf16 {vr(acc2(al,be),16)}, {ar(8*s+4*al,4)}, {vr(vHB+8*(s%NB)+4*be,4)}, {"0" if s == 0 else vr(acc2(al,be),16)}'
    for s in range(pre, NB): p.extend(h_loads(s))
    for k in range(1, 4):
        p(f's_xor_b32 s{sT0}, s{sW}, {k}\ns_mul_i32 s{sT0}, s{sT0}, 12288\ns_add_u32 s{sT0}, s{sT0}, {P2 + 4096*(k-1)}\nv_lshl_add_u32 v{PW+k-1}, v{vL}, 4, s{sT0}')
    p(f's_mul_i32 s{sT0}, s{sW}, 12288\ns_add_u32 s{sT0}, s{sT0}, {P2}\nv_lshl_add_u32 v{PR}, v{vL}, 4, s{sT0}')
    for s in range(24):
        mf = [M(s, 0, 0), M(s, 1, 0), M(s, 0, 1), M(s, 1, 1)]
        ld = h_loads(s + NB) if s + NB < 28 else [[], []]
        ex = extra.get(s, [])
        for m in range(4):
            p(mf[m]); p.extend(ex[len(ex) * m // 4: len(ex) * (m + 1) // 4])
            if m == 1 and ld[0]: p(ld[0])
            if m == 3 and ld[1]: p(ld[1])
    prev = []; late = list(late); nl = len(late)
    for k in (3, 1, 2, 0):
        al, be = k & 1, k >> 1
        mf = [M(s, al, be) for s in range(24, 28)]
        for m in range(4):
            p(mf[m])
            if m >= 1: p.extend(prev[(m - 1) * 2: m * 2])
            for _ in range(-(-nl // 14)):
                if late: p.extend([late.pop(0)])
        prev = [f'ds_write_b128 v{PW+k-1}, {vr(acc2(al,be)+4*q,4)} offset:{1024*q}' for q in range(4)] if k else []
    p.extend(mark())
    t0, t1, va = 182, 183, 196
    p(f'''s_lshr_b32 s{sT1}, s{sW}, 1
    s_lshl_b32 s{sT2}, s{sST}, 1
    s_add_u32 s{sT1}, s{sT1}, s{sT2}
    s_lshl_b32 s{sT1}, s{sT1}, 15
    s_and_b32 s{sT0}, s{sW}, 1
    s_lshl_b32 s{sT2}, s{sDT}, 1
    s_add_u32 s{sT0}, s{sT0}, s{sT2}
    s_lshl_b32 s{sT0}, s{sT0}, 6
    s_add_u32 s{sT0}, s{sT0}, s{sT1}
    v_and_b32 v{t0}, 31, v{vL}
    v_lshrrev_b32 v{t1}, 5, v{vL}
    v_lshlrev_b32 v{t1}, 4, v{t1}
    v_lshl_add_u32 v{va}, v{t0}, 10, v{t1}
    s_waitcnt lgkmcnt(0)
    s_barrier''')
    Q = lambda k, q: 64 + 16 * k + 4 * q
    for q in range(4):
        for k in range(3): p(f'ds_read_b128 {vr(Q(k,q),4)}, v{PR} offset:{4096*k + 1024*q}')
    for q in range(4):
        for e in (0, 2):
            r = 4 * q + e
            p(f'''v_pk_add_f32 {vr(r,2)}, {vr(r,2)}, {vr(Q(0,q)+e,2)}
            v_pk_add_f32 {vr(Q(1,q)+e,2)}, {vr(Q(1,q)+e,2)}, {vr(Q(2,q)+e,2)}''')
        for e in (0, 2):
            r = 4 * q + e
            p(f'v_pk_add_f32 {vr(r,2)}, {vr(r,2)}, {vr(Q(1,q)+e,2)}')
        for e in (0, 2):
            r = 4 * q + e
            p(f'v_pk_fma_f32 {vr(r,2)}, {vr(r,2)}, {vr(vG,2)}, {vr(vGAa+r,2)} op_sel:[0,1,0] op_sel_hi:[1,1,1]')
        for e in (0, 2):
            r = 4 * q + e
            p(f'v_cvt_pk_bf16_f32 v{16 + 2*q + e//2}, v{r}, v{r+1}')
        if q & 1:
            R = 16 + 2 * (q - 1)
            p(f'v_permlane32_swap_b32 v{R}, v{R+2}\nv_permlane32_swap_b32 v{R+1}, v{R+3}')
            p(f'buffer_store_dwordx4 {vr(R,4)}, v{va}, {srd(S_OUT)}, s{sT0} offen offset:{16*(q-1)}')

def spread(lst, a, b):
    n = b - a
    return {a + i: lst[len(lst) * i // n: len(lst) * (i + 1) // n] for i in range(n)}
def k_g2():
    p = Prog(); prologue(p)
    wd_setup(p); p.extend(wd_loads()); g_load(p); h_setup(p)
    ex = spread(a_loads(), 2, 4); ex.update(spread(a_use(), 12, 22))
    gemm2(p, ex)
    p('s_endpgm')
    return p

WS_STAMP = 0x3000000
class Fused:
    def __init__(s, stamps=False):
        s.p = Prog(); s.slow = []; s.stamps = stamps; s.ns = 0; s.want = stamps or []
    def stamp(s, name=None):
        if not s.stamps or (name is not None and name not in s.want): return []
        o = []
        if s.ns: o.append(f's_mov_b32 s{87 + s.ns}, s100')
        o.append('s_memtime s[100:101]'); s.ns += 1
        return o
    def stamp_out(s):
        if not s.stamps: return
        p = s.p
        p(f's_mov_b32 s{87 + s.ns}, s100\ns_lshl_b32 s{sT0}, s2, 2\ns_add_u32 s{sT0}, s{sT0}, s{sW}\ns_lshl_b32 s{sT0}, s{sT0}, 6\ns_add_u32 s{sT0}, s{sT0}, {WS_STAMP}\ns_mov_b64 exec, 1')
        p(f's_memrealtime s[100:101]\nv_mov_b32 v1, s34\nbuffer_store_dword v1, off, {srd(S_WS)}, s{sT0} offset:48\nv_mov_b32 v1, s100\nbuffer_store_dword v1, off, {srd(S_WS)}, s{sT0} offset:52')
        for i in range(s.ns): p(f'v_mov_b32 v1, s{88+i}\nbuffer_store_dword v1, off, {srd(S_WS)}, s{sT0} offset:{4*i}')
    def poll_issue(s, dst, va, S, n=1):
        return [f'buffer_load_dword{"x2" if n == 2 else ""} {vr(dst,n)}, v{va}, {srd(S)}, 0 offen sc1']
    def poll_check(s, dst, va, S, n=1):
        Ls, Lr, Ll = s.p.label('slow'), s.p.label('ret'), s.p.label('spin')
        chk = (f'v_and_b32 v{dst}, v{dst}, v{dst+1}\n' if n == 2 else '') + f'v_cmp_ne_u32 vcc, 1, v{dst}\n'
        s.slow.append(f'''{Ls}:
        s_mov_b32 s{sSP}, 0x8000
        {Ll}:
        {s.poll_issue(dst, va, S, n)[0]}
        s_waitcnt vmcnt(0) lgkmcnt(0)
        {chk}s_cbranch_vccz {Lr}
        s_sub_u32 s{sSP}, s{sSP}, 1
        s_cmp_lg_u32 s{sSP}, 0
        s_cbranch_scc1 {Ll}
        s_branch {Lr}''')
        return [chk + f's_cbranch_vccnz {Ls}\n{Lr}:']
    def flag(s, sreg, one):
        return [f's_mov_b64 exec, 1\nbuffer_store_dword v{one}, off, {srd(S_WS)}, s{sreg} sc1\ns_mov_b64 exec, -1']

sFH, sFA = 78, 79
vONE, vPGO, vPWD, vPUT, vPH, vPA, vF = 238, 239, 240, 241, 242, 243, 244
def flag_setup(p, spare):
    t0 = 192
    p(f'''v_mov_b32 v{vONE}, 1
    v_mov_b32 v{vPGO}, 0
    s_lshl_b32 s{sT0}, s{sW}, 3
    s_add_u32 s{sT0}, s{sT0}, s{sDT}
    s_add_u32 s{sT0}, s{sT0}, 192
    s_lshl_b32 s{sT0}, s{sT0}, 7
    v_and_b32 v{t0}, 3, v{vL}
    v_lshl_add_u32 v{vPWD}, v{t0}, 2, s{sT0}
    v_lshlrev_b32 v{t0}, 3, v{vL}
    v_add_u32 v{vPUT}, {224*128}, v{t0}
    s_lshl_b32 s{sT0}, s{sST}, 2
    s_add_u32 s{sT0}, s{sT0}, s{sW}
    s_lshl_b32 s{sT0}, s{sT0}, 7
    v_min_u32 v{t0}, 6, v{vL}
    v_lshl_add_u32 v{vPH}, v{t0}, 2, s{sT0}
    s_lshr_b32 s{sT0}, s{sST}, 4
    s_lshl_b32 s{sT0}, s{sT0}, 5
    s_lshl_b32 s{sT1}, s{sDT}, 2
    s_add_u32 s{sT0}, s{sT0}, s{sT1}
    s_and_b32 s{sT1}, s{sW}, 1
    s_lshl_b32 s{sT1}, s{sT1}, 1
    s_add_u32 s{sT0}, s{sT0}, s{sT1}
    s_add_u32 s{sT0}, s{sT0}, 128
    s_lshl_b32 s{sT0}, s{sT0}, 7
    v_and_b32 v{t0}, 15, v{vL}
    v_lshl_add_u32 v{vPA}, v{t0}, 2, s{sT0}
    v_bfe_u32 v{t0}, v{vL}, 4, 1
    v_lshl_add_u32 v{vPA}, v{t0}, 7, v{vPA}
    s_lshl_b32 s{sT0}, s{sPI}, 1
    s_lshr_b32 s{sT1}, s{sW}, 1
    s_add_u32 s{sT0}, s{sT0}, s{sT1}
    s_and_b32 s{sT1}, s{sT0}, 15
    s_lshr_b32 s{sT0}, s{sT0}, 4
    s_and_b32 s{sT2}, s{sW}, 1
    s_lshl_b32 s{sT2}, s{sT2}, 5
    s_add_u32 s{sT0}, s{sT0}, s{sT2}
    s_add_u32 s{sT0}, s{sT0}, 128
    s_lshl_b32 s{sT0}, s{sT0}, 5
    s_add_u32 s{sT0}, s{sT0}, s{sT1}
    s_lshl_b32 s{sFA}, s{sT0}, 2''')
    if spare:
        p(f's_lshl_b32 s{sT0}, s{sSI}, 2\ns_add_u32 s{sT0}, s{sT0}, s{sW}\ns_lshl_b32 s{sT0}, s{sT0}, 7\ns_add_u32 s{sFH}, s{sT0}, 0x8000')
    else:
        p(f'''s_lshl_b32 s{sT0}, s{sMI}, 2
        s_add_u32 s{sT0}, s{sT0}, s{sW}
        s_lshl_b32 s{sT0}, s{sT0}, 2
        s_and_b32 s{sT1}, s{sXCD}, 3
        s_add_u32 s{sT0}, s{sT0}, s{sT1}
        s_lshl_b32 s{sT0}, s{sT0}, 5
        s_add_u32 s{sT0}, s{sT0}, s{sDT}
        s_lshl_b32 s{sFH}, s{sT0}, 2''')
def as_list(fn, *a):
    q = Prog(); fn(q, *a); return q.ins

def k_fused(stamps=False, cfg=None):
    cfg = dict(nwd=30, hflag=2, aflag=9, apoll=13, achk=17) | (cfg or {})
    F = Fused(stamps); p = F.p
    if stamps: p('s_memrealtime s[34:35]')
    p.extend(F.stamp()); prologue(p)
    Lsp, Ltail = p.label('spare'), p.label('tail')
    p(f's_cmp_ge_u32 s{sJ}, 28\ns_cbranch_scc1 {Lsp}')
    p.extend(F.stamp('pro'))
    g1_setup(p)
    for t in range(3): p.extend(g1_dma(t))
    p.extend(F.stamp('dma'))
    par_loads(p); g1_setup2(p); tail_setup(p); flag_setup(p, False)
    p.extend(F.stamp('setup'))
    if stamps: p.waitvm('dma0'); p.extend(F.stamp('d0'))
    wl = wd_loads(); n1 = cfg['nwd']
    post = {0: F.stamp('s0'), 1: F.stamp('s1'), 2: F.stamp('s2'),
            3: F.stamp('s3') + F.poll_issue(vF, vPGO, S_DBG),
            4: F.stamp('s4') + F.poll_check(vF, vPGO, S_DBG) + F.poll_issue(vF, vPWD, S_WS),
            5: F.stamp('s5') + F.poll_check(vF, vPWD, S_WS) + F.stamp('s5b') + F.poll_issue(vF, vPUT, S_WS, 2) + as_list(wd_setup),
            6: F.stamp('s6') + F.poll_check(vF, vPUT, S_WS, 2) + F.stamp('s6b') + as_list(u_loads) + as_list(g_load)}
    keys = [(6, 0), (6, 1), (6, 2), (6, 3), (7, 0), (7, 1), (7, 2), (7, 3)]
    extra = {k: wl[n1 * i // 8: n1 * (i + 1) // 8] for i, k in enumerate(keys)}
    g1_main(p, extra, post); p.extend(F.stamp('g1'))
    g1_epilogue(p); u_put(p)
    p.extend(wl[n1:])
    p(f'{Ltail}:'); tail0 = F.ns; p.extend(F.stamp())
    kgen_valu(p); p.extend(F.stamp('kv')); kgen_mfma(p); expand(p); p.extend(F.stamp('ex'))
    ex = {cfg['hflag']: [Ins('WAITVM hst')] + F.flag(sFH, vONE)}
    ex.setdefault(3, []); ex[3] = ex[3] + [[]] * 4 + F.poll_issue(vF, vPH, S_WS)
    ex = {k: [x for x in v if x != []] for k, v in ex.items()}
    conv(p, ex); p.extend(F.stamp('cv'))
    h_setup(p)
    p.extend(F.poll_check(vF, vPH, S_WS)); p.extend(F.stamp('hf'))
    HP = 4
    conv_out(p, pre=[x for s in range(NB) for x in h_loads(s)])
    p.extend(F.stamp('co'))
    ex = {cfg['aflag']: [Ins('WAITVM ast')] + F.flag(sFA, vONE), cfg['apoll']: F.poll_issue(vF, vPA, S_WS),
          cfg['achk']: F.poll_check(vF, vPA, S_WS) + F.stamp('af') + a_loads()}
    gemm2(p, ex, pre=NB, late=a_use(), mark=lambda: F.stamp('g2'))
    p.extend(F.stamp()); F.stamp_out()
    p('s_endpgm')
    p(f'{Lsp}:')
    if stamps: p('s_mov_b32 s88, s100')
    Lk = p.label('noclr'); Lg = p.label('nogo')
    p(f'''s_cmp_lg_u32 s{sSI}, 0
    s_cbranch_scc1 {Lk}
    v_mov_b32 v4, 0
    v_mov_b32 v5, 0
    v_mov_b32 v6, 0
    v_mov_b32 v7, 0
    v_lshlrev_b32 v1, 4, v0''')
    for i in range(8): p(f's_mov_b32 s{sT0}, {4096*i}\nbuffer_store_dwordx4 v[4:7], v1, {srd(S_WS)}, s{sT0} offen sc1')
    p(f'{Lk}:')
    spare_issue(p); par_loads(p); tail_setup(p); flag_setup(p, True)
    p.waitvm('wdma'); p('s_barrier')
    if stamps: p('s_memtime s[100:101]\ns_waitcnt lgkmcnt(0)\ns_mov_b32 s89, s100')
    p(f'''s_or_b32 s{sT0}, s{sSI}, s{sW}
    s_cmp_lg_u32 s{sT0}, 0
    s_cbranch_scc1 {Lg}
    s_mov_b64 exec, 1''')
    p(f'buffer_store_dword v{vONE}, off, {srd(S_DBG)}, 0 sc1', 'untracked')
    p(f's_mov_b64 exec, -1\n{Lg}:')
    spare_wd(p)
    p.extend(F.poll_issue(vF, vPGO, S_DBG))
    spare_ut(p); spare_g(p)
    p.extend(F.poll_check(vF, vPGO, S_DBG))
    p(f'''s_add_u32 s{sT0}, s{sSI}, 192
    s_lshl_b32 s{sT0}, s{sT0}, 5
    s_add_u32 s{sT0}, s{sT0}, s{sW}
    s_lshl_b32 s{sT0}, s{sT0}, 2
    s_add_u32 s{sT1}, s{sW}, 224
    s_lshl_b32 s{sT1}, s{sT1}, 5
    s_add_u32 s{sT1}, s{sT1}, s{sSI}
    s_lshl_b32 s{sT1}, s{sT1}, 2''')
    p.waitvm('wst'); p.extend(F.flag(sT0, vONE))
    if stamps: p('s_memtime s[100:101]\ns_waitcnt lgkmcnt(0)\ns_mov_b32 s90, s100')
    p.waitvm('gst'); p.extend(F.flag(sT1, vONE))
    if stamps: p('s_memtime s[100:101]\ns_waitcnt lgkmcnt(0)\ns_mov_b32 s91, s100')
    p.extend(F.poll_issue(vF, vPWD, S_WS)); wd_setup(p); p.extend(F.poll_check(vF, vPWD, S_WS))
    p.extend(wd_loads())
    p.extend(F.poll_issue(vF, vPUT, S_WS, 2)); p.extend(F.poll_check(vF, vPUT, S_WS, 2))
    u_loads(p); g_load(p)
    p('s_barrier'); u_put(p)
    if stamps: p('s_memtime s[100:101]\ns_waitcnt lgkmcnt(0)')
    p(f's_waitcnt vmcnt(0) lgkmcnt(0)\ns_branch {Ltail}')
    for x in F.slow: p(x)
    return p
```

```python
from t_all import *
def show_stamps(env, n, names=None):
    import numpy as np
    R = env.read(env.ws, np.uint32, 256 * 4 * 16, WS_STAMP).reshape(256, 4, 16).astype(np.int64)
    S = (R[:, :, :n] - R[:, :, :1]) & 0xffffffff
    t0 = R[:, :, 12].min()
    st = (R[:, :, 12] - t0) * 24; en = (R[:, :, 13] - t0) * 24
    print('start skew cyc(24/tick) med %d max %d   end med %d max %d' % (np.median(st), st.max(), np.median(en), en.max()))
    for nm, D in (('main ', S[:224]), ('spare', S[224:])):
        D = D.reshape(-1, n)
        print(nm, 'med', ' '.join(f'{v:6.0f}' for v in np.median(D, 0)))
        print(nm, 'max', ' '.join(f'{v:6.0f}' for v in D.max(0)))
if __name__ == '__main__':
    import json
    W = sys.argv[3].split(',') if len(sys.argv) > 3 else 's0,g1,kv,ex,cv,hf,co,af,g2'.split(',')
    cfg = json.loads(sys.argv[2]) if len(sys.argv) > 2 else {}
    build_file('fu.s', [(KN, k_fused(False, cfg))])
    build_file('fus.s', [(KN, k_fused(W, cfg))])
    if sys.argv[1] == 'gen': sys.exit()
    from harness import *
    ref = np.load('ref0.npz'); env = Env(ref)
    k, g, b, lds = build('fus.s', KN + '_kernel')
    print('stamps: start', W, '(tail,end always)')
    for it in range(3):
        env.cold(); env.launch(k, g, b, lds, 2); env.sync()
        if it == 0: check_spare(env, ref); check_conv(env, ref)
        check_out(env, ref); show_stamps(env, 12)
    for it in range(2):
        env.memset(env.dbg, 0); env.sync(); env.launch(k, g, b, lds, 2); env.sync()
        check_out(env, ref); show_stamps(env, 12)
```

```python
import sys
from core import *
KN = 'gated_mix__ssm_conv_s4d__glu_gated_reglu__prompt'
WS_WDT, WS_UT, WS_G, WS_H, WS_AT = 0x100000, 0x300000, 0x500000, 0x600000, 0xD00000
S_X, S_WG, S_WU, S_WS, S_OUT, S_P, S_DBG = 36, 40, 44, 48, 52, 56, 60
sXCD, sJ, sW, sMI, sFI, sST, sDT, sROT, sKX, sKW, sXM, sWM, sSI, sPI = range(64, 78)
sT0, sT1, sT2, sT3, sT4, sT5 = range(80, 86)
sSP = 86
def srd(i): return f's[{i}:{i+3}]'
def vr(a, n=1): return f'v{a}' if n == 1 else f'v[{a}:{a+n-1}]'
def ar(a, n=1): return f'a{a}' if n == 1 else f'a[{a}:{a+n-1}]'
vL = 255

def mk_srd(p, d, ptr, size):
    p(f's_mov_b32 s{d}, s{ptr}\ns_mov_b32 s{d+1}, s{ptr+1}\ns_mov_b32 s{d+2}, {hex(size)}\ns_mov_b32 s{d+3}, 0x00020000')

def prologue(p):
    L = p.label('go')
    p(f'''s_cmp_lt_u32 s2, 256
    s_cbranch_scc1 {L}
    s_endpgm
    {L}:
    s_load_dwordx16 s[4:19], s[0:1], 0
    s_load_dwordx8 s[20:27], s[0:1], 64
    s_load_dwordx4 s[28:31], s[0:1], 96
    s_load_dwordx2 s[32:33], s[0:1], 112
    v_lshrrev_b32 v1, 6, v0
    v_and_b32 v{vL}, 63, v0
    v_readfirstlane_b32 s{sW}, v1
    s_and_b32 s{sXCD}, s2, 7
    s_lshr_b32 s{sJ}, s2, 3
    s_and_b32 s{sT0}, s{sJ}, 3
    s_lshr_b32 s{sDT}, s{sJ}, 2
    s_lshr_b32 s{sT1}, s{sXCD}, 2
    s_lshl_b32 s{sT1}, s{sT1}, 2
    s_add_u32 s{sMI}, s{sT1}, s{sT0}
    s_and_b32 s{sT1}, s{sXCD}, 3
    s_mul_i32 s{sT1}, s{sT1}, 7
    s_add_u32 s{sFI}, s{sT1}, s{sDT}
    s_lshl_b32 s{sT1}, s{sXCD}, 2
    s_add_u32 s{sST}, s{sT1}, s{sT0}
    s_lshl_b32 s{sT2}, s{sT0}, 1
    s_add_u32 s{sROT}, s{sT2}, s{sDT}
    s_and_b32 s{sROT}, s{sROT}, 7
    s_mov_b32 s{sSI}, s{sST}
    s_lshl_b32 s{sPI}, s{sXCD}, 5
    s_add_u32 s{sPI}, s{sPI}, s{sJ}''')
    mk_srd(p, S_X, 4, 2048 * 1024); mk_srd(p, S_WG, 20, 512 * 3584); mk_srd(p, S_WU, 22, 512 * 3584)
    mk_srd(p, S_WS, 32, 0x10000000); mk_srd(p, S_OUT, 28, 2048 * 1024); mk_srd(p, S_DBG, 30, 256)

G1_B, G1_A, G1_XR, G1_WR, G1_DX, G1_DW = 128, 144, 176, 180, 182, 190
def acc1(st, mat, ft): return 16 * (4 * st + 2 * mat + ft)
def g1_setup(p):
    t0, t1, t2, t3 = 192, 193, 194, 195
    p(f'''v_lshrrev_b32 v{t0}, 3, v{vL}
    v_and_b32 v{t1}, 7, v{vL}
    v_lshrrev_b32 v{t2}, 1, v{t0}
    v_xor_b32 v{t3}, v{t1}, v{t2}
    v_lshlrev_b32 v{t3}, 4, v{t3}
    v_lshl_add_u32 v{t3}, v{t0}, 10, v{t3}
    s_lshl_b32 s{sT0}, s{sMI}, 2
    s_add_u32 s{sT0}, s{sT0}, s{sW}
    s_lshl_b32 s{sT0}, s{sT0}, 16
    v_add_u32 v{G1_DX}, s{sT0}, v{t3}
    v_xor_b32 v{G1_DX+1}, 64, v{G1_DX}''')
    for i in range(7, 0, -1):
        p(f'v_add_u32 v{G1_DX+i}, {8192*i - 1024*(i&3)}, v{G1_DX+(i&1)}')
    p(f'''v_and_b32 v{t2}, 1, v{t2}
    v_lshlrev_b32 v{t2}, 2, v{t2}
    v_xor_b32 v{t2}, v{t1}, v{t2}
    v_lshlrev_b32 v{t2}, 4, v{t2}
    v_mul_u32_u24 v{t0}, 3584, v{t0}
    s_mul_i32 s{sT0}, s{sW}, {16*3584}
    s_lshl_b32 s{sT1}, s{sFI}, 7
    s_add_u32 s{sT0}, s{sT0}, s{sT1}
    v_add3_u32 v{G1_DW}, v{t0}, v{t2}, s{sT0}
    v_add_u32 v{G1_DW+1}, {8*3584-1024}, v{G1_DW}
    s_mul_i32 s{sXM}, s{sW}, 24576
    s_lshl_b32 s{sWM}, s{sW}, 11
    s_add_u32 s{sWM}, s{sWM}, 98304''')
def g1_dma(t):
    sl = t % 3; o = []
    o.append(f's_add_u32 s{sT0}, s{sROT}, {t}\ns_and_b32 s{sT0}, s{sT0}, 7\ns_lshl_b32 s{sKX}, s{sT0}, 7\ns_mul_i32 s{sKW}, s{sT0}, {64*3584}')
    for mat, S in ((0, S_WG), (1, S_WU)):
        o.append(f's_add_u32 m0, s{sWM}, {sl*16384 + mat*8192}')
        for i in range(2): o.append(f'buffer_load_dwordx4 v{G1_DW+i}, {srd(S)}, s{sKW} offen offset:{1024*i} lds')
    for i in range(8):
        if i % 4 == 0: o.append(f's_add_u32 m0, s{sXM}, {sl*8192 + 1024*i}')
        o.append(f'buffer_load_dwordx4 v{G1_DX+i}, {srd(S_X)}, s{sKX} offen offset:{1024*(i&3)} lds')
    o[-1] = (o[-1], f'dma{t}')
    return o
def g1_setup2(p):
    t0, t1, t2, t3 = 192, 193, 194, 195
    p(f'''v_and_b32 v{t0}, 31, v{vL}
    v_lshrrev_b32 v{t1}, 5, v{vL}
    v_bfe_u32 v{t2}, v{vL}, 1, 3
    v_xor_b32 v{t2}, v{t2}, v{t1}
    v_lshlrev_b32 v{t2}, 4, v{t2}
    v_lshl_add_u32 v{t2}, v{t0}, 7, v{t2}
    v_add_u32 v{G1_XR}, s{sXM}, v{t2}''')
    for s in range(1, 4): p(f'v_xor_b32 v{G1_XR+s}, {32*s}, v{G1_XR}')
    p(f'''v_bfe_u32 v{t0}, v{vL}, 2, 2
    v_lshl_add_u32 v{t0}, v{t1}, 3, v{t0}
    v_bfe_u32 v{t1}, v{vL}, 4, 1
    v_bfe_u32 v{t2}, v{vL}, 1, 1
    v_lshl_add_u32 v{t1}, v{t1}, 1, v{t2}
    v_bfe_u32 v{t2}, v{vL}, 3, 1
    v_lshl_add_u32 v{t1}, v{t2}, 2, v{t1}
    v_and_b32 v{t2}, 1, v{vL}
    v_lshlrev_b32 v{t2}, 3, v{t2}
    v_lshl_add_u32 v{t2}, v{t1}, 4, v{t2}
    v_lshl_add_u32 v{t2}, v{t0}, 7, v{t2}
    v_add_u32 v{G1_WR}, 98304, v{t2}
    v_xor_b32 v{G1_WR+1}, 64, v{G1_WR}''')
def g1_reads(t, s):
    b = (4 * t + s) & 1; sl = t % 3; o = []
    B = lambda st: f'ds_read_b128 {vr(G1_B + 8*b + 4*st, 4)}, v{G1_XR+s} offset:{sl*8192 + st*4096}'
    o.append(B(0))
    for mat in range(2):
        for ft in range(2):
            r = G1_A + 16 * b + 4 * (2 * mat + ft)
            for h in range(2):
                o.append(f'ds_read_b64_tr_b16 {vr(r+2*h, 2)}, v{G1_WR+ft} offset:{sl*16384 + mat*8192 + s*2048 + h*512}')
    o.append(B(1))
    return o
def g1_mfmas(t, s):
    b = (4 * t + s) & 1; o = []
    for st in range(2):
        for mat in range(2):
            for ft in range(2):
                c = acc1(st, mat, ft)
                src = '0' if (t == 0 and s == 0) else vr(c, 16)
                o.append(f'v_mfma_f32_32x32x16_bf16 {vr(c,16)}, {vr(G1_A + 16*b + 4*(2*mat+ft), 4)}, {vr(G1_B + 8*b + 4*st, 4)}, {src}')
    return o
def g1_main(p, extra=None, post=None):
    extra = extra or {}; post = post or {}
    p.waitvm('dma0'); p('s_barrier')
    p.extend(g1_reads(0, 0))
    pend = []
    for t in range(8):
        for s in range(4):
            mf = g1_mfmas(t, s)
            slots = [[] for _ in range(8)]
            if s < 3:
                rd = g1_reads(t, s + 1)
                for i, x in enumerate(rd): slots[i // 2].append(x)
            elif t < 7:
                slots[1] += [Ins('s_waitcnt lgkmcnt(0)'), Ins(f'WAITVM dma{t+1}'), 's_barrier']
                rd = g1_reads(t + 1, 0)
                for i, x in enumerate(rd): slots[1 + i // 2].append(x)
                slots[1] += post.get(t, [])
                if t + 3 < 8: pend = g1_dma(t + 3)
            else:
                slots[1] += [Ins('s_waitcnt lgkmcnt(0)'), 's_barrier'] + post.get(t, [])
            lo = 6 if s == 3 else 5 if s < 2 else 0
            if s == 3: n = min(len(pend), 4)
            elif s < 2: n = min(len(pend), 7)
            else: n = len(pend)
            for i in range(n): slots[lo + i * (8 - lo) // max(n, 1)].append(pend.pop(0))
            ex = extra.get((t, s), [])
            for i, x in enumerate(ex): slots[i * 8 // len(ex)].append(x)
            for m in range(8):
                p(mf[m]); p.extend(slots[m])
    assert not pend
def g1_epilogue(p):
    H, va = 128, 192
    p(f'''s_lshl_b32 s{sT0}, s{sMI}, 2
    s_add_u32 s{sT0}, s{sT0}, s{sW}
    s_lshl_b32 s{sT0}, s{sT0}, 10
    s_lshl_b32 s{sT1}, s{sFI}, 18
    s_add_u32 s{sT0}, s{sT0}, s{sT1}
    s_add_u32 s{sT0}, s{sT0}, {WS_H}
    v_lshlrev_b32 v{va}, 4, v{vL}''')
    for ft in range(2):
        for q in range(4):
            R = H + 4 * (4 * ft + q)
            for st in range(2):
                g = acc1(st, 0, ft) + 4 * q; u = acc1(st, 1, ft) + 4 * q
                for e in range(4): p(f'v_max_f32 v{g+e}, 0, v{g+e}')
                for e in (0, 2): p(f'v_pk_mul_f32 {vr(g+e,2)}, {vr(g+e,2)}, {vr(u+e,2)}')
                for e in (0, 2): p(f'v_cvt_pk_bf16_f32 v{R + 2*st + e//2}, v{g+e}, v{g+e+1}')
            p(f'v_permlane32_swap_b32 v{R}, v{R+2}\nv_permlane32_swap_b32 v{R+1}, v{R+3}')
            p(f'buffer_store_dwordx4 {vr(R,4)}, v{va}, {srd(S_WS)}, s{sT0} offen sc1', 'hst')
            if (ft, q) != (1, 3): p(f's_add_u32 s{sT0}, s{sT0}, 32768')

def k_gemm1():
    p = Prog(); prologue(p)
    L = p.label('main')
    p(f's_cmp_lt_u32 s{sJ}, 28\ns_cbranch_scc1 {L}\ns_endpgm\n{L}:')
    g1_setup(p)
    for t in range(3): p.extend(g1_dma(t))
    g1_setup2(p)
    g1_main(p); g1_epilogue(p)
    p('s_endpgm')
    return p

SP_X = 0
SP_W = 73728
def spare_issue(p):
    t0, t1, t2, t3, vw, vx = 1, 2, 3, 4, 8, 10
    mk_srd(p, S_P, 24, 1792 * 1024)
    p(f'''s_lshr_b32 s{sT0}, s{sSI}, 3
    s_lshl_b32 s{sT0}, s{sT0}, 2
    s_add_u32 s{sT0}, s{sT0}, s{sW}
    s_mul_i32 s{sT0}, s{sT0}, {112*1024}
    s_and_b32 s{sT1}, s{sSI}, 7
    s_lshl_b32 s{sT1}, s{sT1}, 7
    s_add_u32 s{sT0}, s{sT0}, s{sT1}
    v_lshrrev_b32 v{t0}, 3, v{vL}
    v_and_b32 v{t1}, 7, v{vL}
    v_bfe_u32 v{t2}, v{vL}, 4, 1
    v_lshlrev_b32 v{t2}, 2, v{t2}
    v_xor_b32 v{t2}, v{t1}, v{t2}
    v_lshlrev_b32 v{t2}, 4, v{t2}
    v_lshl_add_u32 v{vw}, v{t0}, 10, v{t2}
    s_mul_i32 s{sWM}, s{sW}, 14336
    s_add_u32 s{sWM}, s{sWM}, {SP_W}''')
    for i in range(14):
        p(f's_add_u32 m0, s{sWM}, {1024*i}')
        p(f'buffer_load_dwordx4 v{vw}, {srd(S_P)}, s{sT0} offen lds', 'wdma')
        if i < 13: p(f's_add_u32 s{sT0}, s{sT0}, 8192')
    p(f'''s_lshl_b32 s{sT1}, s{sW}, 2
    s_and_b32 s{sT1}, s{sT1}, 7
    v_xor_b32 v{t0}, s{sT1}, v{vL}
    v_lshlrev_b32 v{vx}, 4, v{t0}
    v_xor_b32 v{vx+1}, 16, v{vx}
    v_xor_b32 v{vx+2}, 32, v{vx}
    v_xor_b32 v{vx+3}, 48, v{vx}
    s_lshl_b32 s{sT0}, s{sSI}, 2
    s_add_u32 s{sT0}, s{sT0}, s{sW}
    s_lshl_b32 s{sT0}, s{sT0}, 14
    s_mul_i32 s{sXM}, s{sW}, {16*1152}''')
    for i in range(16):
        p(f's_add_u32 m0, s{sXM}, {SP_X + 1152*i}')
        p(f'buffer_load_dwordx4 v{vx + 2*(i>>3) + ((i>>1)&1)}, {srd(S_X)}, s{sT0} offen lds', 'xdma')
        if i < 15: p(f's_add_u32 s{sT0}, s{sT0}, 1024')
    mk_srd(p, S_WG, 26, 1024)
    p(f'v_and_b32 v{t0}, 3, v{vL}\nv_lshlrev_b32 v{t0}, 4, v{t0}')
    for i in range(16): p(f'buffer_load_dwordx4 {vr(128+4*i,4)}, v{t0}, {srd(S_WG)}, 0 offen offset:{64*i}')
def spare_wd(p):
    t0, t1, t2, ra, va = 1, 2, 3, 8, 14
    p(f'''v_lshrrev_b32 v{t1}, 5, v{vL}
    v_bfe_u32 v{t0}, v{vL}, 2, 2
    v_lshl_add_u32 v{t0}, v{t1}, 3, v{t0}
    v_bfe_u32 v{t1}, v{vL}, 4, 1
    v_bfe_u32 v{t2}, v{vL}, 1, 1
    v_lshl_add_u32 v{t1}, v{t1}, 1, v{t2}
    v_bfe_u32 v{t2}, v{vL}, 3, 1
    v_lshl_add_u32 v{t1}, v{t2}, 2, v{t1}
    v_and_b32 v{t2}, 1, v{vL}
    v_lshlrev_b32 v{t2}, 3, v{t2}
    v_lshl_add_u32 v{t2}, v{t1}, 4, v{t2}
    v_lshl_add_u32 v{t2}, v{t0}, 7, v{t2}
    v_add_u32 v{ra}, s{sWM}, v{t2}
    v_xor_b32 v{ra+1}, 64, v{ra}
    v_lshlrev_b32 v{va}, 4, v{vL}
    s_and_b32 s{sT0}, s{sSI}, 7
    s_lshl_b32 s{sT0}, s{sT0}, 2
    s_lshr_b32 s{sT1}, s{sSI}, 3
    s_add_u32 s{sT0}, s{sT0}, s{sT1}
    s_lshl_b32 s{sT0}, s{sT0}, 2
    s_add_u32 s{sT0}, s{sT0}, s{sW}
    s_mul_i32 s{sT0}, s{sT0}, 14336
    s_add_u32 s{sT0}, s{sT0}, {WS_WDT}''')
    p.waitvm('wdma')
    for s in range(7):
        for d in range(2):
            r = 16 + 4 * (2 * s + d)
            for h in range(2): p(f'ds_read_b64_tr_b16 {vr(r+2*h,2)}, v{ra+d} offset:{s*2048 + h*512}')
    for i in range(14):
        p(f'buffer_store_dwordx4 {vr(16+4*i,4)}, v{va}, {srd(S_WS)}, s{sT0} offen offset:{1024*(i&3)} sc1', 'wst')
        if i & 3 == 3: p(f's_add_u32 s{sT0}, s{sT0}, 4096')
def spare_ut(p):
    t0, t1, t2, t3, ra, va = 1, 2, 3, 4, 72, 14
    p(f'''v_and_b32 v{t0}, 3, v{vL}
    v_lshrrev_b32 v{t1}, 5, v{vL}
    v_lshl_add_u32 v{t1}, v{t1}, 2, v{t0}
    v_bfe_u32 v{t2}, v{vL}, 2, 2
    v_lshl_add_u32 v{t1}, v{t1}, 3, v{t2}
    v_mul_u32_u24 v{t1}, 1152, v{t1}
    v_bfe_u32 v{t2}, v{vL}, 3, 1
    v_lshl_add_u32 v{t0}, v{t0}, 1, v{t2}
    v_lshl_add_u32 v{t1}, v{t0}, 4, v{t1}
    v_bfe_u32 v{t2}, v{vL}, 4, 1
    v_lshl_add_u32 v{t1}, v{t2}, 3, v{t1}
    s_lshl_b32 s{sT0}, s{sW}, 8
    v_add_u32 v{ra}, s{sT0}, v{t1}''')
    for k in range(1, 8): p(f'v_xor_b32 v{ra+k}, {16*k}, v{ra}')
    p(f'''v_and_b32 v{t0}, 15, v{vL}
    v_lshlrev_b32 v{t0}, 4, v{t0}
    v_lshrrev_b32 v{t1}, 5, v{vL}
    v_lshl_add_u32 v{t0}, v{t1}, 8, v{t0}
    v_lshl_add_u32 v{va}, v{t2}, 14, v{t0}
    s_lshl_b32 s{sT0}, s{sW}, 19
    s_lshl_b32 s{sT1}, s{sSI}, 9
    s_add_u32 s{sT0}, s{sT0}, s{sT1}
    s_add_u32 s{sT0}, s{sT0}, {WS_UT}''')
    p.waitvm('xdma'); p('s_barrier')
    for k in range(16):
        r = 16 + 4 * (k % 8) if k < 8 else 80 + 4 * (k % 8)
        for h in range(2): p(f'ds_read_b64_tr_b16 {vr(r+2*h,2)}, v{ra+(k&7)} offset:{SP_X + (k>>3)*128 + h*4608}')
    for k in range(16):
        r = 16 + 4 * (k % 8) if k < 8 else 80 + 4 * (k % 8)
        p(f'buffer_store_dwordx4 {vr(r,4)}, v{va}, {srd(S_WS)}, s{sT0} offen sc1', 'ust')
        if k < 15: p(f's_add_u32 s{sT0}, s{sT0}, 32768')
def spare_g(p):
    t0, t1, t2, ra, ac = 1, 2, 3, 8, 10
    p(f'''s_lshl_b32 s{sT0}, s{sW}, 4
    v_lshrrev_b32 v{t0}, 2, v{vL}
    v_add_u32 v{t0}, s{sT0}, v{t0}
    v_bfe_u32 v{t1}, v{t0}, 3, 2
    v_bfe_u32 v{t2}, v{t0}, 1, 1
    v_lshl_add_u32 v{t1}, v{t1}, 1, v{t2}
    v_and_b32 v{t2}, 3, v{vL}
    v_xor_b32 v{t1}, v{t1}, v{t2}
    v_mul_u32_u24 v{ra}, 1152, v{t0}
    v_lshl_add_u32 v{ra}, v{t1}, 4, v{ra}
    v_xor_b32 v{ra+1}, 64, v{ra}''')
    for i in range(16): p(f'ds_read_b128 {vr(16+4*i,4)}, v{ra+(i&1)} offset:{SP_X + (i>>1)*128}')
    for e in range(4): p(f'v_mov_b32 v{ac+e}, 0')
    for i in range(16):
        for e in range(4): p(f'v_dot2c_f32_bf16 v{ac+e}, v{16+4*i+e}, v{128+4*i+e}')
    p(f'''v_add_f32 v{ac}, v{ac}, v{ac+1}
    v_add_f32 v{ac+2}, v{ac+2}, v{ac+3}
    v_add_f32 v{ac}, v{ac}, v{ac+2}
    v_add_f32_dpp v{ac+1}, v{ac}, v{ac} quad_perm:[1,0,3,2] row_mask:0xf bank_mask:0xf
    v_add_f32_dpp v{ac}, v{ac+1}, v{ac+1} quad_perm:[2,3,0,1] row_mask:0xf bank_mask:0xf
    v_cvt_pk_bf16_f32 v{ac}, v{ac}, v{ac}
    v_and_b32 v{ac}, 0xffff0000, v{ac}
    v_mul_f32 v{ac}, 0xbfb8aa3b, v{ac}
    v_exp_f32 v{ac}, v{ac}
    v_add_f32 v{ac}, 1.0, v{ac}
    v_rcp_f32 v{ac}, v{ac}
    v_cvt_pk_bf16_f32 v{ac}, v{ac}, v{ac}
    v_and_b32 v{ac}, 0xffff0000, v{ac}
    s_lshl_b32 s{sT0}, s{sSI}, 8
    s_add_u32 s{sT0}, s{sT0}, {WS_G}
    v_lshlrev_b32 v{t0}, 2, v{t0}''')
    p(f'buffer_store_dword v{ac}, v{t0}, {srd(S_WS)}, s{sT0} offen sc1', 'gst')

def k_spare():
    p = Prog(); prologue(p)
    L = p.label('main')
    p(f's_cmp_ge_u32 s{sJ}, 28\ns_cbranch_scc1 {L}\ns_endpgm\n{L}:')
    spare_issue(p); spare_wd(p); spare_ut(p); spare_g(p)
    p('s_endpgm')
    return p

KT, KTS = 0, 34816
TL, TLS = 69632, 2064
IMG, IMS = 73760, 8320
UIM, UIS = 90400, 4672
RED = 0
AS = 99840
P2 = 108032
vPAR = 196
vGA = 202
vTA = 219
vZA = 222
vDM = 223
def par_loads(p):
    t0, t1 = 192, 193
    p(f'''s_lshl_b32 s{sT0}, s{sPI}, 2
    s_add_u32 s{sT0}, s{sT0}, s{sW}
    s_lshl_b32 s{sT1}, s{sT0}, 7
    v_lshl_add_u32 v{t0}, v{vL}, 1, s{sT1}
    s_lshr_b32 s{sT0}, s{sT0}, 1
    s_lshl_b32 s{sT0}, s{sT0}, 1
    v_mov_b32 v{t1}, s{sT0}''')
    for i in range(4): p(f'global_load_short_d16_hi v{vPAR+i}, v{t0}, s[{6+2*i}:{7+2*i}]')
    for i in range(2): p(f'global_load_short_d16_hi v{vPAR+4+i}, v{t1}, s[{14+2*i}:{15+2*i}]')
def par_zero(p):
    for i in range(6): p(f'v_mov_b32 v{vPAR+i}, 0')
def rne_off(s, e):
    q, r = divmod(e, 1 << s); h = (1 << s) // 2
    if s and (r > h or (r == h and q & 1)): q += 1
    return q
def tail_setup(p):
    t0, t1, t2, t3, t4 = 192, 193, 194, 195, 234
    p(f'''s_lshr_b32 s{sT0}, s{sW}, 1
    s_and_b32 s{sT1}, s{sW}, 1
    s_mul_i32 s{sT2}, s{sT0}, {TLS}
    s_add_u32 s{sT2}, s{sT2}, {TL}
    s_lshl_b32 s{sT3}, s{sT1}, 6
    s_sub_u32 s{sT3}, 127, s{sT3}
    v_sub_u32 v{t0}, s{sT3}, v{vL}
    v_lshlrev_b32 v{t1}, 4, v{t0}''')
    def idx(dst, src):
        p(f'''v_cvt_f32_u32 v{t3}, v{src}
        v_cvt_pk_bf16_f32 v{t3}, v{t3}, v{t3}
        v_and_b32 v{t3}, 0xffff, v{t3}
        v_subrev_u32 v{t3}, 17024, v{t3}
        v_min_i32 v{t4}, 128, v{src}
        v_max_i32 v{t3}, v{t3}, v{t4}
        v_lshl_add_u32 v{dst}, v{t3}, 1, s{sT2}''')
    idx(vGA + 1, t1)
    p(f'v_subrev_u32 v{t2}, 1, v{t1}\nv_max_i32 v{t2}, 0, v{t2}')
    idx(vGA, t2)
    p(f'''s_add_u32 s{sT3}, s{sT2}, 2048
    v_mov_b32 v{t2}, s{sT3}
    v_cmp_eq_u32 vcc, 0, v{t0}
    v_cndmask_b32 v{vGA}, v{vGA}, v{t2}, vcc
    v_ffbh_u32 v{t2}, v{t0}
    v_min_u32 v{t2}, 28, v{t2}
    v_sub_u32 v{t2}, 28, v{t2}
    v_lshlrev_b32 v{t2}, 3, v{t2}''')
    for e in range(1, 16):
        k = sum((2 * rne_off(s, e)) << (8 * s) for s in range(4))
        p(f's_mov_b32 s{sT3}, {hex(k)}\nv_bfe_u32 v{t3}, s{sT3}, v{t2}, 8\nv_add_u32 v{vGA+1+e}, v{vGA+1}, v{t3}')
    p(f'''v_and_b32 v{t0}, 15, v{vL}
    s_lshl_b32 s{sT3}, s{sT1}, 4
    v_add_u32 v{t0}, s{sT3}, v{t0}
    v_lshrrev_b32 v{t1}, 4, v{vL}
    v_lshlrev_b32 v{t2}, 3, v{t1}
    v_lshl_add_u32 v{t2}, v{t0}, 4, v{t2}
    v_lshlrev_b32 v{t3}, 3, v{t0}
    v_add_u32 v{t3}, 512, v{t3}
    v_cmp_eq_u32 vcc, 2, v{t1}
    v_cndmask_b32 v{t2}, v{t2}, v{t3}, vcc
    v_lshlrev_b32 v{t3}, 2, v{t0}
    v_add_u32 v{t3}, 768, v{t3}
    v_mov_b32 v{t4}, 4
    v_mov_b32 v{vTA+1}, 128
    v_cmp_eq_u32 vcc, 3, v{t1}
    v_cndmask_b32 v{t2}, v{t2}, v{t3}, vcc
    v_cndmask_b32 v{t4}, v{t4}, v{vTA+1}, vcc
    v_add_u32 v{vTA}, s{sT2}, v{t2}
    v_add_u32 v{vTA+1}, v{vTA}, v{t4}
    v_lshlrev_b32 v{t2}, 8, v{t1}
    v_lshl_add_u32 v{t2}, v{t0}, 1, v{t2}
    v_add_u32 v{vTA+2}, s{sT2}, v{t2}
    v_or_b32 v{t2}, v{t0}, v{t1}
    v_mov_b32 v{t3}, 0
    v_cmp_eq_u32 vcc, 0, v{t2}
    v_cndmask_b32 v{vDM}, v{t3}, 1.0, vcc''')
    p(f'''v_lshrrev_b32 v{t0}, 5, v{vL}
    v_mul_u32_u24 v{t0}, {UIS}, v{t0}
    v_and_b32 v{t1}, 31, v{vL}
    v_lshl_add_u32 v{t0}, v{t1}, 4, v{t0}
    v_add_u32 v{t0}, {UIM}, v{t0}
    v_bfe_u32 v{t1}, v{vL}, 1, 2
    v_mul_u32_u24 v{t1}, 4160, v{t1}
    v_and_b32 v{t2}, 1, v{vL}
    v_lshl_add_u32 v{t1}, v{t2}, 4, v{t1}
    v_add_u32 v{t1}, {IMG + 4096}, v{t1}
    v_mul_u32_u24 v{t2}, {TLS}, v{t2}
    v_add_u32 v{t2}, {TL + 2048}, v{t2}
    v_and_b32 v{t3}, 8, v{vL}
    v_cmp_eq_u32 vcc, 0, v{t3}
    v_cndmask_b32 v{t1}, v{t2}, v{t1}, vcc
    s_cmp_eq_u32 s{sW}, 0
    s_cselect_b64 vcc, -1, 0
    v_cndmask_b32 v{vZA}, v{t1}, v{t0}, vcc''')
HI = [0,1,2,3,4,5,6,7,256,258,260,262,512,516,768,772,1024,1280,1536,1792,2048]
def merge(chains):
    out = []; ch = [list(c) for c in chains]
    while any(ch):
        for c in ch:
            if c: out.append(c.pop(0))
    return out
def cmul(D, X, Y):
    return [f'v_pk_mul_f32 {vr(D,2)}, {vr(X,2)}, {vr(Y,2)} op_sel:[0,0] op_sel_hi:[0,1]',
            f'v_pk_fma_f32 {vr(D,2)}, {vr(X,2)}, {vr(Y,2)}, {vr(D,2)} op_sel:[1,1,0] op_sel_hi:[1,0,1] neg_lo:[0,1,0]']
def kgen_valu(p):
    lar, aim, cre, cim, ldt, dsk = range(vPAR, vPAR + 6)
    def expbf(x, t):
        return [f'v_mul_f32 v{t}, 0x3fb8aa3b, v{x}', f'v_fma_f32 v{t+1}, v{x}, s{sT2}, -v{t}', f'v_fmac_f32 v{t+1}, 0x32a57060, v{x}',
                f'v_exp_f32 v{t}, v{t}', f'v_mul_f32 v{t+1}, 0x3f317218, v{t+1}', f'v_fmac_f32 v{t}, v{t}, v{t+1}',
                f'v_cvt_pk_bf16_f32 v{t}, v{t}, v{t}', f'v_and_b32 v{x}, 0xffff0000, v{t}']
    p(f'''s_mov_b32 s{sT2}, 0x3fb8aa3b
    s_lshr_b32 s{sT0}, s{sW}, 1
    s_mul_i32 s{sT0}, s{sT0}, {KTS}
    s_and_b32 s{sT1}, s{sW}, 1
    s_lshl_b32 s{sT1}, s{sT1}, 8
    s_add_u32 m0, s{sT0}, s{sT1}
    v_mov_b32 v8, 0
    v_mov_b32 v9, 0
    v_mov_b32 v10, 0
    v_mov_b32 v11, 0
    v_mov_b32 v12, 0x3f80''')
    p(f'ds_write_b128 v{vZA}, v[8:11]\nds_write_addtid_b32 v12 offset:{KT + 32*544}')
    p.extend(merge([expbf(ldt, 0), expbf(lar, 2)]))
    a2, b2 = 4, 5
    Hreg = {h: 16 + 2 * i for i, h in enumerate(HI)}
    Lreg = {k: 58 + 2 * k for k in range(1, 32)}
    Z1, Z2, Z4, Z256 = 122, 124, 126, 128
    p(f'''v_mul_f32 v{a2}, v{lar}, v{ldt}
    v_mul_f32 v{b2}, v{aim}, v{ldt}
    v_mul_f32 v6, v{cre}, v{ldt}
    v_mul_f32 v7, v{cim}, v{ldt}
    v_mul_f32 v{a2}, 0xbfb8aa3b, v{a2}
    v_mul_f32 v{b2}, 0x3e22f983, v{b2}
    v_add_f32 v{Hreg[0]}, v6, v6
    v_add_f32 v{Hreg[0]+1}, v7, v7
    v_mul_f32 v{vDM}, v{vDM}, v{dsk}''')
    def direct(D, pw, t):
        o = []
        if pw != 1: o += [f'v_mul_f32 v{t}, {float(pw)}, v{a2}', f'v_mul_f32 v{t+1}, {float(pw)}, v{b2}', f'v_exp_f32 v{t}, v{t}', f'v_fract_f32 v{t+1}, v{t+1}']
        else: o += [f'v_exp_f32 v{t}, v{a2}', f'v_fract_f32 v{t+1}, v{b2}']
        o += [f'v_cos_f32 v{D}, v{t+1}', f'v_sin_f32 v{D+1}, v{t+1}', f'v_mul_f32 v{D}, v{D}, v{t}', f'v_mul_f32 v{D+1}, v{D+1}, v{t}']
        return o
    p.extend(merge([direct(Lreg[1], 8, 0), direct(Z256, 256, 2), direct(Z1, 1, 8)]))
    cv = [130]
    def put(reg, row, neg):
        t = cv[0]
        return [f'v_cvt_pk_bf16_f32 v{t}, v{reg}, {"-" if neg else ""}v{reg+1}', f'ds_write_addtid_b32 v{t} offset:{KT + row*544}']
    ph = lambda h: put(Hreg[h], HI.index(h), True)
    pl = lambda k: put(Lreg[k], 32 + k, False)
    cv[0] = 130
    c1 = cmul(Lreg[2], Lreg[1], Lreg[1]) + pl(1) + cmul(Lreg[4], Lreg[2], Lreg[2]) + pl(2)
    cv[0] = 131
    c2 = cmul(Z2, Z1, Z1) + ph(0) + cmul(Lreg[3], Lreg[2], Lreg[1]) + cmul(Z4, Z2, Z2)
    cv[0] = 132
    c3 = cmul(Hreg[256], Hreg[0], Z256) + cmul(Hreg[1], Hreg[0], Z1) + ph(256) + ph(1)
    p.extend(merge([c1, c2, c3]))
    chains = []
    for k0 in range(1, 5):
        c = []; cv[0] = 132 + k0
        for k in range(k0, 32, 4):
            if k + 4 < 32: c += cmul(Lreg[k + 4], Lreg[k], Lreg[4])
            if k > 2: c += pl(k)
        chains.append(c)
    c = []; cv[0] = 137
    for h in range(2, 8): c += cmul(Hreg[h], Hreg[h - 1], Z1) + ph(h)
    for h in (258, 260, 262): c += cmul(Hreg[h], Hreg[h - 2], Z2) + ph(h)
    chains.append(c)
    c = []; cv[0] = 138
    for h in range(512, 2049, 256):
        c += cmul(Hreg[h], Hreg[h - 256], Z256) + ph(h)
        if h in (512, 768): c += cmul(Hreg[h + 4], Hreg[h], Z4) + ph(h + 4)
    chains.append(c)
    p.extend(merge(chains))
def kgen_mfma(p):
    ra, rb, t0, t1 = 0, 1, 2, 3
    p(f'''s_lshr_b32 s{sT0}, s{sW}, 1
    s_mul_i32 s{sT0}, s{sT0}, {KTS}
    s_and_b32 s{sT1}, s{sW}, 1
    s_mul_i32 s{sT1}, s{sT1}, {16*544}
    s_add_u32 s{sT1}, s{sT1}, {32*544}
    v_and_b32 v{t0}, 15, v{vL}
    v_mul_u32_u24 v{t0}, 544, v{t0}
    v_lshrrev_b32 v{t1}, 4, v{vL}
    v_lshl_add_u32 v{t0}, v{t1}, 4, v{t0}
    v_add_u32 v{ra}, s{sT0}, v{t0}
    v_add_u32 v{rb}, s{sT1}, v{ra}
    s_waitcnt lgkmcnt(0)
    s_barrier''')
    F = lambda ks, i: 16 + 12 * ks + 4 * i
    for ks in range(8):
        p(f'ds_read_b128 {vr(F(ks,0),4)}, v{rb} offset:{KT + 64*ks}')
        p(f'ds_read_b128 {vr(F(ks,1),4)}, v{ra} offset:{KT + 64*ks}')
        p(f'ds_read_b128 {vr(F(ks,2),4)}, v{ra} offset:{KT + 64*ks + 16*544}')
        if ks >= 3:
            k = ks - 3
            for mt in range(2): p(f'v_mfma_f32_16x16x32_bf16 {vr(4+4*mt,4)}, {vr(F(k,1+mt),4)}, {vr(F(k,0),4)}, {"0" if k == 0 else vr(4+4*mt,4)}')
    for k in range(5, 8):
        for mt in range(2): p(f'v_mfma_f32_16x16x32_bf16 {vr(4+4*mt,4)}, {vr(F(k,1+mt),4)}, {vr(F(k,0),4)}, {vr(4+4*mt,4)}')
    p(f'''v_add_f32 v4, v4, v{vDM}
    v_cvt_pk_bf16_f32 v5, v4, v5
    v_cvt_pk_bf16_f32 v6, v6, v7
    v_cvt_pk_bf16_f32 v8, v8, v9
    v_cvt_pk_bf16_f32 v10, v10, v11
    ds_write_b32 v{vTA}, v5
    ds_write_b32 v{vTA+1}, v6
    ds_write_b16 v{vTA+2}, v8 offset:1024
    ds_write_b16_d16_hi v{vTA+2}, v8 offset:1088
    ds_write_b16 v{vTA+2}, v10 offset:1152
    ds_write_b16_d16_hi v{vTA+2}, v10 offset:1216''')
def expand(p):
    A, B, wa = 16, 28, 0
    p(f'''s_lshr_b32 s{sT0}, s{sW}, 1
    s_mul_i32 s{sT0}, s{sT0}, {IMS}
    s_and_b32 s{sT1}, s{sW}, 1
    s_lshl_b32 s{sT1}, s{sT1}, 11
    s_add_u32 s{sT0}, s{sT0}, s{sT1}
    s_add_u32 s{sT0}, s{sT0}, {IMG}
    v_lshl_add_u32 v{wa}, v{vL}, 5, s{sT0}
    s_waitcnt lgkmcnt(0)
    s_barrier''')
    for k in range(8):
        p(f'ds_read_u16 v{A+k}, v{vGA + 1 + 15 - 2*k}\nds_read_u16 v{B+k}, v{vGA + 1 + 14 - 2*k}')
    p(f'ds_read_u16 v{A+8}, v{vGA}')
    for k in range(8):
        p(f'v_lshl_or_b32 v{40+k}, v{B+k}, 16, v{A+k}\nv_lshl_or_b32 v{B+k}, v{A+k+1}, 16, v{B+k}')
        if k == 3: p(f'ds_write_b128 v{wa}, {vr(40,4)}\nds_write_b128 v{wa}, {vr(B,4)} offset:4160')
    p(f'ds_write_b128 v{wa}, {vr(44,4)} offset:16\nds_write_b128 v{wa}, {vr(B+4,4)} offset:4176')
    return
    for k in range(8):
        p(f'v_alignbit_b32 v{B+k}, v{A+k+1}, v{A+k}, 16')
        if k == 3: p(f'ds_write_b128 v{wa}, {vr(A,4)}\nds_write_b128 v{wa}, {vr(B,4)} offset:4160')
    p(f'ds_write_b128 v{wa}, {vr(A+4,4)} offset:16\nds_write_b128 v{wa}, {vr(B+4,4)} offset:4176')
vU = 224
def u_loads(p):
    t0, t1 = 232, 233
    p(f'''s_lshr_b32 s{sT0}, s{sPI}, 1
    s_lshl_b32 s{sT0}, s{sT0}, 14
    s_and_b32 s{sT1}, s{sPI}, 1
    s_lshl_b32 s{sT1}, s{sT1}, 5
    s_add_u32 s{sT0}, s{sT0}, s{sT1}
    s_lshl_b32 s{sT1}, s{sW}, 11
    s_add_u32 s{sT0}, s{sT0}, s{sT1}
    s_add_u32 s{sT0}, s{sT0}, {WS_UT}
    s_add_u32 s{sT1}, s{sT0}, 8192
    v_lshrrev_b32 v{t0}, 1, v{vL}
    v_and_b32 v{t1}, 1, v{vL}
    v_lshlrev_b32 v{t1}, 4, v{t1}
    v_lshl_add_u32 v{t0}, v{t0}, 6, v{t1}
    buffer_load_dwordx4 {vr(vU,4)}, v{t0}, {srd(S_WS)}, s{sT0} offen sc1
    buffer_load_dwordx4 {vr(vU+4,4)}, v{t0}, {srd(S_WS)}, s{sT1} offen sc1''')
def u_put(p):
    t0, t1 = 232, 233
    p(f'''s_lshl_b32 s{sT0}, s{sW}, 9
    s_add_u32 s{sT0}, s{sT0}, {UIM + 512}
    v_lshrrev_b32 v{t0}, 1, v{vL}
    v_and_b32 v{t1}, 1, v{vL}
    v_mul_u32_u24 v{t1}, {UIS}, v{t1}
    v_lshl_add_u32 v{t0}, v{t0}, 4, v{t1}
    v_add_u32 v{t0}, s{sT0}, v{t0}
    ds_write_b128 v{t0}, {vr(vU,4)}
    ds_write_b128 v{t0}, {vr(vU+4,4)} offset:2048''')
def conv(p, extra=None):
    AR, BR, t0, t1, t2, t3 = 160, 164, 166, 167, 168, 169
    CA = lambda b, a: 32 + 64 * b + 4 * a
    CB = lambda b, j: 64 + 64 * b + 4 * j
    p(f'''s_lshr_b32 s{sT0}, s{sW}, 1
    s_and_b32 s{sT1}, s{sW}, 1
    s_lshl_b32 s{sT1}, s{sT1}, 8
    s_mul_i32 s{sT2}, s{sT0}, {IMS}
    s_sub_u32 s{sT2}, s{sT2}, s{sT1}
    s_add_u32 s{sT2}, s{sT2}, {IMG + 8220 - 192 - 512}
    s_mul_i32 s{sT3}, s{sT0}, {UIS}
    s_sub_u32 s{sT3}, s{sT3}, s{sT1}
    s_add_u32 s{sT3}, s{sT3}, {UIM + 480 - 192}
    v_and_b32 v{t0}, 15, v{vL}
    v_lshrrev_b32 v{t1}, 4, v{vL}
    v_lshlrev_b32 v{t1}, 4, v{t1}
    v_lshl_add_u32 v{t2}, v{t0}, 5, v{t1}
    v_add_u32 v{BR}, s{sT3}, v{t2}
    v_and_b32 v{t2}, 1, v{vL}
    v_mul_u32_u24 v{t2}, 4158, v{t2}
    v_lshl_add_u32 v{t2}, v{t0}, 1, v{t2}
    v_sub_u32 v{t2}, v{t1}, v{t2}
    v_add_u32 v{AR}, s{sT2}, v{t2}
    v_subrev_u32 v{AR+1}, 1024, v{AR}
    v_subrev_u32 v{AR+2}, 2048, v{AR}
    v_subrev_u32 v{AR+3}, 3072, v{AR}
    s_waitcnt lgkmcnt(0)
    s_barrier''')
    def reads(d):
        b = d & 1; o = []
        def A(a):
            off = 16 * (3 - d) + (128 if a % 2 == 0 else 0)
            return [f'ds_read2_b32 {vr(CA(b,a)+2*h,2)}, v{AR+a//2} offset0:{off+2*h} offset1:{off+2*h+1}' for h in range(2)]
        o += A(0)
        for j in range(8): o.append(f'ds_read_b128 {vr(CB(b,j),4)}, v{BR} offset:{512*j + 64*(3-d)}')
        for a in range(1, 8): o += A(a)
        return o
    p.extend(reads(0)[:12]); rest0 = reads(0)[12:]
    for d in range(4):
        b = d & 1; mf = []
        for a in range(8):
            for j in range(a, 8):
                mf.append(f'v_mfma_f32_16x16x32_bf16 {vr(4*j,4)}, {vr(CA(b,a),4)}, {vr(CB(b,j-a),4)}, {"0" if d == 0 and a == 0 else vr(4*j,4)}')
        fill = (rest0 if d == 0 else []) + (reads(d + 1) if d < 3 else [])
        weave(p, mf, fill, (extra or {}).get(d, []), end=34)
def conv_out(p, pre=()):
    wa, ra, va, t0, t1 = 163, 164, 165, 166, 167
    p(f'''s_lshl_b32 s{sT0}, s{sW}, 13
    v_lshrrev_b32 v{t0}, 5, v{vL}
    v_lshlrev_b32 v{t0}, 3, v{t0}
    v_xor_b32 v{t0}, v{t0}, v{vL}
    v_lshl_add_u32 v{wa}, v{t0}, 4, s{sT0}
    s_lshr_b32 s{sT0}, s{sW}, 1
    s_lshl_b32 s{sT0}, s{sT0}, 14
    s_and_b32 s{sT1}, s{sW}, 1
    s_lshl_b32 s{sT1}, s{sT1}, 12
    s_add_u32 s{sT0}, s{sT0}, s{sT1}
    v_and_b32 v{t0}, 1, v{vL}
    v_bfe_u32 v{t1}, v{vL}, 1, 4
    v_lshl_add_u32 v{t1}, v{t0}, 5, v{t1}
    v_lshlrev_b32 v{t0}, 3, v{t0}
    v_xor_b32 v{t1}, v{t1}, v{t0}
    v_lshrrev_b32 v{t0}, 5, v{vL}
    v_lshl_add_u32 v{t1}, v{t0}, 6, v{t1}
    v_lshl_add_u32 v{ra}, v{t1}, 4, s{sT0}
    v_lshlrev_b32 v{va}, 4, v{vL}
    s_lshl_b32 s{sT0}, s{sPI}, 2
    s_add_u32 s{sT0}, s{sT0}, s{sW}
    s_lshl_b32 s{sT0}, s{sT0}, 11
    s_add_u32 s{sT0}, s{sT0}, {WS_AT}''')
    for j in range(8): p(f'ds_write_b128 v{wa}, {vr(4*j,4)} offset:{RED + 1024*j}')
    p.extend(pre)
    p('s_waitcnt lgkmcnt(0)\ns_barrier')
    R = lambda i, h, k: 32 + 16 * i + 8 * k + 4 * h
    for i in range(2):
        for h in range(2):
            for k in range(2): p(f'ds_read_b128 {vr(R(i,h,k),4)}, v{ra} offset:{RED + 8192*k + 2048*i + 256*h}')
    for i in range(2):
        for e in range(0, 8, 2): p(f'v_pk_add_f32 {vr(R(i,0,0)+e,2)}, {vr(R(i,0,0)+e,2)}, {vr(R(i,0,1)+e,2)}')
        for e in range(4): p(f'v_cvt_pk_bf16_f32 v{4*i+e}, v{R(i,0,0)+2*e}, v{R(i,0,0)+2*e+1}')
        p(f'buffer_store_dwordx4 {vr(4*i,4)}, v{va}, {srd(S_WS)}, s{sT0} offen offset:{1024*i} sc1', 'ast')

def k_conv(dbg=False):
    p = Prog(); prologue(p)
    par_zero(p); par_loads(p); u_loads(p); tail_setup(p)
    kgen_valu(p); kgen_mfma(p); u_put(p); expand(p); conv(p); conv_out(p)
    if dbg:
        p(f's_barrier\nv_lshl_add_u32 v0, s{sW}, 6, v{vL}\nv_lshlrev_b32 v0, 4, v0\ns_lshl_b32 s{sT0}, s2, 15\ns_add_u32 s{sT0}, s{sT0}, 0x2000000\nv_add_u32 v1, {TL}, v0')
        for i in range(8):
            p(f'ds_read_b128 v[4:7], v1 offset:{4096*i}\nbuffer_store_dwordx4 v[4:7], v0, {srd(S_WS)}, s{sT0} offen\ns_add_u32 s{sT0}, s{sT0}, 4096\ns_nop 1')
    p('s_endpgm')
    return p

vWA = 236
def wd_setup(p):
    p(f'''s_lshl_b32 s{sT0}, s{sDT}, 2
    s_add_u32 s{sT0}, s{sT0}, s{sW}
    s_mul_i32 s{sT0}, s{sT0}, 57344
    s_add_u32 s{sKW}, s{sT0}, {WS_WDT}
    s_and_b32 s{sT1}, s{sW}, 1
    s_lshl_b32 s{sT1}, s{sT1}, 10
    v_lshl_add_u32 v{vWA}, v{vL}, 4, s{sT1}
    v_xor_b32 v{vWA+1}, 1024, v{vWA}''')
def wd_loads():
    o = []
    for s in range(28):
        for al in range(2):
            o.append(f'buffer_load_dwordx4 {ar(8*s+4*al,4)}, v{vWA+al}, {srd(S_WS)}, s{sKW} offen offset:{2048*(s&1)} sc1')
        if s & 1 and s < 27: o[-1] += f'\ns_add_u32 s{sKW}, s{sKW}, 4096'
    return o
NB = 12
vHB, vHA, vGAa, vG, vAT = 64, 160, 164, 246, 184
def acc2(al, be): return 16 * (al + 2 * be)
def h_setup(p):
    t0, t1 = 182, 183
    p(f'''s_mul_i32 s{sT0}, s{sW}, {56*32768}
    s_lshl_b32 s{sT1}, s{sST}, 10
    s_add_u32 s{sT0}, s{sT0}, s{sT1}
    s_add_u32 s{sKX}, s{sT0}, {WS_H}
    s_lshr_b32 s{sT1}, s{sW}, 1
    s_lshl_b32 s{sT1}, s{sT1}, 9
    v_lshrrev_b32 v{t0}, 5, v{vL}
    v_and_b32 v{t1}, 31, v{vL}
    v_lshl_add_u32 v{t1}, v{t1}, 4, s{sT1}
    v_lshl_add_u32 v{vHA}, v{t0}, 15, v{t1}
    v_xor_b32 v{vHA+1}, 512, v{vHA}''')
def h_loads(s):
    o = [f'buffer_load_dwordx4 {vr(vHB + 8*(s%NB) + 4*be, 4)}, v{vHA+be}, {srd(S_WS)}, s{sKX} offen sc1' for be in range(2)]
    if s < 27: o[-1] += f'\ns_add_u32 s{sKX}, s{sKX}, 65536'
    return o
def a_loads():
    t0, t1 = 182, 183
    return [f'''s_and_b32 s{sT0}, s{sW}, 1
    s_lshl_b32 s{sT1}, s{sDT}, 1
    s_add_u32 s{sT0}, s{sT0}, s{sT1}
    s_lshl_b32 s{sT0}, s{sT0}, 17
    s_lshr_b32 s{sT1}, s{sW}, 1
    s_lshl_b32 s{sT2}, s{sST}, 1
    s_add_u32 s{sT1}, s{sT1}, s{sT2}
    s_lshl_b32 s{sT2}, s{sT1}, 6
    s_add_u32 s{sT0}, s{sT0}, s{sT2}
    s_add_u32 s{sT0}, s{sT0}, {WS_AT}
    s_add_u32 s{sT2}, s{sT0}, 65536''',
    f'''v_lshrrev_b32 v{t0}, 2, v{vL}
    v_and_b32 v{t1}, 3, v{vL}
    v_lshlrev_b32 v{t1}, 4, v{t1}
    v_lshl_add_u32 v{t0}, v{t0}, 12, v{t1}''',
    f'buffer_load_dwordx4 {vr(vAT,4)}, v{t0}, {srd(S_WS)}, s{sT0} offen sc1',
    f'buffer_load_dwordx4 {vr(vAT+4,4)}, v{t0}, {srd(S_WS)}, s{sT2} offen sc1']
def g_load(p):
    t0 = 235
    p(f'''s_lshr_b32 s{sT1}, s{sW}, 1
    s_lshl_b32 s{sT2}, s{sST}, 1
    s_add_u32 s{sT1}, s{sT1}, s{sT2}
    s_lshl_b32 s{sT1}, s{sT1}, 7
    s_add_u32 s{sT1}, s{sT1}, {WS_G}
    v_and_b32 v{t0}, 31, v{vL}
    v_lshlrev_b32 v{t0}, 2, v{t0}
    buffer_load_dword v{vG}, v{t0}, {srd(S_WS)}, s{sT1} offen sc1''')
def a_use():
    t0, t1, t2 = 182, 183, 162
    o = [f'''s_lshl_b32 s{sT0}, s{sW}, 11
    s_add_u32 s{sT0}, s{sT0}, {AS}
    v_lshl_add_u32 v{t0}, v{vL}, 4, s{sT0}''',
    f'''v_lshrrev_b32 v{t1}, 5, v{vL}
    v_bfe_u32 v{t2}, v{vL}, 2, 2
    v_lshl_add_u32 v{t1}, v{t1}, 2, v{t2}''',
    f'''v_bfe_u32 v{t2}, v{vL}, 4, 1
    v_lshl_add_u32 v{t1}, v{t1}, 1, v{t2}
    v_and_b32 v{t2}, 3, v{vL}''',
    f'''v_lshl_add_u32 v{t1}, v{t1}, 2, v{t2}
    v_lshl_add_u32 v{t1}, v{t1}, 3, s{sT0}''',
    f'ds_write_b128 v{t0}, {vr(vAT,4)}', (f'ds_write_b128 v{t0}, {vr(vAT+4,4)} offset:1024', 'aw')]
    for q in range(4): o.append(f'ds_read_b64_tr_b16 {vr(vAT+2*q,2)}, v{t1} offset:{512*q}')
    o.append(f'v_sub_f32 v{vG+1}, 1.0, v{vG}\nv_cvt_pk_bf16_f32 v{vG+1}, v{vG+1}, v{vG+1}\nv_and_b32 v{vG+1}, 0xffff0000, v{vG+1}')
    for i in range(8):
        o.append(f'v_lshlrev_b32 v{vGAa+2*i}, 16, v{vAT+i}\nv_and_b32 v{vGAa+2*i+1}, 0xffff0000, v{vAT+i}')
        o.append(f'v_mul_f32 v{vGAa+2*i}, v{vG}, v{vGAa+2*i}\nv_mul_f32 v{vGAa+2*i+1}, v{vG}, v{vGAa+2*i+1}')
    return o
def gemm2(p, extra=None, pre=0, late=(), mark=lambda: []):
    extra = extra or {}
    PW, PR, ti = 192, 195, 162
    M = lambda s, al, be: f'v_mfma_f32_32x32x16_bf16 {vr(acc2(al,be),16)}, {ar(8*s+4*al,4)}, {vr(vHB+8*(s%NB)+4*be,4)}, {"0" if s == 0 else vr(acc2(al,be),16)}'
    for s in range(pre, NB): p.extend(h_loads(s))
    for k in range(1, 4):
        p(f's_xor_b32 s{sT0}, s{sW}, {k}\ns_mul_i32 s{sT0}, s{sT0}, 12288\ns_add_u32 s{sT0}, s{sT0}, {P2 + 4096*(k-1)}\nv_lshl_add_u32 v{PW+k-1}, v{vL}, 4, s{sT0}')
    p(f's_mul_i32 s{sT0}, s{sW}, 12288\ns_add_u32 s{sT0}, s{sT0}, {P2}\nv_lshl_add_u32 v{PR}, v{vL}, 4, s{sT0}')
    for s in range(24):
        mf = [M(s, 0, 0), M(s, 1, 0), M(s, 0, 1), M(s, 1, 1)]
        ld = h_loads(s + NB) if s + NB < 28 else [[], []]
        ex = extra.get(s, [])
        for m in range(4):
            p(mf[m]); p.extend(ex[len(ex) * m // 4: len(ex) * (m + 1) // 4])
            if m == 1 and ld[0]: p(ld[0])
            if m == 3 and ld[1]: p(ld[1])
    prev = []; late = list(late); nl = len(late)
    for k in (3, 1, 2, 0):
        al, be = k & 1, k >> 1
        mf = [M(s, al, be) for s in range(24, 28)]
        for m in range(4):
            p(mf[m])
            if m >= 1: p.extend(prev[(m - 1) * 2: m * 2])
            for _ in range(-(-nl // 14)):
                if late: p.extend([late.pop(0)])
        prev = [f'ds_write_b128 v{PW+k-1}, {vr(acc2(al,be)+4*q,4)} offset:{1024*q}' for q in range(4)] if k else []
    p.extend(mark())
    t0, t1, va = 182, 183, 196
    p(f'''s_lshr_b32 s{sT1}, s{sW}, 1
    s_lshl_b32 s{sT2}, s{sST}, 1
    s_add_u32 s{sT1}, s{sT1}, s{sT2}
    s_lshl_b32 s{sT1}, s{sT1}, 15
    s_and_b32 s{sT0}, s{sW}, 1
    s_lshl_b32 s{sT2}, s{sDT}, 1
    s_add_u32 s{sT0}, s{sT0}, s{sT2}
    s_lshl_b32 s{sT0}, s{sT0}, 6
    s_add_u32 s{sT0}, s{sT0}, s{sT1}
    v_and_b32 v{t0}, 31, v{vL}
    v_lshrrev_b32 v{t1}, 5, v{vL}
    v_lshlrev_b32 v{t1}, 4, v{t1}
    v_lshl_add_u32 v{va}, v{t0}, 10, v{t1}
    s_waitcnt lgkmcnt(0)
    s_barrier''')
    Q = lambda k, q: 64 + 16 * k + 4 * q
    for q in range(4):
        for k in range(3): p(f'ds_read_b128 {vr(Q(k,q),4)}, v{PR} offset:{4096*k + 1024*q}')
    for q in range(4):
        for e in (0, 2):
            r = 4 * q + e
            p(f'''v_pk_add_f32 {vr(r,2)}, {vr(r,2)}, {vr(Q(0,q)+e,2)}
            v_pk_add_f32 {vr(Q(1,q)+e,2)}, {vr(Q(1,q)+e,2)}, {vr(Q(2,q)+e,2)}''')
        for e in (0, 2):
            r = 4 * q + e
            p(f'v_pk_add_f32 {vr(r,2)}, {vr(r,2)}, {vr(Q(1,q)+e,2)}')
        for e in (0, 2):
            r = 4 * q + e
            p(f'v_pk_fma_f32 {vr(r,2)}, {vr(r,2)}, {vr(vG,2)}, {vr(vGAa+r,2)} op_sel:[0,1,0] op_sel_hi:[1,1,1]')
        for e in (0, 2):
            r = 4 * q + e
            p(f'v_cvt_pk_bf16_f32 v{16 + 2*q + e//2}, v{r}, v{r+1}')
        if q & 1:
            R = 16 + 2 * (q - 1)
            p(f'v_permlane32_swap_b32 v{R}, v{R+2}\nv_permlane32_swap_b32 v{R+1}, v{R+3}')
            p(f'buffer_store_dwordx4 {vr(R,4)}, v{va}, {srd(S_OUT)}, s{sT0} offen offset:{16*(q-1)}')

def spread(lst, a, b):
    n = b - a
    return {a + i: lst[len(lst) * i // n: len(lst) * (i + 1) // n] for i in range(n)}
def k_g2():
    p = Prog(); prologue(p)
    wd_setup(p); p.extend(wd_loads()); g_load(p); h_setup(p)
    ex = spread(a_loads(), 2, 4); ex.update(spread(a_use(), 12, 22))
    gemm2(p, ex)
    p('s_endpgm')
    return p

WS_STAMP = 0x3000000
class Fused:
    def __init__(s, stamps=False):
        s.p = Prog(); s.slow = []; s.stamps = stamps; s.ns = 0; s.want = stamps or []
    def stamp(s, name=None):
        if not s.stamps or (name is not None and name not in s.want): return []
        o = []
        if s.ns: o.append(f's_mov_b32 s{87 + s.ns}, s100')
        o.append('s_memtime s[100:101]'); s.ns += 1
        return o
    def stamp_out(s):
        if not s.stamps: return
        p = s.p
        p(f's_mov_b32 s{87 + s.ns}, s100\ns_lshl_b32 s{sT0}, s2, 2\ns_add_u32 s{sT0}, s{sT0}, s{sW}\ns_lshl_b32 s{sT0}, s{sT0}, 6\ns_add_u32 s{sT0}, s{sT0}, {WS_STAMP}\ns_mov_b64 exec, 1')
        p(f's_memrealtime s[100:101]\nv_mov_b32 v1, s34\nbuffer_store_dword v1, off, {srd(S_WS)}, s{sT0} offset:48\nv_mov_b32 v1, s100\nbuffer_store_dword v1, off, {srd(S_WS)}, s{sT0} offset:52')
        if 'dbg' in s.want:
            L = p.label('nodbg')
            p(f's_not_b32 s{sT1}, s34\nv_mov_b32 v1, s{sT1}\nv_mov_b32 v2, s100\nbuffer_atomic_umax v1, off, {srd(S_DBG)}, 0 offset:4\nbuffer_atomic_umax v2, off, {srd(S_DBG)}, 0 offset:8')
            p(f'v_mov_b32 v1, s34\nbuffer_atomic_umax v1, off, {srd(S_DBG)}, 0 offset:12')
            p(f's_cmp_lg_u32 s2, 77\ns_cbranch_scc1 {L}\ns_cmp_lg_u32 s{sW}, 1\ns_cbranch_scc1 {L}')
            for i in range(1, s.ns): p(f's_sub_u32 s{sT1}, s{88+i}, s88\nv_mov_b32 v1, s{sT1}\nbuffer_store_dword v1, off, {srd(S_DBG)}, 0 offset:{12+4*i}', 'untracked')
            p(f'{L}:')
            return
        for i in range(s.ns): p(f'v_mov_b32 v1, s{88+i}\nbuffer_store_dword v1, off, {srd(S_WS)}, s{sT0} offset:{4*i}')
    def poll_issue(s, dst, va, S, n=1):
        return [f'buffer_load_dword{"x2" if n == 2 else ""} {vr(dst,n)}, v{va}, {srd(S)}, 0 offen sc1']
    def poll_check(s, dst, va, S, n=1):
        Ls, Lr, Ll = s.p.label('slow'), s.p.label('ret'), s.p.label('spin')
        chk = (f'v_and_b32 v{dst}, v{dst}, v{dst+1}\n' if n == 2 else '') + f'v_cmp_ne_u32 vcc, 1, v{dst}\n'
        s.slow.append(f'''{Ls}:
        s_mov_b32 s{sSP}, 0x8000
        {Ll}:
        {s.poll_issue(dst, va, S, n)[0]}
        s_waitcnt vmcnt(0) lgkmcnt(0)
        {chk}s_cbranch_vccz {Lr}
        s_sub_u32 s{sSP}, s{sSP}, 1
        s_cmp_lg_u32 s{sSP}, 0
        s_cbranch_scc1 {Ll}
        s_branch {Lr}''')
        return [chk + f's_cbranch_vccnz {Ls}\n{Lr}:']
    def flag(s, sreg, one):
        return [f's_mov_b64 exec, 1\nbuffer_store_dword v{one}, off, {srd(S_WS)}, s{sreg} sc1\ns_mov_b64 exec, -1']

sFH, sFA = 78, 79
vONE, vPGO, vPWD, vPUT, vPH, vPA, vF = 238, 239, 240, 241, 242, 243, 244
def flag_setup(p, spare):
    t0 = 192
    p(f'''v_mov_b32 v{vONE}, 1
    v_mov_b32 v{vPGO}, 0
    s_lshl_b32 s{sT0}, s{sW}, 3
    s_add_u32 s{sT0}, s{sT0}, s{sDT}
    s_add_u32 s{sT0}, s{sT0}, 192
    s_lshl_b32 s{sT0}, s{sT0}, 7
    v_and_b32 v{t0}, 3, v{vL}
    v_lshl_add_u32 v{vPWD}, v{t0}, 2, s{sT0}
    v_lshlrev_b32 v{t0}, 3, v{vL}
    v_add_u32 v{vPUT}, {224*128}, v{t0}
    s_lshl_b32 s{sT0}, s{sST}, 2
    s_add_u32 s{sT0}, s{sT0}, s{sW}
    s_lshl_b32 s{sT0}, s{sT0}, 7
    v_min_u32 v{t0}, 6, v{vL}
    v_lshl_add_u32 v{vPH}, v{t0}, 2, s{sT0}
    s_lshr_b32 s{sT0}, s{sST}, 4
    s_lshl_b32 s{sT0}, s{sT0}, 5
    s_lshl_b32 s{sT1}, s{sDT}, 2
    s_add_u32 s{sT0}, s{sT0}, s{sT1}
    s_and_b32 s{sT1}, s{sW}, 1
    s_lshl_b32 s{sT1}, s{sT1}, 1
    s_add_u32 s{sT0}, s{sT0}, s{sT1}
    s_add_u32 s{sT0}, s{sT0}, 128
    s_lshl_b32 s{sT0}, s{sT0}, 7
    v_and_b32 v{t0}, 15, v{vL}
    v_lshl_add_u32 v{vPA}, v{t0}, 2, s{sT0}
    v_bfe_u32 v{t0}, v{vL}, 4, 1
    v_lshl_add_u32 v{vPA}, v{t0}, 7, v{vPA}
    s_lshl_b32 s{sT0}, s{sPI}, 1
    s_lshr_b32 s{sT1}, s{sW}, 1
    s_add_u32 s{sT0}, s{sT0}, s{sT1}
    s_and_b32 s{sT1}, s{sT0}, 15
    s_lshr_b32 s{sT0}, s{sT0}, 4
    s_and_b32 s{sT2}, s{sW}, 1
    s_lshl_b32 s{sT2}, s{sT2}, 5
    s_add_u32 s{sT0}, s{sT0}, s{sT2}
    s_add_u32 s{sT0}, s{sT0}, 128
    s_lshl_b32 s{sT0}, s{sT0}, 5
    s_add_u32 s{sT0}, s{sT0}, s{sT1}
    s_lshl_b32 s{sFA}, s{sT0}, 2''')
    if spare:
        p(f's_lshl_b32 s{sT0}, s{sSI}, 2\ns_add_u32 s{sT0}, s{sT0}, s{sW}\ns_lshl_b32 s{sT0}, s{sT0}, 7\ns_add_u32 s{sFH}, s{sT0}, 0x8000')
    else:
        p(f'''s_lshl_b32 s{sT0}, s{sMI}, 2
        s_add_u32 s{sT0}, s{sT0}, s{sW}
        s_lshl_b32 s{sT0}, s{sT0}, 2
        s_and_b32 s{sT1}, s{sXCD}, 3
        s_add_u32 s{sT0}, s{sT0}, s{sT1}
        s_lshl_b32 s{sT0}, s{sT0}, 5
        s_add_u32 s{sT0}, s{sT0}, s{sDT}
        s_lshl_b32 s{sFH}, s{sT0}, 2''')
def as_list(fn, *a):
    q = Prog(); fn(q, *a); return q.ins

def k_fused(stamps=False, cfg=None):
    cfg = dict(nwd=30, hflag=2, aflag=9, apoll=13, achk=17) | (cfg or {})
    F = Fused(stamps); p = F.p
    if stamps: p('s_memrealtime s[34:35]')
    p.extend(F.stamp()); prologue(p)
    Lsp, Ltail = p.label('spare'), p.label('tail')
    p(f's_cmp_ge_u32 s{sJ}, 28\ns_cbranch_scc1 {Lsp}')
    p.extend(F.stamp('pro'))
    g1_setup(p)
    for t in range(3): p.extend(g1_dma(t))
    p.extend(F.stamp('dma'))
    par_loads(p); g1_setup2(p); tail_setup(p); flag_setup(p, False)
    p.extend(F.stamp('setup'))
    if stamps: p.waitvm('dma0'); p.extend(F.stamp('d0'))
    wl = wd_loads(); n1 = cfg['nwd']
    post = {0: F.stamp('s0'), 1: F.stamp('s1'), 2: F.stamp('s2'),
            3: F.stamp('s3') + F.poll_issue(vF, vPGO, S_DBG),
            4: F.stamp('s4') + F.poll_check(vF, vPGO, S_DBG) + F.poll_issue(vF, vPWD, S_WS),
            5: F.stamp('s5') + F.poll_check(vF, vPWD, S_WS) + F.stamp('s5b') + F.poll_issue(vF, vPUT, S_WS, 2) + as_list(wd_setup),
            6: F.stamp('s6') + F.poll_check(vF, vPUT, S_WS, 2) + F.stamp('s6b') + as_list(u_loads) + as_list(g_load)}
    keys = [(6, 0), (6, 1), (6, 2), (6, 3), (7, 0), (7, 1), (7, 2), (7, 3)]
    extra = {k: wl[n1 * i // 8: n1 * (i + 1) // 8] for i, k in enumerate(keys)}
    g1_main(p, extra, post); p.extend(F.stamp('g1'))
    g1_epilogue(p); u_put(p)
    p.extend(wl[n1:])
    p(f'{Ltail}:'); tail0 = F.ns; p.extend(F.stamp())
    kgen_valu(p); p.extend(F.stamp('kv')); kgen_mfma(p); expand(p); p.extend(F.stamp('ex'))
    ex = {cfg['hflag']: [Ins('WAITVM hst')] + F.flag(sFH, vONE)}
    ex.setdefault(3, []); ex[3] = ex[3] + [[]] * 4 + F.poll_issue(vF, vPH, S_WS)
    ex = {k: [x for x in v if x != []] for k, v in ex.items()}
    conv(p, ex); p.extend(F.stamp('cv'))
    h_setup(p)
    p.extend(F.poll_check(vF, vPH, S_WS)); p.extend(F.stamp('hf'))
    HP = 4
    conv_out(p, pre=[x for s in range(NB) for x in h_loads(s)])
    p.extend(F.stamp('co'))
    ex = {cfg['aflag']: [Ins('WAITVM ast')] + F.flag(sFA, vONE), cfg['apoll']: F.poll_issue(vF, vPA, S_WS),
          cfg['achk']: F.poll_check(vF, vPA, S_WS) + F.stamp('af') + a_loads()}
    gemm2(p, ex, pre=NB, late=a_use(), mark=lambda: F.stamp('g2'))
    p.extend(F.stamp()); F.stamp_out()
    p('s_endpgm')
    p(f'{Lsp}:')
    if stamps: p('s_mov_b32 s88, s100')
    Lk = p.label('noclr'); Lg = p.label('nogo')
    p(f'''s_cmp_lg_u32 s{sSI}, 0
    s_cbranch_scc1 {Lk}
    v_mov_b32 v4, 0
    v_mov_b32 v5, 0
    v_mov_b32 v6, 0
    v_mov_b32 v7, 0
    v_lshlrev_b32 v1, 4, v0''')
    for i in range(8): p(f's_mov_b32 s{sT0}, {4096*i}\nbuffer_store_dwordx4 v[4:7], v1, {srd(S_WS)}, s{sT0} offen sc1')
    p(f'{Lk}:')
    spare_issue(p); par_loads(p); tail_setup(p); flag_setup(p, True)
    p.waitvm('wdma'); p('s_barrier')
    if stamps: p('s_memtime s[100:101]\ns_waitcnt lgkmcnt(0)\ns_mov_b32 s89, s100')
    p(f'''s_or_b32 s{sT0}, s{sSI}, s{sW}
    s_cmp_lg_u32 s{sT0}, 0
    s_cbranch_scc1 {Lg}
    s_mov_b64 exec, 1''')
    p(f'buffer_store_dword v{vONE}, off, {srd(S_DBG)}, 0 sc1', 'untracked')
    p(f's_mov_b64 exec, -1\n{Lg}:')
    spare_wd(p)
    p.extend(F.poll_issue(vF, vPGO, S_DBG))
    spare_ut(p); spare_g(p)
    p.extend(F.poll_check(vF, vPGO, S_DBG))
    p(f'''s_add_u32 s{sT0}, s{sSI}, 192
    s_lshl_b32 s{sT0}, s{sT0}, 5
    s_add_u32 s{sT0}, s{sT0}, s{sW}
    s_lshl_b32 s{sT0}, s{sT0}, 2
    s_add_u32 s{sT1}, s{sW}, 224
    s_lshl_b32 s{sT1}, s{sT1}, 5
    s_add_u32 s{sT1}, s{sT1}, s{sSI}
    s_lshl_b32 s{sT1}, s{sT1}, 2''')
    p.waitvm('wst'); p.extend(F.flag(sT0, vONE))
    if stamps: p('s_memtime s[100:101]\ns_waitcnt lgkmcnt(0)\ns_mov_b32 s90, s100')
    p.waitvm('gst'); p.extend(F.flag(sT1, vONE))
    if stamps: p('s_memtime s[100:101]\ns_waitcnt lgkmcnt(0)\ns_mov_b32 s91, s100')
    p.extend(F.poll_issue(vF, vPWD, S_WS)); wd_setup(p); p.extend(F.poll_check(vF, vPWD, S_WS))
    p.extend(wd_loads())
    p.extend(F.poll_issue(vF, vPUT, S_WS, 2)); p.extend(F.poll_check(vF, vPUT, S_WS, 2))
    u_loads(p); g_load(p)
    p('s_barrier'); u_put(p)
    if stamps: p('s_memtime s[100:101]\ns_waitcnt lgkmcnt(0)')
    p(f's_waitcnt vmcnt(0) lgkmcnt(0)\ns_branch {Ltail}')
    for x in F.slow: p(x)
    return p
```

```python
import sys
from core import *
KN = 'gated_mix__ssm_conv_s4d__glu_gated_reglu__prompt'
WS_WDT, WS_UT, WS_G, WS_H, WS_AT = 0x100000, 0x300000, 0x500000, 0x600000, 0xD00000
S_X, S_WG, S_WU, S_WS, S_OUT, S_P, S_DBG = 36, 40, 44, 48, 52, 56, 60
sXCD, sJ, sW, sMI, sFI, sST, sDT, sROT, sKX, sKW, sXM, sWM, sSI, sPI = range(64, 78)
sT0, sT1, sT2, sT3, sT4, sT5 = range(80, 86)
sSP = 86
def srd(i): return f's[{i}:{i+3}]'
def vr(a, n=1): return f'v{a}' if n == 1 else f'v[{a}:{a+n-1}]'
def ar(a, n=1): return f'a{a}' if n == 1 else f'a[{a}:{a+n-1}]'
vL = 255

ROT = dict(
  a=f's_lshl_b32 s{sT2}, s{sT0}, 1\ns_add_u32 s{sROT}, s{sT2}, s{sDT}',
  z=f's_mov_b32 s{sROT}, 0',
  x=f's_mov_b32 s{sROT}, s{sXCD}',
  b=f's_add_u32 s{sROT}, s{sT0}, s{sDT}',
  c=f's_lshl_b32 s{sT2}, s{sT0}, 1\ns_add_u32 s{sROT}, s{sT2}, s{sDT}\ns_lshr_b32 s{sT2}, s{sXCD}, 2\ns_add_u32 s{sROT}, s{sROT}, s{sT2}',
  d=f's_add_u32 s{sROT}, s{sT0}, s{sDT}\ns_and_b32 s{sROT}, s{sROT}, 1\ns_add_u32 s{sROT}, s{sROT}, s{sXCD}',
  e=f's_add_u32 s{sROT}, s{sT0}, s{sDT}\ns_and_b32 s{sROT}, s{sROT}, 3\ns_add_u32 s{sROT}, s{sROT}, s{sXCD}',
  f=f's_add_u32 s{sROT}, s{sT0}, s{sDT}\ns_lshr_b32 s{sT2}, s{sXCD}, 2\ns_lshl_b32 s{sT2}, s{sT2}, 2\ns_add_u32 s{sROT}, s{sROT}, s{sT2}',
)
def mk_srd(p, d, ptr, size):
    p(f's_mov_b32 s{d}, s{ptr}\ns_mov_b32 s{d+1}, s{ptr+1}\ns_mov_b32 s{d+2}, {hex(size)}\ns_mov_b32 s{d+3}, 0x00020000')

def prologue(p, rot='z', ctouch=0, defer=False):
    L = p.label('go')
    p(f'''s_cmp_lt_u32 s2, 256
    s_cbranch_scc1 {L}
    s_endpgm
    {L}:
    s_load_dwordx16 s[4:19], s[0:1], 0
    s_load_dwordx8 s[20:27], s[0:1], 64
    s_load_dwordx4 s[28:31], s[0:1], 96
    s_load_dwordx2 s[32:33], s[0:1], 112
    s_lshr_b32 s{sJ}, s2, 3''')
    if ctouch:
        p(f'''s_getpc_b64 s[{sT2}:{sT3}]
        L_pc:
        v_and_b32 v2, 7, v0
        v_lshl_add_u32 v2, s{sJ}, 3, v2
        v_min_u32 v2, (L_end-L_pc-4)/128, v2
        v_lshlrev_b32 v2, 7, v2
        v_mov_b32 v3, s{sT3}
        v_add_co_u32 v2, vcc, s{sT2}, v2
        v_addc_co_u32 v3, vcc, 0, v3, vcc''')
        p('global_load_dword v254, v[2:3], off', 'untracked')
    p(f'''v_lshrrev_b32 v1, 6, v0
    v_and_b32 v{vL}, 63, v0
    v_readfirstlane_b32 s{sW}, v1
    s_and_b32 s{sXCD}, s2, 7
    s_and_b32 s{sT0}, s{sJ}, 3
    s_lshr_b32 s{sDT}, s{sJ}, 2
    s_lshr_b32 s{sT1}, s{sXCD}, 2
    s_lshl_b32 s{sT1}, s{sT1}, 2
    s_add_u32 s{sMI}, s{sT1}, s{sT0}
    s_and_b32 s{sT1}, s{sXCD}, 3
    s_mul_i32 s{sT1}, s{sT1}, 7
    s_add_u32 s{sFI}, s{sT1}, s{sDT}
    s_lshl_b32 s{sT1}, s{sXCD}, 2
    s_add_u32 s{sST}, s{sT1}, s{sT0}
    {ROT[rot]}
    s_and_b32 s{sROT}, s{sROT}, 7''')
    for d, n in ((S_X, 2048 * 1024), (S_WG, 512 * 3584), (S_WU, 512 * 3584)): p(f's_mov_b32 s{d+2}, {hex(n)}\ns_mov_b32 s{d+3}, 0x00020000')
    if not defer: prologue2(p)
def srd_bases(p):
    for d, ptr in ((S_X, 4), (S_WG, 20), (S_WU, 22)): p(f's_mov_b64 s[{d}:{d+1}], s[{ptr}:{ptr+1}]')
def prologue2(p, bases=True):
    if bases: srd_bases(p)
    p(f's_mov_b32 s{sSI}, s{sST}')
    mk_srd(p, S_WS, 32, 0x10000000); mk_srd(p, S_OUT, 28, 2048 * 1024); mk_srd(p, S_DBG, 30, 256)

G1_B, G1_A, G1_XR, G1_WR, G1_DX, G1_DW = 128, 144, 176, 180, 182, 190
def acc1(st, mat, ft): return 16 * (4 * st + 2 * mat + ft)
def g1_setup(p):
    t0, t1, t2, t3 = 192, 193, 194, 195
    p(f'''v_lshrrev_b32 v{t0}, 3, v{vL}
    v_and_b32 v{t1}, 7, v{vL}
    v_lshrrev_b32 v{t2}, 1, v{t0}
    v_xor_b32 v{t3}, v{t1}, v{t2}
    v_lshlrev_b32 v{t3}, 4, v{t3}
    v_lshl_add_u32 v{t3}, v{t0}, 10, v{t3}
    s_lshl_b32 s{sT0}, s{sMI}, 2
    s_add_u32 s{sT0}, s{sT0}, s{sW}
    s_lshl_b32 s{sT0}, s{sT0}, 16
    v_add_u32 v{G1_DX}, s{sT0}, v{t3}
    v_xor_b32 v{G1_DX+1}, 64, v{G1_DX}''')
    for i in range(7, 0, -1):
        p(f'v_add_u32 v{G1_DX+i}, {8192*i - 1024*(i&3)}, v{G1_DX+(i&1)}')
    p(f'''v_and_b32 v{t2}, 1, v{t2}
    v_lshlrev_b32 v{t2}, 2, v{t2}
    v_xor_b32 v{t2}, v{t1}, v{t2}
    v_lshlrev_b32 v{t2}, 4, v{t2}
    v_mul_u32_u24 v{t0}, 3584, v{t0}
    s_mul_i32 s{sT0}, s{sW}, {16*3584}
    s_lshl_b32 s{sT1}, s{sFI}, 7
    s_add_u32 s{sT0}, s{sT0}, s{sT1}
    v_add3_u32 v{G1_DW}, v{t0}, v{t2}, s{sT0}
    v_add_u32 v{G1_DW+1}, {8*3584-1024}, v{G1_DW}
    s_lshl_b32 s{sXM}, s{sW}, 13
    s_lshl_b32 s{sWM}, s{sW}, 11
    s_add_u32 s{sWM}, s{sWM}, 98304''')
def g1_dma(t):
    sl = t % 3; o = []
    o.append(f's_add_u32 s{sT0}, s{sROT}, {t}\ns_and_b32 s{sT0}, s{sT0}, 7\ns_lshl_b32 s{sKX}, s{sT0}, 7\ns_mul_i32 s{sKW}, s{sT0}, {64*3584}')
    for mat, S in ((0, S_WG), (1, S_WU)):
        o.append(f's_add_u32 m0, s{sWM}, {sl*16384 + mat*8192}')
        for i in range(2): o.append(f'buffer_load_dwordx4 v{G1_DW+i}, {srd(S)}, s{sKW} offen offset:{1024*i} lds')
    for i in range(8):
        if i % 4 == 0: o.append(f's_add_u32 m0, s{sXM}, {sl*32768 + 1024*i}')
        o.append(f'buffer_load_dwordx4 v{G1_DX+i}, {srd(S_X)}, s{sKX} offen offset:{1024*(i&3)} lds')
    o[-1] = (o[-1], f'dma{t}')
    return o
vTX, vTW, vTD = 248, 249, 250
def touch_setup(p):
    t0, t1 = 192, 193
    p(f'''v_lshrrev_b32 v{t0}, 1, v{vL}
    v_min_u32 v{t0}, 9, v{t0}
    s_mul_i32 s{sT1}, s{sDT}, 10
    v_add_u32 v{t0}, s{sT1}, v{t0}
    v_min_u32 v{t0}, 63, v{t0}
    v_and_b32 v{t1}, 1, v{vL}
    v_lshlrev_b32 v{t1}, 7, v{t1}
    v_lshl_add_u32 v{t0}, v{t0}, 10, v{t1}
    s_lshl_b32 s{sT0}, s{sMI}, 2
    s_add_u32 s{sT0}, s{sT0}, s{sW}
    s_lshl_b32 s{sT0}, s{sT0}, 16
    v_add_u32 v{vTX}, s{sT0}, v{t0}
    v_and_b32 v{t0}, 3, v{vL}
    v_bfe_u32 v{t1}, v{vL}, 2, 1
    v_lshl_add_u32 v{t0}, v{t1}, 6, v{t0}
    s_and_b32 s{sT0}, s{sJ}, 3
    s_lshl_b32 s{sT0}, s{sT0}, 2
    s_add_u32 s{sT0}, s{sT0}, s{sW}
    s_lshl_b32 s{sT0}, s{sT0}, 2
    v_add_u32 v{t0}, s{sT0}, v{t0}
    v_mul_u32_u24 v{t0}, 3584, v{t0}
    s_lshl_b32 s{sT1}, s{sFI}, 7
    v_add_u32 v{vTW}, s{sT1}, v{t0}''')
def touch(c):
    return [f's_add_u32 s{sT4}, s{sROT}, {c}\ns_and_b32 s{sT4}, s{sT4}, 7\ns_lshl_b32 s{sT5}, s{sT4}, 7\ns_mul_i32 s{sT4}, s{sT4}, {64*3584}',
            f's_mov_b64 exec, 0xff\nbuffer_load_dword v{vTD}, v{vTW}, {srd(S_WG)}, s{sT4} offen\nbuffer_load_dword v{vTD+1}, v{vTW}, {srd(S_WU)}, s{sT4} offen\ns_mov_b64 exec, 0xfffff\nbuffer_load_dword v{vTD+2}, v{vTX}, {srd(S_X)}, s{sT5} offen\ns_mov_b64 exec, -1']
def touch_wd(p):
    t0 = 253
    p(f'''s_mul_i32 s{sT0}, s{sJ}, 37
    s_lshr_b32 s{sT0}, s{sT0}, 8
    s_mul_i32 s{sT1}, s{sT0}, 7
    s_sub_u32 s{sT1}, s{sJ}, s{sT1}
    s_lshl_b32 s{sT1}, s{sT1}, 2
    s_add_u32 s{sT1}, s{sT1}, s{sW}
    s_lshl_b32 s{sT1}, s{sT1}, 4
    s_lshl_b32 s{sT2}, s{sXCD}, 2
    s_add_u32 s{sT0}, s{sT0}, s{sT2}
    s_lshr_b32 s{sT2}, s{sT0}, 3
    s_mul_i32 s{sT2}, s{sT2}, 448
    s_add_u32 s{sT1}, s{sT1}, s{sT2}
    s_lshl_b32 s{sT1}, s{sT1}, 3
    s_and_b32 s{sT0}, s{sT0}, 7
    s_add_u32 s{sT0}, s{sT0}, s{sT1}
    s_lshl_b32 s{sT0}, s{sT0}, 7
    v_and_b32 v{t0}, 15, v{vL}
    v_lshl_add_u32 v{t0}, v{t0}, 10, s{sT0}
    s_mov_b64 exec, 0xffff
    global_load_dword v{vTD}, v{t0}, s[24:25]
    s_mov_b64 exec, -1''')
def g1_setup2(p):
    t0, t1, t2, t3 = 192, 193, 194, 195
    p(f'''v_and_b32 v{t0}, 31, v{vL}
    v_lshrrev_b32 v{t1}, 5, v{vL}
    v_bfe_u32 v{t2}, v{vL}, 1, 3
    v_xor_b32 v{t2}, v{t2}, v{t1}
    v_lshlrev_b32 v{t2}, 4, v{t2}
    v_lshl_add_u32 v{t2}, v{t0}, 7, v{t2}
    v_add_u32 v{G1_XR}, s{sXM}, v{t2}''')
    for s in range(1, 4): p(f'v_xor_b32 v{G1_XR+s}, {32*s}, v{G1_XR}')
    p(f'''v_bfe_u32 v{t0}, v{vL}, 2, 2
    v_lshl_add_u32 v{t0}, v{t1}, 3, v{t0}
    v_bfe_u32 v{t1}, v{vL}, 4, 1
    v_bfe_u32 v{t2}, v{vL}, 1, 1
    v_lshl_add_u32 v{t1}, v{t1}, 1, v{t2}
    v_bfe_u32 v{t2}, v{vL}, 3, 1
    v_lshl_add_u32 v{t1}, v{t2}, 2, v{t1}
    v_and_b32 v{t2}, 1, v{vL}
    v_lshlrev_b32 v{t2}, 3, v{t2}
    v_lshl_add_u32 v{t2}, v{t1}, 4, v{t2}
    v_lshl_add_u32 v{t2}, v{t0}, 7, v{t2}
    v_add_u32 v{G1_WR}, 98304, v{t2}
    v_xor_b32 v{G1_WR+1}, 64, v{G1_WR}''')
def g1_reads(t, s):
    b = (4 * t + s) & 1; sl = t % 3; o = []
    B = lambda st: f'ds_read_b128 {vr(G1_B + 8*b + 4*st, 4)}, v{G1_XR+s} offset:{(sl&1)*32768 + st*4096}'
    tog = f'v_add_u32 v{G1_XR+s}, 0x10000, v{G1_XR+s}\n' if sl == 2 else f'v_subrev_u32 v{G1_XR+s}, 0x10000, v{G1_XR+s}\n' if sl == 0 and t else ''
    o.append(tog + B(0))
    for mat in range(2):
        for ft in range(2):
            r = G1_A + 16 * b + 4 * (2 * mat + ft)
            for h in range(2):
                o.append(f'ds_read_b64_tr_b16 {vr(r+2*h, 2)}, v{G1_WR+ft} offset:{sl*16384 + mat*8192 + s*2048 + h*512}')
    o.append(B(1))
    return o
def g1_mfmas(t, s):
    b = (4 * t + s) & 1; o = []
    for st in range(2):
        for mat in range(2):
            for ft in range(2):
                c = acc1(st, mat, ft)
                src = '0' if (t == 0 and s == 0) else vr(c, 16)
                o.append(f'v_mfma_f32_32x32x16_bf16 {vr(c,16)}, {vr(G1_A + 16*b + 4*(2*mat+ft), 4)}, {vr(G1_B + 8*b + 4*st, 4)}, {src}')
    return o
def g1_main(p, extra=None, post=None, ini=3, pre=None):
    extra = extra or {}; post = post or {}; pre = pre or {}
    p.waitvm('dma0'); p('s_barrier')
    p.extend(g1_reads(0, 0))
    pend = [x for t in range(ini, 3) for x in g1_dma(t)]
    for t in range(8):
        for s in range(4):
            mf = g1_mfmas(t, s)
            slots = [[] for _ in range(8)]
            if s < 3:
                rd = g1_reads(t, s + 1)
                for i, x in enumerate(rd): slots[i // 2].append(x)
            elif t < 7:
                slots[1] += pre.get(t, []) + [Ins('s_waitcnt lgkmcnt(0)'), Ins(f'WAITVM dma{t+1}'), 's_barrier']
                rd = g1_reads(t + 1, 0)
                for i, x in enumerate(rd): slots[1 + i // 2].append(x)
                slots[1] += post.get(t, [])
                if t + 3 < 8: pend = g1_dma(t + 3)
            else:
                slots[1] += [Ins('s_waitcnt lgkmcnt(0)'), 's_barrier'] + post.get(t, [])
            lo = 6 if s == 3 else 5 if (s < 2 and (t or ini > 1)) else 0
            if s == 3: n = min(len(pend), 4)
            elif s < 2: n = min(len(pend), 7) if (t or ini > 1) else 17
            else: n = len(pend)
            for i in range(n): slots[lo + i * (8 - lo) // max(n, 1)].append(pend.pop(0))
            ex = extra.get((t, s), [])
            for i, x in enumerate(ex): slots[i * 8 // len(ex)].append(x)
            for m in range(8):
                p(mf[m]); p.extend(slots[m])
    assert not pend
def g1_epilogue(p, fill=()):
    fill = list(fill); nf = len(fill)
    H, va = 128, 192
    p(f'''s_lshl_b32 s{sT0}, s{sMI}, 2
    s_add_u32 s{sT0}, s{sT0}, s{sW}
    s_lshl_b32 s{sT0}, s{sT0}, 10
    s_lshl_b32 s{sT1}, s{sFI}, 18
    s_add_u32 s{sT0}, s{sT0}, s{sT1}
    s_add_u32 s{sT0}, s{sT0}, {WS_H}
    v_lshlrev_b32 v{va}, 4, v{vL}''')
    for ft in range(2):
        for q in range(4):
            R = H + 4 * (4 * ft + q)
            for st in range(2):
                g = acc1(st, 0, ft) + 4 * q; u = acc1(st, 1, ft) + 4 * q
                for e in range(4): p(f'v_max_f32 v{g+e}, 0, v{g+e}')
                for e in (0, 2): p(f'v_pk_mul_f32 {vr(g+e,2)}, {vr(g+e,2)}, {vr(u+e,2)}')
                for e in (0, 2): p(f'v_cvt_pk_bf16_f32 v{R + 2*st + e//2}, v{g+e}, v{g+e+1}')
            p(f'v_permlane32_swap_b32 v{R}, v{R+2}\nv_permlane32_swap_b32 v{R+1}, v{R+3}')
            p(f'buffer_store_dwordx4 {vr(R,4)}, v{va}, {srd(S_WS)}, s{sT0} offen sc1', 'hst')
            if (ft, q) != (1, 3): p(f's_add_u32 s{sT0}, s{sT0}, 32768')
            i = 4 * ft + q
            p.extend(fill[nf * i // 8: nf * (i + 1) // 8])

def k_gemm1():
    p = Prog(); prologue(p)
    L = p.label('main')
    p(f's_cmp_lt_u32 s{sJ}, 28\ns_cbranch_scc1 {L}\ns_endpgm\n{L}:')
    g1_setup(p)
    for t in range(3): p.extend(g1_dma(t))
    g1_setup2(p)
    g1_main(p); g1_epilogue(p)
    p('s_endpgm')
    return p

SP_X = 0
SP_W = 73728
def spare_issue_w(p):
    t0, t1, t2, t3, vw, vx = 1, 2, 3, 4, 8, 10
    mk_srd(p, S_P, 24, 1792 * 1024)
    p(f'''s_lshr_b32 s{sT0}, s{sSI}, 3
    s_lshl_b32 s{sT0}, s{sT0}, 2
    s_add_u32 s{sT0}, s{sT0}, s{sW}
    s_mul_i32 s{sT0}, s{sT0}, {112*1024}
    s_and_b32 s{sT1}, s{sSI}, 7
    s_lshl_b32 s{sT1}, s{sT1}, 7
    s_add_u32 s{sT0}, s{sT0}, s{sT1}
    v_lshrrev_b32 v{t0}, 3, v{vL}
    v_and_b32 v{t1}, 7, v{vL}
    v_bfe_u32 v{t2}, v{vL}, 4, 1
    v_lshlrev_b32 v{t2}, 2, v{t2}
    v_xor_b32 v{t2}, v{t1}, v{t2}
    v_lshlrev_b32 v{t2}, 4, v{t2}
    v_lshl_add_u32 v{vw}, v{t0}, 10, v{t2}
    s_mul_i32 s{sWM}, s{sW}, 14336
    s_add_u32 s{sWM}, s{sWM}, {SP_W}''')
    for i in range(14):
        p(f's_add_u32 m0, s{sWM}, {1024*i}')
        p(f'buffer_load_dwordx4 v{vw}, {srd(S_P)}, s{sT0} offen lds', f'wdma{i//2}')
        if i < 13: p(f's_add_u32 s{sT0}, s{sT0}, 8192')
def spare_issue_x(p):
    t0, t1, t2, t3, vw, vx = 1, 2, 3, 4, 8, 10
    p(f'''s_lshl_b32 s{sT1}, s{sW}, 2
    s_and_b32 s{sT1}, s{sT1}, 7
    v_xor_b32 v{t0}, s{sT1}, v{vL}
    v_lshlrev_b32 v{vx}, 4, v{t0}
    v_xor_b32 v{vx+1}, 16, v{vx}
    v_xor_b32 v{vx+2}, 32, v{vx}
    v_xor_b32 v{vx+3}, 48, v{vx}
    s_lshl_b32 s{sT0}, s{sSI}, 2
    s_add_u32 s{sT0}, s{sT0}, s{sW}
    s_lshl_b32 s{sT0}, s{sT0}, 14
    s_mul_i32 s{sXM}, s{sW}, {16*1152}''')
    for i in range(16):
        p(f's_add_u32 m0, s{sXM}, {SP_X + 1152*i}')
        p(f'buffer_load_dwordx4 v{vx + 2*(i>>3) + ((i>>1)&1)}, {srd(S_X)}, s{sT0} offen lds', 'xdma')
        if i < 15: p(f's_add_u32 s{sT0}, s{sT0}, 1024')
def spare_issue_g(p):
    t0 = 1
    mk_srd(p, S_WG, 26, 1024)
    p(f'v_and_b32 v{t0}, 3, v{vL}\nv_lshlrev_b32 v{t0}, 4, v{t0}')
    for i in range(16): p(f'buffer_load_dwordx4 {vr(128+4*i,4)}, v{t0}, {srd(S_WG)}, 0 offen offset:{64*i}')
def spare_wd(p, fill=()):
    t0, t1, t2, ra, va = 1, 2, 3, 6, 14
    p(f'''v_lshrrev_b32 v{t1}, 5, v{vL}
    v_bfe_u32 v{t0}, v{vL}, 2, 2
    v_lshl_add_u32 v{t0}, v{t1}, 3, v{t0}
    v_bfe_u32 v{t1}, v{vL}, 4, 1
    v_bfe_u32 v{t2}, v{vL}, 1, 1
    v_lshl_add_u32 v{t1}, v{t1}, 1, v{t2}
    v_bfe_u32 v{t2}, v{vL}, 3, 1
    v_lshl_add_u32 v{t1}, v{t2}, 2, v{t1}
    v_and_b32 v{t2}, 1, v{vL}
    v_lshlrev_b32 v{t2}, 3, v{t2}
    v_lshl_add_u32 v{t2}, v{t1}, 4, v{t2}
    v_lshl_add_u32 v{t2}, v{t0}, 7, v{t2}
    v_add_u32 v{ra}, s{sWM}, v{t2}
    v_xor_b32 v{ra+1}, 64, v{ra}
    v_lshlrev_b32 v{va}, 4, v{vL}
    s_and_b32 s{sT0}, s{sSI}, 7
    s_lshl_b32 s{sT0}, s{sT0}, 2
    s_lshr_b32 s{sT1}, s{sSI}, 3
    s_add_u32 s{sT0}, s{sT0}, s{sT1}
    s_lshl_b32 s{sT0}, s{sT0}, 2
    s_add_u32 s{sT0}, s{sT0}, s{sW}
    s_mul_i32 s{sT0}, s{sT0}, 14336
    s_add_u32 s{sT5}, s{sT0}, {WS_WDT}''')
    def st(i):
        p(f'buffer_store_dwordx4 {vr(16+4*i,4)}, v{va}, {srd(S_WS)}, s{sT5} offen offset:{1024*(i&3)} sc1', 'wst')
        if i & 3 == 3: p(f's_add_u32 s{sT5}, s{sT5}, 4096')
    fill = list(fill); nf = len(fill)
    for s in range(8):
        if s < 7:
            p.waitvm(f'wdma{s}')
            for d in range(2):
                r = 16 + 4 * (2 * s + d)
                for h in range(2): p(f'ds_read_b64_tr_b16 {vr(r+2*h,2)}, v{ra+d} offset:{s*2048 + h*512}')
        if s: st(2 * s - 2); st(2 * s - 1)
        p.extend(fill[nf * s // 8: nf * (s + 1) // 8])
def spare_ut(p):
    t0, t1, t2, t3, ra, va = 1, 2, 3, 4, 72, 14
    p(f'''v_and_b32 v{t0}, 3, v{vL}
    v_lshrrev_b32 v{t1}, 5, v{vL}
    v_lshl_add_u32 v{t1}, v{t1}, 2, v{t0}
    v_bfe_u32 v{t2}, v{vL}, 2, 2
    v_lshl_add_u32 v{t1}, v{t1}, 3, v{t2}
    v_mul_u32_u24 v{t1}, 1152, v{t1}
    v_bfe_u32 v{t2}, v{vL}, 3, 1
    v_lshl_add_u32 v{t0}, v{t0}, 1, v{t2}
    v_lshl_add_u32 v{t1}, v{t0}, 4, v{t1}
    v_bfe_u32 v{t2}, v{vL}, 4, 1
    v_lshl_add_u32 v{t1}, v{t2}, 3, v{t1}
    s_lshl_b32 s{sT0}, s{sW}, 8
    v_add_u32 v{ra}, s{sT0}, v{t1}''')
    for k in range(1, 8): p(f'v_xor_b32 v{ra+k}, {16*k}, v{ra}')
    p(f'''v_and_b32 v{t0}, 15, v{vL}
    v_lshlrev_b32 v{t0}, 4, v{t0}
    v_lshrrev_b32 v{t1}, 5, v{vL}
    v_lshl_add_u32 v{t0}, v{t1}, 8, v{t0}
    v_lshl_add_u32 v{va}, v{t2}, 14, v{t0}
    s_lshl_b32 s{sT0}, s{sW}, 19
    s_lshl_b32 s{sT1}, s{sSI}, 9
    s_add_u32 s{sT0}, s{sT0}, s{sT1}
    s_add_u32 s{sT0}, s{sT0}, {WS_UT}''')
    p.waitvm('xdma'); p('s_barrier')
    for k in range(16):
        r = 16 + 4 * (k % 8) if k < 8 else 80 + 4 * (k % 8)
        for h in range(2): p(f'ds_read_b64_tr_b16 {vr(r+2*h,2)}, v{ra+(k&7)} offset:{SP_X + (k>>3)*128 + h*4608}')
    for k in range(16):
        r = 16 + 4 * (k % 8) if k < 8 else 80 + 4 * (k % 8)
        p(f'buffer_store_dwordx4 {vr(r,4)}, v{va}, {srd(S_WS)}, s{sT0} offen sc1', 'ust')
        if k < 15: p(f's_add_u32 s{sT0}, s{sT0}, 32768')
def spare_g(p):
    t0, t1, t2, ra, ac = 1, 2, 3, 8, 10
    p(f'''s_lshl_b32 s{sT0}, s{sW}, 4
    v_lshrrev_b32 v{t0}, 2, v{vL}
    v_add_u32 v{t0}, s{sT0}, v{t0}
    v_bfe_u32 v{t1}, v{t0}, 3, 2
    v_bfe_u32 v{t2}, v{t0}, 1, 1
    v_lshl_add_u32 v{t1}, v{t1}, 1, v{t2}
    v_and_b32 v{t2}, 3, v{vL}
    v_xor_b32 v{t1}, v{t1}, v{t2}
    v_mul_u32_u24 v{ra}, 1152, v{t0}
    v_lshl_add_u32 v{ra}, v{t1}, 4, v{ra}
    v_xor_b32 v{ra+1}, 64, v{ra}''')
    for i in range(16): p(f'ds_read_b128 {vr(16+4*i,4)}, v{ra+(i&1)} offset:{SP_X + (i>>1)*128}')
    for e in range(4): p(f'v_mov_b32 v{ac+e}, 0')
    for i in range(16):
        for e in range(4): p(f'v_dot2c_f32_bf16 v{ac+e}, v{16+4*i+e}, v{128+4*i+e}')
    p(f'''v_add_f32 v{ac}, v{ac}, v{ac+1}
    v_add_f32 v{ac+2}, v{ac+2}, v{ac+3}
    v_add_f32 v{ac}, v{ac}, v{ac+2}
    v_add_f32_dpp v{ac+1}, v{ac}, v{ac} quad_perm:[1,0,3,2] row_mask:0xf bank_mask:0xf
    v_add_f32_dpp v{ac}, v{ac+1}, v{ac+1} quad_perm:[2,3,0,1] row_mask:0xf bank_mask:0xf
    v_cvt_pk_bf16_f32 v{ac}, v{ac}, v{ac}
    v_and_b32 v{ac}, 0xffff0000, v{ac}
    v_mul_f32 v{ac}, 0xbfb8aa3b, v{ac}
    v_exp_f32 v{ac}, v{ac}
    v_add_f32 v{ac}, 1.0, v{ac}
    v_rcp_f32 v{ac}, v{ac}
    v_cvt_pk_bf16_f32 v{ac}, v{ac}, v{ac}
    v_and_b32 v{ac}, 0xffff0000, v{ac}
    s_lshl_b32 s{sT0}, s{sSI}, 8
    s_add_u32 s{sT0}, s{sT0}, {WS_G}
    v_lshlrev_b32 v{t0}, 2, v{t0}''')
    p(f'buffer_store_dword v{ac}, v{t0}, {srd(S_WS)}, s{sT0} offen sc1', 'gst')

def k_spare():
    p = Prog(); prologue(p)
    L = p.label('main')
    p(f's_cmp_ge_u32 s{sJ}, 28\ns_cbranch_scc1 {L}\ns_endpgm\n{L}:')
    spare_issue(p); spare_wd(p); spare_ut(p); spare_g(p)
    p('s_endpgm')
    return p

KT, KTS, KR = 65536, 65536, 528
TL, TLS = 159056, 2064
IMG, IMS = 131072, 8320
UIM, UIS = 147712, 4672
RED = 0
AS = 32768
P2 = 49152
vPAR = 196
vGA = 202
def vE(e): return vGA + 16 if e < 0 else vGA + 8 + (15 - e) // 2 if e & 1 else vGA + (14 - e) // 2
vTA = 219
vZA = 222
vDM = 223
def par_loads(p):
    t0, t1 = 192, 193
    p(f'''s_lshl_b32 s{sT0}, s{sPI}, 2
    s_add_u32 s{sT0}, s{sT0}, s{sW}
    s_lshl_b32 s{sT1}, s{sT0}, 7
    v_lshl_add_u32 v{t0}, v{vL}, 1, s{sT1}
    s_lshr_b32 s{sT0}, s{sT0}, 1
    s_lshl_b32 s{sT0}, s{sT0}, 1
    v_mov_b32 v{t1}, s{sT0}''')
    for i in range(4): p(f'global_load_short_d16_hi v{vPAR+i}, v{t0}, s[{6+2*i}:{7+2*i}]')
    for i in range(2): p(f'global_load_short_d16_hi v{vPAR+4+i}, v{t1}, s[{14+2*i}:{15+2*i}]')
def par_zero(p):
    for i in range(6): p(f'v_mov_b32 v{vPAR+i}, 0')
def rne_off(s, e):
    q, r = divmod(e, 1 << s); h = (1 << s) // 2
    if s and (r > h or (r == h and q & 1)): q += 1
    return q
def tail_setup(p):
    t0, t1, t2, t3, t4 = 192, 193, 194, 195, 234
    p(f'''s_lshr_b32 s{sT0}, s{sW}, 1
    s_and_b32 s{sT1}, s{sW}, 1
    s_mul_i32 s{sT2}, s{sT0}, {TLS}
    s_add_u32 s{sT2}, s{sT2}, {TL}
    s_lshl_b32 s{sT3}, s{sT1}, 6
    s_sub_u32 s{sT3}, 127, s{sT3}
    v_sub_u32 v{t0}, s{sT3}, v{vL}
    v_lshlrev_b32 v{t1}, 4, v{t0}''')
    def idx(dst, src):
        p(f'''v_cvt_f32_u32 v{t3}, v{src}
        v_cvt_pk_bf16_f32 v{t3}, v{t3}, v{t3}
        v_and_b32 v{t3}, 0xffff, v{t3}
        v_subrev_u32 v{t3}, 17024, v{t3}
        v_min_i32 v{t4}, 128, v{src}
        v_max_i32 v{t3}, v{t3}, v{t4}
        v_lshl_add_u32 v{dst}, v{t3}, 1, s{sT2}''')
    idx(vE(0), t1)
    p(f'v_subrev_u32 v{t2}, 1, v{t1}\nv_max_i32 v{t2}, 0, v{t2}')
    idx(vE(-1), t2)
    p(f'''s_add_u32 s{sT3}, s{sT2}, 2048
    v_mov_b32 v{t2}, s{sT3}
    v_cmp_eq_u32 vcc, 0, v{t0}
    v_cndmask_b32 v{vE(-1)}, v{vE(-1)}, v{t2}, vcc
    v_ffbh_u32 v{t2}, v{t0}
    v_min_u32 v{t2}, 28, v{t2}
    v_sub_u32 v{t2}, 28, v{t2}
    v_lshlrev_b32 v{t2}, 3, v{t2}''')
    for e in range(1, 16):
        k = sum((2 * rne_off(s, e)) << (8 * s) for s in range(4))
        p(f's_mov_b32 s{sT3}, {hex(k)}\nv_bfe_u32 v{t3}, s{sT3}, v{t2}, 8\nv_add_u32 v{vE(e)}, v{vE(0)}, v{t3}')
    p(f'''v_and_b32 v{t0}, 15, v{vL}
    s_lshl_b32 s{sT3}, s{sT1}, 4
    v_add_u32 v{t0}, s{sT3}, v{t0}
    v_lshrrev_b32 v{t1}, 4, v{vL}
    v_lshlrev_b32 v{t2}, 3, v{t1}
    v_lshl_add_u32 v{t2}, v{t0}, 4, v{t2}
    v_lshlrev_b32 v{t3}, 3, v{t0}
    v_add_u32 v{t3}, 512, v{t3}
    v_cmp_eq_u32 vcc, 2, v{t1}
    v_cndmask_b32 v{t2}, v{t2}, v{t3}, vcc
    v_lshlrev_b32 v{t3}, 2, v{t0}
    v_add_u32 v{t3}, 768, v{t3}
    v_mov_b32 v{t4}, 4
    v_mov_b32 v{vTA+1}, 128
    v_cmp_eq_u32 vcc, 3, v{t1}
    v_cndmask_b32 v{t2}, v{t2}, v{t3}, vcc
    v_cndmask_b32 v{t4}, v{t4}, v{vTA+1}, vcc
    v_add_u32 v{vTA}, s{sT2}, v{t2}
    v_add_u32 v{vTA+1}, v{vTA}, v{t4}
    v_lshlrev_b32 v{t2}, 8, v{t1}
    v_lshl_add_u32 v{t2}, v{t0}, 1, v{t2}
    v_add_u32 v{vTA+2}, s{sT2}, v{t2}
    v_or_b32 v{t2}, v{t0}, v{t1}
    v_mov_b32 v{t3}, 0
    v_cmp_eq_u32 vcc, 0, v{t2}
    v_cndmask_b32 v{vDM}, v{t3}, 1.0, vcc''')
    p(f'''v_lshrrev_b32 v{t0}, 5, v{vL}
    v_mul_u32_u24 v{t0}, {UIS}, v{t0}
    v_and_b32 v{t1}, 31, v{vL}
    v_lshl_add_u32 v{t0}, v{t1}, 4, v{t0}
    v_add_u32 v{t0}, {UIM}, v{t0}
    v_bfe_u32 v{t1}, v{vL}, 1, 2
    v_mul_u32_u24 v{t1}, 4160, v{t1}
    v_and_b32 v{t2}, 1, v{vL}
    v_lshl_add_u32 v{t1}, v{t2}, 4, v{t1}
    v_add_u32 v{t1}, {IMG + 4096}, v{t1}
    v_mul_u32_u24 v{t2}, {TLS}, v{t2}
    v_add_u32 v{t2}, {TL + 2048}, v{t2}
    v_and_b32 v{t3}, 8, v{vL}
    v_cmp_eq_u32 vcc, 0, v{t3}
    v_cndmask_b32 v{t1}, v{t2}, v{t1}, vcc
    s_cmp_eq_u32 s{sW}, 0
    s_cselect_b64 vcc, -1, 0
    v_cndmask_b32 v{vZA}, v{t1}, v{t0}, vcc''')
HI = [0,1,2,3,4,5,6,7,256,258,260,262,512,516,768,772,1024,1280,1536,1792,2048]
def merge(chains):
    out = []; ch = [list(c) for c in chains]
    while any(ch):
        for c in ch:
            if c: out.append(c.pop(0))
    return out
def cmul(D, X, Y):
    return [f'v_pk_mul_f32 {vr(D,2)}, {vr(X,2)}, {vr(Y,2)} op_sel:[0,0] op_sel_hi:[0,1]',
            f'v_pk_fma_f32 {vr(D,2)}, {vr(X,2)}, {vr(Y,2)}, {vr(D,2)} op_sel:[1,1,0] op_sel_hi:[1,0,1] neg_lo:[0,1,0]']
def kgen_valu(p, fills=()):
    lar, aim, cre, cim, ldt, dsk = range(vPAR, vPAR + 6)
    def expbf(x, t):
        return [f'v_mul_f32 v{t}, 0x3fb8aa3b, v{x}', f'v_fma_f32 v{t+1}, v{x}, s{sT2}, -v{t}', f'v_fmac_f32 v{t+1}, 0x32a57060, v{x}',
                f'v_exp_f32 v{t}, v{t}', f'v_mul_f32 v{t+1}, 0x3f317218, v{t+1}', f'v_fmac_f32 v{t}, v{t}, v{t+1}',
                f'v_cvt_pk_bf16_f32 v{t}, v{t}, v{t}', f'v_and_b32 v{x}, 0xffff0000, v{t}']
    vKA = 13
    p(f'''s_mov_b32 s{sT2}, 0x3fb8aa3b
    s_lshr_b32 s{sT0}, s{sW}, 1
    s_mul_i32 s{sT1}, s{sT0}, {TLS}
    s_add_u32 s{sT1}, s{sT1}, {TL + 2048}
    v_mov_b32 v10, s{sT1}
    s_mul_i32 s{sT0}, s{sT0}, {KTS}
    s_and_b32 s{sT1}, s{sW}, 1
    s_lshl_b32 s{sT1}, s{sT1}, 8
    s_add_u32 s{sT0}, s{sT0}, s{sT1}
    s_add_u32 s{sT0}, s{sT0}, {KT}
    v_lshl_add_u32 v{vKA}, v{vL}, 2, s{sT0}
    v_mov_b32 v11, 0
    v_mov_b32 v12, 0x3f80''')
    p(f'ds_write_b32 v10, v11\nds_write_b32 v{vKA}, v12')
    p0 = p; p = Prog()
    p.extend(merge([expbf(ldt, 0), expbf(lar, 2)]))
    a2, b2 = 4, 5
    Hreg = {h: 16 + 2 * i for i, h in enumerate(HI)}
    Lreg = {k: 58 + 2 * k for k in range(1, 32)}
    Z1, Z2, Z4, Z256 = 122, 124, 126, 128
    p(f'''v_mul_f32 v{a2}, v{lar}, v{ldt}
    v_mul_f32 v{b2}, v{aim}, v{ldt}
    v_mul_f32 v6, v{cre}, v{ldt}
    v_mul_f32 v7, v{cim}, v{ldt}
    v_mul_f32 v{a2}, 0xbfb8aa3b, v{a2}
    v_mul_f32 v{b2}, 0x3e22f983, v{b2}
    v_add_f32 v{Hreg[0]}, v6, v6
    v_add_f32 v{Hreg[0]+1}, v7, v7
    v_mul_f32 v{vDM}, v{vDM}, v{dsk}''')
    def direct(D, pw, t):
        o = []
        if pw != 1: o += [f'v_mul_f32 v{t}, {float(pw)}, v{a2}', f'v_mul_f32 v{t+1}, {float(pw)}, v{b2}', f'v_exp_f32 v{t}, v{t}', f'v_fract_f32 v{t+1}, v{t+1}']
        else: o += [f'v_exp_f32 v{t}, v{a2}', f'v_fract_f32 v{t+1}, v{b2}']
        o += [f'v_cos_f32 v{D}, v{t+1}', f'v_sin_f32 v{D+1}, v{t+1}', f'v_mul_f32 v{D}, v{D}, v{t}', f'v_mul_f32 v{D+1}, v{D+1}, v{t}']
        return o
    p.extend(merge([direct(Lreg[1], 8, 0), direct(Z256, 256, 2), direct(Z1, 1, 8)]))
    cv = [130]
    def put(reg, row, neg):
        t = cv[0]
        return [f'v_cvt_pk_bf16_f32 v{t}, v{reg}, {"-" if neg else ""}v{reg+1}', f'ds_write_b32 v{vKA}, v{t} offset:{row*KR}']
    ph = lambda h: put(Hreg[h], 32 + HI.index(h), True)
    pl = lambda k: put(Lreg[k], k, False)
    cv[0] = 130
    c1 = cmul(Lreg[2], Lreg[1], Lreg[1]) + pl(1) + cmul(Lreg[4], Lreg[2], Lreg[2]) + pl(2)
    cv[0] = 131
    c2 = cmul(Z2, Z1, Z1) + ph(0) + cmul(Lreg[3], Lreg[2], Lreg[1]) + cmul(Z4, Z2, Z2)
    cv[0] = 132
    c3 = cmul(Hreg[256], Hreg[0], Z256) + cmul(Hreg[1], Hreg[0], Z1) + ph(256) + ph(1)
    p.extend(merge([c1, c2, c3]))
    chains = []
    for k0 in range(1, 5):
        c = []; cv[0] = 132 + k0
        for k in range(k0, 32, 4):
            if k + 4 < 32: c += cmul(Lreg[k + 4], Lreg[k], Lreg[4])
            if k > 2: c += pl(k)
        chains.append(c)
    c = []; cv[0] = 137
    for h in range(2, 8): c += cmul(Hreg[h], Hreg[h - 1], Z1) + ph(h)
    for h in (258, 260, 262): c += cmul(Hreg[h], Hreg[h - 2], Z2) + ph(h)
    chains.append(c)
    c = []; cv[0] = 138
    for h in range(512, 2049, 256):
        c += cmul(Hreg[h], Hreg[h - 256], Z256) + ph(h)
        if h in (512, 768): c += cmul(Hreg[h + 4], Hreg[h], Z4) + ph(h + 4)
    chains.append(c)
    p.extend(merge(chains))
    n = len(p.ins); at = [[] for _ in range(n)]
    for a, b, lst in fills:
        for i, x in enumerate(lst): at[min(n - 1, int(n * (a + (b - a) * i / len(lst))))].append(x)
    for I, x in zip(p.ins, at): p0.extend([I]); p0.extend(x)
def kgen_mfma(p, fill=()):
    ra, rb, rc, t0, t1 = 0, 1, 12, 2, 3
    p(f'''s_lshr_b32 s{sT0}, s{sW}, 1
    s_mul_i32 s{sT0}, s{sT0}, {KTS}
    s_add_u32 s{sT0}, s{sT0}, {KT}
    s_and_b32 s{sT1}, s{sW}, 1
    s_mul_i32 s{sT1}, s{sT1}, {16*KR}
    v_and_b32 v{t0}, 15, v{vL}
    v_lshrrev_b32 v{t1}, 4, v{vL}
    v_lshl_add_u32 v{t1}, v{t1}, 4, s{sT0}
    v_mad_u32_u24 v{ra}, v{t0}, {'s'+str(sT3)}, v{t1}
    v_min_u32 v{t0}, 4, v{t0}
    v_mad_u32_u24 v{rc}, v{t0}, {'s'+str(sT3)}, v{t1}
    v_add_u32 v{rb}, s{sT1}, v{ra}
    s_waitcnt lgkmcnt(0)
    s_barrier'''.replace('v_and_b32', f's_mov_b32 s{sT3}, {KR}\n    v_and_b32', 1))
    fill = list(fill); nf = len(fill)
    F = lambda ks, i: 16 + 12 * ks + 4 * i
    for ks in range(8):
        p.extend(fill[nf * ks // 8: nf * (ks + 1) // 8])
        p(f'ds_read_b128 {vr(F(ks,0),4)}, v{rb} offset:{64*ks}')
        p(f'ds_read_b128 {vr(F(ks,1),4)}, v{ra} offset:{64*ks + 32*KR}')
        p(f'ds_read_b128 {vr(F(ks,2),4)}, v{rc} offset:{64*ks + 48*KR}')
        if ks >= 3:
            k = ks - 3
            for mt in range(2): p(f'v_mfma_f32_16x16x32_bf16 {vr(4+4*mt,4)}, {vr(F(k,1+mt),4)}, {vr(F(k,0),4)}, {"0" if k == 0 else vr(4+4*mt,4)}')
    for k in range(5, 8):
        for mt in range(2): p(f'v_mfma_f32_16x16x32_bf16 {vr(4+4*mt,4)}, {vr(F(k,1+mt),4)}, {vr(F(k,0),4)}, {vr(4+4*mt,4)}')
    p(f'''v_add_f32 v4, v4, v{vDM}
    v_cvt_pk_bf16_f32 v5, v4, v5
    v_cvt_pk_bf16_f32 v6, v6, v7
    v_cvt_pk_bf16_f32 v8, v8, v9
    v_cvt_pk_bf16_f32 v10, v10, v11
    ds_write_b32 v{vTA}, v5
    ds_write_b32 v{vTA+1}, v6
    ds_write_b16 v{vTA+2}, v8 offset:1024
    ds_write_b16_d16_hi v{vTA+2}, v8 offset:1088
    ds_write_b16 v{vTA+2}, v10 offset:1152
    ds_write_b16_d16_hi v{vTA+2}, v10 offset:1216''')
def zero_fill():
    return ['v_mov_b32 v196, 0\nv_mov_b32 v197, 0', 'v_mov_b32 v198, 0\nv_mov_b32 v199, 0', f'ds_write_b128 v{vZA}, v[196:199]']
def expand():
    B, A, wa = vGA, vGA + 8, 200
    rd = [f'''s_lshr_b32 s{sT0}, s{sW}, 1
    s_mul_i32 s{sT0}, s{sT0}, {IMS}
    s_and_b32 s{sT1}, s{sW}, 1
    s_lshl_b32 s{sT1}, s{sT1}, 11
    s_add_u32 s{sT0}, s{sT0}, s{sT1}
    s_add_u32 s{sT0}, s{sT0}, {IMG}
    v_lshl_add_u32 v{wa}, v{vL}, 5, s{sT0}''']
    for k in range(8): rd += [f'ds_read_u16 v{A+k}, v{A+k}', f'ds_read_u16 v{B+k}, v{B+k}']
    rd.append(f'ds_read_u16 v{A+8}, v{A+8}')
    wr = []
    for k in range(8):
        wr.append(f'v_lshl_or_b32 v{192+k}, v{B+k}, 16, v{A+k}\nv_lshl_or_b32 v{B+k}, v{A+k+1}, 16, v{B+k}')
        if k & 3 == 3: wr += [f'ds_write_b128 v{wa}, {vr(189+k,4)} offset:{4*(k-3)}', f'ds_write_b128 v{wa}, {vr(B+k-3,4)} offset:{4160 + 4*(k-3)}']
    return rd, wr
vU = 224
def u_loads(p):
    t0, t1 = 232, 233
    p(f'''s_lshr_b32 s{sT0}, s{sPI}, 1
    s_lshl_b32 s{sT0}, s{sT0}, 14
    s_and_b32 s{sT1}, s{sPI}, 1
    s_lshl_b32 s{sT1}, s{sT1}, 5
    s_add_u32 s{sT0}, s{sT0}, s{sT1}
    s_lshl_b32 s{sT1}, s{sW}, 11
    s_add_u32 s{sT0}, s{sT0}, s{sT1}
    s_add_u32 s{sT0}, s{sT0}, {WS_UT}
    s_add_u32 s{sT1}, s{sT0}, 8192
    v_lshrrev_b32 v{t0}, 1, v{vL}
    v_and_b32 v{t1}, 1, v{vL}
    v_lshlrev_b32 v{t1}, 4, v{t1}
    v_lshl_add_u32 v{t0}, v{t0}, 6, v{t1}
    buffer_load_dwordx4 {vr(vU,4)}, v{t0}, {srd(S_WS)}, s{sT0} offen sc1
    buffer_load_dwordx4 {vr(vU+4,4)}, v{t0}, {srd(S_WS)}, s{sT1} offen sc1''')
def u_put():
    t0, t1 = 232, 233
    return [f'''s_lshl_b32 s{sT0}, s{sW}, 9
    s_add_u32 s{sT0}, s{sT0}, {UIM + 512}
    v_lshrrev_b32 v{t0}, 1, v{vL}
    v_and_b32 v{t1}, 1, v{vL}''', f'''v_mul_u32_u24 v{t1}, {UIS}, v{t1}
    v_lshl_add_u32 v{t0}, v{t0}, 4, v{t1}
    v_add_u32 v{t0}, s{sT0}, v{t0}''',
    f'ds_write_b128 v{t0}, {vr(vU,4)}', f'ds_write_b128 v{t0}, {vr(vU+4,4)} offset:2048']
def conv(p, extra=None):
    AR, BR, t0, t1, t2, t3 = 160, 164, 166, 167, 168, 169
    CA = lambda b, a: 32 + 64 * b + 4 * a
    CB = lambda b, j: 64 + 64 * b + 4 * j
    p(f'''s_lshr_b32 s{sT0}, s{sW}, 1
    s_and_b32 s{sT1}, s{sW}, 1
    s_lshl_b32 s{sT1}, s{sT1}, 8
    s_mul_i32 s{sT2}, s{sT0}, {IMS}
    s_sub_u32 s{sT2}, s{sT2}, s{sT1}
    s_add_u32 s{sT2}, s{sT2}, {IMG + 8220 - 192 - 512}
    s_mul_i32 s{sT3}, s{sT0}, {UIS}
    s_sub_u32 s{sT3}, s{sT3}, s{sT1}
    s_add_u32 s{sT3}, s{sT3}, {UIM + 480 - 192}
    v_and_b32 v{t0}, 15, v{vL}
    v_lshrrev_b32 v{t1}, 4, v{vL}
    v_lshlrev_b32 v{t1}, 4, v{t1}
    v_lshl_add_u32 v{t2}, v{t0}, 5, v{t1}
    v_add_u32 v{BR}, s{sT3}, v{t2}
    v_and_b32 v{t2}, 1, v{vL}
    v_mul_u32_u24 v{t2}, 4158, v{t2}
    v_lshl_add_u32 v{t2}, v{t0}, 1, v{t2}
    v_sub_u32 v{t2}, v{t1}, v{t2}
    v_add_u32 v{AR}, s{sT2}, v{t2}
    v_subrev_u32 v{AR+1}, 1024, v{AR}
    v_subrev_u32 v{AR+2}, 2048, v{AR}
    v_subrev_u32 v{AR+3}, 3072, v{AR}''')
    def reads(d):
        b = d & 1; o = []
        def A(a):
            off = 16 * (3 - d) + (128 if a % 2 == 0 else 0)
            return [f'ds_read2_b32 {vr(CA(b,a)+2*h,2)}, v{AR+a//2} offset0:{off+2*h} offset1:{off+2*h+1}' for h in range(2)]
        o += A(0)
        for j in range(8): o.append(f'ds_read_b128 {vr(CB(b,j),4)}, v{BR} offset:{512*j + 64*(3-d)}')
        for a in range(1, 8): o += A(a)
        return o
    p.extend(reads(0)[:12]); rest0 = reads(0)[12:]
    for d in range(4):
        b = d & 1; mf = []
        for a in range(8):
            for j in range(a, 8):
                mf.append(f'v_mfma_f32_16x16x32_bf16 {vr(4*j,4)}, {vr(CA(b,a),4)}, {vr(CB(b,j-a),4)}, {"0" if d == 0 and a == 0 else vr(4*j,4)}')
        fill = (rest0 if d == 0 else []) + (reads(d + 1) if d < 3 else [])
        weave(p, mf, fill, (extra or {}).get(d, []), end=34)
def conv_out(p, pre=()):
    wa, ra, va, t0, t1 = 163, 164, 165, 166, 167
    p(f'''s_lshl_b32 s{sT0}, s{sW}, 13
    v_lshrrev_b32 v{t0}, 5, v{vL}
    v_lshlrev_b32 v{t0}, 3, v{t0}
    v_xor_b32 v{t0}, v{t0}, v{vL}
    v_lshl_add_u32 v{wa}, v{t0}, 4, s{sT0}
    s_lshr_b32 s{sT0}, s{sW}, 1
    s_lshl_b32 s{sT0}, s{sT0}, 14
    s_and_b32 s{sT1}, s{sW}, 1
    s_lshl_b32 s{sT1}, s{sT1}, 12
    s_add_u32 s{sT0}, s{sT0}, s{sT1}
    v_and_b32 v{t0}, 1, v{vL}
    v_bfe_u32 v{t1}, v{vL}, 1, 4
    v_lshl_add_u32 v{t1}, v{t0}, 5, v{t1}
    v_lshlrev_b32 v{t0}, 3, v{t0}
    v_xor_b32 v{t1}, v{t1}, v{t0}
    v_lshrrev_b32 v{t0}, 5, v{vL}
    v_lshl_add_u32 v{t1}, v{t0}, 6, v{t1}
    v_lshl_add_u32 v{ra}, v{t1}, 4, s{sT0}
    v_lshlrev_b32 v{va}, 4, v{vL}
    s_lshl_b32 s{sT0}, s{sPI}, 2
    s_add_u32 s{sT0}, s{sT0}, s{sW}
    s_lshl_b32 s{sT0}, s{sT0}, 11
    s_add_u32 s{sT0}, s{sT0}, {WS_AT}''')
    for j in range(8): p(f'ds_write_b128 v{wa}, {vr(4*j,4)} offset:{RED + 1024*j}')
    p.extend(pre)
    p('s_waitcnt lgkmcnt(0)\ns_barrier')
    R = lambda i, h, k: 32 + 16 * i + 8 * k + 4 * h
    for i in range(2):
        for h in range(2):
            for k in range(2): p(f'ds_read_b128 {vr(R(i,h,k),4)}, v{ra} offset:{RED + 8192*k + 2048*i + 256*h}')
    for i in range(2):
        for e in range(0, 8, 2): p(f'v_pk_add_f32 {vr(R(i,0,0)+e,2)}, {vr(R(i,0,0)+e,2)}, {vr(R(i,0,1)+e,2)}')
        for e in range(4): p(f'v_cvt_pk_bf16_f32 v{4*i+e}, v{R(i,0,0)+2*e}, v{R(i,0,0)+2*e+1}')
        p(f'buffer_store_dwordx4 {vr(4*i,4)}, v{va}, {srd(S_WS)}, s{sT0} offen offset:{1024*i} sc1', 'ast')

def k_conv(dbg=False):
    p = Prog(); prologue(p)
    par_zero(p); par_loads(p); u_loads(p); tail_setup(p)
    kgen_valu(p); kgen_mfma(p); u_put(p); expand(p); conv(p); conv_out(p)
    if dbg:
        p(f's_barrier\nv_lshl_add_u32 v0, s{sW}, 6, v{vL}\nv_lshlrev_b32 v0, 4, v0\ns_lshl_b32 s{sT0}, s2, 15\ns_add_u32 s{sT0}, s{sT0}, 0x2000000\nv_add_u32 v1, {TL}, v0')
        for i in range(8):
            p(f'ds_read_b128 v[4:7], v1 offset:{4096*i}\nbuffer_store_dwordx4 v[4:7], v0, {srd(S_WS)}, s{sT0} offen\ns_add_u32 s{sT0}, s{sT0}, 4096\ns_nop 1')
    p('s_endpgm')
    return p

vWA = 236
sWD, sWE, sHX, sHE, sR2 = 4, 5, 6, 7, 8
def rot2_setup(p, on=True):
    if not on: p(f's_mov_b32 s{sR2}, 0'); return
    p(f'''s_and_b32 s{sT0}, s{sJ}, 3
    s_mul_i32 s{sT0}, s{sT0}, 7
    s_lshr_b32 s{sT0}, s{sT0}, 1
    s_mul_i32 s{sT1}, s{sDT}, 7
    s_lshr_b32 s{sT1}, s{sT1}, 2
    s_add_u32 s{sT0}, s{sT0}, s{sT1}
    s_sub_u32 s{sT1}, s{sT0}, 14
    s_cmp_ge_u32 s{sT0}, 14
    s_cselect_b32 s{sR2}, s{sT1}, s{sT0}''')
def wd_setup(p):
    p(f'''s_lshl_b32 s{sT0}, s{sDT}, 2
    s_add_u32 s{sT0}, s{sT0}, s{sW}
    s_mul_i32 s{sT0}, s{sT0}, 57344
    s_add_u32 s{sT0}, s{sT0}, {WS_WDT}
    s_add_u32 s{sWE}, s{sT0}, 57344
    s_lshl_b32 s{sT1}, s{sR2}, 12
    s_add_u32 s{sWD}, s{sT0}, s{sT1}
    s_and_b32 s{sT1}, s{sW}, 1
    s_lshl_b32 s{sT1}, s{sT1}, 10
    v_lshl_add_u32 v{vWA}, v{vL}, 4, s{sT1}
    v_xor_b32 v{vWA+1}, 1024, v{vWA}''')
def wrap(r, e, step, span, t):
    return f'\ns_add_u32 s{r}, s{r}, {step}\ns_sub_u32 s{t}, s{r}, {span}\ns_cmp_ge_u32 s{r}, s{e}\ns_cselect_b32 s{r}, s{t}, s{r}'
def wd_loads():
    o = []
    for s in range(28):
        for al in range(2):
            o.append(f'buffer_load_dwordx4 {ar(8*s+4*al,4)}, v{vWA+al}, {srd(S_WS)}, s{sWD} offen offset:{2048*(s&1)} sc1')
        if s & 1 and s < 27: o[-1] += wrap(sWD, sWE, 4096, 57344, 9)
    return o
NB = 12
vHB, vHA, vGAa, vG, vAT = 64, 160, 164, 246, 184
def acc2(al, be): return 16 * (al + 2 * be)
def h_setup(p):
    t0, t1 = 182, 183
    p(f'''s_mul_i32 s{sT0}, s{sW}, {56*32768}
    s_lshl_b32 s{sT1}, s{sST}, 10
    s_add_u32 s{sT0}, s{sT0}, s{sT1}
    s_add_u32 s{sT0}, s{sT0}, {WS_H}
    s_add_u32 s{sHE}, s{sT0}, {28*65536}
    s_lshl_b32 s{sT1}, s{sR2}, 17
    s_add_u32 s{sHX}, s{sT0}, s{sT1}
    s_lshr_b32 s{sT1}, s{sW}, 1
    s_lshl_b32 s{sT1}, s{sT1}, 9
    v_lshrrev_b32 v{t0}, 5, v{vL}
    v_and_b32 v{t1}, 31, v{vL}
    v_lshl_add_u32 v{t1}, v{t1}, 4, s{sT1}
    v_lshl_add_u32 v{vHA}, v{t0}, 15, v{t1}
    v_xor_b32 v{vHA+1}, 512, v{vHA}''')
def h_loads(s):
    o = [f'buffer_load_dwordx4 {vr(vHB + 8*(s%NB) + 4*be, 4)}, v{vHA+be}, {srd(S_WS)}, s{sHX} offen sc1' for be in range(2)]
    if s < 27: o[-1] += wrap(sHX, sHE, 65536, 28*65536, 10) if s & 1 else f'\ns_add_u32 s{sHX}, s{sHX}, 65536'
    return o
def a_loads():
    t0, t1 = 182, 183
    return [f'''s_and_b32 s{sT0}, s{sW}, 1
    s_lshl_b32 s{sT1}, s{sDT}, 1
    s_add_u32 s{sT0}, s{sT0}, s{sT1}
    s_lshl_b32 s{sT0}, s{sT0}, 17
    s_lshr_b32 s{sT1}, s{sW}, 1
    s_lshl_b32 s{sT2}, s{sST}, 1
    s_add_u32 s{sT1}, s{sT1}, s{sT2}
    s_lshl_b32 s{sT2}, s{sT1}, 6
    s_add_u32 s{sT0}, s{sT0}, s{sT2}
    s_add_u32 s{sT0}, s{sT0}, {WS_AT}
    s_add_u32 s{sT2}, s{sT0}, 65536''',
    f'''v_lshrrev_b32 v{t0}, 2, v{vL}
    v_and_b32 v{t1}, 3, v{vL}
    v_lshlrev_b32 v{t1}, 4, v{t1}
    v_lshl_add_u32 v{t0}, v{t0}, 12, v{t1}''',
    f'buffer_load_dwordx4 {vr(vAT,4)}, v{t0}, {srd(S_WS)}, s{sT0} offen sc1',
    f'buffer_load_dwordx4 {vr(vAT+4,4)}, v{t0}, {srd(S_WS)}, s{sT2} offen sc1']
def g_load(p):
    t0 = 235
    p(f'''s_lshr_b32 s{sT1}, s{sW}, 1
    s_lshl_b32 s{sT2}, s{sST}, 1
    s_add_u32 s{sT1}, s{sT1}, s{sT2}
    s_lshl_b32 s{sT1}, s{sT1}, 7
    s_add_u32 s{sT1}, s{sT1}, {WS_G}
    v_and_b32 v{t0}, 31, v{vL}
    v_lshlrev_b32 v{t0}, 2, v{t0}
    buffer_load_dword v{vG}, v{t0}, {srd(S_WS)}, s{sT1} offen sc1''')
def a_use():
    t0, t1, t2 = 182, 183, 162
    o = [f'''s_lshl_b32 s{sT0}, s{sW}, 11
    s_add_u32 s{sT0}, s{sT0}, {AS}
    v_lshl_add_u32 v{t0}, v{vL}, 4, s{sT0}''',
    f'''v_lshrrev_b32 v{t1}, 5, v{vL}
    v_bfe_u32 v{t2}, v{vL}, 2, 2
    v_lshl_add_u32 v{t1}, v{t1}, 2, v{t2}''',
    f'''v_bfe_u32 v{t2}, v{vL}, 4, 1
    v_lshl_add_u32 v{t1}, v{t1}, 1, v{t2}
    v_and_b32 v{t2}, 3, v{vL}''',
    f'''v_lshl_add_u32 v{t1}, v{t1}, 2, v{t2}
    v_lshl_add_u32 v{t1}, v{t1}, 3, s{sT0}''',
    f'ds_write_b128 v{t0}, {vr(vAT,4)}', (f'ds_write_b128 v{t0}, {vr(vAT+4,4)} offset:1024', 'aw')]
    for q in range(4): o.append(f'ds_read_b64_tr_b16 {vr(vAT+2*q,2)}, v{t1} offset:{512*q}')
    o.append(f'v_sub_f32 v{vG+1}, 1.0, v{vG}\nv_cvt_pk_bf16_f32 v{vG+1}, v{vG+1}, v{vG+1}\nv_and_b32 v{vG+1}, 0xffff0000, v{vG+1}')
    for i in range(8):
        o.append(f'v_lshlrev_b32 v{vGAa+2*i}, 16, v{vAT+i}\nv_and_b32 v{vGAa+2*i+1}, 0xffff0000, v{vAT+i}')
        o.append(f'v_mul_f32 v{vGAa+2*i}, v{vG}, v{vGAa+2*i}\nv_mul_f32 v{vGAa+2*i+1}, v{vG}, v{vGAa+2*i+1}')
    return o
def gemm2(p, extra=None, pre=0, late=(), mark=lambda: []):
    extra = extra or {}
    PW, PR, ti = 192, 195, 162
    M = lambda s, al, be: f'v_mfma_f32_32x32x16_bf16 {vr(acc2(al,be),16)}, {ar(8*s+4*al,4)}, {vr(vHB+8*(s%NB)+4*be,4)}, {"0" if s == 0 else vr(acc2(al,be),16)}'
    for s in range(pre, NB): p.extend(h_loads(s))
    for k in range(1, 4):
        p(f's_xor_b32 s{sT0}, s{sW}, {k}\ns_mul_i32 s{sT0}, s{sT0}, 12288\ns_add_u32 s{sT0}, s{sT0}, {P2 + 4096*(k-1)}\nv_lshl_add_u32 v{PW+k-1}, v{vL}, 4, s{sT0}')
    p(f's_mul_i32 s{sT0}, s{sW}, 12288\ns_add_u32 s{sT0}, s{sT0}, {P2}\nv_lshl_add_u32 v{PR}, v{vL}, 4, s{sT0}')
    for s in range(24):
        mf = [M(s, 0, 0), M(s, 1, 0), M(s, 0, 1), M(s, 1, 1)]
        ld = h_loads(s + NB) if s + NB < 28 else [[], []]
        ex = extra.get(s, [])
        for m in range(4):
            p(mf[m]); p.extend(ex[len(ex) * m // 4: len(ex) * (m + 1) // 4])
            if m == 1 and ld[0]: p(ld[0])
            if m == 3 and ld[1]: p(ld[1])
    prev = []; late = list(late); nl = len(late)
    for k in (3, 1, 2, 0):
        al, be = k & 1, k >> 1
        mf = [M(s, al, be) for s in range(24, 28)]
        for m in range(4):
            p(mf[m])
            if m >= 1: p.extend(prev[(m - 1) * 2: m * 2])
            for _ in range(-(-nl // 14)):
                if late: p.extend([late.pop(0)])
        prev = [f'ds_write_b128 v{PW+k-1}, {vr(acc2(al,be)+4*q,4)} offset:{1024*q}' for q in range(4)] if k else []
    p.extend(mark())
    t0, t1, va = 182, 183, 196
    p(f'''s_lshr_b32 s{sT1}, s{sW}, 1
    s_lshl_b32 s{sT2}, s{sST}, 1
    s_add_u32 s{sT1}, s{sT1}, s{sT2}
    s_lshl_b32 s{sT1}, s{sT1}, 15
    s_and_b32 s{sT0}, s{sW}, 1
    s_lshl_b32 s{sT2}, s{sDT}, 1
    s_add_u32 s{sT0}, s{sT0}, s{sT2}
    s_lshl_b32 s{sT0}, s{sT0}, 6
    s_add_u32 s{sT0}, s{sT0}, s{sT1}
    v_and_b32 v{t0}, 31, v{vL}
    v_lshrrev_b32 v{t1}, 5, v{vL}
    v_lshlrev_b32 v{t1}, 4, v{t1}
    v_lshl_add_u32 v{va}, v{t0}, 10, v{t1}
    s_waitcnt lgkmcnt(0)
    s_barrier''')
    Q = lambda k, q: 64 + 16 * k + 4 * q
    for q in range(4):
        for k in range(3): p(f'ds_read_b128 {vr(Q(k,q),4)}, v{PR} offset:{4096*k + 1024*q}')
    for q in range(4):
        for e in (0, 2):
            r = 4 * q + e
            p(f'''v_pk_add_f32 {vr(r,2)}, {vr(r,2)}, {vr(Q(0,q)+e,2)}
            v_pk_add_f32 {vr(Q(1,q)+e,2)}, {vr(Q(1,q)+e,2)}, {vr(Q(2,q)+e,2)}''')
        for e in (0, 2):
            r = 4 * q + e
            p(f'v_pk_add_f32 {vr(r,2)}, {vr(r,2)}, {vr(Q(1,q)+e,2)}')
        for e in (0, 2):
            r = 4 * q + e
            p(f'v_pk_fma_f32 {vr(r,2)}, {vr(r,2)}, {vr(vG,2)}, {vr(vGAa+r,2)} op_sel:[0,1,0] op_sel_hi:[1,1,1]')
        for e in (0, 2):
            r = 4 * q + e
            p(f'v_cvt_pk_bf16_f32 v{16 + 2*q + e//2}, v{r}, v{r+1}')
        if q & 1:
            R = 16 + 2 * (q - 1)
            p(f'v_permlane32_swap_b32 v{R}, v{R+2}\nv_permlane32_swap_b32 v{R+1}, v{R+3}')
            p(f'buffer_store_dwordx4 {vr(R,4)}, v{va}, {srd(S_OUT)}, s{sT0} offen offset:{16*(q-1)}')

def spread(lst, a, b):
    n = b - a
    return {a + i: lst[len(lst) * i // n: len(lst) * (i + 1) // n] for i in range(n)}
def k_g2():
    p = Prog(); prologue(p)
    wd_setup(p); p.extend(wd_loads()); g_load(p); h_setup(p)
    ex = spread(a_loads(), 2, 4); ex.update(spread(a_use(), 12, 22))
    gemm2(p, ex)
    p('s_endpgm')
    return p

WS_STAMP = 0x3000000
class Fused:
    def __init__(s, stamps=False):
        s.p = Prog(); s.nap = 0; s.slow = []; s.stamps = stamps; s.ns = 0; s.want = stamps or []
    def stamp(s, name=None):
        if not s.stamps or (name is not None and name not in s.want): return []
        o = []
        if s.ns: o.append(f's_mov_b32 s{87 + s.ns}, s100')
        o.append('s_memtime s[100:101]'); s.ns += 1
        return o
    def stamp_out(s):
        if not s.stamps: return
        p = s.p
        p(f's_mov_b32 s{87 + s.ns}, s100\ns_lshl_b32 s{sT0}, s2, 2\ns_add_u32 s{sT0}, s{sT0}, s{sW}\ns_lshl_b32 s{sT0}, s{sT0}, 6\ns_add_u32 s{sT0}, s{sT0}, {WS_STAMP}\ns_mov_b64 exec, 1')
        p(f's_memrealtime s[100:101]\nv_mov_b32 v1, s34\nbuffer_store_dword v1, off, {srd(S_WS)}, s{sT0} offset:48\nv_mov_b32 v1, s100\nbuffer_store_dword v1, off, {srd(S_WS)}, s{sT0} offset:52')
        if 'dbg' in s.want:
            L = p.label('nodbg')
            p(f's_not_b32 s{sT1}, s34\nv_mov_b32 v1, s{sT1}\nv_mov_b32 v2, s100\nbuffer_atomic_umax v1, off, {srd(S_DBG)}, 0 offset:4\nbuffer_atomic_umax v2, off, {srd(S_DBG)}, 0 offset:8')
            p(f'v_mov_b32 v1, s34\nbuffer_atomic_umax v1, off, {srd(S_DBG)}, 0 offset:12')
            p(f's_cmp_lg_u32 s2, 77\ns_cbranch_scc1 {L}\ns_cmp_lg_u32 s{sW}, 1\ns_cbranch_scc1 {L}')
            for i in range(1, s.ns): p(f's_sub_u32 s{sT1}, s{88+i}, s88\nv_mov_b32 v1, s{sT1}\nbuffer_store_dword v1, off, {srd(S_DBG)}, 0 offset:{12+4*i}', 'untracked')
            p(f'{L}:')
            return
        for i in range(s.ns): p(f'v_mov_b32 v1, s{88+i}\nbuffer_store_dword v1, off, {srd(S_WS)}, s{sT0} offset:{4*i}')
    def poll_issue(s, dst, va, S, n=1, m=False):
        x = f'buffer_load_dword{"x2" if n == 2 else ""} {vr(dst,n)}, v{va}, {srd(S)}, 0 offen sc1'
        return [f's_mov_b64 exec, s[{sM0}:{sM0+1}]\n{x}\ns_mov_b64 exec, -1' if m else x]
    def poll_check(s, dst, va, S, n=1, m=False):
        Ls, Lr, Ll = s.p.label('slow'), s.p.label('ret'), s.p.label('spin')
        chk = (f'v_and_b32 v{dst}, v{dst}, v{dst+1}\n' if n == 2 else '') + f'v_cmp_ne_u32 vcc, 1, v{dst}\n'
        s.slow.append(f'''{Ls}:
        s_mov_b32 s{sSP}, 0x4000
        {Ll}:
        {f's_sleep {s.nap}' if s.nap else ''}
        {s.poll_issue(dst, va, S, n)[0]}
        s_waitcnt vmcnt(0) lgkmcnt(0)
        {chk}s_cbranch_vccz {Lr}
        s_sub_u32 s{sSP}, s{sSP}, 1
        s_cmp_lg_u32 s{sSP}, 0
        s_cbranch_scc1 {Ll}
        s_branch {Lr}''')
        if m: chk = f's_mov_b64 exec, s[{sM0}:{sM0+1}]\n{chk}s_mov_b64 exec, -1\n'
        return [chk + f's_cbranch_vccnz {Ls}\n{Lr}:']
    def flag(s, sreg, one):
        return [f's_mov_b64 exec, 1\nbuffer_store_dword v{one}, off, {srd(S_WS)}, s{sreg} sc1\ns_mov_b64 exec, -1']

sFH, sFA = 78, 79
sM0 = 14
vFW = 253
vONE, vPGO, vPWD, vPUT, vPH, vPA, vF = 238, 239, 240, 241, 242, 243, 244
def flag_setup(p, spare):
    t0 = 192
    p(f'''s_cmp_eq_u32 s{sW}, 0
    s_cselect_b64 s[{sM0}:{sM0+1}], -1, 0
    v_mov_b32 v{vONE}, 1
    v_mov_b32 v{vPGO}, 0
    s_lshl_b32 s{sT0}, s{sW}, 3
    s_add_u32 s{sT0}, s{sT0}, s{sDT}
    s_add_u32 s{sT0}, s{sT0}, 192
    s_lshl_b32 s{sT0}, s{sT0}, 7
    v_and_b32 v{t0}, 3, v{vL}
    v_lshl_add_u32 v{vPWD}, v{t0}, 2, s{sT0}
    v_lshlrev_b32 v{t0}, 3, v{vL}
    v_add_u32 v{vPUT}, {224*128}, v{t0}
    s_lshl_b32 s{sT0}, s{sST}, 2
    s_add_u32 s{sT0}, s{sT0}, s{sW}
    s_lshl_b32 s{sT0}, s{sT0}, 7
    v_min_u32 v{t0}, 6, v{vL}
    v_lshl_add_u32 v{vPH}, v{t0}, 2, s{sT0}
    s_lshr_b32 s{sT0}, s{sST}, 4
    s_lshl_b32 s{sT0}, s{sT0}, 5
    s_lshl_b32 s{sT1}, s{sDT}, 2
    s_add_u32 s{sT0}, s{sT0}, s{sT1}
    s_and_b32 s{sT1}, s{sW}, 1
    s_lshl_b32 s{sT1}, s{sT1}, 1
    s_add_u32 s{sT0}, s{sT0}, s{sT1}
    s_add_u32 s{sT0}, s{sT0}, 128
    s_lshl_b32 s{sT0}, s{sT0}, 7
    v_and_b32 v{t0}, 15, v{vL}
    v_lshl_add_u32 v{vPA}, v{t0}, 2, s{sT0}
    v_bfe_u32 v{t0}, v{vL}, 4, 1
    v_lshl_add_u32 v{vPA}, v{t0}, 7, v{vPA}
    s_lshl_b32 s{sT0}, s{sPI}, 1
    s_lshr_b32 s{sT1}, s{sW}, 1
    s_add_u32 s{sT0}, s{sT0}, s{sT1}
    s_and_b32 s{sT1}, s{sT0}, 15
    s_lshr_b32 s{sT0}, s{sT0}, 4
    s_and_b32 s{sT2}, s{sW}, 1
    s_lshl_b32 s{sT2}, s{sT2}, 5
    s_add_u32 s{sT0}, s{sT0}, s{sT2}
    s_add_u32 s{sT0}, s{sT0}, 128
    s_lshl_b32 s{sT0}, s{sT0}, 5
    s_add_u32 s{sT0}, s{sT0}, s{sT1}
    s_lshl_b32 s{sFA}, s{sT0}, 2''')
    if spare:
        p(f's_lshl_b32 s{sT0}, s{sSI}, 2\ns_add_u32 s{sT0}, s{sT0}, s{sW}\ns_lshl_b32 s{sT0}, s{sT0}, 7\ns_add_u32 s{sFH}, s{sT0}, 0x8000')
    else:
        p(f'''s_lshl_b32 s{sT0}, s{sMI}, 2
        s_add_u32 s{sT0}, s{sT0}, s{sW}
        s_lshl_b32 s{sT0}, s{sT0}, 2
        s_and_b32 s{sT1}, s{sXCD}, 3
        s_add_u32 s{sT0}, s{sT0}, s{sT1}
        s_lshl_b32 s{sT0}, s{sT0}, 5
        s_add_u32 s{sT0}, s{sT0}, s{sDT}
        s_lshl_b32 s{sFH}, s{sT0}, 2''')
def as_list(fn, *a):
    q = Prog(); fn(q, *a); return q.ins

def groups(ins, last):
    o = [[]]
    for I in ins:
        o[-1].append(I)
        if last(I): o.append([])
    return [g for g in o if g]
def flat(l): return [y for x in l for y in (x if isinstance(x, list) else [x])]
class G(list): pass
def k_fused(stamps=False, cfg=None):
    cfg = dict(rot='z', ct=250, tch=[1, 10, 11], tw=0.5, n0=[5, 17], so='xw', nap=4, up=1, nw=[4, 12, 12, 6], r2=1, hflag=60, hpoll=120, aflag=9, apoll=13, achk=17, f0=0.6, sx=1, pg=[1, 3, 4], cw=[0, 100]) | (cfg or {})
    F = Fused(stamps); p = F.p
    if stamps: p('s_memrealtime s[34:35]')
    p.extend(F.stamp()); prologue(p, cfg['rot'], cfg['ct'], True)
    Lsp, Ltail = p.label('spare'), p.label('tail')
    p(f's_lshl_b32 s{sPI}, s{sXCD}, 5\ns_add_u32 s{sPI}, s{sPI}, s{sJ}')
    p(f's_cmp_ge_u32 s{sJ}, 28\ns_cbranch_scc1 {Lsp}')
    tch = cfg['tch']; F.nap = cfg['nap']
    touch_setup(p)
    par_loads(p); srd_bases(p)
    p.extend(F.stamp('pro'))
    tw = [G(as_list(touch_wd))]
    T = [(cfg['tw'], tw), (tch[0], touch(2)), (tch[1], touch(4)), (tch[2], touch(6))]
    p.extend(touch(0))
    for a, x in T:
        if a is not None and a < 0: p.extend(x)
    g1_setup(p)
    dm = g1_dma(0) + g1_dma(1); n0, n1 = cfg['n0']
    p.extend(dm[:n0])
    p.extend(F.stamp('dma'))
    prologue2(p, False)
    g1_setup2(p); tail_setup(p); flag_setup(p, False); rot2_setup(p, cfg['r2'])
    p.extend(F.stamp('setup'))
    if stamps and 'par' in stamps: p(f'v_mov_b32 v{vPAR+5}, v{vPAR+5}'); p.extend(F.stamp('par'))
    kgen_valu(p, [(cfg['f0'], 0.98, dm[n0:n1])] + [(a, a, [G(x)]) for a, x in T if a is not None and 0 <= a <= 1]); p.extend(F.stamp('kv'))
    kgen_mfma(p, dm[n1:] + [G(x) for a, x in T if a is not None and 1 < a < 10]); p('s_waitcnt lgkmcnt(0)'); p.extend(F.stamp('km'))
    if stamps: p.waitvm('dma0'); p.extend(F.stamp('d0'))
    wl = wd_loads(); nw = cfg['nw']; pg, pw, pu = cfg['pg']
    post = {}; pre = {}
    for t in range(7):
        pre[t] = []
        if t == pg + 1: pre[t] += F.poll_check(vF, vPGO, S_DBG, 1, True)
        if t == pu + 1: pre[t] += F.poll_check(vF, vPUT, S_WS, 2, True)
        post[t] = F.stamp(f's{t}')
        if t == pg: post[t] += F.poll_issue(vF, vPGO, S_DBG, 1, True)
        if t == pw + 1: post[t] += F.poll_check(vFW, vPWD, S_WS) + F.stamp('wf') + as_list(wd_setup)
        if t == pu + 1: post[t] += as_list(u_loads) + as_list(g_load)
        if t == pw: post[t] += F.poll_issue(vFW, vPWD, S_WS)
        if t == pu: post[t] += F.poll_issue(vF, vPUT, S_WS, 2, True)
    extra = {}
    def put(keys, lst):
        for i, k in enumerate(keys): extra.setdefault(k, []).extend(lst[len(lst) * i // len(keys): len(lst) * (i + 1) // len(keys)])
    for a, x in T:
        if a is not None and a >= 10: put([(a - 10, 2)], [G(x)])
    rd, wr = expand()
    put([(6, 0)], zero_fill()); put([(6, 1)], rd); put([(6, 2), (6, 3)], wr); put([(7, cfg['up'])], u_put())
    k = 0
    for t, n in zip((5, 6, 7), nw): put([(t, s) for s in range(4)], wl[k:k + n]); k += n
    g1_main(p, extra, post, 2, pre); p.extend(F.stamp('g1'))
    g1_epilogue(p, wl[k:k + nw[3]]); k += nw[3]
    wrest = wl[k:]
    p(f'{Ltail}:'); p.extend(F.stamp())
    ex = {d: [[] for _ in range(34)] for d in range(4)}
    n0, n1 = cfg['cw']
    for i, x in enumerate(wrest):
        m = n0 + (n1 - n0) * i // len(wrest); ex[m // 34][m % 34].append(x)
    m = cfg['hflag']; ex[m // 34][m % 34][:0] = [Ins('WAITVM hst')] + F.flag(sFH, vONE)
    m = cfg['hpoll']; ex[m // 34][m % 34] += F.poll_issue(vF, vPH, S_WS)
    conv(p, ex); p.extend(F.stamp('cv'))
    h_setup(p)
    p.extend(F.poll_check(vF, vPH, S_WS)); p.extend(F.stamp('hf'))
    conv_out(p, pre=[x for s in range(NB) for x in h_loads(s)])
    p.extend(F.stamp('co'))
    ex = {cfg['aflag']: [Ins('WAITVM ast')] + F.flag(sFA, vONE), cfg['apoll']: F.poll_issue(vF, vPA, S_WS),
          cfg['achk']: F.poll_check(vF, vPA, S_WS) + F.stamp('af') + a_loads()}
    gemm2(p, ex, pre=NB, late=a_use(), mark=lambda: F.stamp('g2'))
    p.extend(F.stamp()); F.stamp_out()
    p('s_endpgm')
    p(f'{Lsp}:')
    def sst(i):
        if stamps: p(f's_memtime s[100:101]\ns_waitcnt lgkmcnt(0)\ns_mov_b32 s{88+i}, s100')
    if stamps: p('s_mov_b32 s88, s100')
    prologue2(p, True)
    Lk = p.label('noclr'); Lg = p.label('nogo')
    p(f'''s_cmp_lg_u32 s{sSI}, 0
    s_cbranch_scc1 {Lk}
    v_mov_b32 v4, 0
    v_mov_b32 v5, 0
    v_mov_b32 v6, 0
    v_mov_b32 v7, 0
    v_lshlrev_b32 v1, 4, v0''')
    for i in range(8): p(f's_mov_b32 s{sT0}, {4096*i}\nbuffer_store_dwordx4 v[4:7], v1, {srd(S_WS)}, s{sT0} offen sc1', 'untracked')
    p(f'{Lk}:')
    def go(nl):
        p(f's_cmp_lg_u32 s{sSI}, 0\ns_cbranch_scc1 {Lg}')
        p(f's_waitcnt vmcnt({nl})', 'untracked'); p.ins[-1].kind = 'misc'
        p(f's_barrier\ns_cmp_lg_u32 s{sW}, 0\ns_cbranch_scc1 {Lg}\ns_mov_b64 exec, 1')
        p(f'buffer_store_dword v{vONE}, off, {srd(S_DBG)}, 0 sc1', 'untracked')
        p(f's_mov_b64 exec, -1\n{Lg}:')
    def faddr():
        p(f'''s_add_u32 s{sT0}, s{sSI}, 192
        s_lshl_b32 s{sT0}, s{sT0}, 5
        s_add_u32 s{sT0}, s{sT0}, s{sW}
        s_lshl_b32 s11, s{sT0}, 2
        s_add_u32 s{sT1}, s{sW}, 224
        s_lshl_b32 s{sT1}, s{sT1}, 5
        s_add_u32 s{sT1}, s{sT1}, s{sSI}
        s_lshl_b32 s12, s{sT1}, 2''')
    if cfg['so'] == 'wx':
        spare_issue_w(p); par_loads(p); flag_setup(p, True); rot2_setup(p, cfg['r2'])
        xi = groups(as_list(spare_issue_x), lambda I: I.kind == 'vm')
        go(20)
        if cfg['sx'] == 1: spare_wd(p, [G(x) for x in xi])
        else: spare_wd(p); p.extend(flat(xi))
        sst(1)
        p.extend(F.poll_issue(vF, vPGO, S_DBG))
        spare_issue_g(p); tail_setup(p); faddr()
        p.extend(F.poll_check(vF, vPGO, S_DBG))
        p.waitvm('wst'); p.extend(F.flag(11, vONE)); sst(2)
        spare_ut(p); sst(3); spare_g(p)
        p.waitvm('gst'); p.extend(F.flag(12, vONE)); sst(4)
    else:
        spare_issue_x(p); par_loads(p); flag_setup(p, True); rot2_setup(p, cfg['r2'])
        go(22)
        spare_issue_g(p); spare_issue_w(p); tail_setup(p); faddr()
        p.extend(F.poll_issue(vF, vPGO, S_DBG))
        sst(1)
        spare_ut(p); spare_g(p); sst(2)
        spare_wd(p)
        p.extend(F.poll_check(vF, vPGO, S_DBG))
        p.waitvm('gst'); p.extend(F.flag(12, vONE)); sst(3)
        p.waitvm('wst'); p.extend(F.flag(11, vONE)); sst(4)
    p('s_barrier')
    p.extend(F.poll_issue(vF, vPWD, S_WS)); wd_setup(p)
    kgen_valu(p); kgen_mfma(p)
    p.extend(F.poll_check(vF, vPWD, S_WS))
    p.extend(F.poll_issue(vF, vPUT, S_WS, 2, True))
    p.extend(wl[:k])
    p.extend(F.poll_check(vF, vPUT, S_WS, 2, True))
    p('s_waitcnt lgkmcnt(0)\ns_barrier')
    p.extend(zero_fill()); p.extend(rd); p.extend(wr)
    u_loads(p); g_load(p); p.extend(u_put())
    sst(5)
    if stamps: p('s_memtime s[100:101]\ns_waitcnt lgkmcnt(0)')
    p(f's_waitcnt vmcnt(0) lgkmcnt(0)\ns_barrier\ns_branch {Ltail}')
    for x in F.slow: p(x)
    p('L_end:')
    return p
```

```python
from t_all import *
def show_stamps(env, n, names=None):
    import numpy as np
    R = env.read(env.ws, np.uint32, 256 * 4 * 16, WS_STAMP).reshape(256, 4, 16).astype(np.int64)
    S = (R[:, :, :n] - R[:, :, :1]) & 0xffffffff
    t0 = R[:, :, 12].min()
    st = (R[:, :, 12] - t0) * 24; en = (R[:, :, 13] - t0) * 24
    print('start skew cyc(24/tick) med %d max %d   end med %d max %d' % (np.median(st), st.max(), np.median(en), en.max()))
    import os
    if os.environ.get('SPD'): print('spare per CU (max over waves):'); print(S[224:, :, 1:5].max(1).T)
    if os.environ.get('MND'): k = int(os.environ['MND']); print('main stamp', k, 'per (j, xcd):'); print(S[:, :, k].max(1).reshape(32, 8))
    for nm, D in (('main ', S[:224]), ('spare', S[224:])):
        D = D.reshape(-1, n)
        print(nm, 'med', ' '.join(f'{v:6.0f}' for v in np.median(D, 0)))
        print(nm, 'max', ' '.join(f'{v:6.0f}' for v in D.max(0)))
if __name__ == '__main__':
    import json
    W = sys.argv[3].split(',') if len(sys.argv) > 3 else 's0,g1,kv,ex,cv,hf,co,af,g2'.split(',')
    cfgs = json.loads(sys.argv[2]) if len(sys.argv) > 2 else {}
    if isinstance(cfgs, dict): cfgs = [cfgs]
    if sys.argv[1] == 'gen':
        build_file('fu.s', [(KN, k_fused(False, cfgs[0]))])
        build_file('fus.s', [(KN, k_fused(W, cfgs[0]))]); sys.exit()
    from harness import *
    ref = np.load('ref0.npz'); env = Env(ref)
    print('stamps: start', W, '(tail,end always)')
    for cfg in cfgs:
        build_file('fus.s', [(KN, k_fused(W, cfg))])
        k, g, b, lds = build('fus.s', KN + '_kernel')
        print('----', cfg)
        for it in range(6):
            env.cold(code=it >= 4); env.launch(k, g, b, lds, 2); env.sync()
            if it == 0: check_out(env, ref)
            if it in (3, 5) or len(cfgs) == 1: show_stamps(env, 12)
        if len(cfgs) == 1:
            for it in range(2):
                env.memset(env.dbg, 0); env.sync(); env.launch(k, g, b, lds, 2); env.sync()
                check_out(env, ref); show_stamps(env, 12)
```

```python
import sys
from core import *
KN = 'gated_mix__ssm_conv_s4d__glu_gated_reglu__prompt'
WS_WDT, WS_UT, WS_G, WS_H, WS_AT = 0x100000, 0x300000, 0x500000, 0x600000, 0xD00000
S_X, S_WG, S_WU, S_WS, S_OUT, S_P, S_DBG = 36, 40, 44, 48, 52, 56, 60
sXCD, sJ, sW, sMI, sFI, sST, sDT, sROT, sKX, sKW, sXM, sWM, sSI, sPI = range(64, 78)
sT0, sT1, sT2, sT3, sT4, sT5 = range(80, 86)
sSP = 86
def srd(i): return f's[{i}:{i+3}]'
def vr(a, n=1): return f'v{a}' if n == 1 else f'v[{a}:{a+n-1}]'
def ar(a, n=1): return f'a{a}' if n == 1 else f'a[{a}:{a+n-1}]'
vL = 255

ROT = dict(
  a=f's_lshl_b32 s{sT2}, s{sT0}, 1\ns_add_u32 s{sROT}, s{sT2}, s{sDT}',
  z=f's_mov_b32 s{sROT}, 0',
  x=f's_mov_b32 s{sROT}, s{sXCD}',
  b=f's_add_u32 s{sROT}, s{sT0}, s{sDT}',
  c=f's_lshl_b32 s{sT2}, s{sT0}, 1\ns_add_u32 s{sROT}, s{sT2}, s{sDT}\ns_lshr_b32 s{sT2}, s{sXCD}, 2\ns_add_u32 s{sROT}, s{sROT}, s{sT2}',
  d=f's_add_u32 s{sROT}, s{sT0}, s{sDT}\ns_and_b32 s{sROT}, s{sROT}, 1\ns_add_u32 s{sROT}, s{sROT}, s{sXCD}',
  e=f's_add_u32 s{sROT}, s{sT0}, s{sDT}\ns_and_b32 s{sROT}, s{sROT}, 3\ns_add_u32 s{sROT}, s{sROT}, s{sXCD}',
  f=f's_add_u32 s{sROT}, s{sT0}, s{sDT}\ns_lshr_b32 s{sT2}, s{sXCD}, 2\ns_lshl_b32 s{sT2}, s{sT2}, 2\ns_add_u32 s{sROT}, s{sROT}, s{sT2}',
)
def mk_srd(p, d, ptr, size):
    p(f's_mov_b32 s{d}, s{ptr}\ns_mov_b32 s{d+1}, s{ptr+1}\ns_mov_b32 s{d+2}, {hex(size)}\ns_mov_b32 s{d+3}, 0x00020000')

def prologue(p, rot='z', ctouch=0, defer=False):
    L = p.label('go')
    p(f'''s_cmp_lt_u32 s2, 256
    s_cbranch_scc1 {L}
    s_endpgm
    {L}:
    s_load_dwordx16 s[4:19], s[0:1], 0
    s_load_dwordx8 s[20:27], s[0:1], 64
    s_load_dwordx4 s[28:31], s[0:1], 96
    s_load_dwordx2 s[32:33], s[0:1], 112
    s_lshr_b32 s{sJ}, s2, 3''')
    if ctouch:
        p(f'''s_getpc_b64 s[{sT2}:{sT3}]
        L_pc:
        v_and_b32 v2, 7, v0
        v_lshl_add_u32 v2, s{sJ}, 3, v2
        v_min_u32 v2, (L_end-L_pc-4)/128, v2
        v_lshlrev_b32 v2, 7, v2
        v_mov_b32 v3, s{sT3}
        v_add_co_u32 v2, vcc, s{sT2}, v2
        v_addc_co_u32 v3, vcc, 0, v3, vcc''')
        p('global_load_dword v254, v[2:3], off', 'untracked')
    p(f'''v_lshrrev_b32 v1, 6, v0
    v_and_b32 v{vL}, 63, v0
    v_readfirstlane_b32 s{sW}, v1
    s_and_b32 s{sXCD}, s2, 7
    s_and_b32 s{sT0}, s{sJ}, 3
    s_lshr_b32 s{sDT}, s{sJ}, 2
    s_lshr_b32 s{sT1}, s{sXCD}, 2
    s_lshl_b32 s{sT1}, s{sT1}, 2
    s_add_u32 s{sMI}, s{sT1}, s{sT0}
    s_and_b32 s{sT1}, s{sXCD}, 3
    s_mul_i32 s{sT1}, s{sT1}, 7
    s_add_u32 s{sFI}, s{sT1}, s{sDT}
    s_lshl_b32 s{sT1}, s{sXCD}, 2
    s_add_u32 s{sST}, s{sT1}, s{sT0}
    {ROT[rot]}
    s_and_b32 s{sROT}, s{sROT}, 7''')
    for d, n in ((S_X, 2048 * 1024), (S_WG, 512 * 3584), (S_WU, 512 * 3584)): p(f's_mov_b32 s{d+2}, {hex(n)}\ns_mov_b32 s{d+3}, 0x00020000')
    if not defer: prologue2(p)
def srd_bases(p):
    for d, ptr in ((S_X, 4), (S_WG, 20), (S_WU, 22)): p(f's_mov_b64 s[{d}:{d+1}], s[{ptr}:{ptr+1}]')
def prologue2(p, bases=True):
    if bases: srd_bases(p)
    p(f's_mov_b32 s{sSI}, s{sST}')
    mk_srd(p, S_WS, 32, 0x10000000); mk_srd(p, S_OUT, 28, 2048 * 1024); mk_srd(p, S_DBG, 30, 256)

G1_B, G1_A, G1_XR, G1_WR, G1_DX, G1_DW = 128, 144, 176, 180, 182, 190
def acc1(st, mat, ft): return 16 * (4 * st + 2 * mat + ft)
def g1_setup(p):
    t0, t1, t2, t3 = 192, 193, 194, 195
    p(f'''v_lshrrev_b32 v{t0}, 3, v{vL}
    v_and_b32 v{t1}, 7, v{vL}
    v_lshrrev_b32 v{t2}, 1, v{t0}
    v_xor_b32 v{t3}, v{t1}, v{t2}
    v_lshlrev_b32 v{t3}, 4, v{t3}
    v_lshl_add_u32 v{t3}, v{t0}, 10, v{t3}
    s_lshl_b32 s{sT0}, s{sMI}, 2
    s_add_u32 s{sT0}, s{sT0}, s{sW}
    s_lshl_b32 s{sT0}, s{sT0}, 16
    v_add_u32 v{G1_DX}, s{sT0}, v{t3}
    v_xor_b32 v{G1_DX+1}, 64, v{G1_DX}''')
    for i in range(7, 0, -1):
        p(f'v_add_u32 v{G1_DX+i}, {8192*i - 1024*(i&3)}, v{G1_DX+(i&1)}')
    p(f'''v_and_b32 v{t2}, 1, v{t2}
    v_lshlrev_b32 v{t2}, 2, v{t2}
    v_xor_b32 v{t2}, v{t1}, v{t2}
    v_lshlrev_b32 v{t2}, 4, v{t2}
    v_mul_u32_u24 v{t0}, 3584, v{t0}
    s_mul_i32 s{sT0}, s{sW}, {16*3584}
    s_lshl_b32 s{sT1}, s{sFI}, 7
    s_add_u32 s{sT0}, s{sT0}, s{sT1}
    v_add3_u32 v{G1_DW}, v{t0}, v{t2}, s{sT0}
    v_add_u32 v{G1_DW+1}, {8*3584-1024}, v{G1_DW}
    s_lshl_b32 s{sXM}, s{sW}, 13
    s_lshl_b32 s{sWM}, s{sW}, 11
    s_add_u32 s{sWM}, s{sWM}, 98304''')
def g1_dma(t):
    sl = t % 3; o = []
    o.append(f's_add_u32 s{sT0}, s{sROT}, {t}\ns_and_b32 s{sT0}, s{sT0}, 7\ns_lshl_b32 s{sKX}, s{sT0}, 7\ns_mul_i32 s{sKW}, s{sT0}, {64*3584}')
    for mat, S in ((0, S_WG), (1, S_WU)):
        o.append(f's_add_u32 m0, s{sWM}, {sl*16384 + mat*8192}')
        for i in range(2): o.append(f'buffer_load_dwordx4 v{G1_DW+i}, {srd(S)}, s{sKW} offen offset:{1024*i} lds')
    for i in range(8):
        if i % 4 == 0: o.append(f's_add_u32 m0, s{sXM}, {sl*32768 + 1024*i}')
        o.append(f'buffer_load_dwordx4 v{G1_DX+i}, {srd(S_X)}, s{sKX} offen offset:{1024*(i&3)} lds')
    o[-1] = (o[-1], f'dma{t}')
    return o
vTX, vTW, vTD = 248, 249, 250
def touch_setup(p):
    t0, t1 = 192, 193
    p(f'''v_lshrrev_b32 v{t0}, 1, v{vL}
    v_min_u32 v{t0}, 9, v{t0}
    s_mul_i32 s{sT1}, s{sDT}, 10
    v_add_u32 v{t0}, s{sT1}, v{t0}
    v_min_u32 v{t0}, 63, v{t0}
    v_and_b32 v{t1}, 1, v{vL}
    v_lshlrev_b32 v{t1}, 7, v{t1}
    v_lshl_add_u32 v{t0}, v{t0}, 10, v{t1}
    s_lshl_b32 s{sT0}, s{sMI}, 2
    s_add_u32 s{sT0}, s{sT0}, s{sW}
    s_lshl_b32 s{sT0}, s{sT0}, 16
    v_add_u32 v{vTX}, s{sT0}, v{t0}
    v_and_b32 v{t0}, 3, v{vL}
    v_bfe_u32 v{t1}, v{vL}, 2, 1
    v_lshl_add_u32 v{t0}, v{t1}, 6, v{t0}
    s_and_b32 s{sT0}, s{sJ}, 3
    s_lshl_b32 s{sT0}, s{sT0}, 2
    s_add_u32 s{sT0}, s{sT0}, s{sW}
    s_lshl_b32 s{sT0}, s{sT0}, 2
    v_add_u32 v{t0}, s{sT0}, v{t0}
    v_mul_u32_u24 v{t0}, 3584, v{t0}
    s_lshl_b32 s{sT1}, s{sFI}, 7
    v_add_u32 v{vTW}, s{sT1}, v{t0}''')
def touch(c):
    return [f's_add_u32 s{sT4}, s{sROT}, {c}\ns_and_b32 s{sT4}, s{sT4}, 7\ns_lshl_b32 s{sT5}, s{sT4}, 7\ns_mul_i32 s{sT4}, s{sT4}, {64*3584}',
            f's_mov_b64 exec, 0xff\nbuffer_load_dword v{vTD}, v{vTW}, {srd(S_WG)}, s{sT4} offen\nbuffer_load_dword v{vTD+1}, v{vTW}, {srd(S_WU)}, s{sT4} offen\ns_mov_b64 exec, 0xfffff\nbuffer_load_dword v{vTD+2}, v{vTX}, {srd(S_X)}, s{sT5} offen\ns_mov_b64 exec, -1']
def touch_wd(p):
    t0 = 253
    p(f'''s_mul_i32 s{sT0}, s{sJ}, 37
    s_lshr_b32 s{sT0}, s{sT0}, 8
    s_mul_i32 s{sT1}, s{sT0}, 7
    s_sub_u32 s{sT1}, s{sJ}, s{sT1}
    s_lshl_b32 s{sT1}, s{sT1}, 2
    s_add_u32 s{sT1}, s{sT1}, s{sW}
    s_lshl_b32 s{sT1}, s{sT1}, 4
    s_lshl_b32 s{sT2}, s{sXCD}, 2
    s_add_u32 s{sT0}, s{sT0}, s{sT2}
    s_lshr_b32 s{sT2}, s{sT0}, 3
    s_mul_i32 s{sT2}, s{sT2}, 448
    s_add_u32 s{sT1}, s{sT1}, s{sT2}
    s_lshl_b32 s{sT1}, s{sT1}, 3
    s_and_b32 s{sT0}, s{sT0}, 7
    s_add_u32 s{sT0}, s{sT0}, s{sT1}
    s_lshl_b32 s{sT0}, s{sT0}, 7
    v_and_b32 v{t0}, 15, v{vL}
    v_lshl_add_u32 v{t0}, v{t0}, 10, s{sT0}
    s_mov_b64 exec, 0xffff
    global_load_dword v{vTD}, v{t0}, s[24:25]
    s_mov_b64 exec, -1''')
def g1_setup2(p):
    t0, t1, t2, t3 = 192, 193, 194, 195
    p(f'''v_and_b32 v{t0}, 31, v{vL}
    v_lshrrev_b32 v{t1}, 5, v{vL}
    v_bfe_u32 v{t2}, v{vL}, 1, 3
    v_xor_b32 v{t2}, v{t2}, v{t1}
    v_lshlrev_b32 v{t2}, 4, v{t2}
    v_lshl_add_u32 v{t2}, v{t0}, 7, v{t2}
    v_add_u32 v{G1_XR}, s{sXM}, v{t2}''')
    for s in range(1, 4): p(f'v_xor_b32 v{G1_XR+s}, {32*s}, v{G1_XR}')
    p(f'''v_bfe_u32 v{t0}, v{vL}, 2, 2
    v_lshl_add_u32 v{t0}, v{t1}, 3, v{t0}
    v_bfe_u32 v{t1}, v{vL}, 4, 1
    v_bfe_u32 v{t2}, v{vL}, 1, 1
    v_lshl_add_u32 v{t1}, v{t1}, 1, v{t2}
    v_bfe_u32 v{t2}, v{vL}, 3, 1
    v_lshl_add_u32 v{t1}, v{t2}, 2, v{t1}
    v_and_b32 v{t2}, 1, v{vL}
    v_lshlrev_b32 v{t2}, 3, v{t2}
    v_lshl_add_u32 v{t2}, v{t1}, 4, v{t2}
    v_lshl_add_u32 v{t2}, v{t0}, 7, v{t2}
    v_add_u32 v{G1_WR}, 98304, v{t2}
    v_xor_b32 v{G1_WR+1}, 64, v{G1_WR}''')
def g1_reads(t, s):
    b = (4 * t + s) & 1; sl = t % 3; o = []
    B = lambda st: f'ds_read_b128 {vr(G1_B + 8*b + 4*st, 4)}, v{G1_XR+s} offset:{(sl&1)*32768 + st*4096}'
    tog = f'v_add_u32 v{G1_XR+s}, 0x10000, v{G1_XR+s}\n' if sl == 2 else f'v_subrev_u32 v{G1_XR+s}, 0x10000, v{G1_XR+s}\n' if sl == 0 and t else ''
    o.append(tog + B(0))
    for mat in range(2):
        for ft in range(2):
            r = G1_A + 16 * b + 4 * (2 * mat + ft)
            for h in range(2):
                o.append(f'ds_read_b64_tr_b16 {vr(r+2*h, 2)}, v{G1_WR+ft} offset:{sl*16384 + mat*8192 + s*2048 + h*512}')
    o.append(B(1))
    return o
def g1_mfmas(t, s):
    b = (4 * t + s) & 1; o = []
    for st in range(2):
        for mat in range(2):
            for ft in range(2):
                c = acc1(st, mat, ft)
                src = '0' if (t == 0 and s == 0) else vr(c, 16)
                o.append(f'v_mfma_f32_32x32x16_bf16 {vr(c,16)}, {vr(G1_A + 16*b + 4*(2*mat+ft), 4)}, {vr(G1_B + 8*b + 4*st, 4)}, {src}')
    return o
def g1_main(p, extra=None, post=None, ini=3, pre=None):
    extra = extra or {}; post = post or {}; pre = pre or {}
    p.waitvm('dma0'); p('s_barrier')
    p.extend(g1_reads(0, 0))
    pend = [x for t in range(ini, 3) for x in g1_dma(t)]
    for t in range(8):
        for s in range(4):
            mf = g1_mfmas(t, s)
            slots = [[] for _ in range(8)]
            if s < 3:
                rd = g1_reads(t, s + 1)
                for i, x in enumerate(rd): slots[i // 2].append(x)
            elif t < 7:
                slots[1] += pre.get(t, []) + [Ins('s_waitcnt lgkmcnt(0)'), Ins(f'WAITVM dma{t+1}'), 's_barrier']
                rd = g1_reads(t + 1, 0)
                for i, x in enumerate(rd): slots[1 + i // 2].append(x)
                slots[1] += post.get(t, [])
                if t + 3 < 8: pend = g1_dma(t + 3)
            else:
                slots[1] += [Ins('s_waitcnt lgkmcnt(0)'), 's_barrier'] + post.get(t, [])
            lo = 6 if s == 3 else 5 if (s < 2 and (t or ini > 1)) else 0
            if s == 3: n = min(len(pend), 4)
            elif s < 2: n = min(len(pend), 7) if (t or ini > 1) else 17
            else: n = len(pend)
            for i in range(n): slots[lo + i * (8 - lo) // max(n, 1)].append(pend.pop(0))
            ex = extra.get((t, s), [])
            for i, x in enumerate(ex): slots[i * 8 // len(ex)].append(x)
            for m in range(8):
                p(mf[m]); p.extend(slots[m])
    assert not pend
def g1_epilogue(p, fill=()):
    fill = list(fill); nf = len(fill)
    H, va = 128, 192
    p(f'''s_lshl_b32 s{sT0}, s{sMI}, 2
    s_add_u32 s{sT0}, s{sT0}, s{sW}
    s_lshl_b32 s{sT0}, s{sT0}, 10
    s_lshl_b32 s{sT1}, s{sFI}, 18
    s_add_u32 s{sT0}, s{sT0}, s{sT1}
    s_add_u32 s{sT0}, s{sT0}, {WS_H}
    v_lshlrev_b32 v{va}, 4, v{vL}''')
    for ft in range(2):
        for q in range(4):
            R = H + 4 * (4 * ft + q)
            for st in range(2):
                g = acc1(st, 0, ft) + 4 * q; u = acc1(st, 1, ft) + 4 * q
                for e in range(4): p(f'v_max_f32 v{g+e}, 0, v{g+e}')
                for e in (0, 2): p(f'v_pk_mul_f32 {vr(g+e,2)}, {vr(g+e,2)}, {vr(u+e,2)}')
                for e in (0, 2): p(f'v_cvt_pk_bf16_f32 v{R + 2*st + e//2}, v{g+e}, v{g+e+1}')
            p(f'v_permlane32_swap_b32 v{R}, v{R+2}\nv_permlane32_swap_b32 v{R+1}, v{R+3}')
            p(f'buffer_store_dwordx4 {vr(R,4)}, v{va}, {srd(S_WS)}, s{sT0} offen sc1', 'hst')
            if (ft, q) != (1, 3): p(f's_add_u32 s{sT0}, s{sT0}, 32768')
            i = 4 * ft + q
            p.extend(fill[nf * i // 8: nf * (i + 1) // 8])

def k_gemm1():
    p = Prog(); prologue(p)
    L = p.label('main')
    p(f's_cmp_lt_u32 s{sJ}, 28\ns_cbranch_scc1 {L}\ns_endpgm\n{L}:')
    g1_setup(p)
    for t in range(3): p.extend(g1_dma(t))
    g1_setup2(p)
    g1_main(p); g1_epilogue(p)
    p('s_endpgm')
    return p

SP_X = 0
SP_W = 73728
def spare_issue_w(p):
    t0, t1, t2, t3, vw, vx = 1, 2, 3, 4, 8, 10
    mk_srd(p, S_P, 24, 1792 * 1024)
    p(f'''s_lshr_b32 s{sT0}, s{sSI}, 3
    s_lshl_b32 s{sT0}, s{sT0}, 2
    s_add_u32 s{sT0}, s{sT0}, s{sW}
    s_mul_i32 s{sT0}, s{sT0}, {112*1024}
    s_and_b32 s{sT1}, s{sSI}, 7
    s_lshl_b32 s{sT1}, s{sT1}, 7
    s_add_u32 s{sT0}, s{sT0}, s{sT1}
    v_lshrrev_b32 v{t0}, 3, v{vL}
    v_and_b32 v{t1}, 7, v{vL}
    v_bfe_u32 v{t2}, v{vL}, 4, 1
    v_lshlrev_b32 v{t2}, 2, v{t2}
    v_xor_b32 v{t2}, v{t1}, v{t2}
    v_lshlrev_b32 v{t2}, 4, v{t2}
    v_lshl_add_u32 v{vw}, v{t0}, 10, v{t2}
    s_mul_i32 s{sWM}, s{sW}, 14336
    s_add_u32 s{sWM}, s{sWM}, {SP_W}''')
    for i in range(14):
        p(f's_add_u32 m0, s{sWM}, {1024*i}')
        p(f'buffer_load_dwordx4 v{vw}, {srd(S_P)}, s{sT0} offen lds', f'wdma{i//2}')
        if i < 13: p(f's_add_u32 s{sT0}, s{sT0}, 8192')
def spare_issue_x(p):
    t0, t1, t2, t3, vw, vx = 1, 2, 3, 4, 8, 10
    p(f'''s_lshl_b32 s{sT1}, s{sW}, 2
    s_and_b32 s{sT1}, s{sT1}, 7
    v_xor_b32 v{t0}, s{sT1}, v{vL}
    v_lshlrev_b32 v{vx}, 4, v{t0}
    v_xor_b32 v{vx+1}, 16, v{vx}
    v_xor_b32 v{vx+2}, 32, v{vx}
    v_xor_b32 v{vx+3}, 48, v{vx}
    s_lshl_b32 s{sT0}, s{sSI}, 2
    s_add_u32 s{sT0}, s{sT0}, s{sW}
    s_lshl_b32 s{sT0}, s{sT0}, 14
    s_mul_i32 s{sXM}, s{sW}, {16*1152}''')
    for i in range(16):
        p(f's_add_u32 m0, s{sXM}, {SP_X + 1152*i}')
        p(f'buffer_load_dwordx4 v{vx + 2*(i>>3) + ((i>>1)&1)}, {srd(S_X)}, s{sT0} offen lds', 'xdma')
        if i < 15: p(f's_add_u32 s{sT0}, s{sT0}, 1024')
def spare_issue_g(p):
    t0 = 1
    mk_srd(p, S_WG, 26, 1024)
    p(f'v_and_b32 v{t0}, 3, v{vL}\nv_lshlrev_b32 v{t0}, 4, v{t0}')
    for i in range(16): p(f'buffer_load_dwordx4 {vr(128+4*i,4)}, v{t0}, {srd(S_WG)}, 0 offen offset:{64*i}')
def spare_wd(p, fill=()):
    t0, t1, t2, ra, va = 1, 2, 3, 6, 14
    p(f'''v_lshrrev_b32 v{t1}, 5, v{vL}
    v_bfe_u32 v{t0}, v{vL}, 2, 2
    v_lshl_add_u32 v{t0}, v{t1}, 3, v{t0}
    v_bfe_u32 v{t1}, v{vL}, 4, 1
    v_bfe_u32 v{t2}, v{vL}, 1, 1
    v_lshl_add_u32 v{t1}, v{t1}, 1, v{t2}
    v_bfe_u32 v{t2}, v{vL}, 3, 1
    v_lshl_add_u32 v{t1}, v{t2}, 2, v{t1}
    v_and_b32 v{t2}, 1, v{vL}
    v_lshlrev_b32 v{t2}, 3, v{t2}
    v_lshl_add_u32 v{t2}, v{t1}, 4, v{t2}
    v_lshl_add_u32 v{t2}, v{t0}, 7, v{t2}
    v_add_u32 v{ra}, s{sWM}, v{t2}
    v_xor_b32 v{ra+1}, 64, v{ra}
    v_lshlrev_b32 v{va}, 4, v{vL}
    s_and_b32 s{sT0}, s{sSI}, 7
    s_lshl_b32 s{sT0}, s{sT0}, 2
    s_lshr_b32 s{sT1}, s{sSI}, 3
    s_add_u32 s{sT0}, s{sT0}, s{sT1}
    s_lshl_b32 s{sT0}, s{sT0}, 2
    s_add_u32 s{sT0}, s{sT0}, s{sW}
    s_mul_i32 s{sT0}, s{sT0}, 14336
    s_add_u32 s{sT5}, s{sT0}, {WS_WDT}''')
    def st(i):
        p(f'buffer_store_dwordx4 {vr(16+4*i,4)}, v{va}, {srd(S_WS)}, s{sT5} offen offset:{1024*(i&3)} sc1', 'wst')
        if i & 3 == 3: p(f's_add_u32 s{sT5}, s{sT5}, 4096')
    fill = list(fill); nf = len(fill)
    for s in range(8):
        if s < 7:
            p.waitvm(f'wdma{s}')
            for d in range(2):
                r = 16 + 4 * (2 * s + d)
                for h in range(2): p(f'ds_read_b64_tr_b16 {vr(r+2*h,2)}, v{ra+d} offset:{s*2048 + h*512}')
        if s: st(2 * s - 2); st(2 * s - 1)
        p.extend(fill[nf * s // 8: nf * (s + 1) // 8])
def spare_ut(p):
    t0, t1, t2, t3, ra, va = 1, 2, 3, 4, 72, 14
    p(f'''v_and_b32 v{t0}, 3, v{vL}
    v_lshrrev_b32 v{t1}, 5, v{vL}
    v_lshl_add_u32 v{t1}, v{t1}, 2, v{t0}
    v_bfe_u32 v{t2}, v{vL}, 2, 2
    v_lshl_add_u32 v{t1}, v{t1}, 3, v{t2}
    v_mul_u32_u24 v{t1}, 1152, v{t1}
    v_bfe_u32 v{t2}, v{vL}, 3, 1
    v_lshl_add_u32 v{t0}, v{t0}, 1, v{t2}
    v_lshl_add_u32 v{t1}, v{t0}, 4, v{t1}
    v_bfe_u32 v{t2}, v{vL}, 4, 1
    v_lshl_add_u32 v{t1}, v{t2}, 3, v{t1}
    s_lshl_b32 s{sT0}, s{sW}, 8
    v_add_u32 v{ra}, s{sT0}, v{t1}''')
    for k in range(1, 8): p(f'v_xor_b32 v{ra+k}, {16*k}, v{ra}')
    p(f'''v_and_b32 v{t0}, 15, v{vL}
    v_lshlrev_b32 v{t0}, 4, v{t0}
    v_lshrrev_b32 v{t1}, 5, v{vL}
    v_lshl_add_u32 v{t0}, v{t1}, 8, v{t0}
    v_lshl_add_u32 v{va}, v{t2}, 14, v{t0}
    s_lshl_b32 s{sT0}, s{sW}, 19
    s_lshl_b32 s{sT1}, s{sSI}, 9
    s_add_u32 s{sT0}, s{sT0}, s{sT1}
    s_add_u32 s{sT0}, s{sT0}, {WS_UT}''')
    p.waitvm('xdma'); p('s_barrier')
    for k in range(16):
        r = 16 + 4 * (k % 8) if k < 8 else 80 + 4 * (k % 8)
        for h in range(2): p(f'ds_read_b64_tr_b16 {vr(r+2*h,2)}, v{ra+(k&7)} offset:{SP_X + (k>>3)*128 + h*4608}')
    for k in range(16):
        r = 16 + 4 * (k % 8) if k < 8 else 80 + 4 * (k % 8)
        p(f'buffer_store_dwordx4 {vr(r,4)}, v{va}, {srd(S_WS)}, s{sT0} offen sc1', 'ust')
        if k < 15: p(f's_add_u32 s{sT0}, s{sT0}, 32768')
def spare_g(p):
    t0, t1, t2, ra, ac = 1, 2, 3, 8, 10
    p(f'''s_lshl_b32 s{sT0}, s{sW}, 4
    v_lshrrev_b32 v{t0}, 2, v{vL}
    v_add_u32 v{t0}, s{sT0}, v{t0}
    v_bfe_u32 v{t1}, v{t0}, 3, 2
    v_bfe_u32 v{t2}, v{t0}, 1, 1
    v_lshl_add_u32 v{t1}, v{t1}, 1, v{t2}
    v_and_b32 v{t2}, 3, v{vL}
    v_xor_b32 v{t1}, v{t1}, v{t2}
    v_mul_u32_u24 v{ra}, 1152, v{t0}
    v_lshl_add_u32 v{ra}, v{t1}, 4, v{ra}
    v_xor_b32 v{ra+1}, 64, v{ra}''')
    for i in range(16): p(f'ds_read_b128 {vr(16+4*i,4)}, v{ra+(i&1)} offset:{SP_X + (i>>1)*128}')
    for e in range(4): p(f'v_mov_b32 v{ac+e}, 0')
    for i in range(16):
        for e in range(4): p(f'v_dot2c_f32_bf16 v{ac+e}, v{16+4*i+e}, v{128+4*i+e}')
    p(f'''v_add_f32 v{ac}, v{ac}, v{ac+1}
    v_add_f32 v{ac+2}, v{ac+2}, v{ac+3}
    v_add_f32 v{ac}, v{ac}, v{ac+2}
    v_add_f32_dpp v{ac+1}, v{ac}, v{ac} quad_perm:[1,0,3,2] row_mask:0xf bank_mask:0xf
    v_add_f32_dpp v{ac}, v{ac+1}, v{ac+1} quad_perm:[2,3,0,1] row_mask:0xf bank_mask:0xf
    v_cvt_pk_bf16_f32 v{ac}, v{ac}, v{ac}
    v_and_b32 v{ac}, 0xffff0000, v{ac}
    v_mul_f32 v{ac}, 0xbfb8aa3b, v{ac}
    v_exp_f32 v{ac}, v{ac}
    v_add_f32 v{ac}, 1.0, v{ac}
    v_rcp_f32 v{ac}, v{ac}
    v_cvt_pk_bf16_f32 v{ac}, v{ac}, v{ac}
    v_and_b32 v{ac}, 0xffff0000, v{ac}
    s_lshl_b32 s{sT0}, s{sSI}, 8
    s_add_u32 s{sT0}, s{sT0}, {WS_G}
    v_lshlrev_b32 v{t0}, 2, v{t0}''')
    p(f'buffer_store_dword v{ac}, v{t0}, {srd(S_WS)}, s{sT0} offen sc1', 'gst')

def k_spare():
    p = Prog(); prologue(p)
    L = p.label('main')
    p(f's_cmp_ge_u32 s{sJ}, 28\ns_cbranch_scc1 {L}\ns_endpgm\n{L}:')
    spare_issue(p); spare_wd(p); spare_ut(p); spare_g(p)
    p('s_endpgm')
    return p

KT, KTS, KR = 65536, 65536, 528
TL, TLS = 159056, 2064
IMG, IMS = 131072, 8320
UIM, UIS = 147712, 4672
RED = 0
AS = 32768
P2 = 49152
vPAR = 196
vGA = 202
def vE(e): return vGA + 16 if e < 0 else vGA + 8 + (15 - e) // 2 if e & 1 else vGA + (14 - e) // 2
vTA = 219
vZA = 222
vDM = 223
def par_loads(p):
    t0, t1 = 192, 193
    p(f'''s_lshl_b32 s{sT0}, s{sPI}, 2
    s_add_u32 s{sT0}, s{sT0}, s{sW}
    s_lshl_b32 s{sT1}, s{sT0}, 7
    v_lshl_add_u32 v{t0}, v{vL}, 1, s{sT1}
    s_lshr_b32 s{sT0}, s{sT0}, 1
    s_lshl_b32 s{sT0}, s{sT0}, 1
    v_mov_b32 v{t1}, s{sT0}''')
    for i in range(4): p(f'global_load_short_d16_hi v{vPAR+i}, v{t0}, s[{6+2*i}:{7+2*i}]')
    for i in range(2): p(f'global_load_short_d16_hi v{vPAR+4+i}, v{t1}, s[{14+2*i}:{15+2*i}]')
def par_zero(p):
    for i in range(6): p(f'v_mov_b32 v{vPAR+i}, 0')
def rne_off(s, e):
    q, r = divmod(e, 1 << s); h = (1 << s) // 2
    if s and (r > h or (r == h and q & 1)): q += 1
    return q
def tail_setup(p):
    t0, t1, t2, t3, t4 = 192, 193, 194, 195, 234
    p(f'''s_lshr_b32 s{sT0}, s{sW}, 1
    s_and_b32 s{sT1}, s{sW}, 1
    s_mul_i32 s{sT2}, s{sT0}, {TLS}
    s_add_u32 s{sT2}, s{sT2}, {TL}
    s_lshl_b32 s{sT3}, s{sT1}, 6
    s_sub_u32 s{sT3}, 127, s{sT3}
    v_sub_u32 v{t0}, s{sT3}, v{vL}
    v_lshlrev_b32 v{t1}, 4, v{t0}''')
    def idx(dst, src):
        p(f'''v_cvt_f32_u32 v{t3}, v{src}
        v_cvt_pk_bf16_f32 v{t3}, v{t3}, v{t3}
        v_and_b32 v{t3}, 0xffff, v{t3}
        v_subrev_u32 v{t3}, 17024, v{t3}
        v_min_i32 v{t4}, 128, v{src}
        v_max_i32 v{t3}, v{t3}, v{t4}
        v_lshl_add_u32 v{dst}, v{t3}, 1, s{sT2}''')
    idx(vE(0), t1)
    p(f'v_subrev_u32 v{t2}, 1, v{t1}\nv_max_i32 v{t2}, 0, v{t2}')
    idx(vE(-1), t2)
    p(f'''s_add_u32 s{sT3}, s{sT2}, 2048
    v_mov_b32 v{t2}, s{sT3}
    v_cmp_eq_u32 vcc, 0, v{t0}
    v_cndmask_b32 v{vE(-1)}, v{vE(-1)}, v{t2}, vcc
    v_ffbh_u32 v{t2}, v{t0}
    v_min_u32 v{t2}, 28, v{t2}
    v_sub_u32 v{t2}, 28, v{t2}
    v_lshlrev_b32 v{t2}, 3, v{t2}''')
    for e in range(1, 16):
        k = sum((2 * rne_off(s, e)) << (8 * s) for s in range(4))
        p(f's_mov_b32 s{sT3}, {hex(k)}\nv_bfe_u32 v{t3}, s{sT3}, v{t2}, 8\nv_add_u32 v{vE(e)}, v{vE(0)}, v{t3}')
    p(f'''v_and_b32 v{t0}, 15, v{vL}
    s_lshl_b32 s{sT3}, s{sT1}, 4
    v_add_u32 v{t0}, s{sT3}, v{t0}
    v_lshrrev_b32 v{t1}, 4, v{vL}
    v_lshlrev_b32 v{t2}, 3, v{t1}
    v_lshl_add_u32 v{t2}, v{t0}, 4, v{t2}
    v_lshlrev_b32 v{t3}, 3, v{t0}
    v_add_u32 v{t3}, 512, v{t3}
    v_cmp_eq_u32 vcc, 2, v{t1}
    v_cndmask_b32 v{t2}, v{t2}, v{t3}, vcc
    v_lshlrev_b32 v{t3}, 2, v{t0}
    v_add_u32 v{t3}, 768, v{t3}
    v_mov_b32 v{t4}, 4
    v_mov_b32 v{vTA+1}, 128
    v_cmp_eq_u32 vcc, 3, v{t1}
    v_cndmask_b32 v{t2}, v{t2}, v{t3}, vcc
    v_cndmask_b32 v{t4}, v{t4}, v{vTA+1}, vcc
    v_add_u32 v{vTA}, s{sT2}, v{t2}
    v_add_u32 v{vTA+1}, v{vTA}, v{t4}
    v_lshlrev_b32 v{t2}, 8, v{t1}
    v_lshl_add_u32 v{t2}, v{t0}, 1, v{t2}
    v_add_u32 v{vTA+2}, s{sT2}, v{t2}
    v_or_b32 v{t2}, v{t0}, v{t1}
    v_mov_b32 v{t3}, 0
    v_cmp_eq_u32 vcc, 0, v{t2}
    v_cndmask_b32 v{vDM}, v{t3}, 1.0, vcc''')
    p(f'''v_lshrrev_b32 v{t0}, 5, v{vL}
    v_mul_u32_u24 v{t0}, {UIS}, v{t0}
    v_and_b32 v{t1}, 31, v{vL}
    v_lshl_add_u32 v{t0}, v{t1}, 4, v{t0}
    v_add_u32 v{t0}, {UIM}, v{t0}
    v_bfe_u32 v{t1}, v{vL}, 1, 2
    v_mul_u32_u24 v{t1}, 4160, v{t1}
    v_and_b32 v{t2}, 1, v{vL}
    v_lshl_add_u32 v{t1}, v{t2}, 4, v{t1}
    v_add_u32 v{t1}, {IMG + 4096}, v{t1}
    v_mul_u32_u24 v{t2}, {TLS}, v{t2}
    v_add_u32 v{t2}, {TL + 2048}, v{t2}
    v_and_b32 v{t3}, 8, v{vL}
    v_cmp_eq_u32 vcc, 0, v{t3}
    v_cndmask_b32 v{t1}, v{t2}, v{t1}, vcc
    s_cmp_eq_u32 s{sW}, 0
    s_cselect_b64 vcc, -1, 0
    v_cndmask_b32 v{vZA}, v{t1}, v{t0}, vcc''')
HI = [0,1,2,3,4,5,6,7,256,258,260,262,512,516,768,772,1024,1280,1536,1792,2048]
def merge(chains):
    out = []; ch = [list(c) for c in chains]
    while any(ch):
        for c in ch:
            if c: out.append(c.pop(0))
    return out
def cmul(D, X, Y):
    return [f'v_pk_mul_f32 {vr(D,2)}, {vr(X,2)}, {vr(Y,2)} op_sel:[0,0] op_sel_hi:[0,1]',
            f'v_pk_fma_f32 {vr(D,2)}, {vr(X,2)}, {vr(Y,2)}, {vr(D,2)} op_sel:[1,1,0] op_sel_hi:[1,0,1] neg_lo:[0,1,0]']
def kgen_valu(p, fills=()):
    lar, aim, cre, cim, ldt, dsk = range(vPAR, vPAR + 6)
    def expbf(x, t):
        return [f'v_mul_f32 v{t}, 0x3fb8aa3b, v{x}', f'v_fma_f32 v{t+1}, v{x}, s{sT2}, -v{t}', f'v_fmac_f32 v{t+1}, 0x32a57060, v{x}',
                f'v_exp_f32 v{t}, v{t}', f'v_mul_f32 v{t+1}, 0x3f317218, v{t+1}', f'v_fmac_f32 v{t}, v{t}, v{t+1}',
                f'v_cvt_pk_bf16_f32 v{t}, v{t}, v{t}', f'v_and_b32 v{x}, 0xffff0000, v{t}']
    vKA = 13
    p(f'''s_mov_b32 s{sT2}, 0x3fb8aa3b
    s_lshr_b32 s{sT0}, s{sW}, 1
    s_mul_i32 s{sT1}, s{sT0}, {TLS}
    s_add_u32 s{sT1}, s{sT1}, {TL + 2048}
    v_mov_b32 v10, s{sT1}
    s_mul_i32 s{sT0}, s{sT0}, {KTS}
    s_and_b32 s{sT1}, s{sW}, 1
    s_lshl_b32 s{sT1}, s{sT1}, 8
    s_add_u32 s{sT0}, s{sT0}, s{sT1}
    s_add_u32 s{sT0}, s{sT0}, {KT}
    v_lshl_add_u32 v{vKA}, v{vL}, 2, s{sT0}
    v_mov_b32 v11, 0
    v_mov_b32 v12, 0x3f80''')
    p(f'ds_write_b32 v10, v11\nds_write_b32 v{vKA}, v12')
    p0 = p; p = Prog()
    p.extend(merge([expbf(ldt, 0), expbf(lar, 2)]))
    a2, b2 = 4, 5
    Hreg = {h: 16 + 2 * i for i, h in enumerate(HI)}
    Lreg = {k: 58 + 2 * k for k in range(1, 32)}
    Z1, Z2, Z4, Z256 = 122, 124, 126, 128
    p(f'''v_mul_f32 v{a2}, v{lar}, v{ldt}
    v_mul_f32 v{b2}, v{aim}, v{ldt}
    v_mul_f32 v6, v{cre}, v{ldt}
    v_mul_f32 v7, v{cim}, v{ldt}
    v_mul_f32 v{a2}, 0xbfb8aa3b, v{a2}
    v_mul_f32 v{b2}, 0x3e22f983, v{b2}
    v_add_f32 v{Hreg[0]}, v6, v6
    v_add_f32 v{Hreg[0]+1}, v7, v7
    v_mul_f32 v{vDM}, v{vDM}, v{dsk}''')
    def direct(D, pw, t):
        o = []
        if pw != 1: o += [f'v_mul_f32 v{t}, {float(pw)}, v{a2}', f'v_mul_f32 v{t+1}, {float(pw)}, v{b2}', f'v_exp_f32 v{t}, v{t}', f'v_fract_f32 v{t+1}, v{t+1}']
        else: o += [f'v_exp_f32 v{t}, v{a2}', f'v_fract_f32 v{t+1}, v{b2}']
        o += [f'v_cos_f32 v{D}, v{t+1}', f'v_sin_f32 v{D+1}, v{t+1}', f'v_mul_f32 v{D}, v{D}, v{t}', f'v_mul_f32 v{D+1}, v{D+1}, v{t}']
        return o
    p.extend(merge([direct(Lreg[1], 8, 0), direct(Z256, 256, 2), direct(Z1, 1, 8)]))
    cv = [130]
    def put(reg, row, neg):
        t = cv[0]
        return [f'v_cvt_pk_bf16_f32 v{t}, v{reg}, {"-" if neg else ""}v{reg+1}', f'ds_write_b32 v{vKA}, v{t} offset:{row*KR}']
    ph = lambda h: put(Hreg[h], 32 + HI.index(h), True)
    pl = lambda k: put(Lreg[k], k, False)
    cv[0] = 130
    c1 = cmul(Lreg[2], Lreg[1], Lreg[1]) + pl(1) + cmul(Lreg[4], Lreg[2], Lreg[2]) + pl(2)
    cv[0] = 131
    c2 = cmul(Z2, Z1, Z1) + ph(0) + cmul(Lreg[3], Lreg[2], Lreg[1]) + cmul(Z4, Z2, Z2)
    cv[0] = 132
    c3 = cmul(Hreg[256], Hreg[0], Z256) + cmul(Hreg[1], Hreg[0], Z1) + ph(256) + ph(1)
    p.extend(merge([c1, c2, c3]))
    chains = []
    for k0 in range(1, 5):
        c = []; cv[0] = 132 + k0
        for k in range(k0, 32, 4):
            if k + 4 < 32: c += cmul(Lreg[k + 4], Lreg[k], Lreg[4])
            if k > 2: c += pl(k)
        chains.append(c)
    c = []; cv[0] = 137
    for h in range(2, 8): c += cmul(Hreg[h], Hreg[h - 1], Z1) + ph(h)
    for h in (258, 260, 262): c += cmul(Hreg[h], Hreg[h - 2], Z2) + ph(h)
    chains.append(c)
    c = []; cv[0] = 138
    for h in range(512, 2049, 256):
        c += cmul(Hreg[h], Hreg[h - 256], Z256) + ph(h)
        if h in (512, 768): c += cmul(Hreg[h + 4], Hreg[h], Z4) + ph(h + 4)
    chains.append(c)
    p.extend(merge(chains))
    n = len(p.ins); at = [[] for _ in range(n)]
    for a, b, lst in fills:
        for i, x in enumerate(lst): at[min(n - 1, int(n * (a + (b - a) * i / len(lst))))].append(x)
    for I, x in zip(p.ins, at): p0.extend([I]); p0.extend(x)
def kgen_mfma(p, fill=()):
    ra, rb, rc, t0, t1 = 0, 1, 12, 2, 3
    p(f'''s_lshr_b32 s{sT0}, s{sW}, 1
    s_mul_i32 s{sT0}, s{sT0}, {KTS}
    s_add_u32 s{sT0}, s{sT0}, {KT}
    s_and_b32 s{sT1}, s{sW}, 1
    s_mul_i32 s{sT1}, s{sT1}, {16*KR}
    v_and_b32 v{t0}, 15, v{vL}
    v_lshrrev_b32 v{t1}, 4, v{vL}
    v_lshl_add_u32 v{t1}, v{t1}, 4, s{sT0}
    v_mad_u32_u24 v{ra}, v{t0}, {'s'+str(sT3)}, v{t1}
    v_min_u32 v{t0}, 4, v{t0}
    v_mad_u32_u24 v{rc}, v{t0}, {'s'+str(sT3)}, v{t1}
    v_add_u32 v{rb}, s{sT1}, v{ra}
    s_waitcnt lgkmcnt(0)
    s_barrier'''.replace('v_and_b32', f's_mov_b32 s{sT3}, {KR}\n    v_and_b32', 1))
    fill = list(fill); nf = len(fill)
    F = lambda ks, i: 16 + 12 * ks + 4 * i
    for ks in range(8):
        p.extend(fill[nf * ks // 8: nf * (ks + 1) // 8])
        p(f'ds_read_b128 {vr(F(ks,0),4)}, v{rb} offset:{64*ks}')
        p(f'ds_read_b128 {vr(F(ks,1),4)}, v{ra} offset:{64*ks + 32*KR}')
        p(f'ds_read_b128 {vr(F(ks,2),4)}, v{rc} offset:{64*ks + 48*KR}')
        if ks >= 3:
            k = ks - 3
            for mt in range(2): p(f'v_mfma_f32_16x16x32_bf16 {vr(4+4*mt,4)}, {vr(F(k,1+mt),4)}, {vr(F(k,0),4)}, {"0" if k == 0 else vr(4+4*mt,4)}')
    for k in range(5, 8):
        for mt in range(2): p(f'v_mfma_f32_16x16x32_bf16 {vr(4+4*mt,4)}, {vr(F(k,1+mt),4)}, {vr(F(k,0),4)}, {vr(4+4*mt,4)}')
    p(f'''v_add_f32 v4, v4, v{vDM}
    v_cvt_pk_bf16_f32 v5, v4, v5
    v_cvt_pk_bf16_f32 v6, v6, v7
    v_cvt_pk_bf16_f32 v8, v8, v9
    v_cvt_pk_bf16_f32 v10, v10, v11
    ds_write_b32 v{vTA}, v5
    ds_write_b32 v{vTA+1}, v6
    ds_write_b16 v{vTA+2}, v8 offset:1024
    ds_write_b16_d16_hi v{vTA+2}, v8 offset:1088
    ds_write_b16 v{vTA+2}, v10 offset:1152
    ds_write_b16_d16_hi v{vTA+2}, v10 offset:1216''')
def zero_fill():
    return ['v_mov_b32 v196, 0\nv_mov_b32 v197, 0', 'v_mov_b32 v198, 0\nv_mov_b32 v199, 0', f'ds_write_b128 v{vZA}, v[196:199]']
def expand():
    B, A, wa = vGA, vGA + 8, 200
    rd = [f'''s_lshr_b32 s{sT0}, s{sW}, 1
    s_mul_i32 s{sT0}, s{sT0}, {IMS}
    s_and_b32 s{sT1}, s{sW}, 1
    s_lshl_b32 s{sT1}, s{sT1}, 11
    s_add_u32 s{sT0}, s{sT0}, s{sT1}
    s_add_u32 s{sT0}, s{sT0}, {IMG}
    v_lshl_add_u32 v{wa}, v{vL}, 5, s{sT0}''']
    for k in range(8): rd += [f'ds_read_u16 v{A+k}, v{A+k}', f'ds_read_u16 v{B+k}, v{B+k}']
    rd.append(f'ds_read_u16 v{A+8}, v{A+8}')
    wr = []
    for k in range(8):
        wr.append(f'v_lshl_or_b32 v{192+k}, v{B+k}, 16, v{A+k}\nv_lshl_or_b32 v{B+k}, v{A+k+1}, 16, v{B+k}')
        if k & 3 == 3: wr += [f'ds_write_b128 v{wa}, {vr(189+k,4)} offset:{4*(k-3)}', f'ds_write_b128 v{wa}, {vr(B+k-3,4)} offset:{4160 + 4*(k-3)}']
    return rd, wr
vU = 224
def u_loads(p):
    t0, t1 = 232, 233
    p(f'''s_lshr_b32 s{sT0}, s{sPI}, 1
    s_lshl_b32 s{sT0}, s{sT0}, 14
    s_and_b32 s{sT1}, s{sPI}, 1
    s_lshl_b32 s{sT1}, s{sT1}, 5
    s_add_u32 s{sT0}, s{sT0}, s{sT1}
    s_lshl_b32 s{sT1}, s{sW}, 11
    s_add_u32 s{sT0}, s{sT0}, s{sT1}
    s_add_u32 s{sT0}, s{sT0}, {WS_UT}
    s_add_u32 s{sT1}, s{sT0}, 8192
    v_lshrrev_b32 v{t0}, 1, v{vL}
    v_and_b32 v{t1}, 1, v{vL}
    v_lshlrev_b32 v{t1}, 4, v{t1}
    v_lshl_add_u32 v{t0}, v{t0}, 6, v{t1}
    buffer_load_dwordx4 {vr(vU,4)}, v{t0}, {srd(S_WS)}, s{sT0} offen sc1
    buffer_load_dwordx4 {vr(vU+4,4)}, v{t0}, {srd(S_WS)}, s{sT1} offen sc1''')
def u_put():
    t0, t1 = 232, 233
    return [f'''s_lshl_b32 s{sT0}, s{sW}, 9
    s_add_u32 s{sT0}, s{sT0}, {UIM + 512}
    v_lshrrev_b32 v{t0}, 1, v{vL}
    v_and_b32 v{t1}, 1, v{vL}''', f'''v_mul_u32_u24 v{t1}, {UIS}, v{t1}
    v_lshl_add_u32 v{t0}, v{t0}, 4, v{t1}
    v_add_u32 v{t0}, s{sT0}, v{t0}''',
    f'ds_write_b128 v{t0}, {vr(vU,4)}', f'ds_write_b128 v{t0}, {vr(vU+4,4)} offset:2048']
def conv(p, extra=None):
    AR, BR, t0, t1, t2, t3 = 160, 164, 166, 167, 168, 169
    CA = lambda b, a: 32 + 64 * b + 4 * a
    CB = lambda b, j: 64 + 64 * b + 4 * j
    p(f'''s_lshr_b32 s{sT0}, s{sW}, 1
    s_and_b32 s{sT1}, s{sW}, 1
    s_lshl_b32 s{sT1}, s{sT1}, 8
    s_mul_i32 s{sT2}, s{sT0}, {IMS}
    s_sub_u32 s{sT2}, s{sT2}, s{sT1}
    s_add_u32 s{sT2}, s{sT2}, {IMG + 8220 - 192 - 512}
    s_mul_i32 s{sT3}, s{sT0}, {UIS}
    s_sub_u32 s{sT3}, s{sT3}, s{sT1}
    s_add_u32 s{sT3}, s{sT3}, {UIM + 480 - 192}
    v_and_b32 v{t0}, 15, v{vL}
    v_lshrrev_b32 v{t1}, 4, v{vL}
    v_lshlrev_b32 v{t1}, 4, v{t1}
    v_lshl_add_u32 v{t2}, v{t0}, 5, v{t1}
    v_add_u32 v{BR}, s{sT3}, v{t2}
    v_and_b32 v{t2}, 1, v{vL}
    v_mul_u32_u24 v{t2}, 4158, v{t2}
    v_lshl_add_u32 v{t2}, v{t0}, 1, v{t2}
    v_sub_u32 v{t2}, v{t1}, v{t2}
    v_add_u32 v{AR}, s{sT2}, v{t2}
    v_subrev_u32 v{AR+1}, 1024, v{AR}
    v_subrev_u32 v{AR+2}, 2048, v{AR}
    v_subrev_u32 v{AR+3}, 3072, v{AR}''')
    def reads(d):
        b = d & 1; o = []
        def A(a):
            off = 16 * (3 - d) + (128 if a % 2 == 0 else 0)
            return [f'ds_read2_b32 {vr(CA(b,a)+2*h,2)}, v{AR+a//2} offset0:{off+2*h} offset1:{off+2*h+1}' for h in range(2)]
        o += A(0)
        for j in range(8): o.append(f'ds_read_b128 {vr(CB(b,j),4)}, v{BR} offset:{512*j + 64*(3-d)}')
        for a in range(1, 8): o += A(a)
        return o
    p.extend(reads(0)[:12]); rest0 = reads(0)[12:]
    for d in range(4):
        b = d & 1; mf = []
        for a in range(8):
            for j in range(a, 8):
                mf.append(f'v_mfma_f32_16x16x32_bf16 {vr(4*j,4)}, {vr(CA(b,a),4)}, {vr(CB(b,j-a),4)}, {"0" if d == 0 and a == 0 else vr(4*j,4)}')
        fill = (rest0 if d == 0 else []) + (reads(d + 1) if d < 3 else [])
        weave(p, mf, fill, (extra or {}).get(d, []), end=34)
def conv_out(p, pre=()):
    wa, ra, va, t0, t1 = 163, 164, 165, 166, 167
    p(f'''s_lshl_b32 s{sT0}, s{sW}, 13
    v_lshrrev_b32 v{t0}, 5, v{vL}
    v_lshlrev_b32 v{t0}, 3, v{t0}
    v_xor_b32 v{t0}, v{t0}, v{vL}
    v_lshl_add_u32 v{wa}, v{t0}, 4, s{sT0}
    s_lshr_b32 s{sT0}, s{sW}, 1
    s_lshl_b32 s{sT0}, s{sT0}, 14
    s_and_b32 s{sT1}, s{sW}, 1
    s_lshl_b32 s{sT1}, s{sT1}, 12
    s_add_u32 s{sT0}, s{sT0}, s{sT1}
    v_and_b32 v{t0}, 1, v{vL}
    v_bfe_u32 v{t1}, v{vL}, 1, 4
    v_lshl_add_u32 v{t1}, v{t0}, 5, v{t1}
    v_lshlrev_b32 v{t0}, 3, v{t0}
    v_xor_b32 v{t1}, v{t1}, v{t0}
    v_lshrrev_b32 v{t0}, 5, v{vL}
    v_lshl_add_u32 v{t1}, v{t0}, 6, v{t1}
    v_lshl_add_u32 v{ra}, v{t1}, 4, s{sT0}
    v_lshlrev_b32 v{va}, 4, v{vL}
    s_lshl_b32 s{sT0}, s{sPI}, 2
    s_add_u32 s{sT0}, s{sT0}, s{sW}
    s_lshl_b32 s{sT0}, s{sT0}, 11
    s_add_u32 s{sT0}, s{sT0}, {WS_AT}''')
    for j in range(8): p(f'ds_write_b128 v{wa}, {vr(4*j,4)} offset:{RED + 1024*j}')
    p.extend(pre)
    p('s_waitcnt lgkmcnt(0)\ns_barrier')
    R = lambda i, h, k: 32 + 16 * i + 8 * k + 4 * h
    for i in range(2):
        for h in range(2):
            for k in range(2): p(f'ds_read_b128 {vr(R(i,h,k),4)}, v{ra} offset:{RED + 8192*k + 2048*i + 256*h}')
    for i in range(2):
        for e in range(0, 8, 2): p(f'v_pk_add_f32 {vr(R(i,0,0)+e,2)}, {vr(R(i,0,0)+e,2)}, {vr(R(i,0,1)+e,2)}')
        for e in range(4): p(f'v_cvt_pk_bf16_f32 v{4*i+e}, v{R(i,0,0)+2*e}, v{R(i,0,0)+2*e+1}')
        p(f'buffer_store_dwordx4 {vr(4*i,4)}, v{va}, {srd(S_WS)}, s{sT0} offen offset:{1024*i} sc1', 'ast')

def k_conv(dbg=False):
    p = Prog(); prologue(p)
    par_zero(p); par_loads(p); u_loads(p); tail_setup(p)
    kgen_valu(p); kgen_mfma(p); u_put(p); expand(p); conv(p); conv_out(p)
    if dbg:
        p(f's_barrier\nv_lshl_add_u32 v0, s{sW}, 6, v{vL}\nv_lshlrev_b32 v0, 4, v0\ns_lshl_b32 s{sT0}, s2, 15\ns_add_u32 s{sT0}, s{sT0}, 0x2000000\nv_add_u32 v1, {TL}, v0')
        for i in range(8):
            p(f'ds_read_b128 v[4:7], v1 offset:{4096*i}\nbuffer_store_dwordx4 v[4:7], v0, {srd(S_WS)}, s{sT0} offen\ns_add_u32 s{sT0}, s{sT0}, 4096\ns_nop 1')
    p('s_endpgm')
    return p

vWA = 236
sWD, sWE, sHX, sHE, sR2 = 4, 5, 6, 7, 8
def rot2_setup(p, on=True):
    if not on: p(f's_mov_b32 s{sR2}, 0'); return
    p(f'''s_and_b32 s{sT0}, s{sJ}, 3
    s_mul_i32 s{sT0}, s{sT0}, 7
    s_lshr_b32 s{sT0}, s{sT0}, 1
    s_mul_i32 s{sT1}, s{sDT}, 7
    s_lshr_b32 s{sT1}, s{sT1}, 2
    s_add_u32 s{sT0}, s{sT0}, s{sT1}
    s_sub_u32 s{sT1}, s{sT0}, 14
    s_cmp_ge_u32 s{sT0}, 14
    s_cselect_b32 s{sR2}, s{sT1}, s{sT0}''')
def wd_setup(p):
    p(f'''s_lshl_b32 s{sT0}, s{sDT}, 2
    s_add_u32 s{sT0}, s{sT0}, s{sW}
    s_mul_i32 s{sT0}, s{sT0}, 57344
    s_add_u32 s{sT0}, s{sT0}, {WS_WDT}
    s_add_u32 s{sWE}, s{sT0}, 57344
    s_lshl_b32 s{sT1}, s{sR2}, 12
    s_add_u32 s{sWD}, s{sT0}, s{sT1}
    s_and_b32 s{sT1}, s{sW}, 1
    s_lshl_b32 s{sT1}, s{sT1}, 10
    v_lshl_add_u32 v{vWA}, v{vL}, 4, s{sT1}
    v_xor_b32 v{vWA+1}, 1024, v{vWA}''')
def wrap(r, e, step, span, t):
    return f'\ns_add_u32 s{r}, s{r}, {step}\ns_sub_u32 s{t}, s{r}, {span}\ns_cmp_ge_u32 s{r}, s{e}\ns_cselect_b32 s{r}, s{t}, s{r}'
def wd_loads():
    o = []
    for s in range(28):
        for al in range(2):
            o.append(f'buffer_load_dwordx4 {ar(8*s+4*al,4)}, v{vWA+al}, {srd(S_WS)}, s{sWD} offen offset:{2048*(s&1)} sc1')
        if s & 1 and s < 27: o[-1] += wrap(sWD, sWE, 4096, 57344, 9)
    return o
NB = 12
vHB, vHA, vGAa, vG, vAT = 64, 160, 164, 246, 184
def acc2(al, be): return 16 * (al + 2 * be)
def h_setup(p):
    t0, t1 = 182, 183
    p(f'''s_mul_i32 s{sT0}, s{sW}, {56*32768}
    s_lshl_b32 s{sT1}, s{sST}, 10
    s_add_u32 s{sT0}, s{sT0}, s{sT1}
    s_add_u32 s{sT0}, s{sT0}, {WS_H}
    s_add_u32 s{sHE}, s{sT0}, {28*65536}
    s_lshl_b32 s{sT1}, s{sR2}, 17
    s_add_u32 s{sHX}, s{sT0}, s{sT1}
    s_lshr_b32 s{sT1}, s{sW}, 1
    s_lshl_b32 s{sT1}, s{sT1}, 9
    v_lshrrev_b32 v{t0}, 5, v{vL}
    v_and_b32 v{t1}, 31, v{vL}
    v_lshl_add_u32 v{t1}, v{t1}, 4, s{sT1}
    v_lshl_add_u32 v{vHA}, v{t0}, 15, v{t1}
    v_xor_b32 v{vHA+1}, 512, v{vHA}''')
def h_loads(s):
    o = [f'buffer_load_dwordx4 {vr(vHB + 8*(s%NB) + 4*be, 4)}, v{vHA+be}, {srd(S_WS)}, s{sHX} offen sc1' for be in range(2)]
    if s < 27: o[-1] += wrap(sHX, sHE, 65536, 28*65536, 10) if s & 1 else f'\ns_add_u32 s{sHX}, s{sHX}, 65536'
    return o
def a_loads():
    t0, t1 = 182, 183
    return [f'''s_and_b32 s{sT0}, s{sW}, 1
    s_lshl_b32 s{sT1}, s{sDT}, 1
    s_add_u32 s{sT0}, s{sT0}, s{sT1}
    s_lshl_b32 s{sT0}, s{sT0}, 17
    s_lshr_b32 s{sT1}, s{sW}, 1
    s_lshl_b32 s{sT2}, s{sST}, 1
    s_add_u32 s{sT1}, s{sT1}, s{sT2}
    s_lshl_b32 s{sT2}, s{sT1}, 6
    s_add_u32 s{sT0}, s{sT0}, s{sT2}
    s_add_u32 s{sT0}, s{sT0}, {WS_AT}
    s_add_u32 s{sT2}, s{sT0}, 65536''',
    f'''v_lshrrev_b32 v{t0}, 2, v{vL}
    v_and_b32 v{t1}, 3, v{vL}
    v_lshlrev_b32 v{t1}, 4, v{t1}
    v_lshl_add_u32 v{t0}, v{t0}, 12, v{t1}''',
    f'buffer_load_dwordx4 {vr(vAT,4)}, v{t0}, {srd(S_WS)}, s{sT0} offen sc1',
    f'buffer_load_dwordx4 {vr(vAT+4,4)}, v{t0}, {srd(S_WS)}, s{sT2} offen sc1']
def g_load(p):
    t0 = 235
    p(f'''s_lshr_b32 s{sT1}, s{sW}, 1
    s_lshl_b32 s{sT2}, s{sST}, 1
    s_add_u32 s{sT1}, s{sT1}, s{sT2}
    s_lshl_b32 s{sT1}, s{sT1}, 7
    s_add_u32 s{sT1}, s{sT1}, {WS_G}
    v_and_b32 v{t0}, 31, v{vL}
    v_lshlrev_b32 v{t0}, 2, v{t0}
    buffer_load_dword v{vG}, v{t0}, {srd(S_WS)}, s{sT1} offen sc1''')
def a_use():
    t0, t1, t2 = 182, 183, 162
    o = [f'''s_lshl_b32 s{sT0}, s{sW}, 11
    s_add_u32 s{sT0}, s{sT0}, {AS}
    v_lshl_add_u32 v{t0}, v{vL}, 4, s{sT0}''',
    f'''v_lshrrev_b32 v{t1}, 5, v{vL}
    v_bfe_u32 v{t2}, v{vL}, 2, 2
    v_lshl_add_u32 v{t1}, v{t1}, 2, v{t2}''',
    f'''v_bfe_u32 v{t2}, v{vL}, 4, 1
    v_lshl_add_u32 v{t1}, v{t1}, 1, v{t2}
    v_and_b32 v{t2}, 3, v{vL}''',
    f'''v_lshl_add_u32 v{t1}, v{t1}, 2, v{t2}
    v_lshl_add_u32 v{t1}, v{t1}, 3, s{sT0}''',
    f'ds_write_b128 v{t0}, {vr(vAT,4)}', (f'ds_write_b128 v{t0}, {vr(vAT+4,4)} offset:1024', 'aw')]
    for q in range(4): o.append(f'ds_read_b64_tr_b16 {vr(vAT+2*q,2)}, v{t1} offset:{512*q}')
    o.append(f'v_sub_f32 v{vG+1}, 1.0, v{vG}\nv_cvt_pk_bf16_f32 v{vG+1}, v{vG+1}, v{vG+1}\nv_and_b32 v{vG+1}, 0xffff0000, v{vG+1}')
    for i in range(8):
        o.append(f'v_lshlrev_b32 v{vGAa+2*i}, 16, v{vAT+i}\nv_and_b32 v{vGAa+2*i+1}, 0xffff0000, v{vAT+i}')
        o.append(f'v_mul_f32 v{vGAa+2*i}, v{vG}, v{vGAa+2*i}\nv_mul_f32 v{vGAa+2*i+1}, v{vG}, v{vGAa+2*i+1}')
    return o
def gemm2(p, extra=None, pre=0, late=(), mark=lambda: [], omod=''):
    extra = extra or {}
    PW, PR, ti = 192, 195, 162
    M = lambda s, al, be: f'v_mfma_f32_32x32x16_bf16 {vr(acc2(al,be),16)}, {ar(8*s+4*al,4)}, {vr(vHB+8*(s%NB)+4*be,4)}, {"0" if s == 0 else vr(acc2(al,be),16)}'
    for s in range(pre, NB): p.extend(h_loads(s))
    for k in range(1, 4):
        p(f's_xor_b32 s{sT0}, s{sW}, {k}\ns_mul_i32 s{sT0}, s{sT0}, 12288\ns_add_u32 s{sT0}, s{sT0}, {P2 + 4096*(k-1)}\nv_lshl_add_u32 v{PW+k-1}, v{vL}, 4, s{sT0}')
    p(f's_mul_i32 s{sT0}, s{sW}, 12288\ns_add_u32 s{sT0}, s{sT0}, {P2}\nv_lshl_add_u32 v{PR}, v{vL}, 4, s{sT0}')
    for s in range(24):
        mf = [M(s, 0, 0), M(s, 1, 0), M(s, 0, 1), M(s, 1, 1)]
        ld = h_loads(s + NB) if s + NB < 28 else [[], []]
        ex = extra.get(s, [])
        for m in range(4):
            p(mf[m]); p.extend(ex[len(ex) * m // 4: len(ex) * (m + 1) // 4])
            if m == 1 and ld[0]: p(ld[0])
            if m == 3 and ld[1]: p(ld[1])
    prev = []; late = list(late); nl = len(late)
    for k in (3, 1, 2, 0):
        al, be = k & 1, k >> 1
        mf = [M(s, al, be) for s in range(24, 28)]
        for m in range(4):
            p(mf[m])
            if m >= 1: p.extend(prev[(m - 1) * 2: m * 2])
            for _ in range(-(-nl // 14)):
                if late: p.extend([late.pop(0)])
        prev = [f'ds_write_b128 v{PW+k-1}, {vr(acc2(al,be)+4*q,4)} offset:{1024*q}' for q in range(4)] if k else []
    p.extend(mark())
    t0, t1, va = 182, 183, 196
    p(f'''s_lshr_b32 s{sT1}, s{sW}, 1
    s_lshl_b32 s{sT2}, s{sST}, 1
    s_add_u32 s{sT1}, s{sT1}, s{sT2}
    s_lshl_b32 s{sT1}, s{sT1}, 15
    s_and_b32 s{sT0}, s{sW}, 1
    s_lshl_b32 s{sT2}, s{sDT}, 1
    s_add_u32 s{sT0}, s{sT0}, s{sT2}
    s_lshl_b32 s{sT0}, s{sT0}, 6
    s_add_u32 s{sT0}, s{sT0}, s{sT1}
    v_and_b32 v{t0}, 31, v{vL}
    v_lshrrev_b32 v{t1}, 5, v{vL}
    v_lshlrev_b32 v{t1}, 4, v{t1}
    v_lshl_add_u32 v{va}, v{t0}, 10, v{t1}
    s_waitcnt lgkmcnt(0)
    s_barrier''')
    Q = lambda k, q: 64 + 16 * k + 4 * q
    for q in range(4):
        for k in range(3): p(f'ds_read_b128 {vr(Q(k,q),4)}, v{PR} offset:{4096*k + 1024*q}')
    for q in range(4):
        for e in (0, 2):
            r = 4 * q + e
            p(f'''v_pk_add_f32 {vr(r,2)}, {vr(r,2)}, {vr(Q(0,q)+e,2)}
            v_pk_add_f32 {vr(Q(1,q)+e,2)}, {vr(Q(1,q)+e,2)}, {vr(Q(2,q)+e,2)}''')
        for e in (0, 2):
            r = 4 * q + e
            p(f'v_pk_add_f32 {vr(r,2)}, {vr(r,2)}, {vr(Q(1,q)+e,2)}')
        for e in (0, 2):
            r = 4 * q + e
            p(f'v_pk_fma_f32 {vr(r,2)}, {vr(r,2)}, {vr(vG,2)}, {vr(vGAa+r,2)} op_sel:[0,1,0] op_sel_hi:[1,1,1]')
        for e in (0, 2):
            r = 4 * q + e
            p(f'v_cvt_pk_bf16_f32 v{16 + 2*q + e//2}, v{r}, v{r+1}')
        if q & 1:
            R = 16 + 2 * (q - 1)
            p(f'v_permlane32_swap_b32 v{R}, v{R+2}\nv_permlane32_swap_b32 v{R+1}, v{R+3}')
            p(f'buffer_store_dwordx4 {vr(R,4)}, v{va}, {srd(S_OUT)}, s{sT0} offen offset:{16*(q-1)} {omod}')

def spread(lst, a, b):
    n = b - a
    return {a + i: lst[len(lst) * i // n: len(lst) * (i + 1) // n] for i in range(n)}
def k_g2():
    p = Prog(); prologue(p)
    wd_setup(p); p.extend(wd_loads()); g_load(p); h_setup(p)
    ex = spread(a_loads(), 2, 4); ex.update(spread(a_use(), 12, 22))
    gemm2(p, ex)
    p('s_endpgm')
    return p

WS_STAMP = 0x3000000
class Fused:
    def __init__(s, stamps=False):
        s.p = Prog(); s.nap = 0; s.slow = []; s.stamps = stamps; s.ns = 0; s.want = stamps or []
    def stamp(s, name=None):
        if not s.stamps or (name is not None and name not in s.want): return []
        o = []
        if s.ns: o.append(f's_mov_b32 s{87 + s.ns}, s100')
        o.append('s_memtime s[100:101]'); s.ns += 1
        return o
    def stamp_out(s):
        if not s.stamps: return
        p = s.p
        p(f's_mov_b32 s{87 + s.ns}, s100\ns_lshl_b32 s{sT0}, s2, 2\ns_add_u32 s{sT0}, s{sT0}, s{sW}\ns_lshl_b32 s{sT0}, s{sT0}, 6\ns_add_u32 s{sT0}, s{sT0}, {WS_STAMP}\ns_mov_b64 exec, 1')
        p(f's_memrealtime s[100:101]\nv_mov_b32 v1, s34\nbuffer_store_dword v1, off, {srd(S_WS)}, s{sT0} offset:48\nv_mov_b32 v1, s100\nbuffer_store_dword v1, off, {srd(S_WS)}, s{sT0} offset:52')
        if 'dbg' in s.want:
            L = p.label('nodbg')
            p(f's_not_b32 s{sT1}, s34\nv_mov_b32 v1, s{sT1}\nv_mov_b32 v2, s100\nbuffer_atomic_umax v1, off, {srd(S_DBG)}, 0 offset:4\nbuffer_atomic_umax v2, off, {srd(S_DBG)}, 0 offset:8')
            p(f'v_mov_b32 v1, s34\nbuffer_atomic_umax v1, off, {srd(S_DBG)}, 0 offset:12')
            p(f's_cmp_lg_u32 s2, 77\ns_cbranch_scc1 {L}\ns_cmp_lg_u32 s{sW}, 1\ns_cbranch_scc1 {L}')
            for i in range(1, s.ns): p(f's_sub_u32 s{sT1}, s{88+i}, s88\nv_mov_b32 v1, s{sT1}\nbuffer_store_dword v1, off, {srd(S_DBG)}, 0 offset:{12+4*i}', 'untracked')
            p(f'{L}:')
            return
        for i in range(s.ns): p(f'v_mov_b32 v1, s{88+i}\nbuffer_store_dword v1, off, {srd(S_WS)}, s{sT0} offset:{4*i}')
    def poll_issue(s, dst, va, S, n=1, m=False):
        x = f'buffer_load_dword{"x2" if n == 2 else ""} {vr(dst,n)}, v{va}, {srd(S)}, 0 offen sc1'
        return [f's_mov_b64 exec, s[{sM0}:{sM0+1}]\n{x}\ns_mov_b64 exec, -1' if m else x]
    def poll_check(s, dst, va, S, n=1, m=False):
        Ls, Lr, Ll = s.p.label('slow'), s.p.label('ret'), s.p.label('spin')
        chk = (f'v_and_b32 v{dst}, v{dst}, v{dst+1}\n' if n == 2 else '') + f'v_cmp_ne_u32 vcc, 1, v{dst}\n'
        s.slow.append(f'''{Ls}:
        s_mov_b32 s{sSP}, 0x4000
        {Ll}:
        {f's_sleep {s.nap}' if s.nap else ''}
        {s.poll_issue(dst, va, S, n)[0]}
        s_waitcnt vmcnt(0) lgkmcnt(0)
        {chk}s_cbranch_vccz {Lr}
        s_sub_u32 s{sSP}, s{sSP}, 1
        s_cmp_lg_u32 s{sSP}, 0
        s_cbranch_scc1 {Ll}
        s_branch {Lr}''')
        if m: chk = f's_mov_b64 exec, s[{sM0}:{sM0+1}]\n{chk}s_mov_b64 exec, -1\n'
        return [chk + f's_cbranch_vccnz {Ls}\n{Lr}:']
    def flag(s, sreg, one):
        return [f's_mov_b64 exec, 1\nbuffer_store_dword v{one}, off, {srd(S_WS)}, s{sreg} sc1\ns_mov_b64 exec, -1']

sFH, sFA = 78, 79
sM0 = 14
vFW = 253
vONE, vPGO, vPWD, vPUT, vPH, vPA, vF = 238, 239, 240, 241, 242, 243, 244
def flag_setup(p, spare):
    t0 = 192
    p(f'''s_cmp_eq_u32 s{sW}, 0
    s_cselect_b64 s[{sM0}:{sM0+1}], -1, 0
    v_mov_b32 v{vONE}, 1
    v_mov_b32 v{vPGO}, 0
    s_lshl_b32 s{sT0}, s{sW}, 3
    s_add_u32 s{sT0}, s{sT0}, s{sDT}
    s_add_u32 s{sT0}, s{sT0}, 192
    s_lshl_b32 s{sT0}, s{sT0}, 7
    v_and_b32 v{t0}, 3, v{vL}
    v_lshl_add_u32 v{vPWD}, v{t0}, 2, s{sT0}
    v_lshlrev_b32 v{t0}, 3, v{vL}
    v_add_u32 v{vPUT}, {224*128}, v{t0}
    s_lshl_b32 s{sT0}, s{sST}, 2
    s_add_u32 s{sT0}, s{sT0}, s{sW}
    s_lshl_b32 s{sT0}, s{sT0}, 7
    v_min_u32 v{t0}, 6, v{vL}
    v_lshl_add_u32 v{vPH}, v{t0}, 2, s{sT0}
    s_lshr_b32 s{sT0}, s{sST}, 4
    s_lshl_b32 s{sT0}, s{sT0}, 5
    s_lshl_b32 s{sT1}, s{sDT}, 2
    s_add_u32 s{sT0}, s{sT0}, s{sT1}
    s_and_b32 s{sT1}, s{sW}, 1
    s_lshl_b32 s{sT1}, s{sT1}, 1
    s_add_u32 s{sT0}, s{sT0}, s{sT1}
    s_add_u32 s{sT0}, s{sT0}, 128
    s_lshl_b32 s{sT0}, s{sT0}, 7
    v_and_b32 v{t0}, 15, v{vL}
    v_lshl_add_u32 v{vPA}, v{t0}, 2, s{sT0}
    v_bfe_u32 v{t0}, v{vL}, 4, 1
    v_lshl_add_u32 v{vPA}, v{t0}, 7, v{vPA}
    s_lshl_b32 s{sT0}, s{sPI}, 1
    s_lshr_b32 s{sT1}, s{sW}, 1
    s_add_u32 s{sT0}, s{sT0}, s{sT1}
    s_and_b32 s{sT1}, s{sT0}, 15
    s_lshr_b32 s{sT0}, s{sT0}, 4
    s_and_b32 s{sT2}, s{sW}, 1
    s_lshl_b32 s{sT2}, s{sT2}, 5
    s_add_u32 s{sT0}, s{sT0}, s{sT2}
    s_add_u32 s{sT0}, s{sT0}, 128
    s_lshl_b32 s{sT0}, s{sT0}, 5
    s_add_u32 s{sT0}, s{sT0}, s{sT1}
    s_lshl_b32 s{sFA}, s{sT0}, 2''')
    if spare:
        p(f's_lshl_b32 s{sT0}, s{sSI}, 2\ns_add_u32 s{sT0}, s{sT0}, s{sW}\ns_lshl_b32 s{sT0}, s{sT0}, 7\ns_add_u32 s{sFH}, s{sT0}, 0x8000')
    else:
        p(f'''s_lshl_b32 s{sT0}, s{sMI}, 2
        s_add_u32 s{sT0}, s{sT0}, s{sW}
        s_lshl_b32 s{sT0}, s{sT0}, 2
        s_and_b32 s{sT1}, s{sXCD}, 3
        s_add_u32 s{sT0}, s{sT0}, s{sT1}
        s_lshl_b32 s{sT0}, s{sT0}, 5
        s_add_u32 s{sT0}, s{sT0}, s{sDT}
        s_lshl_b32 s{sFH}, s{sT0}, 2''')
def as_list(fn, *a):
    q = Prog(); fn(q, *a); return q.ins

def groups(ins, last):
    o = [[]]
    for I in ins:
        o[-1].append(I)
        if last(I): o.append([])
    return [g for g in o if g]
def flat(l): return [y for x in l for y in (x if isinstance(x, list) else [x])]
class G(list): pass
def k_fused(stamps=False, cfg=None):
    cfg = dict(rot='z', ct=250, omod='', tch=[10, 11, 12], tw=0.5, n0=[5, 17], so='xw', nap=4, up=1, nw=[4, 12, 12, 6], r2=1, hflag=60, hpoll=120, aflag=9, apoll=13, achk=17, f0=0.6, sx=1, pg=[1, 3, 4], cw=[0, 100]) | (cfg or {})
    F = Fused(stamps); p = F.p
    if stamps: p('s_memrealtime s[34:35]')
    p.extend(F.stamp()); prologue(p, cfg['rot'], cfg['ct'], True)
    Lsp, Ltail = p.label('spare'), p.label('tail')
    p(f's_lshl_b32 s{sPI}, s{sXCD}, 5\ns_add_u32 s{sPI}, s{sPI}, s{sJ}')
    p(f's_cmp_ge_u32 s{sJ}, 28\ns_cbranch_scc1 {Lsp}')
    tch = cfg['tch']; F.nap = cfg['nap']
    touch_setup(p)
    par_loads(p); srd_bases(p)
    p.extend(F.stamp('pro'))
    tw = [G(as_list(touch_wd))]
    T = [(cfg['tw'], tw), (tch[0], touch(2)), (tch[1], touch(4)), (tch[2], touch(6))]
    p.extend(touch(0))
    for a, x in T:
        if a is not None and a < 0: p.extend(x)
    g1_setup(p)
    dm = g1_dma(0) + g1_dma(1); n0, n1 = cfg['n0']
    p.extend(dm[:n0])
    p.extend(F.stamp('dma'))
    prologue2(p, False)
    g1_setup2(p); tail_setup(p); flag_setup(p, False); rot2_setup(p, cfg['r2'])
    p.extend(F.stamp('setup'))
    if stamps and 'par' in stamps: p(f'v_mov_b32 v{vPAR+5}, v{vPAR+5}'); p.extend(F.stamp('par'))
    kgen_valu(p, [(cfg['f0'], 0.98, dm[n0:n1])] + [(a, a, [G(x)]) for a, x in T if a is not None and 0 <= a <= 1]); p.extend(F.stamp('kv'))
    kgen_mfma(p, dm[n1:] + [G(x) for a, x in T if a is not None and 1 < a < 10]); p('s_waitcnt lgkmcnt(0)'); p.extend(F.stamp('km'))
    if stamps: p.waitvm('dma0'); p.extend(F.stamp('d0'))
    wl = wd_loads(); nw = cfg['nw']; pg, pw, pu = cfg['pg']
    post = {}; pre = {}
    for t in range(7):
        pre[t] = []
        if t == pg + 1: pre[t] += F.poll_check(vF, vPGO, S_DBG, 1, True)
        if t == pu + 1: pre[t] += F.poll_check(vF, vPUT, S_WS, 2, True)
        post[t] = F.stamp(f's{t}')
        if t == pg: post[t] += F.poll_issue(vF, vPGO, S_DBG, 1, True)
        if t == pw + 1: post[t] += F.poll_check(vFW, vPWD, S_WS) + F.stamp('wf') + as_list(wd_setup)
        if t == pu + 1: post[t] += as_list(u_loads) + as_list(g_load)
        if t == pw: post[t] += F.poll_issue(vFW, vPWD, S_WS)
        if t == pu: post[t] += F.poll_issue(vF, vPUT, S_WS, 2, True)
    extra = {}
    def put(keys, lst):
        for i, k in enumerate(keys): extra.setdefault(k, []).extend(lst[len(lst) * i // len(keys): len(lst) * (i + 1) // len(keys)])
    for a, x in T:
        if a is not None and a >= 10: put([(a - 10, 2)], [G(x)])
    rd, wr = expand()
    put([(6, 0)], zero_fill()); put([(6, 1)], rd); put([(6, 2), (6, 3)], wr); put([(7, cfg['up'])], u_put())
    k = 0
    for t, n in zip((5, 6, 7), nw): put([(t, s) for s in range(4)], wl[k:k + n]); k += n
    g1_main(p, extra, post, 2, pre); p.extend(F.stamp('g1'))
    g1_epilogue(p, wl[k:k + nw[3]]); k += nw[3]
    wrest = wl[k:]
    p(f'{Ltail}:'); p.extend(F.stamp())
    ex = {d: [[] for _ in range(34)] for d in range(4)}
    n0, n1 = cfg['cw']
    for i, x in enumerate(wrest):
        m = n0 + (n1 - n0) * i // len(wrest); ex[m // 34][m % 34].append(x)
    m = cfg['hflag']; ex[m // 34][m % 34][:0] = [Ins('WAITVM hst')] + F.flag(sFH, vONE)
    m = cfg['hpoll']; ex[m // 34][m % 34] += F.poll_issue(vF, vPH, S_WS)
    conv(p, ex); p.extend(F.stamp('cv'))
    h_setup(p)
    p.extend(F.poll_check(vF, vPH, S_WS)); p.extend(F.stamp('hf'))
    conv_out(p, pre=[x for s in range(NB) for x in h_loads(s)])
    p.extend(F.stamp('co'))
    ex = {cfg['aflag']: [Ins('WAITVM ast')] + F.flag(sFA, vONE), cfg['apoll']: F.poll_issue(vF, vPA, S_WS),
          cfg['achk']: F.poll_check(vF, vPA, S_WS) + F.stamp('af') + a_loads()}
    gemm2(p, ex, pre=NB, late=a_use(), mark=lambda: F.stamp('g2'), omod=cfg['omod'])
    p.extend(F.stamp())
    if cfg.get('amp'):
        a, b, mult = cfg['amp']
        p(f'''s_mov_b32 s{87 + F.ns}, s100
        s_sub_u32 s{sT0}, s{88+b}, s{88+a}
        s_mul_i32 s{sT0}, s{sT0}, {mult}
        s_mov_b32 s{sT2}, 0x40000
        L_amp:
        s_memtime s[34:35]
        s_waitcnt lgkmcnt(0)
        s_sub_u32 s{sT1}, s34, s100
        s_sub_u32 s{sT2}, s{sT2}, 1
        s_cmp_eq_u32 s{sT2}, 0
        s_cbranch_scc1 L_ampx
        s_cmp_lt_u32 s{sT1}, s{sT0}
        s_cbranch_scc1 L_amp
        L_ampx:''')
    else: F.stamp_out()
    p('s_endpgm')
    p(f'{Lsp}:')
    def sst(i):
        if stamps and not cfg.get('amp'): p(f's_memtime s[100:101]\ns_waitcnt lgkmcnt(0)\ns_mov_b32 s{88+i}, s100')
        elif stamps: p(f's_mov_b32 s{88+i}, s88')
    if stamps: p('s_mov_b32 s88, s100')
    prologue2(p, True)
    Lk = p.label('noclr'); Lg = p.label('nogo')
    p(f'''s_cmp_lg_u32 s{sSI}, 0
    s_cbranch_scc1 {Lk}
    v_mov_b32 v4, 0
    v_mov_b32 v5, 0
    v_mov_b32 v6, 0
    v_mov_b32 v7, 0
    v_lshlrev_b32 v1, 4, v0''')
    for i in range(8): p(f's_mov_b32 s{sT0}, {4096*i}\nbuffer_store_dwordx4 v[4:7], v1, {srd(S_WS)}, s{sT0} offen sc1', 'untracked')
    p(f'{Lk}:')
    def go(nl):
        p(f's_cmp_lg_u32 s{sSI}, 0\ns_cbranch_scc1 {Lg}')
        p(f's_waitcnt vmcnt({nl})', 'untracked'); p.ins[-1].kind = 'misc'
        p(f's_barrier\ns_cmp_lg_u32 s{sW}, 0\ns_cbranch_scc1 {Lg}\ns_mov_b64 exec, 1')
        p(f'buffer_store_dword v{vONE}, off, {srd(S_DBG)}, 0 sc1', 'untracked')
        p(f's_mov_b64 exec, -1\n{Lg}:')
    def faddr():
        p(f'''s_add_u32 s{sT0}, s{sSI}, 192
        s_lshl_b32 s{sT0}, s{sT0}, 5
        s_add_u32 s{sT0}, s{sT0}, s{sW}
        s_lshl_b32 s11, s{sT0}, 2
        s_add_u32 s{sT1}, s{sW}, 224
        s_lshl_b32 s{sT1}, s{sT1}, 5
        s_add_u32 s{sT1}, s{sT1}, s{sSI}
        s_lshl_b32 s12, s{sT1}, 2''')
    if cfg['so'] == 'wx':
        spare_issue_w(p); par_loads(p); flag_setup(p, True); rot2_setup(p, cfg['r2'])
        xi = groups(as_list(spare_issue_x), lambda I: I.kind == 'vm')
        go(20)
        if cfg['sx'] == 1: spare_wd(p, [G(x) for x in xi])
        else: spare_wd(p); p.extend(flat(xi))
        sst(1)
        p.extend(F.poll_issue(vF, vPGO, S_DBG))
        spare_issue_g(p); tail_setup(p); faddr()
        p.extend(F.poll_check(vF, vPGO, S_DBG))
        p.waitvm('wst'); p.extend(F.flag(11, vONE)); sst(2)
        spare_ut(p); sst(3); spare_g(p)
        p.waitvm('gst'); p.extend(F.flag(12, vONE)); sst(4)
    else:
        spare_issue_x(p); par_loads(p); flag_setup(p, True); rot2_setup(p, cfg['r2'])
        go(22)
        spare_issue_g(p); spare_issue_w(p); tail_setup(p); faddr()
        p.extend(F.poll_issue(vF, vPGO, S_DBG))
        sst(1)
        spare_ut(p); spare_g(p); sst(2)
        spare_wd(p)
        p.extend(F.poll_check(vF, vPGO, S_DBG))
        p.waitvm('gst'); p.extend(F.flag(12, vONE)); sst(3)
        p.waitvm('wst'); p.extend(F.flag(11, vONE)); sst(4)
    p('s_barrier')
    p.extend(F.poll_issue(vF, vPWD, S_WS)); wd_setup(p)
    kgen_valu(p); kgen_mfma(p)
    p.extend(F.poll_check(vF, vPWD, S_WS))
    p.extend(F.poll_issue(vF, vPUT, S_WS, 2, True))
    p.extend(wl[:k])
    p.extend(F.poll_check(vF, vPUT, S_WS, 2, True))
    p('s_waitcnt lgkmcnt(0)\ns_barrier')
    p.extend(zero_fill()); p.extend(rd); p.extend(wr)
    u_loads(p); g_load(p); p.extend(u_put())
    sst(5)
    if stamps: p('s_memtime s[100:101]\ns_waitcnt lgkmcnt(0)')
    p(f's_waitcnt vmcnt(0) lgkmcnt(0)\ns_barrier\ns_branch {Ltail}')
    for x in F.slow: p(x)
    p('L_end:')
    return p
```

```python
import sys
from core import *
KN = 'gated_mix__ssm_conv_s4d__glu_gated_reglu__prompt'
WS_WDT, WS_UT, WS_G, WS_H, WS_AT = 0x100000, 0x300000, 0x500000, 0x600000, 0xD00000
S_X, S_WG, S_WU, S_WS, S_OUT, S_P, S_DBG = 36, 40, 44, 48, 52, 56, 60
sXCD, sJ, sW, sMI, sFI, sST, sDT, sROT, sKX, sKW, sXM, sWM, sSI, sPI = range(64, 78)
sT0, sT1, sT2, sT3, sT4, sT5 = range(80, 86)
sSP = 86
def srd(i): return f's[{i}:{i+3}]'
def vr(a, n=1): return f'v{a}' if n == 1 else f'v[{a}:{a+n-1}]'
def ar(a, n=1): return f'a{a}' if n == 1 else f'a[{a}:{a+n-1}]'
vL = 255
class G(list): pass

ROT = dict(
  a=f's_lshl_b32 s{sT2}, s{sT0}, 1\ns_add_u32 s{sROT}, s{sT2}, s{sDT}',
  z=f's_mov_b32 s{sROT}, 0',
  t=f's_add_u32 s{sROT}, s{sT0}, s{sDT}\ns_mul_i32 s{sT2}, s{sROT}, 86\ns_lshr_b32 s{sT2}, s{sT2}, 8\ns_mul_i32 s{sT2}, s{sT2}, 3\ns_sub_u32 s{sROT}, s{sROT}, s{sT2}\ns_mul_i32 s{sROT}, s{sROT}, 3',
  g=f's_add_u32 s{sROT}, s{sT0}, s{sDT}\ns_lshl_b32 s{sROT}, s{sROT}, 2',
  h=f's_add_u32 s{sROT}, s{sT0}, s{sDT}\ns_lshl_b32 s{sROT}, s{sROT}, 1',
  x=f's_mov_b32 s{sROT}, s{sXCD}',
  b=f's_add_u32 s{sROT}, s{sT0}, s{sDT}',
  c=f's_lshl_b32 s{sT2}, s{sT0}, 1\ns_add_u32 s{sROT}, s{sT2}, s{sDT}\ns_lshr_b32 s{sT2}, s{sXCD}, 2\ns_add_u32 s{sROT}, s{sROT}, s{sT2}',
  d=f's_add_u32 s{sROT}, s{sT0}, s{sDT}\ns_and_b32 s{sROT}, s{sROT}, 1\ns_add_u32 s{sROT}, s{sROT}, s{sXCD}',
  e=f's_add_u32 s{sROT}, s{sT0}, s{sDT}\ns_and_b32 s{sROT}, s{sROT}, 3\ns_add_u32 s{sROT}, s{sROT}, s{sXCD}',
  f=f's_add_u32 s{sROT}, s{sT0}, s{sDT}\ns_lshr_b32 s{sT2}, s{sXCD}, 2\ns_lshl_b32 s{sT2}, s{sT2}, 2\ns_add_u32 s{sROT}, s{sROT}, s{sT2}',
)
def mk_srd(p, d, ptr, size):
    p(f's_mov_b32 s{d}, s{ptr}\ns_mov_b32 s{d+1}, s{ptr+1}\ns_mov_b32 s{d+2}, {hex(size)}\ns_mov_b32 s{d+3}, 0x00020000')

def prologue(p, rot='z', ctouch=0, defer=False):
    L = p.label('go')
    p(f'''s_cmp_lt_u32 s2, 256
    s_cbranch_scc1 {L}
    s_endpgm
    {L}:
    s_load_dwordx16 s[4:19], s[0:1], 0
    s_load_dwordx8 s[20:27], s[0:1], 64
    s_load_dwordx4 s[28:31], s[0:1], 96
    s_load_dwordx2 s[32:33], s[0:1], 112
    s_lshr_b32 s{sJ}, s2, 3''')
    if ctouch:
        p(f'''s_getpc_b64 s[{sT2}:{sT3}]
        L_pc:
        v_and_b32 v2, 7, v0
        v_lshl_add_u32 v2, s{sJ}, 3, v2
        v_min_u32 v2, (L_end-L_pc-4)/128, v2
        v_lshlrev_b32 v2, 7, v2
        v_mov_b32 v3, s{sT3}
        v_add_co_u32 v2, vcc, s{sT2}, v2
        v_addc_co_u32 v3, vcc, 0, v3, vcc''')
        p('global_load_dword v254, v[2:3], off', 'untracked')
    p(f'''v_lshrrev_b32 v1, 6, v0
    v_and_b32 v{vL}, 63, v0
    v_readfirstlane_b32 s{sW}, v1
    s_and_b32 s{sXCD}, s2, 7
    s_and_b32 s{sT0}, s{sJ}, 3
    s_lshr_b32 s{sDT}, s{sJ}, 2
    s_lshr_b32 s{sT1}, s{sXCD}, 2
    s_lshl_b32 s{sT1}, s{sT1}, 2
    s_add_u32 s{sMI}, s{sT1}, s{sT0}
    s_and_b32 s{sT1}, s{sXCD}, 3
    s_mul_i32 s{sT1}, s{sT1}, 7
    s_add_u32 s{sFI}, s{sT1}, s{sDT}
    s_lshl_b32 s{sT1}, s{sXCD}, 2
    s_add_u32 s{sST}, s{sT1}, s{sT0}
    {ROT[rot]}
    s_and_b32 s{sROT}, s{sROT}, 7''')
    for d, n in ((S_X, 2048 * 1024), (S_WG, 512 * 3584), (S_WU, 512 * 3584)): p(f's_mov_b32 s{d+2}, {hex(n)}\ns_mov_b32 s{d+3}, 0x00020000')
    if not defer: prologue2(p)
def srd_bases(p):
    for d, ptr in ((S_X, 4), (S_WG, 20), (S_WU, 22)): p(f's_mov_b64 s[{d}:{d+1}], s[{ptr}:{ptr+1}]')
def prologue2(p, bases=True):
    if bases: srd_bases(p)
    p(f's_mov_b32 s{sSI}, s{sST}')
    mk_srd(p, S_WS, 32, 0x10000000); mk_srd(p, S_OUT, 28, 2048 * 1024); mk_srd(p, S_DBG, 30, 256)

G1_B, G1_A, G1_XR, G1_WR, G1_DX, G1_DW = 128, 144, 176, 180, 182, 190
def acc1(st, mat, ft): return 16 * (4 * st + 2 * mat + ft)
def g1_setup(p):
    t0, t1, t2, t3 = 192, 193, 194, 195
    p(f'''v_lshrrev_b32 v{t0}, 3, v{vL}
    v_and_b32 v{t1}, 7, v{vL}
    v_lshrrev_b32 v{t2}, 1, v{t0}
    v_xor_b32 v{t3}, v{t1}, v{t2}
    v_lshlrev_b32 v{t3}, 4, v{t3}
    v_lshl_add_u32 v{t3}, v{t0}, 10, v{t3}
    s_lshl_b32 s{sT0}, s{sMI}, 2
    s_add_u32 s{sT0}, s{sT0}, s{sW}
    s_lshl_b32 s{sT0}, s{sT0}, 16
    v_add_u32 v{G1_DX}, s{sT0}, v{t3}
    v_xor_b32 v{G1_DX+1}, 64, v{G1_DX}''')
    for i in range(7, 0, -1):
        p(f'v_add_u32 v{G1_DX+i}, {8192*i - 1024*(i&3)}, v{G1_DX+(i&1)}')
    p(f'''v_and_b32 v{t2}, 1, v{t2}
    v_lshlrev_b32 v{t2}, 2, v{t2}
    v_xor_b32 v{t2}, v{t1}, v{t2}
    v_lshlrev_b32 v{t2}, 4, v{t2}
    v_mul_u32_u24 v{t0}, 3584, v{t0}
    s_mul_i32 s{sT0}, s{sW}, {16*3584}
    s_lshl_b32 s{sT1}, s{sFI}, 7
    s_add_u32 s{sT0}, s{sT0}, s{sT1}
    v_add3_u32 v{G1_DW}, v{t0}, v{t2}, s{sT0}
    v_add_u32 v{G1_DW+1}, {8*3584-1024}, v{G1_DW}
    s_lshl_b32 s{sXM}, s{sW}, 13
    s_lshl_b32 s{sWM}, s{sW}, 11
    s_add_u32 s{sWM}, s{sWM}, 98304''')
MOD = dict(x='', w='', p='', d='', sx='', hs='sc1')
def g1_dma(t):
    sl = t % 3; o = []
    o.append(f's_add_u32 s{sT0}, s{sROT}, {t}\ns_and_b32 s{sT0}, s{sT0}, 7\ns_lshl_b32 s{sKX}, s{sT0}, 7\ns_mul_i32 s{sKW}, s{sT0}, {64*3584}')
    for mat, S in ((0, S_WG), (1, S_WU)):
        o.append(f's_add_u32 m0, s{sWM}, {sl*16384 + mat*8192}')
        for i in range(2): o.append(f'buffer_load_dwordx4 v{G1_DW+i}, {srd(S)}, s{sKW} offen offset:{1024*i} {MOD["w"]} lds')
    for i in range(8):
        if i % 4 == 0: o.append(f's_add_u32 m0, s{sXM}, {sl*32768 + 1024*i}')
        o.append(f'buffer_load_dwordx4 v{G1_DX+i}, {srd(S_X)}, s{sKX} offen offset:{1024*(i&3)} {MOD["x"]} lds')
    o[-1] = (o[-1], f'dma{t}')
    return o
vTX, vTW, vTD = 248, 249, 250
def touch_setup(p):
    t0, t1 = 192, 193
    p(f'''v_lshrrev_b32 v{t0}, 1, v{vL}
    v_min_u32 v{t0}, 9, v{t0}
    s_mul_i32 s{sT1}, s{sDT}, 10
    v_add_u32 v{t0}, s{sT1}, v{t0}
    v_min_u32 v{t0}, 63, v{t0}
    v_and_b32 v{t1}, 1, v{vL}
    v_lshlrev_b32 v{t1}, 7, v{t1}
    v_lshl_add_u32 v{t0}, v{t0}, 10, v{t1}
    s_lshl_b32 s{sT0}, s{sMI}, 2
    s_add_u32 s{sT0}, s{sT0}, s{sW}
    s_lshl_b32 s{sT0}, s{sT0}, 16
    v_add_u32 v{vTX}, s{sT0}, v{t0}
    v_and_b32 v{t0}, 3, v{vL}
    v_bfe_u32 v{t1}, v{vL}, 2, 1
    v_lshl_add_u32 v{t0}, v{t1}, 6, v{t0}
    s_and_b32 s{sT0}, s{sJ}, 3
    s_lshl_b32 s{sT0}, s{sT0}, 2
    s_add_u32 s{sT0}, s{sT0}, s{sW}
    s_lshl_b32 s{sT0}, s{sT0}, 2
    v_add_u32 v{t0}, s{sT0}, v{t0}
    v_mul_u32_u24 v{t0}, 3584, v{t0}
    s_lshl_b32 s{sT1}, s{sFI}, 7
    v_add_u32 v{vTW}, s{sT1}, v{t0}''')
def touch(c):
    return [f's_add_u32 s{sT4}, s{sROT}, {c}\ns_and_b32 s{sT4}, s{sT4}, 7\ns_lshl_b32 s{sT5}, s{sT4}, 7\ns_mul_i32 s{sT4}, s{sT4}, {64*3584}',
            f's_mov_b64 exec, 0xff\nbuffer_load_dword v{vTD}, v{vTW}, {srd(S_WG)}, s{sT4} offen {MOD["w"]}\nbuffer_load_dword v{vTD+1}, v{vTW}, {srd(S_WU)}, s{sT4} offen {MOD["w"]}\ns_mov_b64 exec, 0xfffff\nbuffer_load_dword v{vTD+2}, v{vTX}, {srd(S_X)}, s{sT5} offen {MOD["x"]}\ns_mov_b64 exec, -1']
def touch_wd(p):
    t0 = 253
    p(f'''s_mul_i32 s{sT0}, s{sJ}, 37
    s_lshr_b32 s{sT0}, s{sT0}, 8
    s_mul_i32 s{sT1}, s{sT0}, 7
    s_sub_u32 s{sT1}, s{sJ}, s{sT1}
    s_lshl_b32 s{sT1}, s{sT1}, 2
    s_add_u32 s{sT1}, s{sT1}, s{sW}
    s_lshl_b32 s{sT1}, s{sT1}, 4
    s_lshl_b32 s{sT2}, s{sXCD}, 2
    s_add_u32 s{sT0}, s{sT0}, s{sT2}
    s_lshr_b32 s{sT2}, s{sT0}, 3
    s_mul_i32 s{sT2}, s{sT2}, 448
    s_add_u32 s{sT1}, s{sT1}, s{sT2}
    s_lshl_b32 s{sT1}, s{sT1}, 3
    s_and_b32 s{sT0}, s{sT0}, 7
    s_add_u32 s{sT0}, s{sT0}, s{sT1}
    s_lshl_b32 s{sT0}, s{sT0}, 7
    v_and_b32 v{t0}, 15, v{vL}
    v_lshl_add_u32 v{t0}, v{t0}, 10, s{sT0}
    s_mov_b64 exec, 0xffff
    global_load_dword v{vTD}, v{t0}, s[24:25] {MOD["d"]}
    s_mov_b64 exec, -1''')
def g1_setup2(p):
    t0, t1, t2, t3 = 192, 193, 194, 195
    p(f'''v_and_b32 v{t0}, 31, v{vL}
    v_lshrrev_b32 v{t1}, 5, v{vL}
    v_bfe_u32 v{t2}, v{vL}, 1, 3
    v_xor_b32 v{t2}, v{t2}, v{t1}
    v_lshlrev_b32 v{t2}, 4, v{t2}
    v_lshl_add_u32 v{t2}, v{t0}, 7, v{t2}
    v_add_u32 v{G1_XR}, s{sXM}, v{t2}''')
    for s in range(1, 4): p(f'v_xor_b32 v{G1_XR+s}, {32*s}, v{G1_XR}')
    p(f'''v_bfe_u32 v{t0}, v{vL}, 2, 2
    v_lshl_add_u32 v{t0}, v{t1}, 3, v{t0}
    v_bfe_u32 v{t1}, v{vL}, 4, 1
    v_bfe_u32 v{t2}, v{vL}, 1, 1
    v_lshl_add_u32 v{t1}, v{t1}, 1, v{t2}
    v_bfe_u32 v{t2}, v{vL}, 3, 1
    v_lshl_add_u32 v{t1}, v{t2}, 2, v{t1}
    v_and_b32 v{t2}, 1, v{vL}
    v_lshlrev_b32 v{t2}, 3, v{t2}
    v_lshl_add_u32 v{t2}, v{t1}, 4, v{t2}
    v_lshl_add_u32 v{t2}, v{t0}, 7, v{t2}
    v_add_u32 v{G1_WR}, 98304, v{t2}
    v_xor_b32 v{G1_WR+1}, 64, v{G1_WR}''')
def g1_reads(t, s):
    b = (4 * t + s) & 1; sl = t % 3; o = []
    B = lambda st: f'ds_read_b128 {vr(G1_B + 8*b + 4*st, 4)}, v{G1_XR+s} offset:{(sl&1)*32768 + st*4096}'
    tog = f'v_add_u32 v{G1_XR+s}, 0x10000, v{G1_XR+s}\n' if sl == 2 else f'v_subrev_u32 v{G1_XR+s}, 0x10000, v{G1_XR+s}\n' if sl == 0 and t else ''
    o.append(tog + B(0))
    for mat in range(2):
        for ft in range(2):
            r = G1_A + 16 * b + 4 * (2 * mat + ft)
            for h in range(2):
                o.append(f'ds_read_b64_tr_b16 {vr(r+2*h, 2)}, v{G1_WR+ft} offset:{sl*16384 + mat*8192 + s*2048 + h*512}')
    o.append(B(1))
    return o
def g1_mfmas(t, s):
    b = (4 * t + s) & 1; o = []
    for st in range(2):
        for mat in range(2):
            for ft in range(2):
                c = acc1(st, mat, ft)
                src = '0' if (t == 0 and s == 0) else vr(c, 16)
                o.append(f'v_mfma_f32_32x32x16_bf16 {vr(c,16)}, {vr(G1_A + 16*b + 4*(2*mat+ft), 4)}, {vr(G1_B + 8*b + 4*st, 4)}, {src}')
    return o
def g1_main(p, extra=None, post=None, ini=3, pre=None, fast=0):
    extra = extra or {}; post = post or {}; pre = pre or {}
    p.waitvm('dma0'); p('s_barrier')
    p.extend(g1_reads(0, 0))
    pend = [x for t in range(ini, 3) for x in g1_dma(t)]
    for t in range(8):
        for s in range(4):
            mf = g1_mfmas(t, s)
            slots = [[] for _ in range(8)]
            if s < 3:
                rd = g1_reads(t, s + 1)
                for i, x in enumerate(rd): slots[i // 2].append(x)
            elif t < 7:
                slots[1] += pre.get(t, []) + [Ins('s_waitcnt lgkmcnt(0)'), Ins(f'WAITVM dma{t+1}'), 's_barrier']
                rd = g1_reads(t + 1, 0)
                for i, x in enumerate(rd): slots[1 + i // 2].append(x)
                slots[1] += post.get(t, [])
                if t + 3 < 8: pend = g1_dma(t + 3)
            else:
                slots[1] += pre.get(t, []) + [Ins('s_waitcnt lgkmcnt(0)'), 's_barrier'] + post.get(t, [])
            lo = 6 if s == 3 else 5 if (s < 2 and (t or ini > 1)) else 0
            if s == 3: n = min(len(pend), 4)
            elif s < 2: n = min(len(pend), 7) if (t or ini > 1) else 17
            else: n = len(pend)
            if t < fast and s < 2: lo = 0; n = min(len(pend), 11)
            for i in range(n): slots[lo + i * (8 - lo) // max(n, 1)].append(pend.pop(0))
            ex = extra.get((t, s), [])
            for i, x in enumerate(ex): slots[i * 8 // len(ex)].append(x)
            for m in range(8):
                p(mf[m]); p.extend(slots[m])
    assert not pend
def g1_epilogue(p, fill=(), hook=None):
    fill = list(fill); nf = len(fill)
    H, va = 128, 192
    p(f'''s_lshl_b32 s{sT0}, s{sMI}, 2
    s_add_u32 s{sT0}, s{sT0}, s{sW}
    s_lshl_b32 s{sT0}, s{sT0}, 10
    s_lshl_b32 s{sT1}, s{sFI}, 18
    s_add_u32 s{sT0}, s{sT0}, s{sT1}
    s_add_u32 s{sT0}, s{sT0}, {WS_H}
    v_lshlrev_b32 v{va}, 4, v{vL}''')
    for ft in range(2):
        for q in range(4):
            R = H + 4 * (4 * ft + q)
            for st in range(2):
                g = acc1(st, 0, ft) + 4 * q; u = acc1(st, 1, ft) + 4 * q
                for e in range(4): p(f'v_max_f32 v{g+e}, 0, v{g+e}')
                for e in (0, 2): p(f'v_pk_mul_f32 {vr(g+e,2)}, {vr(g+e,2)}, {vr(u+e,2)}')
                for e in (0, 2): p(f'v_cvt_pk_bf16_f32 v{R + 2*st + e//2}, v{g+e}, v{g+e+1}')
            p(f'v_permlane32_swap_b32 v{R}, v{R+2}\nv_permlane32_swap_b32 v{R+1}, v{R+3}')
            p(f'buffer_store_dwordx4 {vr(R,4)}, v{va}, {srd(S_WS)}, s{sT0} offen {MOD["hs"]}', 'hst')
            if (ft, q) != (1, 3): p(f's_add_u32 s{sT0}, s{sT0}, 32768')
            i = 4 * ft + q
            if i < 7: p.extend(fill[nf * i // 7: nf * (i + 1) // 7])
            if hook: p.extend(hook.get(i, []))

def k_gemm1():
    p = Prog(); prologue(p)
    L = p.label('main')
    p(f's_cmp_lt_u32 s{sJ}, 28\ns_cbranch_scc1 {L}\ns_endpgm\n{L}:')
    g1_setup(p)
    for t in range(3): p.extend(g1_dma(t))
    g1_setup2(p)
    g1_main(p); g1_epilogue(p)
    p('s_endpgm')
    return p

SP_X = 57344
SP_W = 0
def spare_issue_w(p):
    t0, t1, t2, vw = 140, 141, 142, 143
    sT0, sT1 = sT4, sT5
    mk_srd(p, S_P, 24, 1792 * 1024)
    p(f'''s_lshr_b32 s{sT0}, s{sSI}, 3
    s_lshl_b32 s{sT0}, s{sT0}, 2
    s_add_u32 s{sT0}, s{sT0}, s{sW}
    s_mul_i32 s{sT0}, s{sT0}, {112*1024}
    s_and_b32 s{sT1}, s{sSI}, 7
    s_lshl_b32 s{sT1}, s{sT1}, 7
    s_add_u32 s{sT0}, s{sT0}, s{sT1}
    v_lshrrev_b32 v{t0}, 3, v{vL}
    v_and_b32 v{t1}, 7, v{vL}
    v_bfe_u32 v{t2}, v{vL}, 4, 1
    v_lshlrev_b32 v{t2}, 2, v{t2}
    v_xor_b32 v{t2}, v{t1}, v{t2}
    v_lshlrev_b32 v{t2}, 4, v{t2}
    v_lshl_add_u32 v{vw}, v{t0}, 10, v{t2}
    s_mul_i32 s{sWM}, s{sW}, 14336
    s_add_u32 s{sWM}, s{sWM}, {SP_W}''')
    for i in range(14):
        p(f's_add_u32 m0, s{sWM}, {1024*i}')
        p(f'buffer_load_dwordx4 v{vw}, {srd(S_P)}, s{sT0} offen {MOD["d"]} lds', f'wdma{i//2}')
        if i < 13: p(f's_add_u32 s{sT0}, s{sT0}, 8192')
def spare_issue_x(p):
    t0, t1, t2, t3, vw, vx = 1, 2, 3, 4, 8, 10
    p(f'''s_lshl_b32 s{sT1}, s{sW}, 2
    s_and_b32 s{sT1}, s{sT1}, 7
    v_xor_b32 v{t0}, s{sT1}, v{vL}
    v_lshlrev_b32 v{vx}, 4, v{t0}
    v_xor_b32 v{vx+1}, 16, v{vx}
    v_xor_b32 v{vx+2}, 32, v{vx}
    v_xor_b32 v{vx+3}, 48, v{vx}
    s_lshl_b32 s{sT0}, s{sSI}, 2
    s_add_u32 s{sT0}, s{sT0}, s{sW}
    s_lshl_b32 s{sKX}, s{sT0}, 14
    s_mul_i32 s{sXM}, s{sW}, {16*1152}''')
    for i in range(16):
        p(f's_add_u32 m0, s{sXM}, {SP_X + 1152*i}')
        p(f'buffer_load_dwordx4 v{vx + 2*(i>>3) + ((i>>1)&1)}, {srd(S_X)}, s{sKX} offen {MOD["sx"]} lds', 'xdma')
        if i < 15: p(f's_add_u32 s{sKX}, s{sKX}, 1024')
SP_G = 131072
def spare_issue_g(p):
    mk_srd(p, S_WG, 26, 1024)
    p(f's_lshl_b32 s{sT3}, s{sW}, 10\ns_add_u32 m0, s{sT3}, {SP_G}\nv_lshlrev_b32 v5, 4, v{vL}')
    p(f'buffer_load_dwordx4 v5, {srd(S_WG)}, 0 offen lds', 'gdma')
def spare_wd(p, fill=()):
    t0, t1, t2, ra, va = 1, 2, 3, 6, 14
    p(f'''v_lshrrev_b32 v{t1}, 5, v{vL}
    v_bfe_u32 v{t0}, v{vL}, 2, 2
    v_lshl_add_u32 v{t0}, v{t1}, 3, v{t0}
    v_bfe_u32 v{t1}, v{vL}, 4, 1
    v_bfe_u32 v{t2}, v{vL}, 1, 1
    v_lshl_add_u32 v{t1}, v{t1}, 1, v{t2}
    v_bfe_u32 v{t2}, v{vL}, 3, 1
    v_lshl_add_u32 v{t1}, v{t2}, 2, v{t1}
    v_and_b32 v{t2}, 1, v{vL}
    v_lshlrev_b32 v{t2}, 3, v{t2}
    v_lshl_add_u32 v{t2}, v{t1}, 4, v{t2}
    v_lshl_add_u32 v{t2}, v{t0}, 7, v{t2}
    v_add_u32 v{ra}, s{sWM}, v{t2}
    v_xor_b32 v{ra+1}, 64, v{ra}
    v_lshlrev_b32 v{va}, 4, v{vL}
    s_and_b32 s{sT0}, s{sSI}, 7
    s_lshl_b32 s{sT0}, s{sT0}, 2
    s_lshr_b32 s{sT1}, s{sSI}, 3
    s_add_u32 s{sT0}, s{sT0}, s{sT1}
    s_lshl_b32 s{sT0}, s{sT0}, 2
    s_add_u32 s{sT0}, s{sT0}, s{sW}
    s_mul_i32 s{sT0}, s{sT0}, 14336
    s_add_u32 s{sT5}, s{sT0}, {WS_WDT}''')
    def st(i):
        p(f'buffer_store_dwordx4 {vr(16+4*i,4)}, v{va}, {srd(S_WS)}, s{sT5} offen offset:{1024*(i&3)} sc1', 'wst')
        if i & 3 == 3: p(f's_add_u32 s{sT5}, s{sT5}, 4096')
    fill = list(fill); nf = len(fill)
    for s in range(8):
        if s < 7:
            p.waitvm(f'wdma{s}')
            for d in range(2):
                r = 16 + 4 * (2 * s + d)
                for h in range(2): p(f'ds_read_b64_tr_b16 {vr(r+2*h,2)}, v{ra+d} offset:{s*2048 + h*512}')
        if s: st(2 * s - 2); st(2 * s - 1)
        p.extend(fill[nf * s // 8: nf * (s + 1) // 8])
def spare_ut(p, mid=(), fill=()):
    t0, t1, t2, t3, ra, va = 1, 2, 3, 4, 72, 14
    p(f'''v_and_b32 v{t0}, 3, v{vL}
    v_lshrrev_b32 v{t1}, 5, v{vL}
    v_lshl_add_u32 v{t1}, v{t1}, 2, v{t0}
    v_bfe_u32 v{t2}, v{vL}, 2, 2
    v_lshl_add_u32 v{t1}, v{t1}, 3, v{t2}
    v_mul_u32_u24 v{t1}, 1152, v{t1}
    v_bfe_u32 v{t2}, v{vL}, 3, 1
    v_lshl_add_u32 v{t0}, v{t0}, 1, v{t2}
    v_lshl_add_u32 v{t1}, v{t0}, 4, v{t1}
    v_bfe_u32 v{t2}, v{vL}, 4, 1
    v_lshl_add_u32 v{t1}, v{t2}, 3, v{t1}
    s_lshl_b32 s{sT0}, s{sW}, 8
    s_add_u32 s{sT0}, s{sT0}, {SP_X}
    v_add_u32 v{ra}, s{sT0}, v{t1}''')
    for k in range(1, 8): p(f'v_xor_b32 v{ra+k}, {16*k}, v{ra}')
    p(f'''v_and_b32 v{t0}, 15, v{vL}
    v_lshlrev_b32 v{t0}, 4, v{t0}
    v_lshrrev_b32 v{t1}, 5, v{vL}
    v_lshl_add_u32 v{t0}, v{t1}, 8, v{t0}
    v_lshl_add_u32 v{va}, v{t2}, 14, v{t0}
    s_lshl_b32 s{sT0}, s{sW}, 19
    s_lshl_b32 s{sT1}, s{sSI}, 9
    s_add_u32 s{sT0}, s{sT0}, s{sT1}
    s_add_u32 s{sT5}, s{sT0}, {WS_UT}''')
    p.waitvm('xdma'); p('s_barrier')
    for k in range(16):
        r = 16 + 4 * (k % 8) if k < 8 else 80 + 4 * (k % 8)
        for h in range(2): p(f'ds_read_b64_tr_b16 {vr(r+2*h,2)}, v{ra+(k&7)} offset:{(k>>3)*128 + h*4608}')
    p.extend(mid); nf = len(fill)
    for k in range(16):
        r = 16 + 4 * (k % 8) if k < 8 else 80 + 4 * (k % 8)
        p(f'buffer_store_dwordx4 {vr(r,4)}, v{va}, {srd(S_WS)}, s{sT5} offen sc1', 'ust')
        if k < 15: p(f's_add_u32 s{sT5}, s{sT5}, 32768')
        p.extend(fill[nf * k // 16: nf * (k + 1) // 16])
def spare_g(p):
    t0, t1, t2, ra, ac, X, W = 1, 2, 3, 8, 10, 112, 176
    p(f'''s_lshl_b32 s{sT0}, s{sW}, 4
    v_lshrrev_b32 v{t0}, 2, v{vL}
    v_add_u32 v{t0}, s{sT0}, v{t0}
    v_bfe_u32 v{t1}, v{t0}, 3, 2
    v_bfe_u32 v{t2}, v{t0}, 1, 1
    v_lshl_add_u32 v{t1}, v{t1}, 1, v{t2}
    v_and_b32 v{t2}, 3, v{vL}
    v_xor_b32 v{t1}, v{t1}, v{t2}
    v_mul_u32_u24 v{ra}, 1152, v{t0}
    v_lshl_add_u32 v{ra}, v{t1}, 4, v{ra}
    v_add_u32 v{ra}, {SP_X}, v{ra}
    v_xor_b32 v{ra+1}, 64, v{ra}''')
    p(f's_lshl_b32 s{sT3}, s{sW}, 10\ns_add_u32 s{sT3}, s{sT3}, {SP_G}\nv_lshl_add_u32 v{t2}, v{t2}, 4, s{sT3}')
    for e in range(4): p(f'v_mov_b32 v{ac+e}, 0')
    for i in range(16): p(f'ds_read_b128 {vr(X+4*i,4)}, v{ra+(i&1)} offset:{(i>>1)*128}')
    for i in range(20):
        if i < 16: p(f'ds_read_b128 {vr(W+4*(i&3),4)}, v{t2} offset:{64*i}') if i < 4 else None
        if i >= 4:
            for e in range(4): p(f'v_dot2c_f32_bf16 v{ac+e}, v{X+4*(i-4)+e}, v{W+4*(i&3)+e}')
            if i < 16: p(f'ds_read_b128 {vr(W+4*(i&3),4)}, v{t2} offset:{64*i}')
    p(f'''v_add_f32 v{ac}, v{ac}, v{ac+1}
    v_add_f32 v{ac+2}, v{ac+2}, v{ac+3}
    v_add_f32 v{ac}, v{ac}, v{ac+2}
    v_add_f32_dpp v{ac+1}, v{ac}, v{ac} quad_perm:[1,0,3,2] row_mask:0xf bank_mask:0xf
    v_add_f32_dpp v{ac}, v{ac+1}, v{ac+1} quad_perm:[2,3,0,1] row_mask:0xf bank_mask:0xf
    v_cvt_pk_bf16_f32 v{ac}, v{ac}, v{ac}
    v_and_b32 v{ac}, 0xffff0000, v{ac}
    v_mul_f32 v{ac}, 0xbfb8aa3b, v{ac}
    v_exp_f32 v{ac}, v{ac}
    v_add_f32 v{ac}, 1.0, v{ac}
    v_rcp_f32 v{ac}, v{ac}
    v_cvt_pk_bf16_f32 v{ac}, v{ac}, v{ac}
    v_and_b32 v{ac}, 0xffff0000, v{ac}
    s_lshl_b32 s{sT0}, s{sSI}, 8
    s_add_u32 s{sT0}, s{sT0}, {WS_G}
    v_lshlrev_b32 v{t0}, 2, v{t0}''')
    p(f'buffer_store_dword v{ac}, v{t0}, {srd(S_WS)}, s{sT0} offen sc1', 'gst')

def k_spare():
    p = Prog(); prologue(p)
    L = p.label('main')
    p(f's_cmp_ge_u32 s{sJ}, 28\ns_cbranch_scc1 {L}\ns_endpgm\n{L}:')
    spare_issue(p); spare_wd(p); spare_ut(p); spare_g(p)
    p('s_endpgm')
    return p

KT, KTS, KR = 65536, 65536, 528
TL, TLS = 159056, 2064
IMG, IMS = 131072, 8320
UIM, UIS = 147712, 4672
RED = 0
AS = 32768
P2 = 49152
vPAR = 196
vGA = 202
def vE(e): return vGA + 16 if e < 0 else vGA + 8 + (15 - e) // 2 if e & 1 else vGA + (14 - e) // 2
vTA = 219
vZA = 222
vDM = 223
def par_loads(p):
    t0, t1 = 192, 193
    p(f'''s_lshl_b32 s{sT0}, s{sPI}, 2
    s_add_u32 s{sT0}, s{sT0}, s{sW}
    s_lshl_b32 s{sT1}, s{sT0}, 7
    v_lshl_add_u32 v{t0}, v{vL}, 1, s{sT1}
    s_lshr_b32 s{sT0}, s{sT0}, 1
    s_lshl_b32 s{sT0}, s{sT0}, 1
    v_mov_b32 v{t1}, s{sT0}''')
    for i in range(4): p(f'global_load_short_d16_hi v{vPAR+i}, v{t0}, s[{6+2*i}:{7+2*i}] {MOD["p"]}')
    for i in range(2): p(f'global_load_short_d16_hi v{vPAR+4+i}, v{t1}, s[{14+2*i}:{15+2*i}]')
def par_zero(p):
    for i in range(6): p(f'v_mov_b32 v{vPAR+i}, 0')
def rne_off(s, e):
    q, r = divmod(e, 1 << s); h = (1 << s) // 2
    if s and (r > h or (r == h and q & 1)): q += 1
    return q
def tail_setup(p):
    t0, t1, t2, t3, t4 = 192, 193, 194, 195, 234
    p(f'''s_lshr_b32 s{sT0}, s{sW}, 1
    s_and_b32 s{sT1}, s{sW}, 1
    s_mul_i32 s{sT2}, s{sT0}, {TLS}
    s_add_u32 s{sT2}, s{sT2}, {TL}
    s_lshl_b32 s{sT3}, s{sT1}, 6
    s_sub_u32 s{sT3}, 127, s{sT3}
    v_sub_u32 v{t0}, s{sT3}, v{vL}
    v_lshlrev_b32 v{t1}, 4, v{t0}''')
    def idx(dst, src):
        p(f'''v_cvt_f32_u32 v{t3}, v{src}
        v_cvt_pk_bf16_f32 v{t3}, v{t3}, v{t3}
        v_and_b32 v{t3}, 0xffff, v{t3}
        v_subrev_u32 v{t3}, 17024, v{t3}
        v_min_i32 v{t4}, 128, v{src}
        v_max_i32 v{t3}, v{t3}, v{t4}
        v_lshl_add_u32 v{dst}, v{t3}, 1, s{sT2}''')
    idx(vE(0), t1)
    p(f'v_subrev_u32 v{t2}, 1, v{t1}\nv_max_i32 v{t2}, 0, v{t2}')
    idx(vE(-1), t2)
    p(f'''s_add_u32 s{sT3}, s{sT2}, 2048
    v_mov_b32 v{t2}, s{sT3}
    v_cmp_eq_u32 vcc, 0, v{t0}
    v_cndmask_b32 v{vE(-1)}, v{vE(-1)}, v{t2}, vcc
    v_ffbh_u32 v{t2}, v{t0}
    v_min_u32 v{t2}, 28, v{t2}
    v_sub_u32 v{t2}, 28, v{t2}
    v_lshlrev_b32 v{t2}, 3, v{t2}''')
    for e in range(1, 16):
        k = sum((2 * rne_off(s, e)) << (8 * s) for s in range(4))
        p(f's_mov_b32 s{sT3}, {hex(k)}\nv_bfe_u32 v{t3}, s{sT3}, v{t2}, 8\nv_add_u32 v{vE(e)}, v{vE(0)}, v{t3}')
    p(f'''v_and_b32 v{t0}, 15, v{vL}
    s_lshl_b32 s{sT3}, s{sT1}, 4
    v_add_u32 v{t0}, s{sT3}, v{t0}
    v_lshrrev_b32 v{t1}, 4, v{vL}
    v_lshlrev_b32 v{t2}, 3, v{t1}
    v_lshl_add_u32 v{t2}, v{t0}, 4, v{t2}
    v_lshlrev_b32 v{t3}, 3, v{t0}
    v_add_u32 v{t3}, 512, v{t3}
    v_cmp_eq_u32 vcc, 2, v{t1}
    v_cndmask_b32 v{t2}, v{t2}, v{t3}, vcc
    v_lshlrev_b32 v{t3}, 2, v{t0}
    v_add_u32 v{t3}, 768, v{t3}
    v_mov_b32 v{t4}, 4
    v_mov_b32 v{vTA+1}, 128
    v_cmp_eq_u32 vcc, 3, v{t1}
    v_cndmask_b32 v{t2}, v{t2}, v{t3}, vcc
    v_cndmask_b32 v{t4}, v{t4}, v{vTA+1}, vcc
    v_add_u32 v{vTA}, s{sT2}, v{t2}
    v_add_u32 v{vTA+1}, v{vTA}, v{t4}
    v_lshlrev_b32 v{t2}, 8, v{t1}
    v_lshl_add_u32 v{t2}, v{t0}, 1, v{t2}
    v_add_u32 v{vTA+2}, s{sT2}, v{t2}
    v_or_b32 v{t2}, v{t0}, v{t1}
    v_mov_b32 v{t3}, 0
    v_cmp_eq_u32 vcc, 0, v{t2}
    v_cndmask_b32 v{vDM}, v{t3}, 1.0, vcc''')
    p(f'''v_lshrrev_b32 v{t0}, 5, v{vL}
    v_mul_u32_u24 v{t0}, {UIS}, v{t0}
    v_and_b32 v{t1}, 31, v{vL}
    v_lshl_add_u32 v{t0}, v{t1}, 4, v{t0}
    v_add_u32 v{t0}, {UIM}, v{t0}
    v_bfe_u32 v{t1}, v{vL}, 1, 2
    v_mul_u32_u24 v{t1}, 4160, v{t1}
    v_and_b32 v{t2}, 1, v{vL}
    v_lshl_add_u32 v{t1}, v{t2}, 4, v{t1}
    v_add_u32 v{t1}, {IMG + 4096}, v{t1}
    v_mul_u32_u24 v{t2}, {TLS}, v{t2}
    v_add_u32 v{t2}, {TL + 2048}, v{t2}
    v_and_b32 v{t3}, 8, v{vL}
    v_cmp_eq_u32 vcc, 0, v{t3}
    v_cndmask_b32 v{t1}, v{t2}, v{t1}, vcc
    s_cmp_eq_u32 s{sW}, 0
    s_cselect_b64 vcc, -1, 0
    v_cndmask_b32 v{vZA}, v{t1}, v{t0}, vcc''')
HI = [0,1,2,3,4,5,6,7,256,258,260,262,512,516,768,772,1024,1280,1536,1792,2048]
def merge(chains):
    out = []; ch = [list(c) for c in chains]
    while any(ch):
        for c in ch:
            if c: out.append(c.pop(0))
    return out
def cmul(D, X, Y):
    return [f'v_pk_mul_f32 {vr(D,2)}, {vr(X,2)}, {vr(Y,2)} op_sel:[0,0] op_sel_hi:[0,1]',
            f'v_pk_fma_f32 {vr(D,2)}, {vr(X,2)}, {vr(Y,2)}, {vr(D,2)} op_sel:[1,1,0] op_sel_hi:[1,0,1] neg_lo:[0,1,0]']
def kgen_valu(p, fills=()):
    lar, aim, cre, cim, ldt, dsk = range(vPAR, vPAR + 6)
    def expbf(x, t):
        return [f'v_mul_f32 v{t}, 0x3fb8aa3b, v{x}', f'v_fma_f32 v{t+1}, v{x}, s{sT2}, -v{t}', f'v_fmac_f32 v{t+1}, 0x32a57060, v{x}',
                f'v_exp_f32 v{t}, v{t}', f'v_mul_f32 v{t+1}, 0x3f317218, v{t+1}', f'v_fmac_f32 v{t}, v{t}, v{t+1}',
                f'v_cvt_pk_bf16_f32 v{t}, v{t}, v{t}', f'v_and_b32 v{x}, 0xffff0000, v{t}']
    vKA = 13
    p(f'''s_mov_b32 s{sT2}, 0x3fb8aa3b
    s_lshr_b32 s{sT0}, s{sW}, 1
    s_mul_i32 s{sT1}, s{sT0}, {TLS}
    s_add_u32 s{sT1}, s{sT1}, {TL + 2048}
    v_mov_b32 v10, s{sT1}
    s_mul_i32 s{sT0}, s{sT0}, {KTS}
    s_and_b32 s{sT1}, s{sW}, 1
    s_lshl_b32 s{sT1}, s{sT1}, 8
    s_add_u32 s{sT0}, s{sT0}, s{sT1}
    s_add_u32 s{sT0}, s{sT0}, {KT}
    v_lshl_add_u32 v{vKA}, v{vL}, 2, s{sT0}
    v_mov_b32 v11, 0
    v_mov_b32 v12, 0x3f80''')
    p(f'ds_write_b32 v10, v11\nds_write_b32 v{vKA}, v12')
    p0 = p; p = Prog()
    p.extend(merge([expbf(ldt, 0), expbf(lar, 2)]))
    a2, b2 = 4, 5
    Hreg = {h: 16 + 2 * i for i, h in enumerate(HI)}
    Lreg = {k: 58 + 2 * k for k in range(1, 32)}
    Z1, Z2, Z4, Z256 = 122, 124, 126, 128
    p(f'''v_mul_f32 v{a2}, v{lar}, v{ldt}
    v_mul_f32 v{b2}, v{aim}, v{ldt}
    v_mul_f32 v6, v{cre}, v{ldt}
    v_mul_f32 v7, v{cim}, v{ldt}
    v_mul_f32 v{a2}, 0xbfb8aa3b, v{a2}
    v_mul_f32 v{b2}, 0x3e22f983, v{b2}
    v_add_f32 v{Hreg[0]}, v6, v6
    v_add_f32 v{Hreg[0]+1}, v7, v7
    v_mul_f32 v{vDM}, v{vDM}, v{dsk}''')
    def direct(D, pw, t):
        o = []
        if pw != 1: o += [f'v_mul_f32 v{t}, {float(pw)}, v{a2}', f'v_mul_f32 v{t+1}, {float(pw)}, v{b2}', f'v_exp_f32 v{t}, v{t}', f'v_fract_f32 v{t+1}, v{t+1}']
        else: o += [f'v_exp_f32 v{t}, v{a2}', f'v_fract_f32 v{t+1}, v{b2}']
        o += [f'v_cos_f32 v{D}, v{t+1}', f'v_sin_f32 v{D+1}, v{t+1}', f'v_mul_f32 v{D}, v{D}, v{t}', f'v_mul_f32 v{D+1}, v{D+1}, v{t}']
        return o
    p.extend(merge([direct(Lreg[1], 8, 0), direct(Z256, 256, 2), direct(Z1, 1, 8)]))
    cv = [130]
    def put(reg, row, neg):
        t = cv[0]
        return [f'v_cvt_pk_bf16_f32 v{t}, v{reg}, {"-" if neg else ""}v{reg+1}', f'ds_write_b32 v{vKA}, v{t} offset:{row*KR}']
    ph = lambda h: put(Hreg[h], 32 + HI.index(h), True)
    pl = lambda k: put(Lreg[k], k, False)
    cv[0] = 130
    c1 = cmul(Lreg[2], Lreg[1], Lreg[1]) + pl(1) + cmul(Lreg[4], Lreg[2], Lreg[2]) + pl(2)
    cv[0] = 131
    c2 = cmul(Z2, Z1, Z1) + ph(0) + cmul(Lreg[3], Lreg[2], Lreg[1]) + cmul(Z4, Z2, Z2)
    cv[0] = 132
    c3 = cmul(Hreg[256], Hreg[0], Z256) + cmul(Hreg[1], Hreg[0], Z1) + ph(256) + ph(1)
    p.extend(merge([c1, c2, c3]))
    chains = []
    for k0 in range(1, 5):
        c = []; cv[0] = 132 + k0
        for k in range(k0, 32, 4):
            if k + 4 < 32: c += cmul(Lreg[k + 4], Lreg[k], Lreg[4])
            if k > 2: c += pl(k)
        chains.append(c)
    c = []; cv[0] = 137
    for h in range(2, 8): c += cmul(Hreg[h], Hreg[h - 1], Z1) + ph(h)
    for h in (258, 260, 262): c += cmul(Hreg[h], Hreg[h - 2], Z2) + ph(h)
    chains.append(c)
    c = []; cv[0] = 138
    for h in range(512, 2049, 256):
        c += cmul(Hreg[h], Hreg[h - 256], Z256) + ph(h)
        if h in (512, 768): c += cmul(Hreg[h + 4], Hreg[h], Z4) + ph(h + 4)
    chains.append(c)
    p.extend(merge(chains))
    n = len(p.ins); at = [[] for _ in range(n)]
    for a, b, lst in fills:
        for i, x in enumerate(lst): at[min(n - 1, int(n * (a + (b - a) * i / len(lst))))].append(x)
    for I, x in zip(p.ins, at): p0.extend([I]); p0.extend(x)
def kgen_mfma(p, fill=()):
    ra, rb, rc, t0, t1 = 0, 1, 12, 2, 3
    p(f'''s_lshr_b32 s{sT0}, s{sW}, 1
    s_mul_i32 s{sT0}, s{sT0}, {KTS}
    s_add_u32 s{sT0}, s{sT0}, {KT}
    s_and_b32 s{sT1}, s{sW}, 1
    s_mul_i32 s{sT1}, s{sT1}, {16*KR}
    v_and_b32 v{t0}, 15, v{vL}
    v_lshrrev_b32 v{t1}, 4, v{vL}
    v_lshl_add_u32 v{t1}, v{t1}, 4, s{sT0}
    v_mad_u32_u24 v{ra}, v{t0}, {'s'+str(sT3)}, v{t1}
    v_min_u32 v{t0}, 4, v{t0}
    v_mad_u32_u24 v{rc}, v{t0}, {'s'+str(sT3)}, v{t1}
    v_add_u32 v{rb}, s{sT1}, v{ra}
    s_waitcnt lgkmcnt(0)
    s_barrier'''.replace('v_and_b32', f's_mov_b32 s{sT3}, {KR}\n    v_and_b32', 1))
    fill = list(fill); nf = len(fill)
    F = lambda ks, i: 16 + 12 * ks + 4 * i
    for ks in range(8):
        p.extend(fill[nf * ks // 8: nf * (ks + 1) // 8])
        p(f'ds_read_b128 {vr(F(ks,0),4)}, v{rb} offset:{64*ks}')
        p(f'ds_read_b128 {vr(F(ks,1),4)}, v{ra} offset:{64*ks + 32*KR}')
        p(f'ds_read_b128 {vr(F(ks,2),4)}, v{rc} offset:{64*ks + 48*KR}')
        if ks >= 3:
            k = ks - 3
            for mt in range(2): p(f'v_mfma_f32_16x16x32_bf16 {vr(4+4*mt,4)}, {vr(F(k,1+mt),4)}, {vr(F(k,0),4)}, {"0" if k == 0 else vr(4+4*mt,4)}')
    for k in range(5, 8):
        for mt in range(2): p(f'v_mfma_f32_16x16x32_bf16 {vr(4+4*mt,4)}, {vr(F(k,1+mt),4)}, {vr(F(k,0),4)}, {vr(4+4*mt,4)}')
    p(f'''v_add_f32 v4, v4, v{vDM}
    v_cvt_pk_bf16_f32 v5, v4, v5
    v_cvt_pk_bf16_f32 v6, v6, v7
    v_cvt_pk_bf16_f32 v8, v8, v9
    v_cvt_pk_bf16_f32 v10, v10, v11
    ds_write_b32 v{vTA}, v5
    ds_write_b32 v{vTA+1}, v6
    ds_write_b16 v{vTA+2}, v8 offset:1024
    ds_write_b16_d16_hi v{vTA+2}, v8 offset:1088
    ds_write_b16 v{vTA+2}, v10 offset:1152
    ds_write_b16_d16_hi v{vTA+2}, v10 offset:1216''')
def zero_fill():
    return ['v_mov_b32 v196, 0\nv_mov_b32 v197, 0', 'v_mov_b32 v198, 0\nv_mov_b32 v199, 0', f'ds_write_b128 v{vZA}, v[196:199]']
def expand():
    B, A, wa = vGA, vGA + 8, 200
    rd = [f'''s_lshr_b32 s{sT0}, s{sW}, 1
    s_mul_i32 s{sT0}, s{sT0}, {IMS}
    s_and_b32 s{sT1}, s{sW}, 1
    s_lshl_b32 s{sT1}, s{sT1}, 11
    s_add_u32 s{sT0}, s{sT0}, s{sT1}
    s_add_u32 s{sT0}, s{sT0}, {IMG}
    v_lshl_add_u32 v{wa}, v{vL}, 5, s{sT0}''']
    for k in range(8): rd += [f'ds_read_u16 v{A+k}, v{A+k}', f'ds_read_u16 v{B+k}, v{B+k}']
    rd.append(f'ds_read_u16 v{A+8}, v{A+8}')
    wr = []
    for k in range(8):
        wr.append(f'v_lshl_or_b32 v{192+k}, v{B+k}, 16, v{A+k}\nv_lshl_or_b32 v{B+k}, v{A+k+1}, 16, v{B+k}')
        if k & 3 == 3: wr += [f'ds_write_b128 v{wa}, {vr(189+k,4)} offset:{4*(k-3)}', f'ds_write_b128 v{wa}, {vr(B+k-3,4)} offset:{4160 + 4*(k-3)}']
    return rd, wr
vU = 224
def u_loads(p):
    t0, t1 = 232, 233
    p(f'''s_lshr_b32 s{sT0}, s{sPI}, 1
    s_lshl_b32 s{sT0}, s{sT0}, 14
    s_and_b32 s{sT1}, s{sPI}, 1
    s_lshl_b32 s{sT1}, s{sT1}, 5
    s_add_u32 s{sT0}, s{sT0}, s{sT1}
    s_lshl_b32 s{sT1}, s{sW}, 11
    s_add_u32 s{sT0}, s{sT0}, s{sT1}
    s_add_u32 s{sT0}, s{sT0}, {WS_UT}
    s_add_u32 s{sT1}, s{sT0}, 8192
    v_lshrrev_b32 v{t0}, 1, v{vL}
    v_and_b32 v{t1}, 1, v{vL}
    v_lshlrev_b32 v{t1}, 4, v{t1}
    v_lshl_add_u32 v{t0}, v{t0}, 6, v{t1}
    buffer_load_dwordx4 {vr(vU,4)}, v{t0}, {srd(S_WS)}, s{sT0} offen sc1
    buffer_load_dwordx4 {vr(vU+4,4)}, v{t0}, {srd(S_WS)}, s{sT1} offen sc1''')
def u_put():
    t0, t1 = 232, 233
    return [f'''s_lshl_b32 s{sT0}, s{sW}, 9
    s_add_u32 s{sT0}, s{sT0}, {UIM + 512}
    v_lshrrev_b32 v{t0}, 1, v{vL}
    v_and_b32 v{t1}, 1, v{vL}''', f'''v_mul_u32_u24 v{t1}, {UIS}, v{t1}
    v_lshl_add_u32 v{t0}, v{t0}, 4, v{t1}
    v_add_u32 v{t0}, s{sT0}, v{t0}''',
    f'ds_write_b128 v{t0}, {vr(vU,4)}', f'ds_write_b128 v{t0}, {vr(vU+4,4)} offset:2048']
AR, BR = 160, 164
CA = lambda b, a: 32 + 64 * b + 4 * a
CB = lambda b, j: 64 + 64 * b + 4 * j
def conv_setup(p):
    t0, t1, t2, t3 = 166, 167, 168, 169
    sT0, sT1 = sT4, sT5
    p(f'''s_lshr_b32 s{sT0}, s{sW}, 1
    s_and_b32 s{sT1}, s{sW}, 1
    s_lshl_b32 s{sT1}, s{sT1}, 8
    s_mul_i32 s{sT2}, s{sT0}, {IMS}
    s_sub_u32 s{sT2}, s{sT2}, s{sT1}
    s_add_u32 s{sT2}, s{sT2}, {IMG + 8220 - 192 - 512}
    s_mul_i32 s{sT3}, s{sT0}, {UIS}
    s_sub_u32 s{sT3}, s{sT3}, s{sT1}
    s_add_u32 s{sT3}, s{sT3}, {UIM + 480 - 192}
    v_and_b32 v{t0}, 15, v{vL}
    v_lshrrev_b32 v{t1}, 4, v{vL}
    v_lshlrev_b32 v{t1}, 4, v{t1}
    v_lshl_add_u32 v{t2}, v{t0}, 5, v{t1}
    v_add_u32 v{BR}, s{sT3}, v{t2}
    v_and_b32 v{t2}, 1, v{vL}
    v_mul_u32_u24 v{t2}, 4158, v{t2}
    v_lshl_add_u32 v{t2}, v{t0}, 1, v{t2}
    v_sub_u32 v{t2}, v{t1}, v{t2}
    v_add_u32 v{AR}, s{sT2}, v{t2}
    v_subrev_u32 v{AR+1}, 1024, v{AR}
    v_subrev_u32 v{AR+2}, 2048, v{AR}
    v_subrev_u32 v{AR+3}, 3072, v{AR}''')
def conv_reads(d):
    b = d & 1; o = []
    def A(a):
        off = 16 * (3 - d) + (128 if a % 2 == 0 else 0)
        return [f'ds_read2_b32 {vr(CA(b,a)+2*h,2)}, v{AR+a//2} offset0:{off+2*h} offset1:{off+2*h+1}' for h in range(2)]
    o += A(0)
    for j in range(8): o.append(f'ds_read_b128 {vr(CB(b,j),4)}, v{BR} offset:{512*j + 64*(3-d)}')
    for a in range(1, 8): o += A(a)
    return o
def conv(p, extra=None, done=None):
    rest0 = conv_reads(0)[12:]
    for d in range(4):
        b = d & 1; mf = []; fin = {}
        for a in range(8):
            for j in range(a, 8):
                if d == 3 and j == a: fin[len(mf) + 3] = j
                mf.append(f'v_mfma_f32_16x16x32_bf16 {vr(4*j,4)}, {vr(CA(b,a),4)}, {vr(CB(b,j-a),4)}, {"0" if d == 0 and a == 0 else vr(4*j,4)}')
        if done: mf = [G([x] + (done(fin[i]) if i in fin else [])) for i, x in enumerate(mf)]
        fill = (rest0 if d == 0 else []) + (conv_reads(d + 1) if d < 3 else [])
        weave(p, mf, fill, (extra or {}).get(d, []), end=34)
        if d == 3 and done:
            for i in sorted(fin):
                if i >= len(mf): p.extend(done(fin[i]))
vCW, vCR, vCV, sAT = 170, 171, 172, 13
def conv_done(j): return [f'ds_write_b128 v{vCW}, {vr(4*j,4)} offset:{RED + 1024*j}']
def conv_out_setup(p):
    wa, ra, va, t0, t1 = vCW, vCR, vCV, 173, 174
    p(f'''s_lshl_b32 s{sT0}, s{sW}, 13
    v_lshrrev_b32 v{t0}, 5, v{vL}
    v_lshlrev_b32 v{t0}, 3, v{t0}
    v_xor_b32 v{t0}, v{t0}, v{vL}
    v_lshl_add_u32 v{wa}, v{t0}, 4, s{sT0}
    s_lshr_b32 s{sT0}, s{sW}, 1
    s_lshl_b32 s{sT0}, s{sT0}, 14
    s_and_b32 s{sT1}, s{sW}, 1
    s_lshl_b32 s{sT1}, s{sT1}, 12
    s_add_u32 s{sT0}, s{sT0}, s{sT1}
    v_and_b32 v{t0}, 1, v{vL}
    v_bfe_u32 v{t1}, v{vL}, 1, 4
    v_lshl_add_u32 v{t1}, v{t0}, 5, v{t1}
    v_lshlrev_b32 v{t0}, 3, v{t0}
    v_xor_b32 v{t1}, v{t1}, v{t0}
    v_lshrrev_b32 v{t0}, 5, v{vL}
    v_lshl_add_u32 v{t1}, v{t0}, 6, v{t1}
    v_lshl_add_u32 v{ra}, v{t1}, 4, s{sT0}
    v_lshlrev_b32 v{va}, 4, v{vL}
    s_lshl_b32 s{sT0}, s{sPI}, 2
    s_add_u32 s{sT0}, s{sT0}, s{sW}
    s_lshl_b32 s{sT0}, s{sT0}, 11
    s_add_u32 s{sAT}, s{sT0}, {WS_AT}''')
def conv_out(p, pre=(), mid=()):
    ra, va = vCR, vCV
    p.extend(pre)
    p('s_waitcnt lgkmcnt(0)\ns_barrier')
    R = lambda i, h, k: 32 + 16 * i + 8 * k + 4 * h
    for i in range(2):
        for h in range(2):
            for k in range(2): p(f'ds_read_b128 {vr(R(i,h,k),4)}, v{ra} offset:{RED + 8192*k + 2048*i + 256*h}')
    p.extend(mid)
    for i in range(2):
        for e in range(0, 8, 2): p(f'v_pk_add_f32 {vr(R(i,0,0)+e,2)}, {vr(R(i,0,0)+e,2)}, {vr(R(i,0,1)+e,2)}')
        for e in range(4): p(f'v_cvt_pk_bf16_f32 v{4*i+e}, v{R(i,0,0)+2*e}, v{R(i,0,0)+2*e+1}')
        p(f'buffer_store_dwordx4 {vr(4*i,4)}, v{va}, {srd(S_WS)}, s{sAT} offen offset:{1024*i} sc1', 'ast')

def k_conv(dbg=False):
    p = Prog(); prologue(p)
    par_zero(p); par_loads(p); u_loads(p); tail_setup(p)
    kgen_valu(p); kgen_mfma(p); u_put(p); expand(p); conv(p); conv_out(p)
    if dbg:
        p(f's_barrier\nv_lshl_add_u32 v0, s{sW}, 6, v{vL}\nv_lshlrev_b32 v0, 4, v0\ns_lshl_b32 s{sT0}, s2, 15\ns_add_u32 s{sT0}, s{sT0}, 0x2000000\nv_add_u32 v1, {TL}, v0')
        for i in range(8):
            p(f'ds_read_b128 v[4:7], v1 offset:{4096*i}\nbuffer_store_dwordx4 v[4:7], v0, {srd(S_WS)}, s{sT0} offen\ns_add_u32 s{sT0}, s{sT0}, 4096\ns_nop 1')
    p('s_endpgm')
    return p

vWA = 236
sWD, sWE, sHX, sHE, sR2 = 4, 5, 6, 7, 8
def rot2_setup(p, on=True):
    if not on: p(f's_mov_b32 s{sR2}, 0'); return
    if on == 2:
        p(f's_add_u32 s{sT0}, s{sJ}, s{sDT}\ns_and_b32 s{sT0}, s{sT0}, 1\ns_mul_i32 s{sR2}, s{sT0}, 7'); return
    if on == 4:
        p(f's_add_u32 s{sT0}, s{sJ}, s{sDT}\ns_and_b32 s{sT0}, s{sT0}, 3\ns_mul_i32 s{sT0}, s{sT0}, 7\ns_lshr_b32 s{sR2}, s{sT0}, 1'); return
    p(f'''s_and_b32 s{sT0}, s{sJ}, 3
    s_mul_i32 s{sT0}, s{sT0}, 7
    s_lshr_b32 s{sT0}, s{sT0}, 1
    s_mul_i32 s{sT1}, s{sDT}, 7
    s_lshr_b32 s{sT1}, s{sT1}, 2
    s_add_u32 s{sT0}, s{sT0}, s{sT1}
    s_sub_u32 s{sT1}, s{sT0}, 14
    s_cmp_ge_u32 s{sT0}, 14
    s_cselect_b32 s{sR2}, s{sT1}, s{sT0}''')
def wd_setup(p):
    p(f'''s_lshl_b32 s{sT0}, s{sDT}, 2
    s_add_u32 s{sT0}, s{sT0}, s{sW}
    s_mul_i32 s{sT0}, s{sT0}, 57344
    s_add_u32 s{sT0}, s{sT0}, {WS_WDT}
    s_add_u32 s{sWE}, s{sT0}, 57344
    s_lshl_b32 s{sT1}, s{sR2}, 12
    s_add_u32 s{sWD}, s{sT0}, s{sT1}
    s_and_b32 s{sT1}, s{sW}, 1
    s_lshl_b32 s{sT1}, s{sT1}, 10
    v_lshl_add_u32 v{vWA}, v{vL}, 4, s{sT1}
    v_xor_b32 v{vWA+1}, 1024, v{vWA}''')
def wrap(r, e, step, span, t):
    return f'\ns_add_u32 s{r}, s{r}, {step}\ns_sub_u32 s{t}, s{r}, {span}\ns_cmp_ge_u32 s{r}, s{e}\ns_cselect_b32 s{r}, s{t}, s{r}'
def wd_loads():
    o = []
    for s in range(28):
        for al in range(2):
            o.append(f'buffer_load_dwordx4 {ar(8*s+4*al,4)}, v{vWA+al}, {srd(S_WS)}, s{sWD} offen offset:{2048*(s&1)} sc1')
        if s & 1 and s < 27: o[-1] += wrap(sWD, sWE, 4096, 57344, 9)
    return o
NB = 12
vHB, vHA, vGAa, vG, vAT = 64, 160, 164, 246, 184
def acc2(al, be): return 16 * (al + 2 * be)
def h_setup(p):
    t0, t1 = 182, 183
    p(f'''s_mul_i32 s{sT0}, s{sW}, {56*32768}
    s_lshl_b32 s{sT1}, s{sST}, 10
    s_add_u32 s{sT0}, s{sT0}, s{sT1}
    s_add_u32 s{sT0}, s{sT0}, {WS_H}
    s_add_u32 s{sHE}, s{sT0}, {28*65536}
    s_lshl_b32 s{sT1}, s{sR2}, 17
    s_add_u32 s{sHX}, s{sT0}, s{sT1}
    s_lshr_b32 s{sT1}, s{sW}, 1
    s_lshl_b32 s{sT1}, s{sT1}, 9
    v_lshrrev_b32 v{t0}, 5, v{vL}
    v_and_b32 v{t1}, 31, v{vL}
    v_lshl_add_u32 v{t1}, v{t1}, 4, s{sT1}
    v_lshl_add_u32 v{vHA}, v{t0}, 15, v{t1}
    v_xor_b32 v{vHA+1}, 512, v{vHA}''')
def h_touch():
    t0 = 182
    return [f'''s_lshr_b32 s{sT1}, s{sHE}, 0
    s_sub_u32 s{sT1}, s{sT1}, {28*65536}
    s_lshl_b32 s{sT0}, s{sDT}, 7
    v_min_u32 v{t0}, 55, v{vL}
    v_lshl_add_u32 v{t0}, v{t0}, 15, s{sT0}
    buffer_load_dword v{vTD}, v{t0}, {srd(S_WS)}, s{sT1} offen sc1''']
def h_loads(s):
    o = [f'buffer_load_dwordx4 {vr(vHB + 8*(s%NB) + 4*be, 4)}, v{vHA+be}, {srd(S_WS)}, s{sHX} offen sc1' for be in range(2)]
    if s < 27: o[-1] += wrap(sHX, sHE, 65536, 28*65536, 10) if s & 1 else f'\ns_add_u32 s{sHX}, s{sHX}, 65536'
    return o
def a_loads():
    t0, t1 = 182, 183
    return [f'''s_and_b32 s{sT0}, s{sW}, 1
    s_lshl_b32 s{sT1}, s{sDT}, 1
    s_add_u32 s{sT0}, s{sT0}, s{sT1}
    s_lshl_b32 s{sT0}, s{sT0}, 17
    s_lshr_b32 s{sT1}, s{sW}, 1
    s_lshl_b32 s{sT2}, s{sST}, 1
    s_add_u32 s{sT1}, s{sT1}, s{sT2}
    s_lshl_b32 s{sT2}, s{sT1}, 6
    s_add_u32 s{sT0}, s{sT0}, s{sT2}
    s_add_u32 s{sT0}, s{sT0}, {WS_AT}
    s_add_u32 s{sT2}, s{sT0}, 65536''',
    f'''v_lshrrev_b32 v{t0}, 2, v{vL}
    v_and_b32 v{t1}, 3, v{vL}
    v_lshlrev_b32 v{t1}, 4, v{t1}
    v_lshl_add_u32 v{t0}, v{t0}, 12, v{t1}''',
    f'buffer_load_dwordx4 {vr(vAT,4)}, v{t0}, {srd(S_WS)}, s{sT0} offen sc1',
    f'buffer_load_dwordx4 {vr(vAT+4,4)}, v{t0}, {srd(S_WS)}, s{sT2} offen sc1']
def g_load(p):
    t0 = 235
    p(f'''s_lshr_b32 s{sT1}, s{sW}, 1
    s_lshl_b32 s{sT2}, s{sST}, 1
    s_add_u32 s{sT1}, s{sT1}, s{sT2}
    s_lshl_b32 s{sT1}, s{sT1}, 7
    s_add_u32 s{sT1}, s{sT1}, {WS_G}
    v_and_b32 v{t0}, 31, v{vL}
    v_lshlrev_b32 v{t0}, 2, v{t0}
    buffer_load_dword v{vG}, v{t0}, {srd(S_WS)}, s{sT1} offen sc1''')
def a_use():
    t0, t1, t2 = 182, 183, 162
    o = [f'''s_lshl_b32 s{sT0}, s{sW}, 11
    s_add_u32 s{sT0}, s{sT0}, {AS}
    v_lshl_add_u32 v{t0}, v{vL}, 4, s{sT0}''',
    f'''v_lshrrev_b32 v{t1}, 5, v{vL}
    v_bfe_u32 v{t2}, v{vL}, 2, 2
    v_lshl_add_u32 v{t1}, v{t1}, 2, v{t2}''',
    f'''v_bfe_u32 v{t2}, v{vL}, 4, 1
    v_lshl_add_u32 v{t1}, v{t1}, 1, v{t2}
    v_and_b32 v{t2}, 3, v{vL}''',
    f'''v_lshl_add_u32 v{t1}, v{t1}, 2, v{t2}
    v_lshl_add_u32 v{t1}, v{t1}, 3, s{sT0}''',
    f'ds_write_b128 v{t0}, {vr(vAT,4)}', (f'ds_write_b128 v{t0}, {vr(vAT+4,4)} offset:1024', 'aw')]
    for q in range(4): o.append(f'ds_read_b64_tr_b16 {vr(vAT+2*q,2)}, v{t1} offset:{512*q}')
    o.append(f'v_sub_f32 v{vG+1}, 1.0, v{vG}\nv_cvt_pk_bf16_f32 v{vG+1}, v{vG+1}, v{vG+1}\nv_and_b32 v{vG+1}, 0xffff0000, v{vG+1}')
    for i in range(8):
        o.append(f'v_lshlrev_b32 v{vGAa+2*i}, 16, v{vAT+i}\nv_and_b32 v{vGAa+2*i+1}, 0xffff0000, v{vAT+i}')
        o.append(f'v_mul_f32 v{vGAa+2*i}, v{vG}, v{vGAa+2*i}\nv_mul_f32 v{vGAa+2*i+1}, v{vG}, v{vGAa+2*i+1}')
    return o
def gemm2(p, extra=None, pre=0, late=(), mark=lambda: [], omod='', LA=12, fin=()):
    extra = extra or {}
    PW, PR, ti = 192, 195, 162
    M = lambda s, al, be: f'v_mfma_f32_32x32x16_bf16 {vr(acc2(al,be),16)}, {ar(8*s+4*al,4)}, {vr(vHB+8*(s%NB)+4*be,4)}, {"0" if s == 0 else vr(acc2(al,be),16)}'
    pend = [(s, x) for s in range(pre, 28) for x in h_loads(s)]
    for k in range(1, 4):
        p(f's_xor_b32 s{sT0}, s{sW}, {k}\ns_mul_i32 s{sT0}, s{sT0}, 12288\ns_add_u32 s{sT0}, s{sT0}, {P2 + 4096*(k-1)}\nv_lshl_add_u32 v{PW+k-1}, v{vL}, 4, s{sT0}')
    p(f's_mul_i32 s{sT0}, s{sW}, 12288\ns_add_u32 s{sT0}, s{sT0}, {P2}\nv_lshl_add_u32 v{PR}, v{vL}, 4, s{sT0}')
    for s in range(24):
        mf = [M(s, 0, 0), M(s, 1, 0), M(s, 0, 1), M(s, 1, 1)]
        ex = extra.get(s, [])
        for m in range(4):
            p(mf[m]); p.extend(ex[len(ex) * m // 4: len(ex) * (m + 1) // 4])
            la = LA if s < 23 else 5
            if pend and (m & 1 or pend[0][0] < s + la - 1):
                t = pend[0][0]; be = len(pend) & 1
                if t < s + la or (t == s + la and m >= 1 + 2 * be): p.extend([pend.pop(0)[1]])
    assert not pend
    prev = []; late = list(late); nl = len(late)
    for k in (3, 1, 2, 0):
        al, be = k & 1, k >> 1
        mf = [M(s, al, be) for s in range(24, 28)]
        for m in range(4):
            p(mf[m])
            if m >= 1: p.extend(prev[(m - 1) * 2: m * 2])
            for _ in range(-(-nl // 14)):
                if late: p.extend([late.pop(0)])
        prev = [f'ds_write_b128 v{PW+k-1}, {vr(acc2(al,be)+4*q,4)} offset:{1024*q}' for q in range(4)] if k else []
    p.extend(mark())
    t0, t1, va = 182, 183, 196
    p(f'''s_lshr_b32 s{sT1}, s{sW}, 1
    s_lshl_b32 s{sT2}, s{sST}, 1
    s_add_u32 s{sT1}, s{sT1}, s{sT2}
    s_lshl_b32 s{sT1}, s{sT1}, 15
    s_and_b32 s{sT0}, s{sW}, 1
    s_lshl_b32 s{sT2}, s{sDT}, 1
    s_add_u32 s{sT0}, s{sT0}, s{sT2}
    s_lshl_b32 s{sT0}, s{sT0}, 6
    s_add_u32 s{sT0}, s{sT0}, s{sT1}
    v_and_b32 v{t0}, 31, v{vL}
    v_lshrrev_b32 v{t1}, 5, v{vL}
    v_lshlrev_b32 v{t1}, 4, v{t1}
    v_lshl_add_u32 v{va}, v{t0}, 10, v{t1}
    s_waitcnt lgkmcnt(0)
    s_barrier''')
    Q = lambda k, q: 64 + 16 * k + 4 * q
    for q in range(4):
        for k in range(3): p(f'ds_read_b128 {vr(Q(k,q),4)}, v{PR} offset:{4096*k + 1024*q}')
    p.extend(fin)
    for q in range(4):
        for e in (0, 2):
            r = 4 * q + e
            p(f'''v_pk_add_f32 {vr(r,2)}, {vr(r,2)}, {vr(Q(0,q)+e,2)}
            v_pk_add_f32 {vr(Q(1,q)+e,2)}, {vr(Q(1,q)+e,2)}, {vr(Q(2,q)+e,2)}''')
        for e in (0, 2):
            r = 4 * q + e
            p(f'v_pk_add_f32 {vr(r,2)}, {vr(r,2)}, {vr(Q(1,q)+e,2)}')
        for e in (0, 2):
            r = 4 * q + e
            p(f'v_pk_fma_f32 {vr(r,2)}, {vr(r,2)}, {vr(vG,2)}, {vr(vGAa+r,2)} op_sel:[0,1,0] op_sel_hi:[1,1,1]')
        for e in (0, 2):
            r = 4 * q + e
            p(f'v_cvt_pk_bf16_f32 v{16 + 2*q + e//2}, v{r}, v{r+1}')
        if q & 1:
            R = 16 + 2 * (q - 1)
            p(f'v_permlane32_swap_b32 v{R}, v{R+2}\nv_permlane32_swap_b32 v{R+1}, v{R+3}')
            p(f'buffer_store_dwordx4 {vr(R,4)}, v{va}, {srd(S_OUT)}, s{sT0} offen offset:{16*(q-1)} {omod}')

def spread(lst, a, b):
    n = b - a
    return {a + i: lst[len(lst) * i // n: len(lst) * (i + 1) // n] for i in range(n)}
def k_g2():
    p = Prog(); prologue(p)
    wd_setup(p); p.extend(wd_loads()); g_load(p); h_setup(p)
    ex = spread(a_loads(), 2, 4); ex.update(spread(a_use(), 12, 22))
    gemm2(p, ex)
    p('s_endpgm')
    return p

WS_STAMP = 0x3000000
class Fused:
    def __init__(s, stamps=False):
        s.p = Prog(); s.nap = 0; s.slow = []; s.stamps = stamps; s.ns = 0; s.want = stamps or []
    def stamp(s, name=None):
        if not s.stamps or (name is not None and name not in s.want): return []
        o = []
        if s.ns: o.append(f's_mov_b32 s{87 + s.ns}, s100')
        o.append('s_memtime s[100:101]'); s.ns += 1
        return o
    def stamp_out(s):
        if not s.stamps: return
        p = s.p
        p(f's_mov_b32 s{87 + s.ns}, s100\ns_lshl_b32 s{sT0}, s2, 2\ns_add_u32 s{sT0}, s{sT0}, s{sW}\ns_lshl_b32 s{sT0}, s{sT0}, 6\ns_add_u32 s{sT0}, s{sT0}, {WS_STAMP}\ns_mov_b64 exec, 1')
        p(f's_memrealtime s[100:101]\nv_mov_b32 v1, s34\nbuffer_store_dword v1, off, {srd(S_WS)}, s{sT0} offset:48\nv_mov_b32 v1, s100\nbuffer_store_dword v1, off, {srd(S_WS)}, s{sT0} offset:52')
        if 'dbg' in s.want:
            L = p.label('nodbg')
            p(f's_not_b32 s{sT1}, s34\nv_mov_b32 v1, s{sT1}\nv_mov_b32 v2, s100\nbuffer_atomic_umax v1, off, {srd(S_DBG)}, 0 offset:4\nbuffer_atomic_umax v2, off, {srd(S_DBG)}, 0 offset:8')
            p(f'v_mov_b32 v1, s34\nbuffer_atomic_umax v1, off, {srd(S_DBG)}, 0 offset:12')
            p(f's_cmp_lg_u32 s2, 77\ns_cbranch_scc1 {L}\ns_cmp_lg_u32 s{sW}, 1\ns_cbranch_scc1 {L}')
            for i in range(1, s.ns): p(f's_sub_u32 s{sT1}, s{88+i}, s88\nv_mov_b32 v1, s{sT1}\nbuffer_store_dword v1, off, {srd(S_DBG)}, 0 offset:{12+4*i}', 'untracked')
            p(f'{L}:')
            return
        for i in range(s.ns): p(f'v_mov_b32 v1, s{88+i}\nbuffer_store_dword v1, off, {srd(S_WS)}, s{sT0} offset:{4*i}')
    def poll_issue(s, dst, va, S, n=1, m=False):
        x = f'buffer_load_dword{"x2" if n == 2 else ""} {vr(dst,n)}, v{va}, {srd(S)}, 0 offen sc1'
        return [f's_mov_b64 exec, s[{sM0}:{sM0+1}]\n{x}\ns_mov_b64 exec, -1' if m else x]
    def poll_check(s, dst, va, S, n=1, m=False):
        Ls, Lr, Ll = s.p.label('slow'), s.p.label('ret'), s.p.label('spin')
        chk = (f'v_and_b32 v{dst}, v{dst}, v{dst+1}\n' if n == 2 else '') + f'v_cmp_ne_u32 vcc, 1, v{dst}\n'
        s.slow.append(f'''{Ls}:
        s_mov_b32 s{sSP}, 0x4000
        {Ll}:
        {f's_sleep {s.nap}' if s.nap else ''}
        {s.poll_issue(dst, va, S, n)[0]}
        s_waitcnt vmcnt(0) lgkmcnt(0)
        {chk}s_cbranch_vccz {Lr}
        s_sub_u32 s{sSP}, s{sSP}, 1
        s_cmp_lg_u32 s{sSP}, 0
        s_cbranch_scc1 {Ll}
        s_branch {Lr}''')
        if m: chk = f's_mov_b64 exec, s[{sM0}:{sM0+1}]\n{chk}s_mov_b64 exec, -1\n'
        return [chk + f's_cbranch_vccnz {Ls}\n{Lr}:']
    def flag(s, sreg, one):
        return [f's_mov_b64 exec, 1\nbuffer_store_dword v{one}, off, {srd(S_WS)}, s{sreg} sc1\ns_mov_b64 exec, -1']

sFH, sFA = 78, 79
sM0 = 14
vFW = 253
vONE, vPGO, vPWD, vPUT, vPH, vPA, vF = 238, 239, 240, 241, 242, 243, 244
def flag_setup(p, spare):
    t0 = 192
    p(f'''s_cmp_eq_u32 s{sW}, 0
    s_cselect_b64 s[{sM0}:{sM0+1}], -1, 0
    v_mov_b32 v{vONE}, 1
    v_mov_b32 v{vPGO}, 0
    s_lshl_b32 s{sT0}, s{sW}, 3
    s_add_u32 s{sT0}, s{sT0}, s{sDT}
    s_add_u32 s{sT0}, s{sT0}, 192
    s_lshl_b32 s{sT0}, s{sT0}, 7
    v_and_b32 v{t0}, 3, v{vL}
    v_lshl_add_u32 v{vPWD}, v{t0}, 2, s{sT0}
    v_lshlrev_b32 v{t0}, 3, v{vL}
    v_add_u32 v{vPUT}, {224*128}, v{t0}
    s_lshl_b32 s{sT0}, s{sST}, 2
    s_add_u32 s{sT0}, s{sT0}, s{sW}
    s_lshl_b32 s{sT0}, s{sT0}, 7
    v_min_u32 v{t0}, 6, v{vL}
    v_lshl_add_u32 v{vPH}, v{t0}, 2, s{sT0}
    s_add_u32 s{sT0}, s{sST}, 192
    s_lshl_b32 s{sT0}, s{sT0}, 7
    s_add_u32 s{sT0}, s{sT0}, 16
    v_and_b32 v{t0}, 3, v{vL}
    v_lshl_add_u32 v{t0}, v{t0}, 2, s{sT0}
    v_cmp_gt_u32 vcc, 32, v{vL}
    v_cndmask_b32 v{vPH}, v{t0}, v{vPH}, vcc
    s_lshr_b32 s{sT0}, s{sST}, 4
    s_lshl_b32 s{sT0}, s{sT0}, 5
    s_lshl_b32 s{sT1}, s{sDT}, 2
    s_add_u32 s{sT0}, s{sT0}, s{sT1}
    s_and_b32 s{sT1}, s{sW}, 1
    s_lshl_b32 s{sT1}, s{sT1}, 1
    s_add_u32 s{sT0}, s{sT0}, s{sT1}
    s_add_u32 s{sT0}, s{sT0}, 128
    s_lshl_b32 s{sT0}, s{sT0}, 7
    v_and_b32 v{t0}, 15, v{vL}
    v_lshl_add_u32 v{vPA}, v{t0}, 2, s{sT0}
    v_bfe_u32 v{t0}, v{vL}, 4, 1
    v_lshl_add_u32 v{vPA}, v{t0}, 7, v{vPA}
    s_lshl_b32 s{sT0}, s{sPI}, 1
    s_lshr_b32 s{sT1}, s{sW}, 1
    s_add_u32 s{sT0}, s{sT0}, s{sT1}
    s_and_b32 s{sT1}, s{sT0}, 15
    s_lshr_b32 s{sT0}, s{sT0}, 4
    s_and_b32 s{sT2}, s{sW}, 1
    s_lshl_b32 s{sT2}, s{sT2}, 5
    s_add_u32 s{sT0}, s{sT0}, s{sT2}
    s_add_u32 s{sT0}, s{sT0}, 128
    s_lshl_b32 s{sT0}, s{sT0}, 5
    s_add_u32 s{sT0}, s{sT0}, s{sT1}
    s_lshl_b32 s{sFA}, s{sT0}, 2''')
    if spare:
        p(f's_lshl_b32 s{sT0}, s{sSI}, 2\ns_add_u32 s{sT0}, s{sT0}, s{sW}\ns_lshl_b32 s{sT0}, s{sT0}, 7\ns_add_u32 s{sFH}, s{sT0}, 0x8000')
    else:
        p(f'''s_lshl_b32 s{sT0}, s{sMI}, 2
        s_add_u32 s{sT0}, s{sT0}, s{sW}
        s_lshl_b32 s{sT0}, s{sT0}, 2
        s_and_b32 s{sT1}, s{sXCD}, 3
        s_add_u32 s{sT0}, s{sT0}, s{sT1}
        s_lshl_b32 s{sT0}, s{sT0}, 5
        s_add_u32 s{sT0}, s{sT0}, s{sDT}
        s_lshl_b32 s{sFH}, s{sT0}, 2''')
def as_list(fn, *a):
    q = Prog(); fn(q, *a); return q.ins

def groups(ins, last):
    o = [[]]
    for I in ins:
        o[-1].append(I)
        if last(I): o.append([])
    return [g for g in o if g]
def flat(l): return [y for x in l for y in (x if isinstance(x, list) else [x])]
def k_fused(stamps=False, cfg=None):
    cfg = dict(rot='g', ct=250, omod='', na=99, la=6, xp=[[[6, 0], [6, 1]], [[6, 2], [6, 3]]], fast=1, hs='sc1', wsb=0, nt='w,p,d', tch=[0.5, 10, 11], tw=1.5, n0=[12, 23, 34], nap=4, up=2, nw=[4, 8, 12, 12, 0], r2=0, ht=0, hp=[0, 2], xn=6, hflag=30, hpoll=130, aflag=3, apoll=17, achk=21, f0=[0.0, 0.3, 0.75], sx=99, pg=[0, 2, 5], cw=[50, 135]) | (cfg or {})
    for k in MOD: MOD[k] = 'nt' if k in cfg['nt'].split(',') else ''
    MOD['hs'] = cfg['hs']
    global WS_WDT, WS_UT, WS_G, WS_H, WS_AT
    WS_WDT, WS_UT, WS_G, WS_H, WS_AT = [cfg['wsb'] + x for x in (0x100000, 0x300000, 0x500000, 0x600000, 0xD00000)]
    F = Fused(stamps); p = F.p
    if stamps: p('s_memrealtime s[34:35]')
    p.extend(F.stamp()); prologue(p, cfg['rot'], cfg['ct'], True)
    Lsp, Ltail = p.label('spare'), p.label('tail')
    p(f's_lshl_b32 s{sPI}, s{sXCD}, 5\ns_add_u32 s{sPI}, s{sPI}, s{sJ}')
    p(f's_cmp_ge_u32 s{sJ}, 28\ns_cbranch_scc1 {Lsp}')
    tch = cfg['tch']; F.nap = cfg['nap']
    g1_setup(p)
    par_loads(p); srd_bases(p)
    p.extend(F.stamp('pro'))
    T = []
    dm = g1_dma(0) + g1_dma(1); n0, n1, n2 = cfg['n0']; f0, f1, f2 = cfg['f0']
    p.extend(dm[:n0])
    p.extend(F.stamp('dma'))
    prologue2(p, False)
    g1_setup2(p); tail_setup(p); flag_setup(p, False); rot2_setup(p, cfg['r2'])
    p.extend(F.stamp('setup'))
    if stamps and 'par' in stamps: p(f'v_mov_b32 v{vPAR+5}, v{vPAR+5}'); p.extend(F.stamp('par'))
    kgen_valu(p, [(f0, f1, dm[n0:n1]), (f2, 0.99, dm[n1:n2])]); p.extend(F.stamp('kv'))
    kgen_mfma(p, dm[n2:]); p('s_waitcnt lgkmcnt(0)'); p.extend(F.stamp('km'))
    if stamps: p.waitvm('dma0'); p.extend(F.stamp('d0'))
    wl = wd_loads(); nw = cfg['nw']; pg, pw, pu = cfg['pg']
    post = {}; pre = {}
    for t in range(8):
        pre[t] = []
        if t == pg + 1: pre[t] += F.poll_check(vF, vPGO, S_DBG, 1, True)
        if t == pu + 1: pre[t] += F.poll_check(vF, vPUT, S_WS, 2, True)
        post[t] = F.stamp(f's{t}') if t < 7 else []
        if t == pg: post[t] += F.poll_issue(vF, vPGO, S_DBG, 1, True)
        if t == pw + 1: post[t] += F.poll_check(vFW, vPWD, S_WS) + F.stamp('wf') + as_list(wd_setup)
        if t == pu + 1: post[t] += as_list(u_loads)
        if t == pw: post[t] += F.poll_issue(vFW, vPWD, S_WS)
        if t == pu: post[t] += F.poll_issue(vF, vPUT, S_WS, 2, True)
    extra = {}
    def put(keys, lst):
        for i, k in enumerate(keys): extra.setdefault(k, []).extend(lst[len(lst) * i // len(keys): len(lst) * (i + 1) // len(keys)])
    for a, x in T:
        if a is not None and a >= 10: put([(a - 10, 2)], [G(x)])
    rd, wr = expand()
    xp = cfg['xp']; put([(6, 0)], zero_fill()); put([tuple(k) for k in xp[0]], rd); put([tuple(k) for k in xp[1]], wr); put([(7, cfg['up'])], u_put() if pu < 6 else [])
    k = 0
    for t, n in zip((4, 5, 6, 7), nw): put([(t, s) for s in range(4)], wl[k:k + n]); k += n
    g1_main(p, extra, post, 2, pre, cfg['fast']); p.extend(F.stamp('g1'))
    r0 = conv_reads(0)[:12]
    hook = {0: as_list(conv_setup), 3: r0[:6] + r0[10:], 4: [r0[6]], 5: [r0[7]], 6: [r0[8]], 7: [r0[9]]} if pu < 6 else None
    g1_epilogue(p, wl[k:k + nw[4]], hook); k += nw[4]
    wrest = wl[k:]
    if pu >= 6: p.extend(u_put()); conv_setup(p); p('s_waitcnt lgkmcnt(0)\ns_barrier'); p.extend(r0)
    p(f'{Ltail}:'); p.extend(F.stamp())
    ex = {d: [[] for _ in range(34)] for d in range(4)}
    n0, n1 = cfg['cw']
    for i, x in enumerate(wrest):
        m = n0 + (n1 - n0) * i // len(wrest); ex[m // 34][m % 34].append(x)
    m = cfg['hflag']; ex[m // 34][m % 34][:0] = F.stamp('h0') + [Ins('WAITVM hst')] + F.stamp('h1') + F.flag(sFH, vONE)
    m = cfg['hpoll']; ex[m // 34][m % 34] += F.poll_issue(vF, vPH, S_WS)
    st = groups(as_list(conv_out_setup), lambda I: I.kind == 'valu')
    for i, x in enumerate(st): ex[2][10 + i].append(G(x))
    st = groups(as_list(h_setup), lambda I: I.kind == 'valu')
    for i, x in enumerate(st): ex[3][4 + 2 * i].append(G(x))
    conv(p, ex, conv_done); p.extend(F.stamp('cv'))
    hp0, hp1 = cfg['hp']
    chk = F.poll_check(vF, vPH, S_WS) + F.stamp('hf')
    if hp0: p.extend(chk); chk = []
    conv_out(p, pre=[x for s in range(hp0) for x in h_loads(s)], mid=chk + [x for s in range(hp0, hp1) for x in h_loads(s)])
    g_load(p)
    p.extend(F.stamp('co'))
    ex = {}
    for t in range(24):
        ex[t] = F.stamp(f'q{t}')
        if t == cfg['aflag']: ex[t] = ex[t] + [Ins('WAITVM ast')] + F.flag(sFA, vONE)
        if t == cfg['apoll']: ex[t] = ex[t] + F.poll_issue(vF, vPA, S_WS)
        if t == cfg['achk']: ex[t] = ex[t] + F.poll_check(vF, vPA, S_WS) + F.stamp('af') + a_loads()
    au = a_use(); na = cfg['na']
    gemm2(p, ex, pre=hp1, late=au[:na], fin=au[na:], mark=lambda: F.stamp('g2'), omod=cfg['omod'], LA=cfg['la'])
    p.extend(F.stamp())
    if cfg.get('amp'):
        a, b, mult = cfg['amp']
        p(f'''s_mov_b32 s{87 + F.ns}, s100
        s_sub_u32 s{sT0}, s{88+b}, s{88+a}
        s_mul_i32 s{sT0}, s{sT0}, {mult}
        s_mov_b32 s{sT2}, 0x40000
        L_amp:
        s_memtime s[34:35]
        s_waitcnt lgkmcnt(0)
        s_sub_u32 s{sT1}, s34, s100
        s_sub_u32 s{sT2}, s{sT2}, 1
        s_cmp_eq_u32 s{sT2}, 0
        s_cbranch_scc1 L_ampx
        s_cmp_lt_u32 s{sT1}, s{sT0}
        s_cbranch_scc1 L_amp
        L_ampx:''')
    else: F.stamp_out()
    p('s_endpgm')
    p(f'{Lsp}:')
    def sst(i):
        if stamps and not cfg.get('amp'): p(f's_memtime s[100:101]\ns_waitcnt lgkmcnt(0)\ns_mov_b32 s{88+i}, s100')
        elif stamps: p(f's_mov_b32 s{88+i}, s88')
    if stamps: p('s_mov_b32 s88, s100')
    prologue2(p, True)
    Lk = p.label('noclr'); Lg = p.label('nogo')
    p(f'''s_cmp_lg_u32 s{sSI}, 0
    s_cbranch_scc1 {Lk}
    v_mov_b32 v4, 0
    v_mov_b32 v5, 0
    v_mov_b32 v6, 0
    v_mov_b32 v7, 0
    v_lshlrev_b32 v1, 4, v0''')
    for i in range(8): p(f's_mov_b32 s{sT0}, {4096*i}\nbuffer_store_dwordx4 v[4:7], v1, {srd(S_WS)}, s{sT0} offen sc1', 'untracked')
    p(f'{Lk}:')
    def go(nl):
        p(f's_cmp_lg_u32 s{sSI}, 0\ns_cbranch_scc1 {Lg}')
        p(f's_waitcnt vmcnt({nl})', 'untracked'); p.ins[-1].kind = 'misc'
        p(f's_barrier\ns_cmp_lg_u32 s{sW}, 0\ns_cbranch_scc1 {Lg}\ns_mov_b64 exec, 1')
        p(f'buffer_store_dword v{vONE}, off, {srd(S_DBG)}, 0 sc1', 'untracked')
        p(f's_mov_b64 exec, -1\n{Lg}:')
    def faddr():
        p(f'''s_add_u32 s{sT0}, s{sSI}, 192
        s_lshl_b32 s{sT0}, s{sT0}, 5
        s_add_u32 s{sT0}, s{sT0}, s{sW}
        s_lshl_b32 s11, s{sT0}, 2
        s_add_u32 s{sT1}, s{sW}, 224
        s_lshl_b32 s{sT1}, s{sT1}, 5
        s_add_u32 s{sT1}, s{sT1}, s{sSI}
        s_lshl_b32 s12, s{sT1}, 2''')
    xi = [G(x) for x in groups(as_list(spare_issue_x), lambda I: I.kind == 'vm')]
    spare_issue_w(p); par_loads(p); spare_issue_g(p); flag_setup(p, True); rot2_setup(p, cfg['r2']); faddr()
    go(21)
    sx = cfg['sx']
    spare_wd(p, [[]] * sx + xi if sx < 99 else [])
    sst(1)
    p.extend(F.poll_issue(vF, vPGO, S_DBG))
    if sx >= 99: p.extend(xi[:cfg['xn']])
    tail_setup(p)
    p.extend(F.poll_check(vF, vPGO, S_DBG))
    p.waitvm('wst'); p.extend(F.flag(11, vONE)); sst(2)
    if sx >= 99: p.extend(xi[cfg['xn']:])
    q = Prog()
    if stamps: q(f's_memtime s[100:101]\ns_waitcnt lgkmcnt(0)\ns_mov_b32 s91, s100')
    spare_ut(p, q.ins)
    p.extend(F.poll_issue(vFW, vPWD, S_WS)); wd_setup(p)
    gl = as_list(spare_g); p.extend(gl[:-1])
    p.waitvm('ust'); p.extend(F.flag(12, vONE)); sst(4)
    p.extend(gl[-1:])
    p.extend(F.poll_check(vFW, vPWD, S_WS))
    p('s_barrier')
    kgen_valu(p, [(0.05, 0.9, wl[:k // 2]), (0.95, 0.95, [G([Ins('WAITVM gst'), f's_add_u32 s11, s11, 16'] + F.flag(11, vONE))]), (0.99, 0.99, F.poll_issue(vF, vPUT, S_WS, 2, True))]); kgen_mfma(p)
    p.extend(F.poll_check(vF, vPUT, S_WS, 2, True))
    p('s_waitcnt lgkmcnt(0)\ns_barrier')
    u_loads(p)
    p.extend(zero_fill()); p.extend(rd); p.extend(wl[k // 2:k // 2 + 4]); p.extend(wr); p.extend(wl[k // 2 + 4:k])
    p.extend(u_put())
    sst(5)
    if stamps: p('s_memtime s[100:101]\ns_waitcnt lgkmcnt(0)')
    conv_setup(p); p('FORGETVM\ns_waitcnt lgkmcnt(0)\ns_barrier'); p.extend(r0)
    p(f's_waitcnt lgkmcnt(0)\ns_branch {Ltail}')
    for x in F.slow: p(x)
    p('L_end:')
    return p
```

```python
import sys
from core import *
KN = 'gated_mix__ssm_conv_s4d__glu_gated_reglu__prompt'
WS_WDT, WS_UT, WS_G, WS_H, WS_AT = 0x100000, 0x300000, 0x500000, 0x600000, 0xD00000
S_X, S_WG, S_WU, S_WS, S_OUT, S_P, S_DBG = 36, 40, 44, 48, 52, 56, 60
sXCD, sJ, sW, sMI, sFI, sST, sDT, sROT, sKX, sKW, sXM, sWM, sSI, sPI = range(64, 78)
sT0, sT1, sT2, sT3, sT4, sT5 = range(80, 86)
sSP = 86
def srd(i): return f's[{i}:{i+3}]'
def vr(a, n=1): return f'v{a}' if n == 1 else f'v[{a}:{a+n-1}]'
def ar(a, n=1): return f'a{a}' if n == 1 else f'a[{a}:{a+n-1}]'
vL = 255

ROT = dict(
  a=f's_lshl_b32 s{sT2}, s{sT0}, 1\ns_add_u32 s{sROT}, s{sT2}, s{sDT}',
  z=f's_mov_b32 s{sROT}, 0',
  x=f's_mov_b32 s{sROT}, s{sXCD}',
  b=f's_add_u32 s{sROT}, s{sT0}, s{sDT}',
  c=f's_lshl_b32 s{sT2}, s{sT0}, 1\ns_add_u32 s{sROT}, s{sT2}, s{sDT}\ns_lshr_b32 s{sT2}, s{sXCD}, 2\ns_add_u32 s{sROT}, s{sROT}, s{sT2}',
  d=f's_add_u32 s{sROT}, s{sT0}, s{sDT}\ns_and_b32 s{sROT}, s{sROT}, 1\ns_add_u32 s{sROT}, s{sROT}, s{sXCD}',
  e=f's_add_u32 s{sROT}, s{sT0}, s{sDT}\ns_and_b32 s{sROT}, s{sROT}, 3\ns_add_u32 s{sROT}, s{sROT}, s{sXCD}',
  f=f's_add_u32 s{sROT}, s{sT0}, s{sDT}\ns_lshr_b32 s{sT2}, s{sXCD}, 2\ns_lshl_b32 s{sT2}, s{sT2}, 2\ns_add_u32 s{sROT}, s{sROT}, s{sT2}',
)
def mk_srd(p, d, ptr, size):
    p(f's_mov_b32 s{d}, s{ptr}\ns_mov_b32 s{d+1}, s{ptr+1}\ns_mov_b32 s{d+2}, {hex(size)}\ns_mov_b32 s{d+3}, 0x00020000')

def prologue(p, rot='z', ctouch=0, defer=False):
    L = p.label('go')
    p(f'''s_cmp_lt_u32 s2, 256
    s_cbranch_scc1 {L}
    s_endpgm
    {L}:
    s_load_dwordx16 s[4:19], s[0:1], 0
    s_load_dwordx8 s[20:27], s[0:1], 64
    s_load_dwordx4 s[28:31], s[0:1], 96
    s_load_dwordx2 s[32:33], s[0:1], 112
    s_lshr_b32 s{sJ}, s2, 3''')
    if ctouch:
        p(f'''s_getpc_b64 s[{sT2}:{sT3}]
        L_pc:
        v_and_b32 v2, 7, v0
        v_lshl_add_u32 v2, s{sJ}, 3, v2
        v_min_u32 v2, (L_end-L_pc-4)/128, v2
        v_lshlrev_b32 v2, 7, v2
        v_mov_b32 v3, s{sT3}
        v_add_co_u32 v2, vcc, s{sT2}, v2
        v_addc_co_u32 v3, vcc, 0, v3, vcc''')
        p('global_load_dword v254, v[2:3], off', 'untracked')
    p(f'''v_lshrrev_b32 v1, 6, v0
    v_and_b32 v{vL}, 63, v0
    v_readfirstlane_b32 s{sW}, v1
    s_and_b32 s{sXCD}, s2, 7
    s_and_b32 s{sT0}, s{sJ}, 3
    s_lshr_b32 s{sDT}, s{sJ}, 2
    s_lshr_b32 s{sT1}, s{sXCD}, 2
    s_lshl_b32 s{sT1}, s{sT1}, 2
    s_add_u32 s{sMI}, s{sT1}, s{sT0}
    s_and_b32 s{sT1}, s{sXCD}, 3
    s_mul_i32 s{sT1}, s{sT1}, 7
    s_add_u32 s{sFI}, s{sT1}, s{sDT}
    s_lshl_b32 s{sT1}, s{sXCD}, 2
    s_add_u32 s{sST}, s{sT1}, s{sT0}
    {ROT[rot]}
    s_and_b32 s{sROT}, s{sROT}, 7''')
    for d, n in ((S_X, 2048 * 1024), (S_WG, 512 * 3584), (S_WU, 512 * 3584)): p(f's_mov_b32 s{d+2}, {hex(n)}\ns_mov_b32 s{d+3}, 0x00020000')
    if not defer: prologue2(p)
def srd_bases(p):
    for d, ptr in ((S_X, 4), (S_WG, 20), (S_WU, 22)): p(f's_mov_b64 s[{d}:{d+1}], s[{ptr}:{ptr+1}]')
def prologue2(p, bases=True):
    if bases: srd_bases(p)
    p(f's_mov_b32 s{sSI}, s{sST}')
    mk_srd(p, S_WS, 32, 0x10000000); mk_srd(p, S_OUT, 28, 2048 * 1024); mk_srd(p, S_DBG, 30, 256)

G1_B, G1_A, G1_XR, G1_WR, G1_DX, G1_DW = 128, 144, 176, 180, 182, 190
def acc1(st, mat, ft): return 16 * (4 * st + 2 * mat + ft)
def g1_setup(p):
    t0, t1, t2, t3 = 192, 193, 194, 195
    p(f'''v_lshrrev_b32 v{t0}, 3, v{vL}
    v_and_b32 v{t1}, 7, v{vL}
    v_lshrrev_b32 v{t2}, 1, v{t0}
    v_xor_b32 v{t3}, v{t1}, v{t2}
    v_lshlrev_b32 v{t3}, 4, v{t3}
    v_lshl_add_u32 v{t3}, v{t0}, 10, v{t3}
    s_lshl_b32 s{sT0}, s{sMI}, 2
    s_add_u32 s{sT0}, s{sT0}, s{sW}
    s_lshl_b32 s{sT0}, s{sT0}, 16
    v_add_u32 v{G1_DX}, s{sT0}, v{t3}
    v_xor_b32 v{G1_DX+1}, 64, v{G1_DX}''')
    for i in range(7, 0, -1):
        p(f'v_add_u32 v{G1_DX+i}, {8192*i - 1024*(i&3)}, v{G1_DX+(i&1)}')
    p(f'''v_and_b32 v{t2}, 1, v{t2}
    v_lshlrev_b32 v{t2}, 2, v{t2}
    v_xor_b32 v{t2}, v{t1}, v{t2}
    v_lshlrev_b32 v{t2}, 4, v{t2}
    v_mul_u32_u24 v{t0}, 3584, v{t0}
    s_mul_i32 s{sT0}, s{sW}, {16*3584}
    s_lshl_b32 s{sT1}, s{sFI}, 7
    s_add_u32 s{sT0}, s{sT0}, s{sT1}
    v_add3_u32 v{G1_DW}, v{t0}, v{t2}, s{sT0}
    v_add_u32 v{G1_DW+1}, {8*3584-1024}, v{G1_DW}
    s_lshl_b32 s{sXM}, s{sW}, 13
    s_lshl_b32 s{sWM}, s{sW}, 11
    s_add_u32 s{sWM}, s{sWM}, 98304''')
def g1_dma(t):
    sl = t % 3; o = []
    o.append(f's_add_u32 s{sT0}, s{sROT}, {t}\ns_and_b32 s{sT0}, s{sT0}, 7\ns_lshl_b32 s{sKX}, s{sT0}, 7\ns_mul_i32 s{sKW}, s{sT0}, {64*3584}')
    for mat, S in ((0, S_WG), (1, S_WU)):
        o.append(f's_add_u32 m0, s{sWM}, {sl*16384 + mat*8192}')
        for i in range(2): o.append(f'buffer_load_dwordx4 v{G1_DW+i}, {srd(S)}, s{sKW} offen offset:{1024*i} lds')
    for i in range(8):
        if i % 4 == 0: o.append(f's_add_u32 m0, s{sXM}, {sl*32768 + 1024*i}')
        o.append(f'buffer_load_dwordx4 v{G1_DX+i}, {srd(S_X)}, s{sKX} offen offset:{1024*(i&3)} lds')
    o[-1] = (o[-1], f'dma{t}')
    return o
vTX, vTW, vTD = 248, 249, 250
def touch_setup(p):
    t0, t1 = 192, 193
    p(f'''v_lshrrev_b32 v{t0}, 1, v{vL}
    v_min_u32 v{t0}, 9, v{t0}
    s_mul_i32 s{sT1}, s{sDT}, 10
    v_add_u32 v{t0}, s{sT1}, v{t0}
    v_min_u32 v{t0}, 63, v{t0}
    v_and_b32 v{t1}, 1, v{vL}
    v_lshlrev_b32 v{t1}, 7, v{t1}
    v_lshl_add_u32 v{t0}, v{t0}, 10, v{t1}
    s_lshl_b32 s{sT0}, s{sMI}, 2
    s_add_u32 s{sT0}, s{sT0}, s{sW}
    s_lshl_b32 s{sT0}, s{sT0}, 16
    v_add_u32 v{vTX}, s{sT0}, v{t0}
    v_and_b32 v{t0}, 3, v{vL}
    v_bfe_u32 v{t1}, v{vL}, 2, 1
    v_lshl_add_u32 v{t0}, v{t1}, 6, v{t0}
    s_and_b32 s{sT0}, s{sJ}, 3
    s_lshl_b32 s{sT0}, s{sT0}, 2
    s_add_u32 s{sT0}, s{sT0}, s{sW}
    s_lshl_b32 s{sT0}, s{sT0}, 2
    v_add_u32 v{t0}, s{sT0}, v{t0}
    v_mul_u32_u24 v{t0}, 3584, v{t0}
    s_lshl_b32 s{sT1}, s{sFI}, 7
    v_add_u32 v{vTW}, s{sT1}, v{t0}''')
def touch(c):
    return [f's_add_u32 s{sT4}, s{sROT}, {c}\ns_and_b32 s{sT4}, s{sT4}, 7\ns_lshl_b32 s{sT5}, s{sT4}, 7\ns_mul_i32 s{sT4}, s{sT4}, {64*3584}',
            f's_mov_b64 exec, 0xff\nbuffer_load_dword v{vTD}, v{vTW}, {srd(S_WG)}, s{sT4} offen\nbuffer_load_dword v{vTD+1}, v{vTW}, {srd(S_WU)}, s{sT4} offen\ns_mov_b64 exec, 0xfffff\nbuffer_load_dword v{vTD+2}, v{vTX}, {srd(S_X)}, s{sT5} offen\ns_mov_b64 exec, -1']
def g1_setup2(p):
    t0, t1, t2, t3 = 192, 193, 194, 195
    p(f'''v_and_b32 v{t0}, 31, v{vL}
    v_lshrrev_b32 v{t1}, 5, v{vL}
    v_bfe_u32 v{t2}, v{vL}, 1, 3
    v_xor_b32 v{t2}, v{t2}, v{t1}
    v_lshlrev_b32 v{t2}, 4, v{t2}
    v_lshl_add_u32 v{t2}, v{t0}, 7, v{t2}
    v_add_u32 v{G1_XR}, s{sXM}, v{t2}''')
    for s in range(1, 4): p(f'v_xor_b32 v{G1_XR+s}, {32*s}, v{G1_XR}')
    p(f'''v_bfe_u32 v{t0}, v{vL}, 2, 2
    v_lshl_add_u32 v{t0}, v{t1}, 3, v{t0}
    v_bfe_u32 v{t1}, v{vL}, 4, 1
    v_bfe_u32 v{t2}, v{vL}, 1, 1
    v_lshl_add_u32 v{t1}, v{t1}, 1, v{t2}
    v_bfe_u32 v{t2}, v{vL}, 3, 1
    v_lshl_add_u32 v{t1}, v{t2}, 2, v{t1}
    v_and_b32 v{t2}, 1, v{vL}
    v_lshlrev_b32 v{t2}, 3, v{t2}
    v_lshl_add_u32 v{t2}, v{t1}, 4, v{t2}
    v_lshl_add_u32 v{t2}, v{t0}, 7, v{t2}
    v_add_u32 v{G1_WR}, 98304, v{t2}
    v_xor_b32 v{G1_WR+1}, 64, v{G1_WR}''')
def g1_reads(t, s):
    b = (4 * t + s) & 1; sl = t % 3; o = []
    B = lambda st: f'ds_read_b128 {vr(G1_B + 8*b + 4*st, 4)}, v{G1_XR+s} offset:{(sl&1)*32768 + st*4096}'
    tog = f'v_add_u32 v{G1_XR+s}, 0x10000, v{G1_XR+s}\n' if sl == 2 else f'v_subrev_u32 v{G1_XR+s}, 0x10000, v{G1_XR+s}\n' if sl == 0 and t else ''
    o.append(tog + B(0))
    for mat in range(2):
        for ft in range(2):
            r = G1_A + 16 * b + 4 * (2 * mat + ft)
            for h in range(2):
                o.append(f'ds_read_b64_tr_b16 {vr(r+2*h, 2)}, v{G1_WR+ft} offset:{sl*16384 + mat*8192 + s*2048 + h*512}')
    o.append(B(1))
    return o
def g1_mfmas(t, s):
    b = (4 * t + s) & 1; o = []
    for st in range(2):
        for mat in range(2):
            for ft in range(2):
                c = acc1(st, mat, ft)
                src = '0' if (t == 0 and s == 0) else vr(c, 16)
                o.append(f'v_mfma_f32_32x32x16_bf16 {vr(c,16)}, {vr(G1_A + 16*b + 4*(2*mat+ft), 4)}, {vr(G1_B + 8*b + 4*st, 4)}, {src}')
    return o
def g1_main(p, extra=None, post=None, ini=3):
    extra = extra or {}; post = post or {}
    p.waitvm('dma0'); p('s_barrier')
    p.extend(g1_reads(0, 0))
    pend = [x for t in range(ini, 3) for x in g1_dma(t)]
    for t in range(8):
        for s in range(4):
            mf = g1_mfmas(t, s)
            slots = [[] for _ in range(8)]
            if s < 3:
                rd = g1_reads(t, s + 1)
                for i, x in enumerate(rd): slots[i // 2].append(x)
            elif t < 7:
                slots[1] += [Ins('s_waitcnt lgkmcnt(0)'), Ins(f'WAITVM dma{t+1}'), 's_barrier']
                rd = g1_reads(t + 1, 0)
                for i, x in enumerate(rd): slots[1 + i // 2].append(x)
                slots[1] += post.get(t, [])
                if t + 3 < 8: pend = g1_dma(t + 3)
            else:
                slots[1] += [Ins('s_waitcnt lgkmcnt(0)'), 's_barrier'] + post.get(t, [])
            lo = 6 if s == 3 else 5 if (s < 2 and (t or ini > 1)) else 0
            if s == 3: n = min(len(pend), 4)
            elif s < 2: n = min(len(pend), 7) if (t or ini > 1) else 17
            else: n = len(pend)
            for i in range(n): slots[lo + i * (8 - lo) // max(n, 1)].append(pend.pop(0))
            ex = extra.get((t, s), [])
            for i, x in enumerate(ex): slots[i * 8 // len(ex)].append(x)
            for m in range(8):
                p(mf[m]); p.extend(slots[m])
    assert not pend
def g1_epilogue(p, fill=()):
    fill = list(fill); nf = len(fill)
    H, va = 128, 192
    p(f'''s_lshl_b32 s{sT0}, s{sMI}, 2
    s_add_u32 s{sT0}, s{sT0}, s{sW}
    s_lshl_b32 s{sT0}, s{sT0}, 10
    s_lshl_b32 s{sT1}, s{sFI}, 18
    s_add_u32 s{sT0}, s{sT0}, s{sT1}
    s_add_u32 s{sT0}, s{sT0}, {WS_H}
    v_lshlrev_b32 v{va}, 4, v{vL}''')
    for ft in range(2):
        for q in range(4):
            R = H + 4 * (4 * ft + q)
            for st in range(2):
                g = acc1(st, 0, ft) + 4 * q; u = acc1(st, 1, ft) + 4 * q
                for e in range(4): p(f'v_max_f32 v{g+e}, 0, v{g+e}')
                for e in (0, 2): p(f'v_pk_mul_f32 {vr(g+e,2)}, {vr(g+e,2)}, {vr(u+e,2)}')
                for e in (0, 2): p(f'v_cvt_pk_bf16_f32 v{R + 2*st + e//2}, v{g+e}, v{g+e+1}')
            p(f'v_permlane32_swap_b32 v{R}, v{R+2}\nv_permlane32_swap_b32 v{R+1}, v{R+3}')
            p(f'buffer_store_dwordx4 {vr(R,4)}, v{va}, {srd(S_WS)}, s{sT0} offen sc1', 'hst')
            if (ft, q) != (1, 3): p(f's_add_u32 s{sT0}, s{sT0}, 32768')
            i = 4 * ft + q
            p.extend(fill[nf * i // 8: nf * (i + 1) // 8])

def k_gemm1():
    p = Prog(); prologue(p)
    L = p.label('main')
    p(f's_cmp_lt_u32 s{sJ}, 28\ns_cbranch_scc1 {L}\ns_endpgm\n{L}:')
    g1_setup(p)
    for t in range(3): p.extend(g1_dma(t))
    g1_setup2(p)
    g1_main(p); g1_epilogue(p)
    p('s_endpgm')
    return p

SP_X = 0
SP_W = 73728
def spare_issue_w(p):
    t0, t1, t2, t3, vw, vx = 1, 2, 3, 4, 8, 10
    mk_srd(p, S_P, 24, 1792 * 1024)
    p(f'''s_lshr_b32 s{sT0}, s{sSI}, 3
    s_lshl_b32 s{sT0}, s{sT0}, 2
    s_add_u32 s{sT0}, s{sT0}, s{sW}
    s_mul_i32 s{sT0}, s{sT0}, {112*1024}
    s_and_b32 s{sT1}, s{sSI}, 7
    s_lshl_b32 s{sT1}, s{sT1}, 7
    s_add_u32 s{sT0}, s{sT0}, s{sT1}
    v_lshrrev_b32 v{t0}, 3, v{vL}
    v_and_b32 v{t1}, 7, v{vL}
    v_bfe_u32 v{t2}, v{vL}, 4, 1
    v_lshlrev_b32 v{t2}, 2, v{t2}
    v_xor_b32 v{t2}, v{t1}, v{t2}
    v_lshlrev_b32 v{t2}, 4, v{t2}
    v_lshl_add_u32 v{vw}, v{t0}, 10, v{t2}
    s_mul_i32 s{sWM}, s{sW}, 14336
    s_add_u32 s{sWM}, s{sWM}, {SP_W}''')
    for i in range(14):
        p(f's_add_u32 m0, s{sWM}, {1024*i}')
        p(f'buffer_load_dwordx4 v{vw}, {srd(S_P)}, s{sT0} offen lds', f'wdma{i//2}')
        if i < 13: p(f's_add_u32 s{sT0}, s{sT0}, 8192')
def spare_issue_x(p):
    t0, t1, t2, t3, vw, vx = 1, 2, 3, 4, 8, 10
    p(f'''s_lshl_b32 s{sT1}, s{sW}, 2
    s_and_b32 s{sT1}, s{sT1}, 7
    v_xor_b32 v{t0}, s{sT1}, v{vL}
    v_lshlrev_b32 v{vx}, 4, v{t0}
    v_xor_b32 v{vx+1}, 16, v{vx}
    v_xor_b32 v{vx+2}, 32, v{vx}
    v_xor_b32 v{vx+3}, 48, v{vx}
    s_lshl_b32 s{sT0}, s{sSI}, 2
    s_add_u32 s{sT0}, s{sT0}, s{sW}
    s_lshl_b32 s{sT0}, s{sT0}, 14
    s_mul_i32 s{sXM}, s{sW}, {16*1152}''')
    for i in range(16):
        p(f's_add_u32 m0, s{sXM}, {SP_X + 1152*i}')
        p(f'buffer_load_dwordx4 v{vx + 2*(i>>3) + ((i>>1)&1)}, {srd(S_X)}, s{sT0} offen lds', 'xdma')
        if i < 15: p(f's_add_u32 s{sT0}, s{sT0}, 1024')
def spare_issue_g(p):
    t0 = 1
    mk_srd(p, S_WG, 26, 1024)
    p(f'v_and_b32 v{t0}, 3, v{vL}\nv_lshlrev_b32 v{t0}, 4, v{t0}')
    for i in range(16): p(f'buffer_load_dwordx4 {vr(128+4*i,4)}, v{t0}, {srd(S_WG)}, 0 offen offset:{64*i}')
def spare_wd(p, fill=()):
    t0, t1, t2, ra, va = 1, 2, 3, 6, 14
    p(f'''v_lshrrev_b32 v{t1}, 5, v{vL}
    v_bfe_u32 v{t0}, v{vL}, 2, 2
    v_lshl_add_u32 v{t0}, v{t1}, 3, v{t0}
    v_bfe_u32 v{t1}, v{vL}, 4, 1
    v_bfe_u32 v{t2}, v{vL}, 1, 1
    v_lshl_add_u32 v{t1}, v{t1}, 1, v{t2}
    v_bfe_u32 v{t2}, v{vL}, 3, 1
    v_lshl_add_u32 v{t1}, v{t2}, 2, v{t1}
    v_and_b32 v{t2}, 1, v{vL}
    v_lshlrev_b32 v{t2}, 3, v{t2}
    v_lshl_add_u32 v{t2}, v{t1}, 4, v{t2}
    v_lshl_add_u32 v{t2}, v{t0}, 7, v{t2}
    v_add_u32 v{ra}, s{sWM}, v{t2}
    v_xor_b32 v{ra+1}, 64, v{ra}
    v_lshlrev_b32 v{va}, 4, v{vL}
    s_and_b32 s{sT0}, s{sSI}, 7
    s_lshl_b32 s{sT0}, s{sT0}, 2
    s_lshr_b32 s{sT1}, s{sSI}, 3
    s_add_u32 s{sT0}, s{sT0}, s{sT1}
    s_lshl_b32 s{sT0}, s{sT0}, 2
    s_add_u32 s{sT0}, s{sT0}, s{sW}
    s_mul_i32 s{sT0}, s{sT0}, 14336
    s_add_u32 s{sT5}, s{sT0}, {WS_WDT}''')
    def st(i):
        p(f'buffer_store_dwordx4 {vr(16+4*i,4)}, v{va}, {srd(S_WS)}, s{sT5} offen offset:{1024*(i&3)} sc1', 'wst')
        if i & 3 == 3: p(f's_add_u32 s{sT5}, s{sT5}, 4096')
    fill = list(fill); nf = len(fill)
    for s in range(8):
        if s < 7:
            p.waitvm(f'wdma{s}')
            for d in range(2):
                r = 16 + 4 * (2 * s + d)
                for h in range(2): p(f'ds_read_b64_tr_b16 {vr(r+2*h,2)}, v{ra+d} offset:{s*2048 + h*512}')
        if s: st(2 * s - 2); st(2 * s - 1)
        p.extend(fill[nf * s // 8: nf * (s + 1) // 8])
def spare_ut(p):
    t0, t1, t2, t3, ra, va = 1, 2, 3, 4, 72, 14
    p(f'''v_and_b32 v{t0}, 3, v{vL}
    v_lshrrev_b32 v{t1}, 5, v{vL}
    v_lshl_add_u32 v{t1}, v{t1}, 2, v{t0}
    v_bfe_u32 v{t2}, v{vL}, 2, 2
    v_lshl_add_u32 v{t1}, v{t1}, 3, v{t2}
    v_mul_u32_u24 v{t1}, 1152, v{t1}
    v_bfe_u32 v{t2}, v{vL}, 3, 1
    v_lshl_add_u32 v{t0}, v{t0}, 1, v{t2}
    v_lshl_add_u32 v{t1}, v{t0}, 4, v{t1}
    v_bfe_u32 v{t2}, v{vL}, 4, 1
    v_lshl_add_u32 v{t1}, v{t2}, 3, v{t1}
    s_lshl_b32 s{sT0}, s{sW}, 8
    v_add_u32 v{ra}, s{sT0}, v{t1}''')
    for k in range(1, 8): p(f'v_xor_b32 v{ra+k}, {16*k}, v{ra}')
    p(f'''v_and_b32 v{t0}, 15, v{vL}
    v_lshlrev_b32 v{t0}, 4, v{t0}
    v_lshrrev_b32 v{t1}, 5, v{vL}
    v_lshl_add_u32 v{t0}, v{t1}, 8, v{t0}
    v_lshl_add_u32 v{va}, v{t2}, 14, v{t0}
    s_lshl_b32 s{sT0}, s{sW}, 19
    s_lshl_b32 s{sT1}, s{sSI}, 9
    s_add_u32 s{sT0}, s{sT0}, s{sT1}
    s_add_u32 s{sT0}, s{sT0}, {WS_UT}''')
    p.waitvm('xdma'); p('s_barrier')
    for k in range(16):
        r = 16 + 4 * (k % 8) if k < 8 else 80 + 4 * (k % 8)
        for h in range(2): p(f'ds_read_b64_tr_b16 {vr(r+2*h,2)}, v{ra+(k&7)} offset:{SP_X + (k>>3)*128 + h*4608}')
    for k in range(16):
        r = 16 + 4 * (k % 8) if k < 8 else 80 + 4 * (k % 8)
        p(f'buffer_store_dwordx4 {vr(r,4)}, v{va}, {srd(S_WS)}, s{sT0} offen sc1', 'ust')
        if k < 15: p(f's_add_u32 s{sT0}, s{sT0}, 32768')
def spare_g(p):
    t0, t1, t2, ra, ac = 1, 2, 3, 8, 10
    p(f'''s_lshl_b32 s{sT0}, s{sW}, 4
    v_lshrrev_b32 v{t0}, 2, v{vL}
    v_add_u32 v{t0}, s{sT0}, v{t0}
    v_bfe_u32 v{t1}, v{t0}, 3, 2
    v_bfe_u32 v{t2}, v{t0}, 1, 1
    v_lshl_add_u32 v{t1}, v{t1}, 1, v{t2}
    v_and_b32 v{t2}, 3, v{vL}
    v_xor_b32 v{t1}, v{t1}, v{t2}
    v_mul_u32_u24 v{ra}, 1152, v{t0}
    v_lshl_add_u32 v{ra}, v{t1}, 4, v{ra}
    v_xor_b32 v{ra+1}, 64, v{ra}''')
    for i in range(16): p(f'ds_read_b128 {vr(16+4*i,4)}, v{ra+(i&1)} offset:{SP_X + (i>>1)*128}')
    for e in range(4): p(f'v_mov_b32 v{ac+e}, 0')
    for i in range(16):
        for e in range(4): p(f'v_dot2c_f32_bf16 v{ac+e}, v{16+4*i+e}, v{128+4*i+e}')
    p(f'''v_add_f32 v{ac}, v{ac}, v{ac+1}
    v_add_f32 v{ac+2}, v{ac+2}, v{ac+3}
    v_add_f32 v{ac}, v{ac}, v{ac+2}
    v_add_f32_dpp v{ac+1}, v{ac}, v{ac} quad_perm:[1,0,3,2] row_mask:0xf bank_mask:0xf
    v_add_f32_dpp v{ac}, v{ac+1}, v{ac+1} quad_perm:[2,3,0,1] row_mask:0xf bank_mask:0xf
    v_cvt_pk_bf16_f32 v{ac}, v{ac}, v{ac}
    v_and_b32 v{ac}, 0xffff0000, v{ac}
    v_mul_f32 v{ac}, 0xbfb8aa3b, v{ac}
    v_exp_f32 v{ac}, v{ac}
    v_add_f32 v{ac}, 1.0, v{ac}
    v_rcp_f32 v{ac}, v{ac}
    v_cvt_pk_bf16_f32 v{ac}, v{ac}, v{ac}
    v_and_b32 v{ac}, 0xffff0000, v{ac}
    s_lshl_b32 s{sT0}, s{sSI}, 8
    s_add_u32 s{sT0}, s{sT0}, {WS_G}
    v_lshlrev_b32 v{t0}, 2, v{t0}''')
    p(f'buffer_store_dword v{ac}, v{t0}, {srd(S_WS)}, s{sT0} offen sc1', 'gst')

def k_spare():
    p = Prog(); prologue(p)
    L = p.label('main')
    p(f's_cmp_ge_u32 s{sJ}, 28\ns_cbranch_scc1 {L}\ns_endpgm\n{L}:')
    spare_issue(p); spare_wd(p); spare_ut(p); spare_g(p)
    p('s_endpgm')
    return p

KT, KTS, KR = 65536, 65536, 528
TL, TLS = 159056, 2064
IMG, IMS = 131072, 8320
UIM, UIS = 147712, 4672
RED = 0
AS = 32768
P2 = 49152
vPAR = 196
vGA = 202
def vE(e): return vGA + 16 if e < 0 else vGA + 8 + (15 - e) // 2 if e & 1 else vGA + (14 - e) // 2
vTA = 219
vZA = 222
vDM = 223
def par_loads(p):
    t0, t1 = 192, 193
    p(f'''s_lshl_b32 s{sT0}, s{sPI}, 2
    s_add_u32 s{sT0}, s{sT0}, s{sW}
    s_lshl_b32 s{sT1}, s{sT0}, 7
    v_lshl_add_u32 v{t0}, v{vL}, 1, s{sT1}
    s_lshr_b32 s{sT0}, s{sT0}, 1
    s_lshl_b32 s{sT0}, s{sT0}, 1
    v_mov_b32 v{t1}, s{sT0}''')
    for i in range(4): p(f'global_load_short_d16_hi v{vPAR+i}, v{t0}, s[{6+2*i}:{7+2*i}]')
    for i in range(2): p(f'global_load_short_d16_hi v{vPAR+4+i}, v{t1}, s[{14+2*i}:{15+2*i}]')
def par_zero(p):
    for i in range(6): p(f'v_mov_b32 v{vPAR+i}, 0')
def rne_off(s, e):
    q, r = divmod(e, 1 << s); h = (1 << s) // 2
    if s and (r > h or (r == h and q & 1)): q += 1
    return q
def tail_setup(p):
    t0, t1, t2, t3, t4 = 192, 193, 194, 195, 234
    p(f'''s_lshr_b32 s{sT0}, s{sW}, 1
    s_and_b32 s{sT1}, s{sW}, 1
    s_mul_i32 s{sT2}, s{sT0}, {TLS}
    s_add_u32 s{sT2}, s{sT2}, {TL}
    s_lshl_b32 s{sT3}, s{sT1}, 6
    s_sub_u32 s{sT3}, 127, s{sT3}
    v_sub_u32 v{t0}, s{sT3}, v{vL}
    v_lshlrev_b32 v{t1}, 4, v{t0}''')
    def idx(dst, src):
        p(f'''v_cvt_f32_u32 v{t3}, v{src}
        v_cvt_pk_bf16_f32 v{t3}, v{t3}, v{t3}
        v_and_b32 v{t3}, 0xffff, v{t3}
        v_subrev_u32 v{t3}, 17024, v{t3}
        v_min_i32 v{t4}, 128, v{src}
        v_max_i32 v{t3}, v{t3}, v{t4}
        v_lshl_add_u32 v{dst}, v{t3}, 1, s{sT2}''')
    idx(vE(0), t1)
    p(f'v_subrev_u32 v{t2}, 1, v{t1}\nv_max_i32 v{t2}, 0, v{t2}')
    idx(vE(-1), t2)
    p(f'''s_add_u32 s{sT3}, s{sT2}, 2048
    v_mov_b32 v{t2}, s{sT3}
    v_cmp_eq_u32 vcc, 0, v{t0}
    v_cndmask_b32 v{vE(-1)}, v{vE(-1)}, v{t2}, vcc
    v_ffbh_u32 v{t2}, v{t0}
    v_min_u32 v{t2}, 28, v{t2}
    v_sub_u32 v{t2}, 28, v{t2}
    v_lshlrev_b32 v{t2}, 3, v{t2}''')
    for e in range(1, 16):
        k = sum((2 * rne_off(s, e)) << (8 * s) for s in range(4))
        p(f's_mov_b32 s{sT3}, {hex(k)}\nv_bfe_u32 v{t3}, s{sT3}, v{t2}, 8\nv_add_u32 v{vE(e)}, v{vE(0)}, v{t3}')
    p(f'''v_and_b32 v{t0}, 15, v{vL}
    s_lshl_b32 s{sT3}, s{sT1}, 4
    v_add_u32 v{t0}, s{sT3}, v{t0}
    v_lshrrev_b32 v{t1}, 4, v{vL}
    v_lshlrev_b32 v{t2}, 3, v{t1}
    v_lshl_add_u32 v{t2}, v{t0}, 4, v{t2}
    v_lshlrev_b32 v{t3}, 3, v{t0}
    v_add_u32 v{t3}, 512, v{t3}
    v_cmp_eq_u32 vcc, 2, v{t1}
    v_cndmask_b32 v{t2}, v{t2}, v{t3}, vcc
    v_lshlrev_b32 v{t3}, 2, v{t0}
    v_add_u32 v{t3}, 768, v{t3}
    v_mov_b32 v{t4}, 4
    v_mov_b32 v{vTA+1}, 128
    v_cmp_eq_u32 vcc, 3, v{t1}
    v_cndmask_b32 v{t2}, v{t2}, v{t3}, vcc
    v_cndmask_b32 v{t4}, v{t4}, v{vTA+1}, vcc
    v_add_u32 v{vTA}, s{sT2}, v{t2}
    v_add_u32 v{vTA+1}, v{vTA}, v{t4}
    v_lshlrev_b32 v{t2}, 8, v{t1}
    v_lshl_add_u32 v{t2}, v{t0}, 1, v{t2}
    v_add_u32 v{vTA+2}, s{sT2}, v{t2}
    v_or_b32 v{t2}, v{t0}, v{t1}
    v_mov_b32 v{t3}, 0
    v_cmp_eq_u32 vcc, 0, v{t2}
    v_cndmask_b32 v{vDM}, v{t3}, 1.0, vcc''')
    p(f'''v_lshrrev_b32 v{t0}, 5, v{vL}
    v_mul_u32_u24 v{t0}, {UIS}, v{t0}
    v_and_b32 v{t1}, 31, v{vL}
    v_lshl_add_u32 v{t0}, v{t1}, 4, v{t0}
    v_add_u32 v{t0}, {UIM}, v{t0}
    v_bfe_u32 v{t1}, v{vL}, 1, 2
    v_mul_u32_u24 v{t1}, 4160, v{t1}
    v_and_b32 v{t2}, 1, v{vL}
    v_lshl_add_u32 v{t1}, v{t2}, 4, v{t1}
    v_add_u32 v{t1}, {IMG + 4096}, v{t1}
    v_mul_u32_u24 v{t2}, {TLS}, v{t2}
    v_add_u32 v{t2}, {TL + 2048}, v{t2}
    v_and_b32 v{t3}, 8, v{vL}
    v_cmp_eq_u32 vcc, 0, v{t3}
    v_cndmask_b32 v{t1}, v{t2}, v{t1}, vcc
    s_cmp_eq_u32 s{sW}, 0
    s_cselect_b64 vcc, -1, 0
    v_cndmask_b32 v{vZA}, v{t1}, v{t0}, vcc''')
HI = [0,1,2,3,4,5,6,7,256,258,260,262,512,516,768,772,1024,1280,1536,1792,2048]
def merge(chains):
    out = []; ch = [list(c) for c in chains]
    while any(ch):
        for c in ch:
            if c: out.append(c.pop(0))
    return out
def cmul(D, X, Y):
    return [f'v_pk_mul_f32 {vr(D,2)}, {vr(X,2)}, {vr(Y,2)} op_sel:[0,0] op_sel_hi:[0,1]',
            f'v_pk_fma_f32 {vr(D,2)}, {vr(X,2)}, {vr(Y,2)}, {vr(D,2)} op_sel:[1,1,0] op_sel_hi:[1,0,1] neg_lo:[0,1,0]']
def kgen_valu(p, fill=(), f0=40):
    lar, aim, cre, cim, ldt, dsk = range(vPAR, vPAR + 6)
    def expbf(x, t):
        return [f'v_mul_f32 v{t}, 0x3fb8aa3b, v{x}', f'v_fma_f32 v{t+1}, v{x}, s{sT2}, -v{t}', f'v_fmac_f32 v{t+1}, 0x32a57060, v{x}',
                f'v_exp_f32 v{t}, v{t}', f'v_mul_f32 v{t+1}, 0x3f317218, v{t+1}', f'v_fmac_f32 v{t}, v{t}, v{t+1}',
                f'v_cvt_pk_bf16_f32 v{t}, v{t}, v{t}', f'v_and_b32 v{x}, 0xffff0000, v{t}']
    vKA = 13
    p(f'''s_mov_b32 s{sT2}, 0x3fb8aa3b
    s_lshr_b32 s{sT0}, s{sW}, 1
    s_mul_i32 s{sT1}, s{sT0}, {TLS}
    s_add_u32 s{sT1}, s{sT1}, {TL + 2048}
    v_mov_b32 v10, s{sT1}
    s_mul_i32 s{sT0}, s{sT0}, {KTS}
    s_and_b32 s{sT1}, s{sW}, 1
    s_lshl_b32 s{sT1}, s{sT1}, 8
    s_add_u32 s{sT0}, s{sT0}, s{sT1}
    s_add_u32 s{sT0}, s{sT0}, {KT}
    v_lshl_add_u32 v{vKA}, v{vL}, 2, s{sT0}
    v_mov_b32 v11, 0
    v_mov_b32 v12, 0x3f80''')
    p(f'ds_write_b32 v10, v11\nds_write_b32 v{vKA}, v12')
    p0 = p; p = Prog()
    p.extend(merge([expbf(ldt, 0), expbf(lar, 2)]))
    a2, b2 = 4, 5
    Hreg = {h: 16 + 2 * i for i, h in enumerate(HI)}
    Lreg = {k: 58 + 2 * k for k in range(1, 32)}
    Z1, Z2, Z4, Z256 = 122, 124, 126, 128
    p(f'''v_mul_f32 v{a2}, v{lar}, v{ldt}
    v_mul_f32 v{b2}, v{aim}, v{ldt}
    v_mul_f32 v6, v{cre}, v{ldt}
    v_mul_f32 v7, v{cim}, v{ldt}
    v_mul_f32 v{a2}, 0xbfb8aa3b, v{a2}
    v_mul_f32 v{b2}, 0x3e22f983, v{b2}
    v_add_f32 v{Hreg[0]}, v6, v6
    v_add_f32 v{Hreg[0]+1}, v7, v7
    v_mul_f32 v{vDM}, v{vDM}, v{dsk}''')
    def direct(D, pw, t):
        o = []
        if pw != 1: o += [f'v_mul_f32 v{t}, {float(pw)}, v{a2}', f'v_mul_f32 v{t+1}, {float(pw)}, v{b2}', f'v_exp_f32 v{t}, v{t}', f'v_fract_f32 v{t+1}, v{t+1}']
        else: o += [f'v_exp_f32 v{t}, v{a2}', f'v_fract_f32 v{t+1}, v{b2}']
        o += [f'v_cos_f32 v{D}, v{t+1}', f'v_sin_f32 v{D+1}, v{t+1}', f'v_mul_f32 v{D}, v{D}, v{t}', f'v_mul_f32 v{D+1}, v{D+1}, v{t}']
        return o
    p.extend(merge([direct(Lreg[1], 8, 0), direct(Z256, 256, 2), direct(Z1, 1, 8)]))
    cv = [130]
    def put(reg, row, neg):
        t = cv[0]
        return [f'v_cvt_pk_bf16_f32 v{t}, v{reg}, {"-" if neg else ""}v{reg+1}', f'ds_write_b32 v{vKA}, v{t} offset:{row*KR}']
    ph = lambda h: put(Hreg[h], 32 + HI.index(h), True)
    pl = lambda k: put(Lreg[k], k, False)
    cv[0] = 130
    c1 = cmul(Lreg[2], Lreg[1], Lreg[1]) + pl(1) + cmul(Lreg[4], Lreg[2], Lreg[2]) + pl(2)
    cv[0] = 131
    c2 = cmul(Z2, Z1, Z1) + ph(0) + cmul(Lreg[3], Lreg[2], Lreg[1]) + cmul(Z4, Z2, Z2)
    cv[0] = 132
    c3 = cmul(Hreg[256], Hreg[0], Z256) + cmul(Hreg[1], Hreg[0], Z1) + ph(256) + ph(1)
    p.extend(merge([c1, c2, c3]))
    chains = []
    for k0 in range(1, 5):
        c = []; cv[0] = 132 + k0
        for k in range(k0, 32, 4):
            if k + 4 < 32: c += cmul(Lreg[k + 4], Lreg[k], Lreg[4])
            if k > 2: c += pl(k)
        chains.append(c)
    c = []; cv[0] = 137
    for h in range(2, 8): c += cmul(Hreg[h], Hreg[h - 1], Z1) + ph(h)
    for h in (258, 260, 262): c += cmul(Hreg[h], Hreg[h - 2], Z2) + ph(h)
    chains.append(c)
    c = []; cv[0] = 138
    for h in range(512, 2049, 256):
        c += cmul(Hreg[h], Hreg[h - 256], Z256) + ph(h)
        if h in (512, 768): c += cmul(Hreg[h + 4], Hreg[h], Z4) + ph(h + 4)
    chains.append(c)
    p.extend(merge(chains))
    weave(p0, p.ins, list(fill), start=f0, end=len(p.ins) - 10)
def kgen_mfma(p, fill=()):
    ra, rb, rc, t0, t1 = 0, 1, 12, 2, 3
    p(f'''s_lshr_b32 s{sT0}, s{sW}, 1
    s_mul_i32 s{sT0}, s{sT0}, {KTS}
    s_add_u32 s{sT0}, s{sT0}, {KT}
    s_and_b32 s{sT1}, s{sW}, 1
    s_mul_i32 s{sT1}, s{sT1}, {16*KR}
    v_and_b32 v{t0}, 15, v{vL}
    v_lshrrev_b32 v{t1}, 4, v{vL}
    v_lshl_add_u32 v{t1}, v{t1}, 4, s{sT0}
    v_mad_u32_u24 v{ra}, v{t0}, {'s'+str(sT3)}, v{t1}
    v_min_u32 v{t0}, 4, v{t0}
    v_mad_u32_u24 v{rc}, v{t0}, {'s'+str(sT3)}, v{t1}
    v_add_u32 v{rb}, s{sT1}, v{ra}
    s_waitcnt lgkmcnt(0)
    s_barrier'''.replace('v_and_b32', f's_mov_b32 s{sT3}, {KR}\n    v_and_b32', 1))
    p.extend(fill)
    F = lambda ks, i: 16 + 12 * ks + 4 * i
    for ks in range(8):
        p(f'ds_read_b128 {vr(F(ks,0),4)}, v{rb} offset:{64*ks}')
        p(f'ds_read_b128 {vr(F(ks,1),4)}, v{ra} offset:{64*ks + 32*KR}')
        p(f'ds_read_b128 {vr(F(ks,2),4)}, v{rc} offset:{64*ks + 48*KR}')
        if ks >= 3:
            k = ks - 3
            for mt in range(2): p(f'v_mfma_f32_16x16x32_bf16 {vr(4+4*mt,4)}, {vr(F(k,1+mt),4)}, {vr(F(k,0),4)}, {"0" if k == 0 else vr(4+4*mt,4)}')
    for k in range(5, 8):
        for mt in range(2): p(f'v_mfma_f32_16x16x32_bf16 {vr(4+4*mt,4)}, {vr(F(k,1+mt),4)}, {vr(F(k,0),4)}, {vr(4+4*mt,4)}')
    p(f'''v_add_f32 v4, v4, v{vDM}
    v_cvt_pk_bf16_f32 v5, v4, v5
    v_cvt_pk_bf16_f32 v6, v6, v7
    v_cvt_pk_bf16_f32 v8, v8, v9
    v_cvt_pk_bf16_f32 v10, v10, v11
    ds_write_b32 v{vTA}, v5
    ds_write_b32 v{vTA+1}, v6
    ds_write_b16 v{vTA+2}, v8 offset:1024
    ds_write_b16_d16_hi v{vTA+2}, v8 offset:1088
    ds_write_b16 v{vTA+2}, v10 offset:1152
    ds_write_b16_d16_hi v{vTA+2}, v10 offset:1216''')
def zero_fill():
    return ['v_mov_b32 v196, 0\nv_mov_b32 v197, 0', 'v_mov_b32 v198, 0\nv_mov_b32 v199, 0', f'ds_write_b128 v{vZA}, v[196:199]']
def expand():
    B, A, wa = vGA, vGA + 8, 200
    rd = [f'''s_lshr_b32 s{sT0}, s{sW}, 1
    s_mul_i32 s{sT0}, s{sT0}, {IMS}
    s_and_b32 s{sT1}, s{sW}, 1
    s_lshl_b32 s{sT1}, s{sT1}, 11
    s_add_u32 s{sT0}, s{sT0}, s{sT1}
    s_add_u32 s{sT0}, s{sT0}, {IMG}
    v_lshl_add_u32 v{wa}, v{vL}, 5, s{sT0}''']
    for k in range(8): rd += [f'ds_read_u16 v{A+k}, v{A+k}', f'ds_read_u16 v{B+k}, v{B+k}']
    rd.append(f'ds_read_u16 v{A+8}, v{A+8}')
    wr = []
    for k in range(8):
        wr.append(f'v_lshl_or_b32 v{192+k}, v{B+k}, 16, v{A+k}\nv_lshl_or_b32 v{B+k}, v{A+k+1}, 16, v{B+k}')
        if k & 3 == 3: wr += [f'ds_write_b128 v{wa}, {vr(189+k,4)} offset:{4*(k-3)}', f'ds_write_b128 v{wa}, {vr(B+k-3,4)} offset:{4160 + 4*(k-3)}']
    return rd, wr
vU = 224
def u_loads(p):
    t0, t1 = 232, 233
    p(f'''s_lshr_b32 s{sT0}, s{sPI}, 1
    s_lshl_b32 s{sT0}, s{sT0}, 14
    s_and_b32 s{sT1}, s{sPI}, 1
    s_lshl_b32 s{sT1}, s{sT1}, 5
    s_add_u32 s{sT0}, s{sT0}, s{sT1}
    s_lshl_b32 s{sT1}, s{sW}, 11
    s_add_u32 s{sT0}, s{sT0}, s{sT1}
    s_add_u32 s{sT0}, s{sT0}, {WS_UT}
    s_add_u32 s{sT1}, s{sT0}, 8192
    v_lshrrev_b32 v{t0}, 1, v{vL}
    v_and_b32 v{t1}, 1, v{vL}
    v_lshlrev_b32 v{t1}, 4, v{t1}
    v_lshl_add_u32 v{t0}, v{t0}, 6, v{t1}
    buffer_load_dwordx4 {vr(vU,4)}, v{t0}, {srd(S_WS)}, s{sT0} offen sc1
    buffer_load_dwordx4 {vr(vU+4,4)}, v{t0}, {srd(S_WS)}, s{sT1} offen sc1''')
def u_put():
    t0, t1 = 232, 233
    return [f'''s_lshl_b32 s{sT0}, s{sW}, 9
    s_add_u32 s{sT0}, s{sT0}, {UIM + 512}
    v_lshrrev_b32 v{t0}, 1, v{vL}
    v_and_b32 v{t1}, 1, v{vL}''', f'''v_mul_u32_u24 v{t1}, {UIS}, v{t1}
    v_lshl_add_u32 v{t0}, v{t0}, 4, v{t1}
    v_add_u32 v{t0}, s{sT0}, v{t0}''',
    f'ds_write_b128 v{t0}, {vr(vU,4)}', f'ds_write_b128 v{t0}, {vr(vU+4,4)} offset:2048']
def conv(p, extra=None):
    AR, BR, t0, t1, t2, t3 = 160, 164, 166, 167, 168, 169
    CA = lambda b, a: 32 + 64 * b + 4 * a
    CB = lambda b, j: 64 + 64 * b + 4 * j
    p(f'''s_lshr_b32 s{sT0}, s{sW}, 1
    s_and_b32 s{sT1}, s{sW}, 1
    s_lshl_b32 s{sT1}, s{sT1}, 8
    s_mul_i32 s{sT2}, s{sT0}, {IMS}
    s_sub_u32 s{sT2}, s{sT2}, s{sT1}
    s_add_u32 s{sT2}, s{sT2}, {IMG + 8220 - 192 - 512}
    s_mul_i32 s{sT3}, s{sT0}, {UIS}
    s_sub_u32 s{sT3}, s{sT3}, s{sT1}
    s_add_u32 s{sT3}, s{sT3}, {UIM + 480 - 192}
    v_and_b32 v{t0}, 15, v{vL}
    v_lshrrev_b32 v{t1}, 4, v{vL}
    v_lshlrev_b32 v{t1}, 4, v{t1}
    v_lshl_add_u32 v{t2}, v{t0}, 5, v{t1}
    v_add_u32 v{BR}, s{sT3}, v{t2}
    v_and_b32 v{t2}, 1, v{vL}
    v_mul_u32_u24 v{t2}, 4158, v{t2}
    v_lshl_add_u32 v{t2}, v{t0}, 1, v{t2}
    v_sub_u32 v{t2}, v{t1}, v{t2}
    v_add_u32 v{AR}, s{sT2}, v{t2}
    v_subrev_u32 v{AR+1}, 1024, v{AR}
    v_subrev_u32 v{AR+2}, 2048, v{AR}
    v_subrev_u32 v{AR+3}, 3072, v{AR}''')
    def reads(d):
        b = d & 1; o = []
        def A(a):
            off = 16 * (3 - d) + (128 if a % 2 == 0 else 0)
            return [f'ds_read2_b32 {vr(CA(b,a)+2*h,2)}, v{AR+a//2} offset0:{off+2*h} offset1:{off+2*h+1}' for h in range(2)]
        o += A(0)
        for j in range(8): o.append(f'ds_read_b128 {vr(CB(b,j),4)}, v{BR} offset:{512*j + 64*(3-d)}')
        for a in range(1, 8): o += A(a)
        return o
    p.extend(reads(0)[:12]); rest0 = reads(0)[12:]
    for d in range(4):
        b = d & 1; mf = []
        for a in range(8):
            for j in range(a, 8):
                mf.append(f'v_mfma_f32_16x16x32_bf16 {vr(4*j,4)}, {vr(CA(b,a),4)}, {vr(CB(b,j-a),4)}, {"0" if d == 0 and a == 0 else vr(4*j,4)}')
        fill = (rest0 if d == 0 else []) + (reads(d + 1) if d < 3 else [])
        weave(p, mf, fill, (extra or {}).get(d, []), end=34)
def conv_out(p, pre=()):
    wa, ra, va, t0, t1 = 163, 164, 165, 166, 167
    p(f'''s_lshl_b32 s{sT0}, s{sW}, 13
    v_lshrrev_b32 v{t0}, 5, v{vL}
    v_lshlrev_b32 v{t0}, 3, v{t0}
    v_xor_b32 v{t0}, v{t0}, v{vL}
    v_lshl_add_u32 v{wa}, v{t0}, 4, s{sT0}
    s_lshr_b32 s{sT0}, s{sW}, 1
    s_lshl_b32 s{sT0}, s{sT0}, 14
    s_and_b32 s{sT1}, s{sW}, 1
    s_lshl_b32 s{sT1}, s{sT1}, 12
    s_add_u32 s{sT0}, s{sT0}, s{sT1}
    v_and_b32 v{t0}, 1, v{vL}
    v_bfe_u32 v{t1}, v{vL}, 1, 4
    v_lshl_add_u32 v{t1}, v{t0}, 5, v{t1}
    v_lshlrev_b32 v{t0}, 3, v{t0}
    v_xor_b32 v{t1}, v{t1}, v{t0}
    v_lshrrev_b32 v{t0}, 5, v{vL}
    v_lshl_add_u32 v{t1}, v{t0}, 6, v{t1}
    v_lshl_add_u32 v{ra}, v{t1}, 4, s{sT0}
    v_lshlrev_b32 v{va}, 4, v{vL}
    s_lshl_b32 s{sT0}, s{sPI}, 2
    s_add_u32 s{sT0}, s{sT0}, s{sW}
    s_lshl_b32 s{sT0}, s{sT0}, 11
    s_add_u32 s{sT0}, s{sT0}, {WS_AT}''')
    for j in range(8): p(f'ds_write_b128 v{wa}, {vr(4*j,4)} offset:{RED + 1024*j}')
    p.extend(pre)
    p('s_waitcnt lgkmcnt(0)\ns_barrier')
    R = lambda i, h, k: 32 + 16 * i + 8 * k + 4 * h
    for i in range(2):
        for h in range(2):
            for k in range(2): p(f'ds_read_b128 {vr(R(i,h,k),4)}, v{ra} offset:{RED + 8192*k + 2048*i + 256*h}')
    for i in range(2):
        for e in range(0, 8, 2): p(f'v_pk_add_f32 {vr(R(i,0,0)+e,2)}, {vr(R(i,0,0)+e,2)}, {vr(R(i,0,1)+e,2)}')
        for e in range(4): p(f'v_cvt_pk_bf16_f32 v{4*i+e}, v{R(i,0,0)+2*e}, v{R(i,0,0)+2*e+1}')
        p(f'buffer_store_dwordx4 {vr(4*i,4)}, v{va}, {srd(S_WS)}, s{sT0} offen offset:{1024*i} sc1', 'ast')

def k_conv(dbg=False):
    p = Prog(); prologue(p)
    par_zero(p); par_loads(p); u_loads(p); tail_setup(p)
    kgen_valu(p); kgen_mfma(p); u_put(p); expand(p); conv(p); conv_out(p)
    if dbg:
        p(f's_barrier\nv_lshl_add_u32 v0, s{sW}, 6, v{vL}\nv_lshlrev_b32 v0, 4, v0\ns_lshl_b32 s{sT0}, s2, 15\ns_add_u32 s{sT0}, s{sT0}, 0x2000000\nv_add_u32 v1, {TL}, v0')
        for i in range(8):
            p(f'ds_read_b128 v[4:7], v1 offset:{4096*i}\nbuffer_store_dwordx4 v[4:7], v0, {srd(S_WS)}, s{sT0} offen\ns_add_u32 s{sT0}, s{sT0}, 4096\ns_nop 1')
    p('s_endpgm')
    return p

vWA = 236
sWD, sWE, sHX, sHE, sR2 = 4, 5, 6, 7, 8
def rot2_setup(p, on=True):
    if not on: p(f's_mov_b32 s{sR2}, 0'); return
    p(f'''s_and_b32 s{sT0}, s{sJ}, 3
    s_mul_i32 s{sT0}, s{sT0}, 7
    s_lshr_b32 s{sT0}, s{sT0}, 1
    s_mul_i32 s{sT1}, s{sDT}, 7
    s_lshr_b32 s{sT1}, s{sT1}, 2
    s_add_u32 s{sT0}, s{sT0}, s{sT1}
    s_sub_u32 s{sT1}, s{sT0}, 14
    s_cmp_ge_u32 s{sT0}, 14
    s_cselect_b32 s{sR2}, s{sT1}, s{sT0}''')
def wd_setup(p):
    p(f'''s_lshl_b32 s{sT0}, s{sDT}, 2
    s_add_u32 s{sT0}, s{sT0}, s{sW}
    s_mul_i32 s{sT0}, s{sT0}, 57344
    s_add_u32 s{sT0}, s{sT0}, {WS_WDT}
    s_add_u32 s{sWE}, s{sT0}, 57344
    s_lshl_b32 s{sT1}, s{sR2}, 12
    s_add_u32 s{sWD}, s{sT0}, s{sT1}
    s_and_b32 s{sT1}, s{sW}, 1
    s_lshl_b32 s{sT1}, s{sT1}, 10
    v_lshl_add_u32 v{vWA}, v{vL}, 4, s{sT1}
    v_xor_b32 v{vWA+1}, 1024, v{vWA}''')
def wrap(r, e, step, span, t):
    return f'\ns_add_u32 s{r}, s{r}, {step}\ns_sub_u32 s{t}, s{r}, {span}\ns_cmp_ge_u32 s{r}, s{e}\ns_cselect_b32 s{r}, s{t}, s{r}'
def wd_loads():
    o = []
    for s in range(28):
        for al in range(2):
            o.append(f'buffer_load_dwordx4 {ar(8*s+4*al,4)}, v{vWA+al}, {srd(S_WS)}, s{sWD} offen offset:{2048*(s&1)} sc1')
        if s & 1 and s < 27: o[-1] += wrap(sWD, sWE, 4096, 57344, 9)
    return o
NB = 12
vHB, vHA, vGAa, vG, vAT = 64, 160, 164, 246, 184
def acc2(al, be): return 16 * (al + 2 * be)
def h_setup(p):
    t0, t1 = 182, 183
    p(f'''s_mul_i32 s{sT0}, s{sW}, {56*32768}
    s_lshl_b32 s{sT1}, s{sST}, 10
    s_add_u32 s{sT0}, s{sT0}, s{sT1}
    s_add_u32 s{sT0}, s{sT0}, {WS_H}
    s_add_u32 s{sHE}, s{sT0}, {28*65536}
    s_lshl_b32 s{sT1}, s{sR2}, 17
    s_add_u32 s{sHX}, s{sT0}, s{sT1}
    s_lshr_b32 s{sT1}, s{sW}, 1
    s_lshl_b32 s{sT1}, s{sT1}, 9
    v_lshrrev_b32 v{t0}, 5, v{vL}
    v_and_b32 v{t1}, 31, v{vL}
    v_lshl_add_u32 v{t1}, v{t1}, 4, s{sT1}
    v_lshl_add_u32 v{vHA}, v{t0}, 15, v{t1}
    v_xor_b32 v{vHA+1}, 512, v{vHA}''')
def h_loads(s):
    o = [f'buffer_load_dwordx4 {vr(vHB + 8*(s%NB) + 4*be, 4)}, v{vHA+be}, {srd(S_WS)}, s{sHX} offen sc1' for be in range(2)]
    if s < 27: o[-1] += wrap(sHX, sHE, 65536, 28*65536, 10) if s & 1 else f'\ns_add_u32 s{sHX}, s{sHX}, 65536'
    return o
def a_loads():
    t0, t1 = 182, 183
    return [f'''s_and_b32 s{sT0}, s{sW}, 1
    s_lshl_b32 s{sT1}, s{sDT}, 1
    s_add_u32 s{sT0}, s{sT0}, s{sT1}
    s_lshl_b32 s{sT0}, s{sT0}, 17
    s_lshr_b32 s{sT1}, s{sW}, 1
    s_lshl_b32 s{sT2}, s{sST}, 1
    s_add_u32 s{sT1}, s{sT1}, s{sT2}
    s_lshl_b32 s{sT2}, s{sT1}, 6
    s_add_u32 s{sT0}, s{sT0}, s{sT2}
    s_add_u32 s{sT0}, s{sT0}, {WS_AT}
    s_add_u32 s{sT2}, s{sT0}, 65536''',
    f'''v_lshrrev_b32 v{t0}, 2, v{vL}
    v_and_b32 v{t1}, 3, v{vL}
    v_lshlrev_b32 v{t1}, 4, v{t1}
    v_lshl_add_u32 v{t0}, v{t0}, 12, v{t1}''',
    f'buffer_load_dwordx4 {vr(vAT,4)}, v{t0}, {srd(S_WS)}, s{sT0} offen sc1',
    f'buffer_load_dwordx4 {vr(vAT+4,4)}, v{t0}, {srd(S_WS)}, s{sT2} offen sc1']
def g_load(p):
    t0 = 235
    p(f'''s_lshr_b32 s{sT1}, s{sW}, 1
    s_lshl_b32 s{sT2}, s{sST}, 1
    s_add_u32 s{sT1}, s{sT1}, s{sT2}
    s_lshl_b32 s{sT1}, s{sT1}, 7
    s_add_u32 s{sT1}, s{sT1}, {WS_G}
    v_and_b32 v{t0}, 31, v{vL}
    v_lshlrev_b32 v{t0}, 2, v{t0}
    buffer_load_dword v{vG}, v{t0}, {srd(S_WS)}, s{sT1} offen sc1''')
def a_use():
    t0, t1, t2 = 182, 183, 162
    o = [f'''s_lshl_b32 s{sT0}, s{sW}, 11
    s_add_u32 s{sT0}, s{sT0}, {AS}
    v_lshl_add_u32 v{t0}, v{vL}, 4, s{sT0}''',
    f'''v_lshrrev_b32 v{t1}, 5, v{vL}
    v_bfe_u32 v{t2}, v{vL}, 2, 2
    v_lshl_add_u32 v{t1}, v{t1}, 2, v{t2}''',
    f'''v_bfe_u32 v{t2}, v{vL}, 4, 1
    v_lshl_add_u32 v{t1}, v{t1}, 1, v{t2}
    v_and_b32 v{t2}, 3, v{vL}''',
    f'''v_lshl_add_u32 v{t1}, v{t1}, 2, v{t2}
    v_lshl_add_u32 v{t1}, v{t1}, 3, s{sT0}''',
    f'ds_write_b128 v{t0}, {vr(vAT,4)}', (f'ds_write_b128 v{t0}, {vr(vAT+4,4)} offset:1024', 'aw')]
    for q in range(4): o.append(f'ds_read_b64_tr_b16 {vr(vAT+2*q,2)}, v{t1} offset:{512*q}')
    o.append(f'v_sub_f32 v{vG+1}, 1.0, v{vG}\nv_cvt_pk_bf16_f32 v{vG+1}, v{vG+1}, v{vG+1}\nv_and_b32 v{vG+1}, 0xffff0000, v{vG+1}')
    for i in range(8):
        o.append(f'v_lshlrev_b32 v{vGAa+2*i}, 16, v{vAT+i}\nv_and_b32 v{vGAa+2*i+1}, 0xffff0000, v{vAT+i}')
        o.append(f'v_mul_f32 v{vGAa+2*i}, v{vG}, v{vGAa+2*i}\nv_mul_f32 v{vGAa+2*i+1}, v{vG}, v{vGAa+2*i+1}')
    return o
def gemm2(p, extra=None, pre=0, late=(), mark=lambda: []):
    extra = extra or {}
    PW, PR, ti = 192, 195, 162
    M = lambda s, al, be: f'v_mfma_f32_32x32x16_bf16 {vr(acc2(al,be),16)}, {ar(8*s+4*al,4)}, {vr(vHB+8*(s%NB)+4*be,4)}, {"0" if s == 0 else vr(acc2(al,be),16)}'
    for s in range(pre, NB): p.extend(h_loads(s))
    for k in range(1, 4):
        p(f's_xor_b32 s{sT0}, s{sW}, {k}\ns_mul_i32 s{sT0}, s{sT0}, 12288\ns_add_u32 s{sT0}, s{sT0}, {P2 + 4096*(k-1)}\nv_lshl_add_u32 v{PW+k-1}, v{vL}, 4, s{sT0}')
    p(f's_mul_i32 s{sT0}, s{sW}, 12288\ns_add_u32 s{sT0}, s{sT0}, {P2}\nv_lshl_add_u32 v{PR}, v{vL}, 4, s{sT0}')
    for s in range(24):
        mf = [M(s, 0, 0), M(s, 1, 0), M(s, 0, 1), M(s, 1, 1)]
        ld = h_loads(s + NB) if s + NB < 28 else [[], []]
        ex = extra.get(s, [])
        for m in range(4):
            p(mf[m]); p.extend(ex[len(ex) * m // 4: len(ex) * (m + 1) // 4])
            if m == 1 and ld[0]: p(ld[0])
            if m == 3 and ld[1]: p(ld[1])
    prev = []; late = list(late); nl = len(late)
    for k in (3, 1, 2, 0):
        al, be = k & 1, k >> 1
        mf = [M(s, al, be) for s in range(24, 28)]
        for m in range(4):
            p(mf[m])
            if m >= 1: p.extend(prev[(m - 1) * 2: m * 2])
            for _ in range(-(-nl // 14)):
                if late: p.extend([late.pop(0)])
        prev = [f'ds_write_b128 v{PW+k-1}, {vr(acc2(al,be)+4*q,4)} offset:{1024*q}' for q in range(4)] if k else []
    p.extend(mark())
    t0, t1, va = 182, 183, 196
    p(f'''s_lshr_b32 s{sT1}, s{sW}, 1
    s_lshl_b32 s{sT2}, s{sST}, 1
    s_add_u32 s{sT1}, s{sT1}, s{sT2}
    s_lshl_b32 s{sT1}, s{sT1}, 15
    s_and_b32 s{sT0}, s{sW}, 1
    s_lshl_b32 s{sT2}, s{sDT}, 1
    s_add_u32 s{sT0}, s{sT0}, s{sT2}
    s_lshl_b32 s{sT0}, s{sT0}, 6
    s_add_u32 s{sT0}, s{sT0}, s{sT1}
    v_and_b32 v{t0}, 31, v{vL}
    v_lshrrev_b32 v{t1}, 5, v{vL}
    v_lshlrev_b32 v{t1}, 4, v{t1}
    v_lshl_add_u32 v{va}, v{t0}, 10, v{t1}
    s_waitcnt lgkmcnt(0)
    s_barrier''')
    Q = lambda k, q: 64 + 16 * k + 4 * q
    for q in range(4):
        for k in range(3): p(f'ds_read_b128 {vr(Q(k,q),4)}, v{PR} offset:{4096*k + 1024*q}')
    for q in range(4):
        for e in (0, 2):
            r = 4 * q + e
            p(f'''v_pk_add_f32 {vr(r,2)}, {vr(r,2)}, {vr(Q(0,q)+e,2)}
            v_pk_add_f32 {vr(Q(1,q)+e,2)}, {vr(Q(1,q)+e,2)}, {vr(Q(2,q)+e,2)}''')
        for e in (0, 2):
            r = 4 * q + e
            p(f'v_pk_add_f32 {vr(r,2)}, {vr(r,2)}, {vr(Q(1,q)+e,2)}')
        for e in (0, 2):
            r = 4 * q + e
            p(f'v_pk_fma_f32 {vr(r,2)}, {vr(r,2)}, {vr(vG,2)}, {vr(vGAa+r,2)} op_sel:[0,1,0] op_sel_hi:[1,1,1]')
        for e in (0, 2):
            r = 4 * q + e
            p(f'v_cvt_pk_bf16_f32 v{16 + 2*q + e//2}, v{r}, v{r+1}')
        if q & 1:
            R = 16 + 2 * (q - 1)
            p(f'v_permlane32_swap_b32 v{R}, v{R+2}\nv_permlane32_swap_b32 v{R+1}, v{R+3}')
            p(f'buffer_store_dwordx4 {vr(R,4)}, v{va}, {srd(S_OUT)}, s{sT0} offen offset:{16*(q-1)}')

def spread(lst, a, b):
    n = b - a
    return {a + i: lst[len(lst) * i // n: len(lst) * (i + 1) // n] for i in range(n)}
def k_g2():
    p = Prog(); prologue(p)
    wd_setup(p); p.extend(wd_loads()); g_load(p); h_setup(p)
    ex = spread(a_loads(), 2, 4); ex.update(spread(a_use(), 12, 22))
    gemm2(p, ex)
    p('s_endpgm')
    return p

WS_STAMP = 0x3000000
class Fused:
    def __init__(s, stamps=False):
        s.p = Prog(); s.slow = []; s.stamps = stamps; s.ns = 0; s.want = stamps or []
    def stamp(s, name=None):
        if not s.stamps or (name is not None and name not in s.want): return []
        o = []
        if s.ns: o.append(f's_mov_b32 s{87 + s.ns}, s100')
        o.append('s_memtime s[100:101]'); s.ns += 1
        return o
    def stamp_out(s):
        if not s.stamps: return
        p = s.p
        p(f's_mov_b32 s{87 + s.ns}, s100\ns_lshl_b32 s{sT0}, s2, 2\ns_add_u32 s{sT0}, s{sT0}, s{sW}\ns_lshl_b32 s{sT0}, s{sT0}, 6\ns_add_u32 s{sT0}, s{sT0}, {WS_STAMP}\ns_mov_b64 exec, 1')
        p(f's_memrealtime s[100:101]\nv_mov_b32 v1, s34\nbuffer_store_dword v1, off, {srd(S_WS)}, s{sT0} offset:48\nv_mov_b32 v1, s100\nbuffer_store_dword v1, off, {srd(S_WS)}, s{sT0} offset:52')
        if 'dbg' in s.want:
            L = p.label('nodbg')
            p(f's_not_b32 s{sT1}, s34\nv_mov_b32 v1, s{sT1}\nv_mov_b32 v2, s100\nbuffer_atomic_umax v1, off, {srd(S_DBG)}, 0 offset:4\nbuffer_atomic_umax v2, off, {srd(S_DBG)}, 0 offset:8')
            p(f'v_mov_b32 v1, s34\nbuffer_atomic_umax v1, off, {srd(S_DBG)}, 0 offset:12')
            p(f's_cmp_lg_u32 s2, 77\ns_cbranch_scc1 {L}\ns_cmp_lg_u32 s{sW}, 1\ns_cbranch_scc1 {L}')
            for i in range(1, s.ns): p(f's_sub_u32 s{sT1}, s{88+i}, s88\nv_mov_b32 v1, s{sT1}\nbuffer_store_dword v1, off, {srd(S_DBG)}, 0 offset:{12+4*i}', 'untracked')
            p(f'{L}:')
            return
        for i in range(s.ns): p(f'v_mov_b32 v1, s{88+i}\nbuffer_store_dword v1, off, {srd(S_WS)}, s{sT0} offset:{4*i}')
    def poll_issue(s, dst, va, S, n=1):
        return [f'buffer_load_dword{"x2" if n == 2 else ""} {vr(dst,n)}, v{va}, {srd(S)}, 0 offen sc1']
    def poll_check(s, dst, va, S, n=1):
        Ls, Lr, Ll = s.p.label('slow'), s.p.label('ret'), s.p.label('spin')
        chk = (f'v_and_b32 v{dst}, v{dst}, v{dst+1}\n' if n == 2 else '') + f'v_cmp_ne_u32 vcc, 1, v{dst}\n'
        s.slow.append(f'''{Ls}:
        s_mov_b32 s{sSP}, 0x8000
        {Ll}:
        {s.poll_issue(dst, va, S, n)[0]}
        s_waitcnt vmcnt(0) lgkmcnt(0)
        {chk}s_cbranch_vccz {Lr}
        s_sub_u32 s{sSP}, s{sSP}, 1
        s_cmp_lg_u32 s{sSP}, 0
        s_cbranch_scc1 {Ll}
        s_branch {Lr}''')
        return [chk + f's_cbranch_vccnz {Ls}\n{Lr}:']
    def flag(s, sreg, one):
        return [f's_mov_b64 exec, 1\nbuffer_store_dword v{one}, off, {srd(S_WS)}, s{sreg} sc1\ns_mov_b64 exec, -1']

sFH, sFA = 78, 79
vONE, vPGO, vPWD, vPUT, vPH, vPA, vF = 238, 239, 240, 241, 242, 243, 244
def flag_setup(p, spare):
    t0 = 192
    p(f'''v_mov_b32 v{vONE}, 1
    v_mov_b32 v{vPGO}, 0
    s_lshl_b32 s{sT0}, s{sW}, 3
    s_add_u32 s{sT0}, s{sT0}, s{sDT}
    s_add_u32 s{sT0}, s{sT0}, 192
    s_lshl_b32 s{sT0}, s{sT0}, 7
    v_and_b32 v{t0}, 3, v{vL}
    v_lshl_add_u32 v{vPWD}, v{t0}, 2, s{sT0}
    v_lshlrev_b32 v{t0}, 3, v{vL}
    v_add_u32 v{vPUT}, {224*128}, v{t0}
    s_lshl_b32 s{sT0}, s{sST}, 2
    s_add_u32 s{sT0}, s{sT0}, s{sW}
    s_lshl_b32 s{sT0}, s{sT0}, 7
    v_min_u32 v{t0}, 6, v{vL}
    v_lshl_add_u32 v{vPH}, v{t0}, 2, s{sT0}
    s_lshr_b32 s{sT0}, s{sST}, 4
    s_lshl_b32 s{sT0}, s{sT0}, 5
    s_lshl_b32 s{sT1}, s{sDT}, 2
    s_add_u32 s{sT0}, s{sT0}, s{sT1}
    s_and_b32 s{sT1}, s{sW}, 1
    s_lshl_b32 s{sT1}, s{sT1}, 1
    s_add_u32 s{sT0}, s{sT0}, s{sT1}
    s_add_u32 s{sT0}, s{sT0}, 128
    s_lshl_b32 s{sT0}, s{sT0}, 7
    v_and_b32 v{t0}, 15, v{vL}
    v_lshl_add_u32 v{vPA}, v{t0}, 2, s{sT0}
    v_bfe_u32 v{t0}, v{vL}, 4, 1
    v_lshl_add_u32 v{vPA}, v{t0}, 7, v{vPA}
    s_lshl_b32 s{sT0}, s{sPI}, 1
    s_lshr_b32 s{sT1}, s{sW}, 1
    s_add_u32 s{sT0}, s{sT0}, s{sT1}
    s_and_b32 s{sT1}, s{sT0}, 15
    s_lshr_b32 s{sT0}, s{sT0}, 4
    s_and_b32 s{sT2}, s{sW}, 1
    s_lshl_b32 s{sT2}, s{sT2}, 5
    s_add_u32 s{sT0}, s{sT0}, s{sT2}
    s_add_u32 s{sT0}, s{sT0}, 128
    s_lshl_b32 s{sT0}, s{sT0}, 5
    s_add_u32 s{sT0}, s{sT0}, s{sT1}
    s_lshl_b32 s{sFA}, s{sT0}, 2''')
    if spare:
        p(f's_lshl_b32 s{sT0}, s{sSI}, 2\ns_add_u32 s{sT0}, s{sT0}, s{sW}\ns_lshl_b32 s{sT0}, s{sT0}, 7\ns_add_u32 s{sFH}, s{sT0}, 0x8000')
    else:
        p(f'''s_lshl_b32 s{sT0}, s{sMI}, 2
        s_add_u32 s{sT0}, s{sT0}, s{sW}
        s_lshl_b32 s{sT0}, s{sT0}, 2
        s_and_b32 s{sT1}, s{sXCD}, 3
        s_add_u32 s{sT0}, s{sT0}, s{sT1}
        s_lshl_b32 s{sT0}, s{sT0}, 5
        s_add_u32 s{sT0}, s{sT0}, s{sDT}
        s_lshl_b32 s{sFH}, s{sT0}, 2''')
def as_list(fn, *a):
    q = Prog(); fn(q, *a); return q.ins

def groups(ins, last):
    o = [[]]
    for I in ins:
        o[-1].append(I)
        if last(I): o.append([])
    return [g for g in o if g]
def flat(l): return [y for x in l for y in (x if isinstance(x, list) else [x])]
class G(list): pass
def k_fused(stamps=False, cfg=None):
    cfg = dict(rot='z', ct=250, tch=[1, 1, 1, 2], nw=[4, 12, 12, 6], r2=1, hflag=60, hpoll=120, aflag=9, apoll=13, achk=17, f0=40, sx=1, pg=2, cw=[0, 100]) | (cfg or {})
    F = Fused(stamps); p = F.p
    if stamps: p('s_memrealtime s[34:35]')
    p.extend(F.stamp()); prologue(p, cfg['rot'], cfg['ct'], True)
    Lsp, Ltail = p.label('spare'), p.label('tail')
    p(f's_lshl_b32 s{sPI}, s{sXCD}, 5\ns_add_u32 s{sPI}, s{sPI}, s{sJ}')
    p(f's_cmp_ge_u32 s{sJ}, 28\ns_cbranch_scc1 {Lsp}')
    tch = cfg['tch']
    if tch[0]: touch_setup(p)
    par_loads(p); srd_bases(p)
    p.extend(F.stamp('pro'))
    if tch[0]: p.extend(touch(0))
    g1_setup(p); p.extend(g1_dma(0))
    if tch[1]: p.extend(touch(2))
    p.extend(F.stamp('dma'))
    prologue2(p, False)
    g1_setup2(p); tail_setup(p); flag_setup(p, False); rot2_setup(p, cfg['r2'])
    p.extend(F.stamp('setup'))
    kgen_valu(p, g1_dma(1) + (touch(4) if tch[2] == 1 else []), cfg['f0']); p.extend(F.stamp('kv'))
    kgen_mfma(p, touch(4) if tch[2] == 2 else []); p('s_waitcnt lgkmcnt(0)'); p.extend(F.stamp('km'))
    if stamps: p.waitvm('dma0'); p.extend(F.stamp('d0'))
    wl = wd_loads(); nw = cfg['nw']; pg = cfg['pg']
    post = {}
    for t in range(7):
        post[t] = F.stamp(f's{t}')
        if t == pg: post[t] += F.poll_issue(vF, vPGO, S_DBG)
        if t == pg + 1: post[t] += F.poll_check(vF, vPGO, S_DBG) + F.poll_issue(vF, vPWD, S_WS)
        if t == pg + 2: post[t] += F.poll_check(vF, vPWD, S_WS) + F.stamp('wf') + F.poll_issue(vF, vPUT, S_WS, 2) + as_list(wd_setup)
        if t == pg + 3: post[t] += F.poll_check(vF, vPUT, S_WS, 2) + F.stamp('uf') + as_list(u_loads) + as_list(g_load)
    extra = {}
    def put(keys, lst):
        for i, k in enumerate(keys): extra.setdefault(k, []).extend(lst[len(lst) * i // len(keys): len(lst) * (i + 1) // len(keys)])
    if tch[3]: put([(tch[3] - 1, 2)], touch(6))
    rd, wr = expand()
    put([(6, 0)], zero_fill()); put([(6, 1)], rd); put([(6, 2), (6, 3)], wr); put([(7, 1)], u_put())
    k = 0
    for t, n in zip((5, 6, 7), nw): put([(t, s) for s in range(4)], wl[k:k + n]); k += n
    g1_main(p, extra, post, 2); p.extend(F.stamp('g1'))
    g1_epilogue(p, wl[k:k + nw[3]]); k += nw[3]
    wrest = wl[k:]
    p(f'{Ltail}:'); p.extend(F.stamp())
    ex = {d: [[] for _ in range(34)] for d in range(4)}
    n0, n1 = cfg['cw']
    for i, x in enumerate(wrest):
        m = n0 + (n1 - n0) * i // len(wrest); ex[m // 34][m % 34].append(x)
    m = cfg['hflag']; ex[m // 34][m % 34][:0] = [Ins('WAITVM hst')] + F.flag(sFH, vONE)
    m = cfg['hpoll']; ex[m // 34][m % 34] += F.poll_issue(vF, vPH, S_WS)
    conv(p, ex); p.extend(F.stamp('cv'))
    h_setup(p)
    p.extend(F.poll_check(vF, vPH, S_WS)); p.extend(F.stamp('hf'))
    conv_out(p, pre=[x for s in range(NB) for x in h_loads(s)])
    p.extend(F.stamp('co'))
    ex = {cfg['aflag']: [Ins('WAITVM ast')] + F.flag(sFA, vONE), cfg['apoll']: F.poll_issue(vF, vPA, S_WS),
          cfg['achk']: F.poll_check(vF, vPA, S_WS) + F.stamp('af') + a_loads()}
    gemm2(p, ex, pre=NB, late=a_use(), mark=lambda: F.stamp('g2'))
    p.extend(F.stamp()); F.stamp_out()
    p('s_endpgm')
    p(f'{Lsp}:')
    def sst(i):
        if stamps: p(f's_memtime s[100:101]\ns_waitcnt lgkmcnt(0)\ns_mov_b32 s{88+i}, s100')
    if stamps: p('s_mov_b32 s88, s100')
    prologue2(p, True)
    Lk = p.label('noclr'); Lg = p.label('nogo')
    p(f'''s_cmp_lg_u32 s{sSI}, 0
    s_cbranch_scc1 {Lk}
    v_mov_b32 v4, 0
    v_mov_b32 v5, 0
    v_mov_b32 v6, 0
    v_mov_b32 v7, 0
    v_lshlrev_b32 v1, 4, v0''')
    for i in range(8): p(f's_mov_b32 s{sT0}, {4096*i}\nbuffer_store_dwordx4 v[4:7], v1, {srd(S_WS)}, s{sT0} offen sc1', 'untracked')
    p(f'{Lk}:')
    spare_issue_w(p); par_loads(p); flag_setup(p, True); rot2_setup(p, cfg['r2'])
    xi = groups(as_list(spare_issue_x), lambda I: I.kind == 'vm')
    if cfg['sx'] == 0: p.extend(flat(xi)); xi = []
    nl = 20 + (16 if cfg['sx'] == 0 else 0)
    p(f'''s_cmp_lg_u32 s{sSI}, 0
    s_cbranch_scc1 {Lg}''')
    p(f's_waitcnt vmcnt({nl})', 'untracked'); p.ins[-1].kind = 'misc'
    p(f's_barrier\ns_cmp_lg_u32 s{sW}, 0\ns_cbranch_scc1 {Lg}\ns_mov_b64 exec, 1')
    p(f'buffer_store_dword v{vONE}, off, {srd(S_DBG)}, 0 sc1', 'untracked')
    p(f's_mov_b64 exec, -1\n{Lg}:')
    q = Prog(); spare_wd(q, [G(x) for x in xi]); p.extend(q.ins)
    sst(1)
    p.extend(F.poll_issue(vF, vPGO, S_DBG))
    spare_issue_g(p); tail_setup(p)
    p(f'''s_add_u32 s{sT0}, s{sSI}, 192
    s_lshl_b32 s{sT0}, s{sT0}, 5
    s_add_u32 s{sT0}, s{sT0}, s{sW}
    s_lshl_b32 s11, s{sT0}, 2
    s_add_u32 s{sT1}, s{sW}, 224
    s_lshl_b32 s{sT1}, s{sT1}, 5
    s_add_u32 s{sT1}, s{sT1}, s{sSI}
    s_lshl_b32 s12, s{sT1}, 2''')
    p.extend(F.poll_check(vF, vPGO, S_DBG))
    p.waitvm('wst'); p.extend(F.flag(11, vONE)); sst(2)
    spare_ut(p); sst(3); spare_g(p)
    p.waitvm('gst'); p.extend(F.flag(12, vONE)); sst(4)
    p('s_barrier')
    p.extend(F.poll_issue(vF, vPWD, S_WS)); wd_setup(p)
    kgen_valu(p); kgen_mfma(p)
    p.extend(F.poll_check(vF, vPWD, S_WS))
    p.extend(F.poll_issue(vF, vPUT, S_WS, 2))
    p.extend(wl[:k])
    p('s_waitcnt lgkmcnt(0)\ns_barrier')
    p.extend(zero_fill()); p.extend(rd); p.extend(wr)
    p.extend(F.poll_check(vF, vPUT, S_WS, 2))
    u_loads(p); g_load(p); p.extend(u_put())
    sst(5)
    if stamps: p('s_memtime s[100:101]\ns_waitcnt lgkmcnt(0)')
    p(f's_waitcnt vmcnt(0) lgkmcnt(0)\ns_barrier\ns_branch {Ltail}')
    for x in F.slow: p(x)
    p('L_end:')
    return p
```

```python
import sys
from core import *
KN = 'gated_mix__ssm_conv_s4d__glu_gated_reglu__prompt'
WS_WDT, WS_UT, WS_G, WS_H, WS_AT = 0x100000, 0x300000, 0x500000, 0x600000, 0xD00000
S_X, S_WG, S_WU, S_WS, S_OUT, S_P, S_DBG = 36, 40, 44, 48, 52, 56, 60
sXCD, sJ, sW, sMI, sFI, sST, sDT, sROT, sKX, sKW, sXM, sWM, sSI, sPI = range(64, 78)
sT0, sT1, sT2, sT3, sT4, sT5 = range(80, 86)
sSP = 86
def srd(i): return f's[{i}:{i+3}]'
def vr(a, n=1): return f'v{a}' if n == 1 else f'v[{a}:{a+n-1}]'
def ar(a, n=1): return f'a{a}' if n == 1 else f'a[{a}:{a+n-1}]'
vL = 255
class G(list): pass

ROT = dict(
  a=f's_lshl_b32 s{sT2}, s{sT0}, 1\ns_add_u32 s{sROT}, s{sT2}, s{sDT}',
  z=f's_mov_b32 s{sROT}, 0',
  t=f's_add_u32 s{sROT}, s{sT0}, s{sDT}\ns_mul_i32 s{sT2}, s{sROT}, 86\ns_lshr_b32 s{sT2}, s{sT2}, 8\ns_mul_i32 s{sT2}, s{sT2}, 3\ns_sub_u32 s{sROT}, s{sROT}, s{sT2}\ns_mul_i32 s{sROT}, s{sROT}, 3',
  g=f's_add_u32 s{sROT}, s{sT0}, s{sDT}\ns_lshl_b32 s{sROT}, s{sROT}, 2',
  h=f's_add_u32 s{sROT}, s{sT0}, s{sDT}\ns_lshl_b32 s{sROT}, s{sROT}, 1',
  x=f's_mov_b32 s{sROT}, s{sXCD}',
  b=f's_add_u32 s{sROT}, s{sT0}, s{sDT}',
  c=f's_lshl_b32 s{sT2}, s{sT0}, 1\ns_add_u32 s{sROT}, s{sT2}, s{sDT}\ns_lshr_b32 s{sT2}, s{sXCD}, 2\ns_add_u32 s{sROT}, s{sROT}, s{sT2}',
  d=f's_add_u32 s{sROT}, s{sT0}, s{sDT}\ns_and_b32 s{sROT}, s{sROT}, 1\ns_add_u32 s{sROT}, s{sROT}, s{sXCD}',
  e=f's_add_u32 s{sROT}, s{sT0}, s{sDT}\ns_and_b32 s{sROT}, s{sROT}, 3\ns_add_u32 s{sROT}, s{sROT}, s{sXCD}',
  f=f's_add_u32 s{sROT}, s{sT0}, s{sDT}\ns_lshr_b32 s{sT2}, s{sXCD}, 2\ns_lshl_b32 s{sT2}, s{sT2}, 2\ns_add_u32 s{sROT}, s{sROT}, s{sT2}',
)
def mk_srd(p, d, ptr, size):
    p(f's_mov_b32 s{d}, s{ptr}\ns_mov_b32 s{d+1}, s{ptr+1}\ns_mov_b32 s{d+2}, {hex(size)}\ns_mov_b32 s{d+3}, 0x00020000')

def prologue(p, rot='z', ctouch=0, defer=False):
    L = p.label('go')
    p(f'''s_cmp_lt_u32 s2, 256
    s_cbranch_scc1 {L}
    s_endpgm
    {L}:
    s_load_dwordx16 s[4:19], s[0:1], 0
    s_load_dwordx8 s[20:27], s[0:1], 64
    s_load_dwordx4 s[28:31], s[0:1], 96
    s_load_dwordx2 s[32:33], s[0:1], 112
    s_lshr_b32 s{sJ}, s2, 3''')
    if ctouch:
        p(f'''s_getpc_b64 s[{sT2}:{sT3}]
        L_pc:
        v_and_b32 v2, 7, v0
        v_lshl_add_u32 v2, s{sJ}, 3, v2
        v_min_u32 v2, (L_end-L_pc-4)/128, v2
        v_lshlrev_b32 v2, 7, v2
        v_mov_b32 v3, s{sT3}
        v_add_co_u32 v2, vcc, s{sT2}, v2
        v_addc_co_u32 v3, vcc, 0, v3, vcc''')
        p('global_load_dword v254, v[2:3], off', 'untracked')
    p(f'''v_lshrrev_b32 v1, 6, v0
    v_and_b32 v{vL}, 63, v0
    v_readfirstlane_b32 s{sW}, v1
    s_and_b32 s{sXCD}, s2, 7
    s_and_b32 s{sT0}, s{sJ}, 3
    s_lshr_b32 s{sDT}, s{sJ}, 2
    s_lshr_b32 s{sT1}, s{sXCD}, 2
    s_lshl_b32 s{sT1}, s{sT1}, 2
    s_add_u32 s{sMI}, s{sT1}, s{sT0}
    s_and_b32 s{sT1}, s{sXCD}, 3
    s_mul_i32 s{sT1}, s{sT1}, 7
    s_add_u32 s{sFI}, s{sT1}, s{sDT}
    s_lshl_b32 s{sT1}, s{sXCD}, 2
    s_add_u32 s{sST}, s{sT1}, s{sT0}
    {ROT[rot]}
    s_and_b32 s{sROT}, s{sROT}, 7''')
    for d, n in ((S_X, 2048 * 1024), (S_WG, 512 * 3584), (S_WU, 512 * 3584)): p(f's_mov_b32 s{d+2}, {hex(n)}\ns_mov_b32 s{d+3}, 0x00020000')
    if not defer: prologue2(p)
def srd_bases(p):
    for d, ptr in ((S_X, 4), (S_WG, 20), (S_WU, 22)): p(f's_mov_b64 s[{d}:{d+1}], s[{ptr}:{ptr+1}]')
def prologue2(p, bases=True):
    if bases: srd_bases(p)
    p(f's_mov_b32 s{sSI}, s{sST}')
    mk_srd(p, S_WS, 32, 0x10000000); mk_srd(p, S_OUT, 28, 2048 * 1024); mk_srd(p, S_DBG, 30, 256)

G1_B, G1_A, G1_XR, G1_WR, G1_DX, G1_DW = 128, 144, 176, 180, 182, 190
def acc1(st, mat, ft): return 16 * (4 * st + 2 * mat + ft)
def g1_setup(p):
    t0, t1, t2, t3 = 192, 193, 194, 195
    p(f'''v_lshrrev_b32 v{t0}, 3, v{vL}
    v_and_b32 v{t1}, 7, v{vL}
    v_lshrrev_b32 v{t2}, 1, v{t0}
    v_xor_b32 v{t3}, v{t1}, v{t2}
    v_lshlrev_b32 v{t3}, 4, v{t3}
    v_lshl_add_u32 v{t3}, v{t0}, 10, v{t3}
    s_lshl_b32 s{sT0}, s{sMI}, 2
    s_add_u32 s{sT0}, s{sT0}, s{sW}
    s_lshl_b32 s{sT0}, s{sT0}, 16
    v_add_u32 v{G1_DX}, s{sT0}, v{t3}
    v_xor_b32 v{G1_DX+1}, 64, v{G1_DX}''')
    for i in range(7, 0, -1):
        p(f'v_add_u32 v{G1_DX+i}, {8192*i - 1024*(i&3)}, v{G1_DX+(i&1)}')
    p(f'''v_and_b32 v{t2}, 1, v{t2}
    v_lshlrev_b32 v{t2}, 2, v{t2}
    v_xor_b32 v{t2}, v{t1}, v{t2}
    v_lshlrev_b32 v{t2}, 4, v{t2}
    v_mul_u32_u24 v{t0}, 3584, v{t0}
    s_mul_i32 s{sT0}, s{sW}, {16*3584}
    s_lshl_b32 s{sT1}, s{sFI}, 7
    s_add_u32 s{sT0}, s{sT0}, s{sT1}
    v_add3_u32 v{G1_DW}, v{t0}, v{t2}, s{sT0}
    v_add_u32 v{G1_DW+1}, {8*3584-1024}, v{G1_DW}
    s_lshl_b32 s{sXM}, s{sW}, 13
    s_lshl_b32 s{sWM}, s{sW}, 11
    s_add_u32 s{sWM}, s{sWM}, 98304''')
MOD = dict(x='', w='', p='', d='', sx='', hs='sc1')
def g1_dma(t):
    sl = t % 3; o = []
    o.append(f's_add_u32 s{sT0}, s{sROT}, {t}\ns_and_b32 s{sT0}, s{sT0}, 7\ns_lshl_b32 s{sKX}, s{sT0}, 7\ns_mul_i32 s{sKW}, s{sT0}, {64*3584}')
    for mat, S in ((0, S_WG), (1, S_WU)):
        o.append(f's_add_u32 m0, s{sWM}, {sl*16384 + mat*8192}')
        for i in range(2): o.append(f'buffer_load_dwordx4 v{G1_DW+i}, {srd(S)}, s{sKW} offen offset:{1024*i} {MOD["w"]} lds')
    for i in range(8):
        if i % 4 == 0: o.append(f's_add_u32 m0, s{sXM}, {sl*32768 + 1024*i}')
        o.append(f'buffer_load_dwordx4 v{G1_DX+i}, {srd(S_X)}, s{sKX} offen offset:{1024*(i&3)} {MOD["x"]} lds')
    o[-1] = (o[-1], f'dma{t}')
    return o
vTX, vTW, vTD = 248, 249, 250
def touch_setup(p):
    t0, t1 = 192, 193
    p(f'''v_lshrrev_b32 v{t0}, 1, v{vL}
    v_min_u32 v{t0}, 9, v{t0}
    s_mul_i32 s{sT1}, s{sDT}, 10
    v_add_u32 v{t0}, s{sT1}, v{t0}
    v_min_u32 v{t0}, 63, v{t0}
    v_and_b32 v{t1}, 1, v{vL}
    v_lshlrev_b32 v{t1}, 7, v{t1}
    v_lshl_add_u32 v{t0}, v{t0}, 10, v{t1}
    s_lshl_b32 s{sT0}, s{sMI}, 2
    s_add_u32 s{sT0}, s{sT0}, s{sW}
    s_lshl_b32 s{sT0}, s{sT0}, 16
    v_add_u32 v{vTX}, s{sT0}, v{t0}
    v_and_b32 v{t0}, 3, v{vL}
    v_bfe_u32 v{t1}, v{vL}, 2, 1
    v_lshl_add_u32 v{t0}, v{t1}, 6, v{t0}
    s_and_b32 s{sT0}, s{sJ}, 3
    s_lshl_b32 s{sT0}, s{sT0}, 2
    s_add_u32 s{sT0}, s{sT0}, s{sW}
    s_lshl_b32 s{sT0}, s{sT0}, 2
    v_add_u32 v{t0}, s{sT0}, v{t0}
    v_mul_u32_u24 v{t0}, 3584, v{t0}
    s_lshl_b32 s{sT1}, s{sFI}, 7
    v_add_u32 v{vTW}, s{sT1}, v{t0}''')
def touch(c):
    return [f's_add_u32 s{sT4}, s{sROT}, {c}\ns_and_b32 s{sT4}, s{sT4}, 7\ns_lshl_b32 s{sT5}, s{sT4}, 7\ns_mul_i32 s{sT4}, s{sT4}, {64*3584}',
            f's_mov_b64 exec, 0xff\nbuffer_load_dword v{vTD}, v{vTW}, {srd(S_WG)}, s{sT4} offen {MOD["w"]}\nbuffer_load_dword v{vTD+1}, v{vTW}, {srd(S_WU)}, s{sT4} offen {MOD["w"]}\ns_mov_b64 exec, 0xfffff\nbuffer_load_dword v{vTD+2}, v{vTX}, {srd(S_X)}, s{sT5} offen {MOD["x"]}\ns_mov_b64 exec, -1']
def touch_wd(p):
    t0 = 253
    p(f'''s_mul_i32 s{sT0}, s{sJ}, 37
    s_lshr_b32 s{sT0}, s{sT0}, 8
    s_mul_i32 s{sT1}, s{sT0}, 7
    s_sub_u32 s{sT1}, s{sJ}, s{sT1}
    s_lshl_b32 s{sT1}, s{sT1}, 2
    s_add_u32 s{sT1}, s{sT1}, s{sW}
    s_lshl_b32 s{sT1}, s{sT1}, 4
    s_lshl_b32 s{sT2}, s{sXCD}, 2
    s_add_u32 s{sT0}, s{sT0}, s{sT2}
    s_lshr_b32 s{sT2}, s{sT0}, 3
    s_mul_i32 s{sT2}, s{sT2}, 448
    s_add_u32 s{sT1}, s{sT1}, s{sT2}
    s_lshl_b32 s{sT1}, s{sT1}, 3
    s_and_b32 s{sT0}, s{sT0}, 7
    s_add_u32 s{sT0}, s{sT0}, s{sT1}
    s_lshl_b32 s{sT0}, s{sT0}, 7
    v_and_b32 v{t0}, 15, v{vL}
    v_lshl_add_u32 v{t0}, v{t0}, 10, s{sT0}
    s_mov_b64 exec, 0xffff
    global_load_dword v{vTD}, v{t0}, s[24:25] {MOD["d"]}
    s_mov_b64 exec, -1''')
def g1_setup2(p):
    t0, t1, t2, t3 = 192, 193, 194, 195
    p(f'''v_and_b32 v{t0}, 31, v{vL}
    v_lshrrev_b32 v{t1}, 5, v{vL}
    v_bfe_u32 v{t2}, v{vL}, 1, 3
    v_xor_b32 v{t2}, v{t2}, v{t1}
    v_lshlrev_b32 v{t2}, 4, v{t2}
    v_lshl_add_u32 v{t2}, v{t0}, 7, v{t2}
    v_add_u32 v{G1_XR}, s{sXM}, v{t2}''')
    for s in range(1, 4): p(f'v_xor_b32 v{G1_XR+s}, {32*s}, v{G1_XR}')
    p(f'''v_bfe_u32 v{t0}, v{vL}, 2, 2
    v_lshl_add_u32 v{t0}, v{t1}, 3, v{t0}
    v_bfe_u32 v{t1}, v{vL}, 4, 1
    v_bfe_u32 v{t2}, v{vL}, 1, 1
    v_lshl_add_u32 v{t1}, v{t1}, 1, v{t2}
    v_bfe_u32 v{t2}, v{vL}, 3, 1
    v_lshl_add_u32 v{t1}, v{t2}, 2, v{t1}
    v_and_b32 v{t2}, 1, v{vL}
    v_lshlrev_b32 v{t2}, 3, v{t2}
    v_lshl_add_u32 v{t2}, v{t1}, 4, v{t2}
    v_lshl_add_u32 v{t2}, v{t0}, 7, v{t2}
    v_add_u32 v{G1_WR}, 98304, v{t2}
    v_xor_b32 v{G1_WR+1}, 64, v{G1_WR}''')
def g1_reads(t, s):
    b = (4 * t + s) & 1; sl = t % 3; o = []
    B = lambda st: f'ds_read_b128 {vr(G1_B + 8*b + 4*st, 4)}, v{G1_XR+s} offset:{(sl&1)*32768 + st*4096}'
    tog = f'v_add_u32 v{G1_XR+s}, 0x10000, v{G1_XR+s}\n' if sl == 2 else f'v_subrev_u32 v{G1_XR+s}, 0x10000, v{G1_XR+s}\n' if sl == 0 and t else ''
    o.append(tog + B(0))
    for mat in range(2):
        for ft in range(2):
            r = G1_A + 16 * b + 4 * (2 * mat + ft)
            for h in range(2):
                o.append(f'ds_read_b64_tr_b16 {vr(r+2*h, 2)}, v{G1_WR+ft} offset:{sl*16384 + mat*8192 + s*2048 + h*512}')
    o.append(B(1))
    return o
def g1_mfmas(t, s):
    b = (4 * t + s) & 1; o = []
    for st in range(2):
        for mat in range(2):
            for ft in range(2):
                c = acc1(st, mat, ft)
                src = '0' if (t == 0 and s == 0) else vr(c, 16)
                o.append(f'v_mfma_f32_32x32x16_bf16 {vr(c,16)}, {vr(G1_A + 16*b + 4*(2*mat+ft), 4)}, {vr(G1_B + 8*b + 4*st, 4)}, {src}')
    return o
def g1_main(p, extra=None, post=None, ini=3, pre=None, fast=0):
    extra = extra or {}; post = post or {}; pre = pre or {}
    p.waitvm('dma0'); p('s_barrier')
    p.extend(g1_reads(0, 0))
    pend = [x for t in range(ini, 3) for x in g1_dma(t)]
    for t in range(8):
        for s in range(4):
            mf = g1_mfmas(t, s)
            slots = [[] for _ in range(8)]
            if s < 3:
                rd = g1_reads(t, s + 1)
                for i, x in enumerate(rd): slots[i // 2].append(x)
            elif t < 7:
                slots[1] += pre.get(t, []) + [Ins('s_waitcnt lgkmcnt(0)'), Ins(f'WAITVM dma{t+1}'), 's_barrier']
                rd = g1_reads(t + 1, 0)
                for i, x in enumerate(rd): slots[1 + i // 2].append(x)
                slots[1] += post.get(t, [])
                if t + 3 < 8: pend = g1_dma(t + 3)
            else:
                slots[1] += pre.get(t, []) + [Ins('s_waitcnt lgkmcnt(0)'), 's_barrier'] + post.get(t, [])
            lo = 6 if s == 3 else 5 if (s < 2 and (t or ini > 1)) else 0
            if s == 3: n = min(len(pend), 4)
            elif s < 2: n = min(len(pend), 7) if (t or ini > 1) else 17
            else: n = len(pend)
            if t < fast and s < 2: lo = 0; n = min(len(pend), 11)
            for i in range(n): slots[lo + i * (8 - lo) // max(n, 1)].append(pend.pop(0))
            ex = extra.get((t, s), [])
            for i, x in enumerate(ex): slots[i * 8 // len(ex)].append(x)
            for m in range(8):
                p(mf[m]); p.extend(slots[m])
    assert not pend
def g1_epilogue(p, fill=(), hook=None):
    fill = list(fill); nf = len(fill)
    H, va = 128, 192
    p(f'''s_lshl_b32 s{sT0}, s{sMI}, 2
    s_add_u32 s{sT0}, s{sT0}, s{sW}
    s_lshl_b32 s{sT0}, s{sT0}, 10
    s_lshl_b32 s{sT1}, s{sFI}, 18
    s_add_u32 s{sT0}, s{sT0}, s{sT1}
    s_add_u32 s{sT0}, s{sT0}, {WS_H}
    v_lshlrev_b32 v{va}, 4, v{vL}''')
    for ft in range(2):
        for q in range(4):
            R = H + 4 * (4 * ft + q)
            for st in range(2):
                g = acc1(st, 0, ft) + 4 * q; u = acc1(st, 1, ft) + 4 * q
                for e in range(4): p(f'v_max_f32 v{g+e}, 0, v{g+e}')
                for e in (0, 2): p(f'v_pk_mul_f32 {vr(g+e,2)}, {vr(g+e,2)}, {vr(u+e,2)}')
                for e in (0, 2): p(f'v_cvt_pk_bf16_f32 v{R + 2*st + e//2}, v{g+e}, v{g+e+1}')
            p(f'v_permlane32_swap_b32 v{R}, v{R+2}\nv_permlane32_swap_b32 v{R+1}, v{R+3}')
            p(f'buffer_store_dwordx4 {vr(R,4)}, v{va}, {srd(S_WS)}, s{sT0} offen {MOD["hs"]}', 'hst')
            if (ft, q) != (1, 3): p(f's_add_u32 s{sT0}, s{sT0}, 32768')
            i = 4 * ft + q
            if i < 7: p.extend(fill[nf * i // 7: nf * (i + 1) // 7])
            if hook: p.extend(hook.get(i, []))

def k_gemm1():
    p = Prog(); prologue(p)
    L = p.label('main')
    p(f's_cmp_lt_u32 s{sJ}, 28\ns_cbranch_scc1 {L}\ns_endpgm\n{L}:')
    g1_setup(p)
    for t in range(3): p.extend(g1_dma(t))
    g1_setup2(p)
    g1_main(p); g1_epilogue(p)
    p('s_endpgm')
    return p

SP_X = 57344
SP_W = 0
def spare_issue_w(p):
    t0, t1, t2, vw = 140, 141, 142, 143
    sT0, sT1 = sT4, sT5
    mk_srd(p, S_P, 24, 1792 * 1024)
    p(f'''s_lshr_b32 s{sT0}, s{sSI}, 3
    s_lshl_b32 s{sT0}, s{sT0}, 2
    s_add_u32 s{sT0}, s{sT0}, s{sW}
    s_mul_i32 s{sT0}, s{sT0}, {112*1024}
    s_and_b32 s{sT1}, s{sSI}, 7
    s_lshl_b32 s{sT1}, s{sT1}, 7
    s_add_u32 s{sT0}, s{sT0}, s{sT1}
    v_lshrrev_b32 v{t0}, 3, v{vL}
    v_and_b32 v{t1}, 7, v{vL}
    v_bfe_u32 v{t2}, v{vL}, 4, 1
    v_lshlrev_b32 v{t2}, 2, v{t2}
    v_xor_b32 v{t2}, v{t1}, v{t2}
    v_lshlrev_b32 v{t2}, 4, v{t2}
    v_lshl_add_u32 v{vw}, v{t0}, 10, v{t2}
    s_mul_i32 s{sWM}, s{sW}, 14336
    s_add_u32 s{sWM}, s{sWM}, {SP_W}''')
    for i in range(14):
        p(f's_add_u32 m0, s{sWM}, {1024*i}')
        p(f'buffer_load_dwordx4 v{vw}, {srd(S_P)}, s{sT0} offen {MOD["d"]} lds', f'wdma{i//2}')
        if i < 13: p(f's_add_u32 s{sT0}, s{sT0}, 8192')
def spare_issue_x(p):
    t0, t1, t2, t3, vw, vx = 1, 2, 3, 4, 8, 10
    p(f'''s_lshl_b32 s{sT1}, s{sW}, 2
    s_and_b32 s{sT1}, s{sT1}, 7
    v_xor_b32 v{t0}, s{sT1}, v{vL}
    v_lshlrev_b32 v{vx}, 4, v{t0}
    v_xor_b32 v{vx+1}, 16, v{vx}
    v_xor_b32 v{vx+2}, 32, v{vx}
    v_xor_b32 v{vx+3}, 48, v{vx}
    s_lshl_b32 s{sT0}, s{sSI}, 2
    s_add_u32 s{sT0}, s{sT0}, s{sW}
    s_lshl_b32 s{sKX}, s{sT0}, 14
    s_mul_i32 s{sXM}, s{sW}, {16*1152}''')
    for i in range(16):
        p(f's_add_u32 m0, s{sXM}, {SP_X + 1152*i}')
        p(f'buffer_load_dwordx4 v{vx + 2*(i>>3) + ((i>>1)&1)}, {srd(S_X)}, s{sKX} offen {MOD["sx"]} lds', 'xdma')
        if i < 15: p(f's_add_u32 s{sKX}, s{sKX}, 1024')
SP_G = 131072
def spare_issue_g(p):
    mk_srd(p, S_WG, 26, 1024)
    p(f's_lshl_b32 s{sT3}, s{sW}, 10\ns_add_u32 m0, s{sT3}, {SP_G}\nv_lshlrev_b32 v5, 4, v{vL}')
    p(f'buffer_load_dwordx4 v5, {srd(S_WG)}, 0 offen lds', 'gdma')
def spare_wd(p, fill=()):
    t0, t1, t2, ra, va = 1, 2, 3, 6, 14
    p(f'''v_lshrrev_b32 v{t1}, 5, v{vL}
    v_bfe_u32 v{t0}, v{vL}, 2, 2
    v_lshl_add_u32 v{t0}, v{t1}, 3, v{t0}
    v_bfe_u32 v{t1}, v{vL}, 4, 1
    v_bfe_u32 v{t2}, v{vL}, 1, 1
    v_lshl_add_u32 v{t1}, v{t1}, 1, v{t2}
    v_bfe_u32 v{t2}, v{vL}, 3, 1
    v_lshl_add_u32 v{t1}, v{t2}, 2, v{t1}
    v_and_b32 v{t2}, 1, v{vL}
    v_lshlrev_b32 v{t2}, 3, v{t2}
    v_lshl_add_u32 v{t2}, v{t1}, 4, v{t2}
    v_lshl_add_u32 v{t2}, v{t0}, 7, v{t2}
    v_add_u32 v{ra}, s{sWM}, v{t2}
    v_xor_b32 v{ra+1}, 64, v{ra}
    v_lshlrev_b32 v{va}, 4, v{vL}
    s_and_b32 s{sT0}, s{sSI}, 7
    s_lshl_b32 s{sT0}, s{sT0}, 2
    s_lshr_b32 s{sT1}, s{sSI}, 3
    s_add_u32 s{sT0}, s{sT0}, s{sT1}
    s_lshl_b32 s{sT0}, s{sT0}, 2
    s_add_u32 s{sT0}, s{sT0}, s{sW}
    s_mul_i32 s{sT0}, s{sT0}, 14336
    s_add_u32 s{sT5}, s{sT0}, {WS_WDT}''')
    def st(i):
        p(f'buffer_store_dwordx4 {vr(16+4*i,4)}, v{va}, {srd(S_WS)}, s{sT5} offen offset:{1024*(i&3)} sc1', 'wst')
        if i & 3 == 3: p(f's_add_u32 s{sT5}, s{sT5}, 4096')
    fill = list(fill); nf = len(fill)
    for s in range(8):
        if s < 7:
            p.waitvm(f'wdma{s}')
            for d in range(2):
                r = 16 + 4 * (2 * s + d)
                for h in range(2): p(f'ds_read_b64_tr_b16 {vr(r+2*h,2)}, v{ra+d} offset:{s*2048 + h*512}')
        if s: st(2 * s - 2); st(2 * s - 1)
        p.extend(fill[nf * s // 8: nf * (s + 1) // 8])
def spare_ut(p, mid=(), fill=()):
    t0, t1, t2, t3, ra, va = 1, 2, 3, 4, 72, 14
    p(f'''v_and_b32 v{t0}, 3, v{vL}
    v_lshrrev_b32 v{t1}, 5, v{vL}
    v_lshl_add_u32 v{t1}, v{t1}, 2, v{t0}
    v_bfe_u32 v{t2}, v{vL}, 2, 2
    v_lshl_add_u32 v{t1}, v{t1}, 3, v{t2}
    v_mul_u32_u24 v{t1}, 1152, v{t1}
    v_bfe_u32 v{t2}, v{vL}, 3, 1
    v_lshl_add_u32 v{t0}, v{t0}, 1, v{t2}
    v_lshl_add_u32 v{t1}, v{t0}, 4, v{t1}
    v_bfe_u32 v{t2}, v{vL}, 4, 1
    v_lshl_add_u32 v{t1}, v{t2}, 3, v{t1}
    s_lshl_b32 s{sT0}, s{sW}, 8
    s_add_u32 s{sT0}, s{sT0}, {SP_X}
    v_add_u32 v{ra}, s{sT0}, v{t1}''')
    for k in range(1, 8): p(f'v_xor_b32 v{ra+k}, {16*k}, v{ra}')
    p(f'''v_and_b32 v{t0}, 15, v{vL}
    v_lshlrev_b32 v{t0}, 4, v{t0}
    v_lshrrev_b32 v{t1}, 5, v{vL}
    v_lshl_add_u32 v{t0}, v{t1}, 8, v{t0}
    v_lshl_add_u32 v{va}, v{t2}, 14, v{t0}
    s_lshl_b32 s{sT0}, s{sW}, 19
    s_lshl_b32 s{sT1}, s{sSI}, 9
    s_add_u32 s{sT0}, s{sT0}, s{sT1}
    s_add_u32 s{sT5}, s{sT0}, {WS_UT}''')
    p.waitvm('xdma'); p('s_barrier')
    for k in range(16):
        r = 16 + 4 * (k % 8) if k < 8 else 80 + 4 * (k % 8)
        for h in range(2): p(f'ds_read_b64_tr_b16 {vr(r+2*h,2)}, v{ra+(k&7)} offset:{(k>>3)*128 + h*4608}')
    p.extend(mid); nf = len(fill)
    for k in range(16):
        r = 16 + 4 * (k % 8) if k < 8 else 80 + 4 * (k % 8)
        p(f'buffer_store_dwordx4 {vr(r,4)}, v{va}, {srd(S_WS)}, s{sT5} offen sc1', 'ust')
        if k < 15: p(f's_add_u32 s{sT5}, s{sT5}, 32768')
        p.extend(fill[nf * k // 16: nf * (k + 1) // 16])
def spare_g(p):
    t0, t1, t2, ra, ac, X, W = 1, 2, 3, 8, 10, 112, 176
    p(f'''s_lshl_b32 s{sT0}, s{sW}, 4
    v_lshrrev_b32 v{t0}, 2, v{vL}
    v_add_u32 v{t0}, s{sT0}, v{t0}
    v_bfe_u32 v{t1}, v{t0}, 3, 2
    v_bfe_u32 v{t2}, v{t0}, 1, 1
    v_lshl_add_u32 v{t1}, v{t1}, 1, v{t2}
    v_and_b32 v{t2}, 3, v{vL}
    v_xor_b32 v{t1}, v{t1}, v{t2}
    v_mul_u32_u24 v{ra}, 1152, v{t0}
    v_lshl_add_u32 v{ra}, v{t1}, 4, v{ra}
    v_add_u32 v{ra}, {SP_X}, v{ra}
    v_xor_b32 v{ra+1}, 64, v{ra}''')
    p(f's_lshl_b32 s{sT3}, s{sW}, 10\ns_add_u32 s{sT3}, s{sT3}, {SP_G}\nv_lshl_add_u32 v{t2}, v{t2}, 4, s{sT3}')
    for e in range(4): p(f'v_mov_b32 v{ac+e}, 0')
    for i in range(16): p(f'ds_read_b128 {vr(X+4*i,4)}, v{ra+(i&1)} offset:{(i>>1)*128}')
    for i in range(20):
        if i < 16: p(f'ds_read_b128 {vr(W+4*(i&3),4)}, v{t2} offset:{64*i}') if i < 4 else None
        if i >= 4:
            for e in range(4): p(f'v_dot2c_f32_bf16 v{ac+e}, v{X+4*(i-4)+e}, v{W+4*(i&3)+e}')
            if i < 16: p(f'ds_read_b128 {vr(W+4*(i&3),4)}, v{t2} offset:{64*i}')
    p(f'''v_add_f32 v{ac}, v{ac}, v{ac+1}
    v_add_f32 v{ac+2}, v{ac+2}, v{ac+3}
    v_add_f32 v{ac}, v{ac}, v{ac+2}
    v_add_f32_dpp v{ac+1}, v{ac}, v{ac} quad_perm:[1,0,3,2] row_mask:0xf bank_mask:0xf
    v_add_f32_dpp v{ac}, v{ac+1}, v{ac+1} quad_perm:[2,3,0,1] row_mask:0xf bank_mask:0xf
    v_cvt_pk_bf16_f32 v{ac}, v{ac}, v{ac}
    v_and_b32 v{ac}, 0xffff0000, v{ac}
    v_mul_f32 v{ac}, 0xbfb8aa3b, v{ac}
    v_exp_f32 v{ac}, v{ac}
    v_add_f32 v{ac}, 1.0, v{ac}
    v_rcp_f32 v{ac}, v{ac}
    v_cvt_pk_bf16_f32 v{ac}, v{ac}, v{ac}
    v_and_b32 v{ac}, 0xffff0000, v{ac}
    s_lshl_b32 s{sT0}, s{sSI}, 8
    s_add_u32 s{sT0}, s{sT0}, {WS_G}
    v_lshlrev_b32 v{t0}, 2, v{t0}''')
    p(f'buffer_store_dword v{ac}, v{t0}, {srd(S_WS)}, s{sT0} offen sc1', 'gst')

def k_spare():
    p = Prog(); prologue(p)
    L = p.label('main')
    p(f's_cmp_ge_u32 s{sJ}, 28\ns_cbranch_scc1 {L}\ns_endpgm\n{L}:')
    spare_issue(p); spare_wd(p); spare_ut(p); spare_g(p)
    p('s_endpgm')
    return p

KT, KTS, KR = 65536, 65536, 528
TL, TLS = 159056, 2064
IMG, IMS = 131072, 8320
UIM, UIS = 147712, 4672
RED = 0
AS = 32768
P2 = 49152
vPAR = 196
vGA = 202
def vE(e): return vGA + 16 if e < 0 else vGA + 8 + (15 - e) // 2 if e & 1 else vGA + (14 - e) // 2
vTA = 219
vZA = 222
vDM = 223
def par_loads(p):
    t0, t1 = 192, 193
    p(f'''s_lshl_b32 s{sT0}, s{sPI}, 2
    s_add_u32 s{sT0}, s{sT0}, s{sW}
    s_lshl_b32 s{sT1}, s{sT0}, 7
    v_lshl_add_u32 v{t0}, v{vL}, 1, s{sT1}
    s_lshr_b32 s{sT0}, s{sT0}, 1
    s_lshl_b32 s{sT0}, s{sT0}, 1
    v_mov_b32 v{t1}, s{sT0}''')
    for i in range(4): p(f'global_load_short_d16_hi v{vPAR+i}, v{t0}, s[{6+2*i}:{7+2*i}] {MOD["p"]}')
    for i in range(2): p(f'global_load_short_d16_hi v{vPAR+4+i}, v{t1}, s[{14+2*i}:{15+2*i}]')
def par_zero(p):
    for i in range(6): p(f'v_mov_b32 v{vPAR+i}, 0')
def rne_off(s, e):
    q, r = divmod(e, 1 << s); h = (1 << s) // 2
    if s and (r > h or (r == h and q & 1)): q += 1
    return q
def tail_setup(p):
    t0, t1, t2, t3, t4 = 192, 193, 194, 195, 234
    p(f'''s_lshr_b32 s{sT0}, s{sW}, 1
    s_and_b32 s{sT1}, s{sW}, 1
    s_mul_i32 s{sT2}, s{sT0}, {TLS}
    s_add_u32 s{sT2}, s{sT2}, {TL}
    s_lshl_b32 s{sT3}, s{sT1}, 6
    s_sub_u32 s{sT3}, 127, s{sT3}
    v_sub_u32 v{t0}, s{sT3}, v{vL}
    v_lshlrev_b32 v{t1}, 4, v{t0}''')
    def idx(dst, src):
        p(f'''v_cvt_f32_u32 v{t3}, v{src}
        v_cvt_pk_bf16_f32 v{t3}, v{t3}, v{t3}
        v_and_b32 v{t3}, 0xffff, v{t3}
        v_subrev_u32 v{t3}, 17024, v{t3}
        v_min_i32 v{t4}, 128, v{src}
        v_max_i32 v{t3}, v{t3}, v{t4}
        v_lshl_add_u32 v{dst}, v{t3}, 1, s{sT2}''')
    idx(vE(0), t1)
    p(f'v_subrev_u32 v{t2}, 1, v{t1}\nv_max_i32 v{t2}, 0, v{t2}')
    idx(vE(-1), t2)
    p(f'''s_add_u32 s{sT3}, s{sT2}, 2048
    v_mov_b32 v{t2}, s{sT3}
    v_cmp_eq_u32 vcc, 0, v{t0}
    v_cndmask_b32 v{vE(-1)}, v{vE(-1)}, v{t2}, vcc
    v_ffbh_u32 v{t2}, v{t0}
    v_min_u32 v{t2}, 28, v{t2}
    v_sub_u32 v{t2}, 28, v{t2}
    v_lshlrev_b32 v{t2}, 3, v{t2}''')
    for e in range(1, 16):
        k = sum((2 * rne_off(s, e)) << (8 * s) for s in range(4))
        p(f's_mov_b32 s{sT3}, {hex(k)}\nv_bfe_u32 v{t3}, s{sT3}, v{t2}, 8\nv_add_u32 v{vE(e)}, v{vE(0)}, v{t3}')
    p(f'''v_and_b32 v{t0}, 15, v{vL}
    s_lshl_b32 s{sT3}, s{sT1}, 4
    v_add_u32 v{t0}, s{sT3}, v{t0}
    v_lshrrev_b32 v{t1}, 4, v{vL}
    v_lshlrev_b32 v{t2}, 3, v{t1}
    v_lshl_add_u32 v{t2}, v{t0}, 4, v{t2}
    v_lshlrev_b32 v{t3}, 3, v{t0}
    v_add_u32 v{t3}, 512, v{t3}
    v_cmp_eq_u32 vcc, 2, v{t1}
    v_cndmask_b32 v{t2}, v{t2}, v{t3}, vcc
    v_lshlrev_b32 v{t3}, 2, v{t0}
    v_add_u32 v{t3}, 768, v{t3}
    v_mov_b32 v{t4}, 4
    v_mov_b32 v{vTA+1}, 128
    v_cmp_eq_u32 vcc, 3, v{t1}
    v_cndmask_b32 v{t2}, v{t2}, v{t3}, vcc
    v_cndmask_b32 v{t4}, v{t4}, v{vTA+1}, vcc
    v_add_u32 v{vTA}, s{sT2}, v{t2}
    v_add_u32 v{vTA+1}, v{vTA}, v{t4}
    v_lshlrev_b32 v{t2}, 8, v{t1}
    v_lshl_add_u32 v{t2}, v{t0}, 1, v{t2}
    v_add_u32 v{vTA+2}, s{sT2}, v{t2}
    v_or_b32 v{t2}, v{t0}, v{t1}
    v_mov_b32 v{t3}, 0
    v_cmp_eq_u32 vcc, 0, v{t2}
    v_cndmask_b32 v{vDM}, v{t3}, 1.0, vcc''')
    p(f'''v_lshrrev_b32 v{t0}, 5, v{vL}
    v_mul_u32_u24 v{t0}, {UIS}, v{t0}
    v_and_b32 v{t1}, 31, v{vL}
    v_lshl_add_u32 v{t0}, v{t1}, 4, v{t0}
    v_add_u32 v{t0}, {UIM}, v{t0}
    v_bfe_u32 v{t1}, v{vL}, 1, 2
    v_mul_u32_u24 v{t1}, 4160, v{t1}
    v_and_b32 v{t2}, 1, v{vL}
    v_lshl_add_u32 v{t1}, v{t2}, 4, v{t1}
    v_add_u32 v{t1}, {IMG + 4096}, v{t1}
    v_mul_u32_u24 v{t2}, {TLS}, v{t2}
    v_add_u32 v{t2}, {TL + 2048}, v{t2}
    v_and_b32 v{t3}, 8, v{vL}
    v_cmp_eq_u32 vcc, 0, v{t3}
    v_cndmask_b32 v{t1}, v{t2}, v{t1}, vcc
    s_cmp_eq_u32 s{sW}, 0
    s_cselect_b64 vcc, -1, 0
    v_cndmask_b32 v{vZA}, v{t1}, v{t0}, vcc''')
HI = [0,1,2,3,4,5,6,7,256,258,260,262,512,516,768,772,1024,1280,1536,1792,2048]
def merge(chains):
    out = []; ch = [list(c) for c in chains]
    while any(ch):
        for c in ch:
            if c: out.append(c.pop(0))
    return out
def cmul(D, X, Y):
    return [f'v_pk_mul_f32 {vr(D,2)}, {vr(X,2)}, {vr(Y,2)} op_sel:[0,0] op_sel_hi:[0,1]',
            f'v_pk_fma_f32 {vr(D,2)}, {vr(X,2)}, {vr(Y,2)}, {vr(D,2)} op_sel:[1,1,0] op_sel_hi:[1,0,1] neg_lo:[0,1,0]']
def kgen_valu(p, fills=()):
    lar, aim, cre, cim, ldt, dsk = range(vPAR, vPAR + 6)
    def expbf(x, t):
        return [f'v_mul_f32 v{t}, 0x3fb8aa3b, v{x}', f'v_fma_f32 v{t+1}, v{x}, s{sT2}, -v{t}', f'v_fmac_f32 v{t+1}, 0x32a57060, v{x}',
                f'v_exp_f32 v{t}, v{t}', f'v_mul_f32 v{t+1}, 0x3f317218, v{t+1}', f'v_fmac_f32 v{t}, v{t}, v{t+1}',
                f'v_cvt_pk_bf16_f32 v{t}, v{t}, v{t}', f'v_and_b32 v{x}, 0xffff0000, v{t}']
    vKA = 13
    p(f'''s_mov_b32 s{sT2}, 0x3fb8aa3b
    s_lshr_b32 s{sT0}, s{sW}, 1
    s_mul_i32 s{sT1}, s{sT0}, {TLS}
    s_add_u32 s{sT1}, s{sT1}, {TL + 2048}
    v_mov_b32 v10, s{sT1}
    s_mul_i32 s{sT0}, s{sT0}, {KTS}
    s_and_b32 s{sT1}, s{sW}, 1
    s_lshl_b32 s{sT1}, s{sT1}, 8
    s_add_u32 s{sT0}, s{sT0}, s{sT1}
    s_add_u32 s{sT0}, s{sT0}, {KT}
    v_lshl_add_u32 v{vKA}, v{vL}, 2, s{sT0}
    v_mov_b32 v11, 0
    v_mov_b32 v12, 0x3f80''')
    p(f'ds_write_b32 v10, v11\nds_write_b32 v{vKA}, v12')
    p0 = p; p = Prog()
    p.extend(merge([expbf(ldt, 0), expbf(lar, 2)]))
    a2, b2 = 4, 5
    Hreg = {h: 16 + 2 * i for i, h in enumerate(HI)}
    Lreg = {k: 58 + 2 * k for k in range(1, 32)}
    Z1, Z2, Z4, Z256 = 122, 124, 126, 128
    p(f'''v_mul_f32 v{a2}, v{lar}, v{ldt}
    v_mul_f32 v{b2}, v{aim}, v{ldt}
    v_mul_f32 v6, v{cre}, v{ldt}
    v_mul_f32 v7, v{cim}, v{ldt}
    v_mul_f32 v{a2}, 0xbfb8aa3b, v{a2}
    v_mul_f32 v{b2}, 0x3e22f983, v{b2}
    v_add_f32 v{Hreg[0]}, v6, v6
    v_add_f32 v{Hreg[0]+1}, v7, v7
    v_mul_f32 v{vDM}, v{vDM}, v{dsk}''')
    def direct(D, pw, t):
        o = []
        if pw != 1: o += [f'v_mul_f32 v{t}, {float(pw)}, v{a2}', f'v_mul_f32 v{t+1}, {float(pw)}, v{b2}', f'v_exp_f32 v{t}, v{t}', f'v_fract_f32 v{t+1}, v{t+1}']
        else: o += [f'v_exp_f32 v{t}, v{a2}', f'v_fract_f32 v{t+1}, v{b2}']
        o += [f'v_cos_f32 v{D}, v{t+1}', f'v_sin_f32 v{D+1}, v{t+1}', f'v_mul_f32 v{D}, v{D}, v{t}', f'v_mul_f32 v{D+1}, v{D+1}, v{t}']
        return o
    p.extend(merge([direct(Lreg[1], 8, 0), direct(Z256, 256, 2), direct(Z1, 1, 8)]))
    cv = [130]
    def put(reg, row, neg):
        t = cv[0]
        return [f'v_cvt_pk_bf16_f32 v{t}, v{reg}, {"-" if neg else ""}v{reg+1}', f'ds_write_b32 v{vKA}, v{t} offset:{row*KR}']
    ph = lambda h: put(Hreg[h], 32 + HI.index(h), True)
    pl = lambda k: put(Lreg[k], k, False)
    cv[0] = 130
    c1 = cmul(Lreg[2], Lreg[1], Lreg[1]) + pl(1) + cmul(Lreg[4], Lreg[2], Lreg[2]) + pl(2)
    cv[0] = 131
    c2 = cmul(Z2, Z1, Z1) + ph(0) + cmul(Lreg[3], Lreg[2], Lreg[1]) + cmul(Z4, Z2, Z2)
    cv[0] = 132
    c3 = cmul(Hreg[256], Hreg[0], Z256) + cmul(Hreg[1], Hreg[0], Z1) + ph(256) + ph(1)
    p.extend(merge([c1, c2, c3]))
    chains = []
    for k0 in range(1, 5):
        c = []; cv[0] = 132 + k0
        for k in range(k0, 32, 4):
            if k + 4 < 32: c += cmul(Lreg[k + 4], Lreg[k], Lreg[4])
            if k > 2: c += pl(k)
        chains.append(c)
    c = []; cv[0] = 137
    for h in range(2, 8): c += cmul(Hreg[h], Hreg[h - 1], Z1) + ph(h)
    for h in (258, 260, 262): c += cmul(Hreg[h], Hreg[h - 2], Z2) + ph(h)
    chains.append(c)
    c = []; cv[0] = 138
    for h in range(512, 2049, 256):
        c += cmul(Hreg[h], Hreg[h - 256], Z256) + ph(h)
        if h in (512, 768): c += cmul(Hreg[h + 4], Hreg[h], Z4) + ph(h + 4)
    chains.append(c)
    p.extend(merge(chains))
    n = len(p.ins); at = [[] for _ in range(n)]
    for a, b, lst in fills:
        for i, x in enumerate(lst): at[min(n - 1, int(n * (a + (b - a) * i / len(lst))))].append(x)
    for I, x in zip(p.ins, at): p0.extend([I]); p0.extend(x)
def kgen_mfma(p, fill=()):
    ra, rb, rc, t0, t1 = 0, 1, 12, 2, 3
    p(f'''s_lshr_b32 s{sT0}, s{sW}, 1
    s_mul_i32 s{sT0}, s{sT0}, {KTS}
    s_add_u32 s{sT0}, s{sT0}, {KT}
    s_and_b32 s{sT1}, s{sW}, 1
    s_mul_i32 s{sT1}, s{sT1}, {16*KR}
    v_and_b32 v{t0}, 15, v{vL}
    v_lshrrev_b32 v{t1}, 4, v{vL}
    v_lshl_add_u32 v{t1}, v{t1}, 4, s{sT0}
    v_mad_u32_u24 v{ra}, v{t0}, {'s'+str(sT3)}, v{t1}
    v_min_u32 v{t0}, 4, v{t0}
    v_mad_u32_u24 v{rc}, v{t0}, {'s'+str(sT3)}, v{t1}
    v_add_u32 v{rb}, s{sT1}, v{ra}
    s_waitcnt lgkmcnt(0)
    s_barrier'''.replace('v_and_b32', f's_mov_b32 s{sT3}, {KR}\n    v_and_b32', 1))
    fill = list(fill); nf = len(fill)
    F = lambda ks, i: 16 + 12 * ks + 4 * i
    for ks in range(8):
        p.extend(fill[nf * ks // 8: nf * (ks + 1) // 8])
        p(f'ds_read_b128 {vr(F(ks,0),4)}, v{rb} offset:{64*ks}')
        p(f'ds_read_b128 {vr(F(ks,1),4)}, v{ra} offset:{64*ks + 32*KR}')
        p(f'ds_read_b128 {vr(F(ks,2),4)}, v{rc} offset:{64*ks + 48*KR}')
        if ks >= 3:
            k = ks - 3
            for mt in range(2): p(f'v_mfma_f32_16x16x32_bf16 {vr(4+4*mt,4)}, {vr(F(k,1+mt),4)}, {vr(F(k,0),4)}, {"0" if k == 0 else vr(4+4*mt,4)}')
    for k in range(5, 8):
        for mt in range(2): p(f'v_mfma_f32_16x16x32_bf16 {vr(4+4*mt,4)}, {vr(F(k,1+mt),4)}, {vr(F(k,0),4)}, {vr(4+4*mt,4)}')
    p(f'''v_add_f32 v4, v4, v{vDM}
    v_cvt_pk_bf16_f32 v5, v4, v5
    v_cvt_pk_bf16_f32 v6, v6, v7
    v_cvt_pk_bf16_f32 v8, v8, v9
    v_cvt_pk_bf16_f32 v10, v10, v11
    ds_write_b32 v{vTA}, v5
    ds_write_b32 v{vTA+1}, v6
    ds_write_b16 v{vTA+2}, v8 offset:1024
    ds_write_b16_d16_hi v{vTA+2}, v8 offset:1088
    ds_write_b16 v{vTA+2}, v10 offset:1152
    ds_write_b16_d16_hi v{vTA+2}, v10 offset:1216''')
def zero_fill():
    return ['v_mov_b32 v196, 0\nv_mov_b32 v197, 0', 'v_mov_b32 v198, 0\nv_mov_b32 v199, 0', f'ds_write_b128 v{vZA}, v[196:199]']
def expand():
    B, A, wa = vGA, vGA + 8, 200
    rd = [f'''s_lshr_b32 s{sT0}, s{sW}, 1
    s_mul_i32 s{sT0}, s{sT0}, {IMS}
    s_and_b32 s{sT1}, s{sW}, 1
    s_lshl_b32 s{sT1}, s{sT1}, 11
    s_add_u32 s{sT0}, s{sT0}, s{sT1}
    s_add_u32 s{sT0}, s{sT0}, {IMG}
    v_lshl_add_u32 v{wa}, v{vL}, 5, s{sT0}''']
    for k in range(8): rd += [f'ds_read_u16 v{A+k}, v{A+k}', f'ds_read_u16 v{B+k}, v{B+k}']
    rd.append(f'ds_read_u16 v{A+8}, v{A+8}')
    wr = []
    for k in range(8):
        wr.append(f'v_lshl_or_b32 v{192+k}, v{B+k}, 16, v{A+k}\nv_lshl_or_b32 v{B+k}, v{A+k+1}, 16, v{B+k}')
        if k & 3 == 3: wr += [f'ds_write_b128 v{wa}, {vr(189+k,4)} offset:{4*(k-3)}', f'ds_write_b128 v{wa}, {vr(B+k-3,4)} offset:{4160 + 4*(k-3)}']
    return rd, wr
vU = 224
def u_loads(p):
    t0, t1 = 232, 233
    p(f'''s_lshr_b32 s{sT0}, s{sPI}, 1
    s_lshl_b32 s{sT0}, s{sT0}, 14
    s_and_b32 s{sT1}, s{sPI}, 1
    s_lshl_b32 s{sT1}, s{sT1}, 5
    s_add_u32 s{sT0}, s{sT0}, s{sT1}
    s_lshl_b32 s{sT1}, s{sW}, 11
    s_add_u32 s{sT0}, s{sT0}, s{sT1}
    s_add_u32 s{sT0}, s{sT0}, {WS_UT}
    s_add_u32 s{sT1}, s{sT0}, 8192
    v_lshrrev_b32 v{t0}, 1, v{vL}
    v_and_b32 v{t1}, 1, v{vL}
    v_lshlrev_b32 v{t1}, 4, v{t1}
    v_lshl_add_u32 v{t0}, v{t0}, 6, v{t1}
    buffer_load_dwordx4 {vr(vU,4)}, v{t0}, {srd(S_WS)}, s{sT0} offen sc1
    buffer_load_dwordx4 {vr(vU+4,4)}, v{t0}, {srd(S_WS)}, s{sT1} offen sc1''')
def u_put():
    t0, t1 = 232, 233
    return [f'''s_lshl_b32 s{sT0}, s{sW}, 9
    s_add_u32 s{sT0}, s{sT0}, {UIM + 512}
    v_lshrrev_b32 v{t0}, 1, v{vL}
    v_and_b32 v{t1}, 1, v{vL}''', f'''v_mul_u32_u24 v{t1}, {UIS}, v{t1}
    v_lshl_add_u32 v{t0}, v{t0}, 4, v{t1}
    v_add_u32 v{t0}, s{sT0}, v{t0}''',
    f'ds_write_b128 v{t0}, {vr(vU,4)}', f'ds_write_b128 v{t0}, {vr(vU+4,4)} offset:2048']
AR, BR = 160, 164
CA = lambda b, a: 32 + 64 * b + 4 * a
CB = lambda b, j: 64 + 64 * b + 4 * j
def conv_setup(p):
    t0, t1, t2, t3 = 166, 167, 168, 169
    sT0, sT1 = sT4, sT5
    p(f'''s_lshr_b32 s{sT0}, s{sW}, 1
    s_and_b32 s{sT1}, s{sW}, 1
    s_lshl_b32 s{sT1}, s{sT1}, 8
    s_mul_i32 s{sT2}, s{sT0}, {IMS}
    s_sub_u32 s{sT2}, s{sT2}, s{sT1}
    s_add_u32 s{sT2}, s{sT2}, {IMG + 8220 - 192 - 512}
    s_mul_i32 s{sT3}, s{sT0}, {UIS}
    s_sub_u32 s{sT3}, s{sT3}, s{sT1}
    s_add_u32 s{sT3}, s{sT3}, {UIM + 480 - 192}
    v_and_b32 v{t0}, 15, v{vL}
    v_lshrrev_b32 v{t1}, 4, v{vL}
    v_lshlrev_b32 v{t1}, 4, v{t1}
    v_lshl_add_u32 v{t2}, v{t0}, 5, v{t1}
    v_add_u32 v{BR}, s{sT3}, v{t2}
    v_and_b32 v{t2}, 1, v{vL}
    v_mul_u32_u24 v{t2}, 4158, v{t2}
    v_lshl_add_u32 v{t2}, v{t0}, 1, v{t2}
    v_sub_u32 v{t2}, v{t1}, v{t2}
    v_add_u32 v{AR}, s{sT2}, v{t2}
    v_subrev_u32 v{AR+1}, 1024, v{AR}
    v_subrev_u32 v{AR+2}, 2048, v{AR}
    v_subrev_u32 v{AR+3}, 3072, v{AR}''')
def conv_reads(d):
    b = d & 1; o = []
    def A(a):
        off = 16 * (3 - d) + (128 if a % 2 == 0 else 0)
        return [f'ds_read2_b32 {vr(CA(b,a)+2*h,2)}, v{AR+a//2} offset0:{off+2*h} offset1:{off+2*h+1}' for h in range(2)]
    o += A(0)
    for j in range(8): o.append(f'ds_read_b128 {vr(CB(b,j),4)}, v{BR} offset:{512*j + 64*(3-d)}')
    for a in range(1, 8): o += A(a)
    return o
def conv(p, extra=None, done=None):
    rest0 = conv_reads(0)[12:]
    for d in range(4):
        b = d & 1; mf = []; fin = {}
        for a in range(8):
            for j in range(a, 8):
                if d == 3 and j == a: fin[len(mf) + 3] = j
                mf.append(f'v_mfma_f32_16x16x32_bf16 {vr(4*j,4)}, {vr(CA(b,a),4)}, {vr(CB(b,j-a),4)}, {"0" if d == 0 and a == 0 else vr(4*j,4)}')
        if done: mf = [G([x] + (done(fin[i]) if i in fin else [])) for i, x in enumerate(mf)]
        fill = (rest0 if d == 0 else []) + (conv_reads(d + 1) if d < 3 else [])
        weave(p, mf, fill, (extra or {}).get(d, []), end=34)
        if d == 3 and done:
            for i in sorted(fin):
                if i >= len(mf): p.extend(done(fin[i]))
vCW, vCR, vCV, sAT = 170, 171, 172, 13
def conv_done(j): return [f'ds_write_b128 v{vCW}, {vr(4*j,4)} offset:{RED + 1024*j}']
def conv_out_setup(p):
    wa, ra, va, t0, t1 = vCW, vCR, vCV, 173, 174
    p(f'''s_lshl_b32 s{sT0}, s{sW}, 13
    v_lshrrev_b32 v{t0}, 5, v{vL}
    v_lshlrev_b32 v{t0}, 3, v{t0}
    v_xor_b32 v{t0}, v{t0}, v{vL}
    v_lshl_add_u32 v{wa}, v{t0}, 4, s{sT0}
    s_lshr_b32 s{sT0}, s{sW}, 1
    s_lshl_b32 s{sT0}, s{sT0}, 14
    s_and_b32 s{sT1}, s{sW}, 1
    s_lshl_b32 s{sT1}, s{sT1}, 12
    s_add_u32 s{sT0}, s{sT0}, s{sT1}
    v_and_b32 v{t0}, 1, v{vL}
    v_bfe_u32 v{t1}, v{vL}, 1, 4
    v_lshl_add_u32 v{t1}, v{t0}, 5, v{t1}
    v_lshlrev_b32 v{t0}, 3, v{t0}
    v_xor_b32 v{t1}, v{t1}, v{t0}
    v_lshrrev_b32 v{t0}, 5, v{vL}
    v_lshl_add_u32 v{t1}, v{t0}, 6, v{t1}
    v_lshl_add_u32 v{ra}, v{t1}, 4, s{sT0}
    v_lshlrev_b32 v{va}, 4, v{vL}
    s_lshl_b32 s{sT0}, s{sPI}, 2
    s_add_u32 s{sT0}, s{sT0}, s{sW}
    s_lshl_b32 s{sT0}, s{sT0}, 11
    s_add_u32 s{sAT}, s{sT0}, {WS_AT}''')
def conv_out(p, pre=(), mid=()):
    ra, va = vCR, vCV
    p.extend(pre)
    p('s_waitcnt lgkmcnt(0)\ns_barrier')
    R = lambda i, h, k: 32 + 16 * i + 8 * k + 4 * h
    for i in range(2):
        for h in range(2):
            for k in range(2): p(f'ds_read_b128 {vr(R(i,h,k),4)}, v{ra} offset:{RED + 8192*k + 2048*i + 256*h}')
    p.extend(mid)
    for i in range(2):
        for e in range(0, 8, 2): p(f'v_pk_add_f32 {vr(R(i,0,0)+e,2)}, {vr(R(i,0,0)+e,2)}, {vr(R(i,0,1)+e,2)}')
        for e in range(4): p(f'v_cvt_pk_bf16_f32 v{4*i+e}, v{R(i,0,0)+2*e}, v{R(i,0,0)+2*e+1}')
        p(f'buffer_store_dwordx4 {vr(4*i,4)}, v{va}, {srd(S_WS)}, s{sAT} offen offset:{1024*i} sc1', 'ast')

def k_conv(dbg=False):
    p = Prog(); prologue(p)
    par_zero(p); par_loads(p); u_loads(p); tail_setup(p)
    kgen_valu(p); kgen_mfma(p); u_put(p); expand(p); conv(p); conv_out(p)
    if dbg:
        p(f's_barrier\nv_lshl_add_u32 v0, s{sW}, 6, v{vL}\nv_lshlrev_b32 v0, 4, v0\ns_lshl_b32 s{sT0}, s2, 15\ns_add_u32 s{sT0}, s{sT0}, 0x2000000\nv_add_u32 v1, {TL}, v0')
        for i in range(8):
            p(f'ds_read_b128 v[4:7], v1 offset:{4096*i}\nbuffer_store_dwordx4 v[4:7], v0, {srd(S_WS)}, s{sT0} offen\ns_add_u32 s{sT0}, s{sT0}, 4096\ns_nop 1')
    p('s_endpgm')
    return p

vWA = 236
sWD, sWE, sHX, sHE, sR2 = 4, 5, 6, 7, 8
def rot2_setup(p, on=True):
    if not on: p(f's_mov_b32 s{sR2}, 0'); return
    if on == 2:
        p(f's_add_u32 s{sT0}, s{sJ}, s{sDT}\ns_and_b32 s{sT0}, s{sT0}, 1\ns_mul_i32 s{sR2}, s{sT0}, 7'); return
    if on == 4:
        p(f's_add_u32 s{sT0}, s{sJ}, s{sDT}\ns_and_b32 s{sT0}, s{sT0}, 3\ns_mul_i32 s{sT0}, s{sT0}, 7\ns_lshr_b32 s{sR2}, s{sT0}, 1'); return
    p(f'''s_and_b32 s{sT0}, s{sJ}, 3
    s_mul_i32 s{sT0}, s{sT0}, 7
    s_lshr_b32 s{sT0}, s{sT0}, 1
    s_mul_i32 s{sT1}, s{sDT}, 7
    s_lshr_b32 s{sT1}, s{sT1}, 2
    s_add_u32 s{sT0}, s{sT0}, s{sT1}
    s_sub_u32 s{sT1}, s{sT0}, 14
    s_cmp_ge_u32 s{sT0}, 14
    s_cselect_b32 s{sR2}, s{sT1}, s{sT0}''')
def wd_setup(p):
    p(f'''s_lshl_b32 s{sT0}, s{sDT}, 2
    s_add_u32 s{sT0}, s{sT0}, s{sW}
    s_mul_i32 s{sT0}, s{sT0}, 57344
    s_add_u32 s{sT0}, s{sT0}, {WS_WDT}
    s_add_u32 s{sWE}, s{sT0}, 57344
    s_lshl_b32 s{sT1}, s{sR2}, 12
    s_add_u32 s{sWD}, s{sT0}, s{sT1}
    s_and_b32 s{sT1}, s{sW}, 1
    s_lshl_b32 s{sT1}, s{sT1}, 10
    v_lshl_add_u32 v{vWA}, v{vL}, 4, s{sT1}
    v_xor_b32 v{vWA+1}, 1024, v{vWA}''')
def wrap(r, e, step, span, t):
    return f'\ns_add_u32 s{r}, s{r}, {step}\ns_sub_u32 s{t}, s{r}, {span}\ns_cmp_ge_u32 s{r}, s{e}\ns_cselect_b32 s{r}, s{t}, s{r}'
def wd_loads():
    o = []
    for s in range(28):
        for al in range(2):
            o.append(f'buffer_load_dwordx4 {ar(8*s+4*al,4)}, v{vWA+al}, {srd(S_WS)}, s{sWD} offen offset:{2048*(s&1)} sc1')
        if s & 1 and s < 27: o[-1] += wrap(sWD, sWE, 4096, 57344, 9)
    return o
NB = 12
vHB, vHA, vGAa, vG, vAT = 64, 160, 164, 246, 184
def acc2(al, be): return 16 * (al + 2 * be)
def h_setup(p):
    t0, t1 = 182, 183
    p(f'''s_mul_i32 s{sT0}, s{sW}, {56*32768}
    s_lshl_b32 s{sT1}, s{sST}, 10
    s_add_u32 s{sT0}, s{sT0}, s{sT1}
    s_add_u32 s{sT0}, s{sT0}, {WS_H}
    s_add_u32 s{sHE}, s{sT0}, {28*65536}
    s_lshl_b32 s{sT1}, s{sR2}, 17
    s_add_u32 s{sHX}, s{sT0}, s{sT1}
    s_lshr_b32 s{sT1}, s{sW}, 1
    s_lshl_b32 s{sT1}, s{sT1}, 9
    v_lshrrev_b32 v{t0}, 5, v{vL}
    v_and_b32 v{t1}, 31, v{vL}
    v_lshl_add_u32 v{t1}, v{t1}, 4, s{sT1}
    v_lshl_add_u32 v{vHA}, v{t0}, 15, v{t1}
    v_xor_b32 v{vHA+1}, 512, v{vHA}''')
def h_touch():
    t0 = 182
    return [f'''s_lshr_b32 s{sT1}, s{sHE}, 0
    s_sub_u32 s{sT1}, s{sT1}, {28*65536}
    s_lshl_b32 s{sT0}, s{sDT}, 7
    v_min_u32 v{t0}, 55, v{vL}
    v_lshl_add_u32 v{t0}, v{t0}, 15, s{sT0}
    buffer_load_dword v{vTD}, v{t0}, {srd(S_WS)}, s{sT1} offen sc1''']
def h_loads(s):
    o = [f'buffer_load_dwordx4 {vr(vHB + 8*(s%NB) + 4*be, 4)}, v{vHA+be}, {srd(S_WS)}, s{sHX} offen sc1' for be in range(2)]
    if s < 27: o[-1] += wrap(sHX, sHE, 65536, 28*65536, 10) if s & 1 else f'\ns_add_u32 s{sHX}, s{sHX}, 65536'
    return o
def a_loads():
    t0, t1 = 182, 183
    return [f'''s_and_b32 s{sT0}, s{sW}, 1
    s_lshl_b32 s{sT1}, s{sDT}, 1
    s_add_u32 s{sT0}, s{sT0}, s{sT1}
    s_lshl_b32 s{sT0}, s{sT0}, 17
    s_lshr_b32 s{sT1}, s{sW}, 1
    s_lshl_b32 s{sT2}, s{sST}, 1
    s_add_u32 s{sT1}, s{sT1}, s{sT2}
    s_lshl_b32 s{sT2}, s{sT1}, 6
    s_add_u32 s{sT0}, s{sT0}, s{sT2}
    s_add_u32 s{sT0}, s{sT0}, {WS_AT}
    s_add_u32 s{sT2}, s{sT0}, 65536''',
    f'''v_lshrrev_b32 v{t0}, 2, v{vL}
    v_and_b32 v{t1}, 3, v{vL}
    v_lshlrev_b32 v{t1}, 4, v{t1}
    v_lshl_add_u32 v{t0}, v{t0}, 12, v{t1}''',
    f'buffer_load_dwordx4 {vr(vAT,4)}, v{t0}, {srd(S_WS)}, s{sT0} offen sc1',
    f'buffer_load_dwordx4 {vr(vAT+4,4)}, v{t0}, {srd(S_WS)}, s{sT2} offen sc1']
def g_load(p):
    t0 = 235
    p(f'''s_lshr_b32 s{sT1}, s{sW}, 1
    s_lshl_b32 s{sT2}, s{sST}, 1
    s_add_u32 s{sT1}, s{sT1}, s{sT2}
    s_lshl_b32 s{sT1}, s{sT1}, 7
    s_add_u32 s{sT1}, s{sT1}, {WS_G}
    v_and_b32 v{t0}, 31, v{vL}
    v_lshlrev_b32 v{t0}, 2, v{t0}
    buffer_load_dword v{vG}, v{t0}, {srd(S_WS)}, s{sT1} offen sc1''')
def a_use():
    t0, t1, t2 = 182, 183, 162
    o = [f'''s_lshl_b32 s{sT0}, s{sW}, 11
    s_add_u32 s{sT0}, s{sT0}, {AS}
    v_lshl_add_u32 v{t0}, v{vL}, 4, s{sT0}''',
    f'''v_lshrrev_b32 v{t1}, 5, v{vL}
    v_bfe_u32 v{t2}, v{vL}, 2, 2
    v_lshl_add_u32 v{t1}, v{t1}, 2, v{t2}''',
    f'''v_bfe_u32 v{t2}, v{vL}, 4, 1
    v_lshl_add_u32 v{t1}, v{t1}, 1, v{t2}
    v_and_b32 v{t2}, 3, v{vL}''',
    f'''v_lshl_add_u32 v{t1}, v{t1}, 2, v{t2}
    v_lshl_add_u32 v{t1}, v{t1}, 3, s{sT0}''',
    f'ds_write_b128 v{t0}, {vr(vAT,4)}', (f'ds_write_b128 v{t0}, {vr(vAT+4,4)} offset:1024', 'aw')]
    for q in range(4): o.append(f'ds_read_b64_tr_b16 {vr(vAT+2*q,2)}, v{t1} offset:{512*q}')
    o.append(f'v_sub_f32 v{vG+1}, 1.0, v{vG}\nv_cvt_pk_bf16_f32 v{vG+1}, v{vG+1}, v{vG+1}\nv_and_b32 v{vG+1}, 0xffff0000, v{vG+1}')
    for i in range(8):
        o.append(f'v_lshlrev_b32 v{vGAa+2*i}, 16, v{vAT+i}\nv_and_b32 v{vGAa+2*i+1}, 0xffff0000, v{vAT+i}')
        o.append(f'v_mul_f32 v{vGAa+2*i}, v{vG}, v{vGAa+2*i}\nv_mul_f32 v{vGAa+2*i+1}, v{vG}, v{vGAa+2*i+1}')
    return o
def gemm2(p, extra=None, pre=0, late=(), mark=lambda: [], omod='', LA=12, fin=()):
    extra = extra or {}
    PW, PR, ti = 192, 195, 162
    M = lambda s, al, be: f'v_mfma_f32_32x32x16_bf16 {vr(acc2(al,be),16)}, {ar(8*s+4*al,4)}, {vr(vHB+8*(s%NB)+4*be,4)}, {"0" if s == 0 else vr(acc2(al,be),16)}'
    pend = [(s, x) for s in range(pre, 28) for x in h_loads(s)]
    for k in range(1, 4):
        p(f's_xor_b32 s{sT0}, s{sW}, {k}\ns_mul_i32 s{sT0}, s{sT0}, 12288\ns_add_u32 s{sT0}, s{sT0}, {P2 + 4096*(k-1)}\nv_lshl_add_u32 v{PW+k-1}, v{vL}, 4, s{sT0}')
    p(f's_mul_i32 s{sT0}, s{sW}, 12288\ns_add_u32 s{sT0}, s{sT0}, {P2}\nv_lshl_add_u32 v{PR}, v{vL}, 4, s{sT0}')
    for s in range(24):
        mf = [M(s, 0, 0), M(s, 1, 0), M(s, 0, 1), M(s, 1, 1)]
        ex = extra.get(s, [])
        for m in range(4):
            p(mf[m]); p.extend(ex[len(ex) * m // 4: len(ex) * (m + 1) // 4])
            la = LA if s < 23 else 5
            if pend and (m & 1 or pend[0][0] < s + la - 1):
                t = pend[0][0]; be = len(pend) & 1
                if t < s + la or (t == s + la and m >= 1 + 2 * be): p.extend([pend.pop(0)[1]])
    assert not pend
    prev = []; late = list(late); nl = len(late)
    for k in (3, 1, 2, 0):
        al, be = k & 1, k >> 1
        mf = [M(s, al, be) for s in range(24, 28)]
        for m in range(4):
            p(mf[m])
            if m >= 1: p.extend(prev[(m - 1) * 2: m * 2])
            for _ in range(-(-nl // 14)):
                if late: p.extend([late.pop(0)])
        prev = [f'ds_write_b128 v{PW+k-1}, {vr(acc2(al,be)+4*q,4)} offset:{1024*q}' for q in range(4)] if k else []
    p.extend(mark())
    t0, t1, va = 182, 183, 196
    p(f'''s_lshr_b32 s{sT1}, s{sW}, 1
    s_lshl_b32 s{sT2}, s{sST}, 1
    s_add_u32 s{sT1}, s{sT1}, s{sT2}
    s_lshl_b32 s{sT1}, s{sT1}, 15
    s_and_b32 s{sT0}, s{sW}, 1
    s_lshl_b32 s{sT2}, s{sDT}, 1
    s_add_u32 s{sT0}, s{sT0}, s{sT2}
    s_lshl_b32 s{sT0}, s{sT0}, 6
    s_add_u32 s{sT0}, s{sT0}, s{sT1}
    v_and_b32 v{t0}, 31, v{vL}
    v_lshrrev_b32 v{t1}, 5, v{vL}
    v_lshlrev_b32 v{t1}, 4, v{t1}
    v_lshl_add_u32 v{va}, v{t0}, 10, v{t1}
    s_waitcnt lgkmcnt(0)
    s_barrier''')
    Q = lambda k, q: 64 + 16 * k + 4 * q
    for q in range(4):
        for k in range(3): p(f'ds_read_b128 {vr(Q(k,q),4)}, v{PR} offset:{4096*k + 1024*q}')
    p.extend(fin)
    for q in range(4):
        for e in (0, 2):
            r = 4 * q + e
            p(f'''v_pk_add_f32 {vr(r,2)}, {vr(r,2)}, {vr(Q(0,q)+e,2)}
            v_pk_add_f32 {vr(Q(1,q)+e,2)}, {vr(Q(1,q)+e,2)}, {vr(Q(2,q)+e,2)}''')
        for e in (0, 2):
            r = 4 * q + e
            p(f'v_pk_add_f32 {vr(r,2)}, {vr(r,2)}, {vr(Q(1,q)+e,2)}')
        for e in (0, 2):
            r = 4 * q + e
            p(f'v_pk_fma_f32 {vr(r,2)}, {vr(r,2)}, {vr(vG,2)}, {vr(vGAa+r,2)} op_sel:[0,1,0] op_sel_hi:[1,1,1]')
        for e in (0, 2):
            r = 4 * q + e
            p(f'v_cvt_pk_bf16_f32 v{16 + 2*q + e//2}, v{r}, v{r+1}')
        if q & 1:
            R = 16 + 2 * (q - 1)
            p(f'v_permlane32_swap_b32 v{R}, v{R+2}\nv_permlane32_swap_b32 v{R+1}, v{R+3}')
            p(f'buffer_store_dwordx4 {vr(R,4)}, v{va}, {srd(S_OUT)}, s{sT0} offen offset:{16*(q-1)} {omod}')

def spread(lst, a, b):
    n = b - a
    return {a + i: lst[len(lst) * i // n: len(lst) * (i + 1) // n] for i in range(n)}
def k_g2():
    p = Prog(); prologue(p)
    wd_setup(p); p.extend(wd_loads()); g_load(p); h_setup(p)
    ex = spread(a_loads(), 2, 4); ex.update(spread(a_use(), 12, 22))
    gemm2(p, ex)
    p('s_endpgm')
    return p

WS_STAMP = 0x3000000
class Fused:
    def __init__(s, stamps=False):
        s.p = Prog(); s.nap = 0; s.slow = []; s.stamps = stamps; s.ns = 0; s.want = stamps or []
    def stamp(s, name=None):
        if not s.stamps or (name is not None and name not in s.want): return []
        o = []
        if s.ns: o.append(f's_mov_b32 s{87 + s.ns}, s100')
        o.append('s_memtime s[100:101]'); s.ns += 1
        return o
    def stamp_out(s):
        if not s.stamps: return
        p = s.p
        p(f's_mov_b32 s{87 + s.ns}, s100\ns_lshl_b32 s{sT0}, s2, 2\ns_add_u32 s{sT0}, s{sT0}, s{sW}\ns_lshl_b32 s{sT0}, s{sT0}, 6\ns_add_u32 s{sT0}, s{sT0}, {WS_STAMP}\ns_mov_b64 exec, 1')
        p(f's_memrealtime s[100:101]\nv_mov_b32 v1, s34\nbuffer_store_dword v1, off, {srd(S_WS)}, s{sT0} offset:48\nv_mov_b32 v1, s100\nbuffer_store_dword v1, off, {srd(S_WS)}, s{sT0} offset:52')
        if 'dbg' in s.want:
            L = p.label('nodbg')
            p(f's_not_b32 s{sT1}, s34\nv_mov_b32 v1, s{sT1}\nv_mov_b32 v2, s100\nbuffer_atomic_umax v1, off, {srd(S_DBG)}, 0 offset:4\nbuffer_atomic_umax v2, off, {srd(S_DBG)}, 0 offset:8')
            p(f'v_mov_b32 v1, s34\nbuffer_atomic_umax v1, off, {srd(S_DBG)}, 0 offset:12')
            p(f's_cmp_lg_u32 s2, 77\ns_cbranch_scc1 {L}\ns_cmp_lg_u32 s{sW}, 1\ns_cbranch_scc1 {L}')
            for i in range(1, s.ns): p(f's_sub_u32 s{sT1}, s{88+i}, s88\nv_mov_b32 v1, s{sT1}\nbuffer_store_dword v1, off, {srd(S_DBG)}, 0 offset:{12+4*i}', 'untracked')
            p(f'{L}:')
            return
        for i in range(s.ns): p(f'v_mov_b32 v1, s{88+i}\nbuffer_store_dword v1, off, {srd(S_WS)}, s{sT0} offset:{4*i}')
    def poll_issue(s, dst, va, S, n=1, m=False):
        x = f'buffer_load_dword{"x2" if n == 2 else ""} {vr(dst,n)}, v{va}, {srd(S)}, 0 offen sc1'
        return [f's_mov_b64 exec, s[{sM0}:{sM0+1}]\n{x}\ns_mov_b64 exec, -1' if m else x]
    def poll_check(s, dst, va, S, n=1, m=False):
        Ls, Lr, Ll = s.p.label('slow'), s.p.label('ret'), s.p.label('spin')
        chk = (f'v_and_b32 v{dst}, v{dst}, v{dst+1}\n' if n == 2 else '') + f'v_cmp_ne_u32 vcc, 1, v{dst}\n'
        s.slow.append(f'''{Ls}:
        s_mov_b32 s{sSP}, 0x4000
        {Ll}:
        {f's_sleep {s.nap}' if s.nap else ''}
        {s.poll_issue(dst, va, S, n)[0]}
        s_waitcnt vmcnt(0) lgkmcnt(0)
        {chk}s_cbranch_vccz {Lr}
        s_sub_u32 s{sSP}, s{sSP}, 1
        s_cmp_lg_u32 s{sSP}, 0
        s_cbranch_scc1 {Ll}
        s_branch {Lr}''')
        if m: chk = f's_mov_b64 exec, s[{sM0}:{sM0+1}]\n{chk}s_mov_b64 exec, -1\n'
        return [chk + f's_cbranch_vccnz {Ls}\n{Lr}:']
    def flag(s, sreg, one):
        return [f's_mov_b64 exec, 1\nbuffer_store_dword v{one}, off, {srd(S_WS)}, s{sreg} sc1\ns_mov_b64 exec, -1']

sFH, sFA = 78, 79
sM0 = 14
vFW = 253
vONE, vPGO, vPWD, vPUT, vPH, vPA, vF = 238, 239, 240, 241, 242, 243, 244
def flag_setup(p, spare):
    t0 = 192
    p(f'''s_cmp_eq_u32 s{sW}, 0
    s_cselect_b64 s[{sM0}:{sM0+1}], -1, 0
    v_mov_b32 v{vONE}, 1
    v_mov_b32 v{vPGO}, 0
    s_lshl_b32 s{sT0}, s{sW}, 3
    s_add_u32 s{sT0}, s{sT0}, s{sDT}
    s_add_u32 s{sT0}, s{sT0}, 192
    s_lshl_b32 s{sT0}, s{sT0}, 7
    v_and_b32 v{t0}, 3, v{vL}
    v_lshl_add_u32 v{vPWD}, v{t0}, 2, s{sT0}
    v_lshlrev_b32 v{t0}, 3, v{vL}
    v_add_u32 v{vPUT}, {224*128}, v{t0}
    s_lshl_b32 s{sT0}, s{sST}, 2
    s_add_u32 s{sT0}, s{sT0}, s{sW}
    s_lshl_b32 s{sT0}, s{sT0}, 7
    v_min_u32 v{t0}, 6, v{vL}
    v_lshl_add_u32 v{vPH}, v{t0}, 2, s{sT0}
    s_add_u32 s{sT0}, s{sST}, 192
    s_lshl_b32 s{sT0}, s{sT0}, 7
    s_add_u32 s{sT0}, s{sT0}, 16
    v_and_b32 v{t0}, 3, v{vL}
    v_lshl_add_u32 v{t0}, v{t0}, 2, s{sT0}
    v_cmp_gt_u32 vcc, 32, v{vL}
    v_cndmask_b32 v{vPH}, v{t0}, v{vPH}, vcc
    s_lshr_b32 s{sT0}, s{sST}, 4
    s_lshl_b32 s{sT0}, s{sT0}, 5
    s_lshl_b32 s{sT1}, s{sDT}, 2
    s_add_u32 s{sT0}, s{sT0}, s{sT1}
    s_and_b32 s{sT1}, s{sW}, 1
    s_lshl_b32 s{sT1}, s{sT1}, 1
    s_add_u32 s{sT0}, s{sT0}, s{sT1}
    s_add_u32 s{sT0}, s{sT0}, 128
    s_lshl_b32 s{sT0}, s{sT0}, 7
    v_and_b32 v{t0}, 15, v{vL}
    v_lshl_add_u32 v{vPA}, v{t0}, 2, s{sT0}
    v_bfe_u32 v{t0}, v{vL}, 4, 1
    v_lshl_add_u32 v{vPA}, v{t0}, 7, v{vPA}
    s_lshl_b32 s{sT0}, s{sPI}, 1
    s_lshr_b32 s{sT1}, s{sW}, 1
    s_add_u32 s{sT0}, s{sT0}, s{sT1}
    s_and_b32 s{sT1}, s{sT0}, 15
    s_lshr_b32 s{sT0}, s{sT0}, 4
    s_and_b32 s{sT2}, s{sW}, 1
    s_lshl_b32 s{sT2}, s{sT2}, 5
    s_add_u32 s{sT0}, s{sT0}, s{sT2}
    s_add_u32 s{sT0}, s{sT0}, 128
    s_lshl_b32 s{sT0}, s{sT0}, 5
    s_add_u32 s{sT0}, s{sT0}, s{sT1}
    s_lshl_b32 s{sFA}, s{sT0}, 2''')
    if spare:
        p(f's_lshl_b32 s{sT0}, s{sSI}, 2\ns_add_u32 s{sT0}, s{sT0}, s{sW}\ns_lshl_b32 s{sT0}, s{sT0}, 7\ns_add_u32 s{sFH}, s{sT0}, 0x8000')
    else:
        p(f'''s_lshl_b32 s{sT0}, s{sMI}, 2
        s_add_u32 s{sT0}, s{sT0}, s{sW}
        s_lshl_b32 s{sT0}, s{sT0}, 2
        s_and_b32 s{sT1}, s{sXCD}, 3
        s_add_u32 s{sT0}, s{sT0}, s{sT1}
        s_lshl_b32 s{sT0}, s{sT0}, 5
        s_add_u32 s{sT0}, s{sT0}, s{sDT}
        s_lshl_b32 s{sFH}, s{sT0}, 2''')
def as_list(fn, *a):
    q = Prog(); fn(q, *a); return q.ins

def groups(ins, last):
    o = [[]]
    for I in ins:
        o[-1].append(I)
        if last(I): o.append([])
    return [g for g in o if g]
def flat(l): return [y for x in l for y in (x if isinstance(x, list) else [x])]
def k_fused(stamps=False, cfg=None):
    cfg = dict(rot='t', ct=250, omod='', na=99, la=6, xp=[[[6, 0], [6, 1]], [[6, 2], [6, 3]]], fast=1, hs='sc1', wsb=0, nt='', tch=[0.5, 10, 11], tw=1.5, n0=[12, 23, 34], nap=4, up=2, nw=[4, 8, 12, 12, 0], r2=0, ht=0, hp=[0, 2], xn=6, hflag=30, hpoll=130, aflag=3, apoll=17, achk=21, f0=[0.0, 0.3, 0.75], sx=99, pg=[0, 2, 5], cw=[50, 135]) | (cfg or {})
    for k in MOD: MOD[k] = 'nt' if k in cfg['nt'].split(',') else ''
    MOD['hs'] = cfg['hs']
    global WS_WDT, WS_UT, WS_G, WS_H, WS_AT
    WS_WDT, WS_UT, WS_G, WS_H, WS_AT = [cfg['wsb'] + x for x in (0x100000, 0x300000, 0x500000, 0x600000, 0xD00000)]
    F = Fused(stamps); p = F.p
    if stamps: p('s_memrealtime s[34:35]')
    p.extend(F.stamp()); prologue(p, cfg['rot'], cfg['ct'], True)
    Lsp, Ltail = p.label('spare'), p.label('tail')
    p(f's_lshl_b32 s{sPI}, s{sXCD}, 5\ns_add_u32 s{sPI}, s{sPI}, s{sJ}')
    p(f's_cmp_ge_u32 s{sJ}, 28\ns_cbranch_scc1 {Lsp}')
    tch = cfg['tch']; F.nap = cfg['nap']
    g1_setup(p)
    par_loads(p); srd_bases(p)
    p.extend(F.stamp('pro'))
    T = []
    dm = g1_dma(0) + g1_dma(1); n0, n1, n2 = cfg['n0']; f0, f1, f2 = cfg['f0']
    p.extend(dm[:n0])
    p.extend(F.stamp('dma'))
    prologue2(p, False)
    g1_setup2(p); tail_setup(p); flag_setup(p, False); rot2_setup(p, cfg['r2'])
    p.extend(F.stamp('setup'))
    if cfg.get('dbg0'):
        p(f'v_mov_b32 v{vPAR+5}, v{vPAR+5}'); p.extend(F.stamp('x0'))
        p.waitvm('dma0'); p.extend(F.stamp('x1'))
        if n0 > 17: p.waitvm('dma1'); p.extend(F.stamp('x2'))
    if stamps and 'par' in stamps: p(f'v_mov_b32 v{vPAR+5}, v{vPAR+5}'); p.extend(F.stamp('par'))
    kgen_valu(p, [(f0, f1, dm[n0:n1]), (f2, 0.99, dm[n1:n2])]); p.extend(F.stamp('kv'))
    kgen_mfma(p, dm[n2:]); p('s_waitcnt lgkmcnt(0)'); p.extend(F.stamp('km'))
    if stamps: p.waitvm('dma0'); p.extend(F.stamp('d0'))
    wl = wd_loads(); nw = cfg['nw']; pg, pw, pu = cfg['pg']
    post = {}; pre = {}
    for t in range(8):
        pre[t] = []
        if t == pg + 1: pre[t] += F.poll_check(vF, vPGO, S_DBG, 1, True)
        if t == pu + 1: pre[t] += F.poll_check(vF, vPUT, S_WS, 2, True)
        post[t] = F.stamp(f's{t}') if t < 7 else []
        if t == pg: post[t] += F.poll_issue(vF, vPGO, S_DBG, 1, True)
        if t == pw + 1: post[t] += F.poll_check(vFW, vPWD, S_WS) + F.stamp('wf') + as_list(wd_setup)
        if t == pu + 1: post[t] += as_list(u_loads)
        if t == pw: post[t] += F.poll_issue(vFW, vPWD, S_WS)
        if t == pu: post[t] += F.poll_issue(vF, vPUT, S_WS, 2, True)
    extra = {}
    def put(keys, lst):
        for i, k in enumerate(keys): extra.setdefault(k, []).extend(lst[len(lst) * i // len(keys): len(lst) * (i + 1) // len(keys)])
    for a, x in T:
        if a is not None and a >= 10: put([(a - 10, 2)], [G(x)])
    rd, wr = expand()
    xp = cfg['xp']; put([(6, 0)], zero_fill()); put([tuple(k) for k in xp[0]], rd); put([tuple(k) for k in xp[1]], wr); put([(7, cfg['up'])], u_put() if pu < 6 else [])
    k = 0
    for t, n in zip((4, 5, 6, 7), nw): put([(t, s) for s in range(4)], wl[k:k + n]); k += n
    g1_main(p, extra, post, 2, pre, cfg['fast']); p.extend(F.stamp('g1'))
    r0 = conv_reads(0)[:12]
    hook = {0: as_list(conv_setup), 3: r0[:6] + r0[10:], 4: [r0[6]], 5: [r0[7]], 6: [r0[8]], 7: [r0[9]]} if pu < 6 else None
    g1_epilogue(p, wl[k:k + nw[4]], hook); k += nw[4]
    wrest = wl[k:]
    if pu >= 6: p.extend(u_put()); conv_setup(p); p('s_waitcnt lgkmcnt(0)\ns_barrier'); p.extend(r0)
    p(f'{Ltail}:'); p.extend(F.stamp())
    ex = {d: [[] for _ in range(34)] for d in range(4)}
    n0, n1 = cfg['cw']
    for i, x in enumerate(wrest):
        m = n0 + (n1 - n0) * i // len(wrest); ex[m // 34][m % 34].append(x)
    m = cfg['hflag']; ex[m // 34][m % 34][:0] = F.stamp('h0') + [Ins('WAITVM hst')] + F.stamp('h1') + F.flag(sFH, vONE)
    m = cfg['hpoll']; ex[m // 34][m % 34] += F.poll_issue(vF, vPH, S_WS)
    st = groups(as_list(conv_out_setup), lambda I: I.kind == 'valu')
    for i, x in enumerate(st): ex[2][10 + i].append(G(x))
    st = groups(as_list(h_setup), lambda I: I.kind == 'valu')
    for i, x in enumerate(st): ex[3][4 + 2 * i].append(G(x))
    conv(p, ex, conv_done); p.extend(F.stamp('cv'))
    hp0, hp1 = cfg['hp']
    chk = F.poll_check(vF, vPH, S_WS) + F.stamp('hf')
    if hp0: p.extend(chk); chk = []
    conv_out(p, pre=[x for s in range(hp0) for x in h_loads(s)], mid=chk + [x for s in range(hp0, hp1) for x in h_loads(s)])
    g_load(p)
    p.extend(F.stamp('co'))
    ex = {}
    for t in range(24):
        ex[t] = F.stamp(f'q{t}')
        if t == cfg['aflag']: ex[t] = ex[t] + [Ins('WAITVM ast')] + F.flag(sFA, vONE)
        if t == cfg['apoll']: ex[t] = ex[t] + F.poll_issue(vF, vPA, S_WS)
        if t == cfg['achk']: ex[t] = ex[t] + F.poll_check(vF, vPA, S_WS) + F.stamp('af') + a_loads()
    au = a_use(); na = cfg['na']
    gemm2(p, ex, pre=hp1, late=au[:na], fin=au[na:], mark=lambda: F.stamp('g2'), omod=cfg['omod'], LA=cfg['la'])
    p.extend(F.stamp())
    if cfg.get('amp'):
        a, b, mult = cfg['amp']
        p(f'''s_mov_b32 s{87 + F.ns}, s100
        s_sub_u32 s{sT0}, s{88+b}, s{88+a}
        s_mul_i32 s{sT0}, s{sT0}, {mult}
        s_mov_b32 s{sT2}, 0x40000
        L_amp:
        s_memtime s[34:35]
        s_waitcnt lgkmcnt(0)
        s_sub_u32 s{sT1}, s34, s100
        s_sub_u32 s{sT2}, s{sT2}, 1
        s_cmp_eq_u32 s{sT2}, 0
        s_cbranch_scc1 L_ampx
        s_cmp_lt_u32 s{sT1}, s{sT0}
        s_cbranch_scc1 L_amp
        L_ampx:''')
    else: F.stamp_out()
    p('s_endpgm')
    p(f'{Lsp}:')
    def sst(i):
        if stamps and not cfg.get('amp'): p(f's_memtime s[100:101]\ns_waitcnt lgkmcnt(0)\ns_mov_b32 s{88+i}, s100')
        elif stamps: p(f's_mov_b32 s{88+i}, s88')
    if stamps: p('s_mov_b32 s88, s100')
    prologue2(p, True)
    Lk = p.label('noclr'); Lg = p.label('nogo')
    p(f'''s_cmp_lg_u32 s{sSI}, 0
    s_cbranch_scc1 {Lk}
    v_mov_b32 v4, 0
    v_mov_b32 v5, 0
    v_mov_b32 v6, 0
    v_mov_b32 v7, 0
    v_lshlrev_b32 v1, 4, v0''')
    for i in range(8): p(f's_mov_b32 s{sT0}, {4096*i}\nbuffer_store_dwordx4 v[4:7], v1, {srd(S_WS)}, s{sT0} offen sc1', 'untracked')
    p(f'{Lk}:')
    def go(nl):
        p(f's_cmp_lg_u32 s{sSI}, 0\ns_cbranch_scc1 {Lg}')
        p(f's_waitcnt vmcnt({nl})', 'untracked'); p.ins[-1].kind = 'misc'
        p(f's_barrier\ns_cmp_lg_u32 s{sW}, 0\ns_cbranch_scc1 {Lg}\ns_mov_b64 exec, 1')
        p(f'buffer_store_dword v{vONE}, off, {srd(S_DBG)}, 0 sc1', 'untracked')
        p(f's_mov_b64 exec, -1\n{Lg}:')
    def faddr():
        p(f'''s_add_u32 s{sT0}, s{sSI}, 192
        s_lshl_b32 s{sT0}, s{sT0}, 5
        s_add_u32 s{sT0}, s{sT0}, s{sW}
        s_lshl_b32 s11, s{sT0}, 2
        s_add_u32 s{sT1}, s{sW}, 224
        s_lshl_b32 s{sT1}, s{sT1}, 5
        s_add_u32 s{sT1}, s{sT1}, s{sSI}
        s_lshl_b32 s12, s{sT1}, 2''')
    xi = [G(x) for x in groups(as_list(spare_issue_x), lambda I: I.kind == 'vm')]
    spare_issue_w(p); par_loads(p); spare_issue_g(p); flag_setup(p, True); rot2_setup(p, cfg['r2']); faddr()
    go(21)
    sx = cfg['sx']
    spare_wd(p, [[]] * sx + xi if sx < 99 else [])
    sst(1)
    p.extend(F.poll_issue(vF, vPGO, S_DBG))
    if sx >= 99: p.extend(xi[:cfg['xn']])
    tail_setup(p)
    p.extend(F.poll_check(vF, vPGO, S_DBG))
    p.waitvm('wst'); p.extend(F.flag(11, vONE)); sst(2)
    if sx >= 99: p.extend(xi[cfg['xn']:])
    q = Prog()
    if stamps: q(f's_memtime s[100:101]\ns_waitcnt lgkmcnt(0)\ns_mov_b32 s91, s100')
    spare_ut(p, q.ins)
    p.extend(F.poll_issue(vFW, vPWD, S_WS)); wd_setup(p)
    gl = as_list(spare_g); p.extend(gl[:-1])
    p.waitvm('ust'); p.extend(F.flag(12, vONE)); sst(4)
    p.extend(gl[-1:])
    p.extend(F.poll_check(vFW, vPWD, S_WS))
    p('s_barrier')
    kgen_valu(p, [(0.05, 0.9, wl[:k // 2]), (0.95, 0.95, [G([Ins('WAITVM gst'), f's_add_u32 s11, s11, 16'] + F.flag(11, vONE))]), (0.99, 0.99, F.poll_issue(vF, vPUT, S_WS, 2, True))]); kgen_mfma(p)
    p.extend(F.poll_check(vF, vPUT, S_WS, 2, True))
    p('s_waitcnt lgkmcnt(0)\ns_barrier')
    u_loads(p)
    p.extend(zero_fill()); p.extend(rd); p.extend(wl[k // 2:k // 2 + 4]); p.extend(wr); p.extend(wl[k // 2 + 4:k])
    p.extend(u_put())
    sst(5)
    if stamps: p('s_memtime s[100:101]\ns_waitcnt lgkmcnt(0)')
    conv_setup(p); p('FORGETVM\ns_waitcnt lgkmcnt(0)\ns_barrier'); p.extend(r0)
    p(f's_waitcnt lgkmcnt(0)\ns_branch {Ltail}')
    for x in F.slow: p(x)
    p('L_end:')
    return p
```

```python
import sys
from core import *
KN = 'gated_mix__ssm_conv_s4d__glu_gated_reglu__prompt'
WS_WDT, WS_UT, WS_G, WS_H, WS_AT = 0x100000, 0x300000, 0x500000, 0x600000, 0xD00000
S_X, S_WG, S_WU, S_WS, S_OUT, S_P, S_DBG = 36, 40, 44, 48, 52, 56, 60
sXCD, sJ, sW, sMI, sFI, sST, sDT, sROT, sKX, sKW, sXM, sWM, sSI, sPI = range(64, 78)
sT0, sT1, sT2, sT3, sT4, sT5 = range(80, 86)
sSP = 86
def srd(i): return f's[{i}:{i+3}]'
def vr(a, n=1): return f'v{a}' if n == 1 else f'v[{a}:{a+n-1}]'
def ar(a, n=1): return f'a{a}' if n == 1 else f'a[{a}:{a+n-1}]'
vL = 255
class G(list): pass

ROT = dict(
  a=f's_lshl_b32 s{sT2}, s{sT0}, 1\ns_add_u32 s{sROT}, s{sT2}, s{sDT}',
  z=f's_mov_b32 s{sROT}, 0',
  t=f's_add_u32 s{sROT}, s{sT0}, s{sDT}\ns_mul_i32 s{sT2}, s{sROT}, 86\ns_lshr_b32 s{sT2}, s{sT2}, 8\ns_mul_i32 s{sT2}, s{sT2}, 3\ns_sub_u32 s{sROT}, s{sROT}, s{sT2}\ns_mul_i32 s{sROT}, s{sROT}, 3',
  g=f's_add_u32 s{sROT}, s{sT0}, s{sDT}\ns_lshl_b32 s{sROT}, s{sROT}, 2',
  h=f's_add_u32 s{sROT}, s{sT0}, s{sDT}\ns_lshl_b32 s{sROT}, s{sROT}, 1',
  x=f's_mov_b32 s{sROT}, s{sXCD}',
  b=f's_add_u32 s{sROT}, s{sT0}, s{sDT}',
  c=f's_lshl_b32 s{sT2}, s{sT0}, 1\ns_add_u32 s{sROT}, s{sT2}, s{sDT}\ns_lshr_b32 s{sT2}, s{sXCD}, 2\ns_add_u32 s{sROT}, s{sROT}, s{sT2}',
  d=f's_add_u32 s{sROT}, s{sT0}, s{sDT}\ns_and_b32 s{sROT}, s{sROT}, 1\ns_add_u32 s{sROT}, s{sROT}, s{sXCD}',
  e=f's_add_u32 s{sROT}, s{sT0}, s{sDT}\ns_and_b32 s{sROT}, s{sROT}, 3\ns_add_u32 s{sROT}, s{sROT}, s{sXCD}',
  f=f's_add_u32 s{sROT}, s{sT0}, s{sDT}\ns_lshr_b32 s{sT2}, s{sXCD}, 2\ns_lshl_b32 s{sT2}, s{sT2}, 2\ns_add_u32 s{sROT}, s{sROT}, s{sT2}',
)
def mk_srd(p, d, ptr, size):
    p(f's_mov_b32 s{d}, s{ptr}\ns_mov_b32 s{d+1}, s{ptr+1}\ns_mov_b32 s{d+2}, {hex(size)}\ns_mov_b32 s{d+3}, 0x00020000')

def prologue(p, rot='z', ctouch=0, defer=False):
    L = p.label('go')
    p(f'''s_cmp_lt_u32 s2, 256
    s_cbranch_scc1 {L}
    s_endpgm
    {L}:
    s_load_dwordx16 s[4:19], s[0:1], 0
    s_load_dwordx8 s[20:27], s[0:1], 64
    s_load_dwordx4 s[28:31], s[0:1], 96
    s_load_dwordx2 s[32:33], s[0:1], 112
    s_lshr_b32 s{sJ}, s2, 3''')
    if ctouch:
        p(f'''s_getpc_b64 s[{sT2}:{sT3}]
        L_pc:
        v_and_b32 v2, 7, v0
        v_lshl_add_u32 v2, s{sJ}, 3, v2
        v_min_u32 v2, (L_end-L_pc-4)/128, v2
        v_lshlrev_b32 v2, 7, v2
        v_mov_b32 v3, s{sT3}
        v_add_co_u32 v2, vcc, s{sT2}, v2
        v_addc_co_u32 v3, vcc, 0, v3, vcc''')
        p('global_load_dword v254, v[2:3], off', 'untracked')
    p(f'''v_lshrrev_b32 v1, 6, v0
    v_and_b32 v{vL}, 63, v0
    v_readfirstlane_b32 s{sW}, v1
    s_and_b32 s{sXCD}, s2, 7
    s_and_b32 s{sT0}, s{sJ}, 3
    s_lshr_b32 s{sDT}, s{sJ}, 2
    s_lshr_b32 s{sT1}, s{sXCD}, 2
    s_lshl_b32 s{sT1}, s{sT1}, 2
    s_add_u32 s{sMI}, s{sT1}, s{sT0}
    s_and_b32 s{sT1}, s{sXCD}, 3
    s_mul_i32 s{sT1}, s{sT1}, 7
    s_add_u32 s{sFI}, s{sT1}, s{sDT}
    s_lshl_b32 s{sT1}, s{sXCD}, 2
    s_add_u32 s{sST}, s{sT1}, s{sT0}
    {ROT[rot]}
    s_and_b32 s{sROT}, s{sROT}, 7''')
    for d, n in ((S_X, 2048 * 1024), (S_WG, 512 * 3584), (S_WU, 512 * 3584)): p(f's_mov_b32 s{d+2}, {hex(n)}\ns_mov_b32 s{d+3}, 0x00020000')
    if not defer: prologue2(p)
def srd_bases(p):
    for d, ptr in ((S_X, 4), (S_WG, 20), (S_WU, 22)): p(f's_mov_b64 s[{d}:{d+1}], s[{ptr}:{ptr+1}]')
def prologue2(p, bases=True):
    if bases: srd_bases(p)
    p(f's_mov_b32 s{sSI}, s{sST}')
    mk_srd(p, S_WS, 32, 0x10000000); mk_srd(p, S_OUT, 28, 2048 * 1024); mk_srd(p, S_DBG, 30, 256)

G1_B, G1_A, G1_XR, G1_WR, G1_DX, G1_DW = 128, 144, 176, 180, 182, 190
def acc1(st, mat, ft): return 16 * (4 * st + 2 * mat + ft)
def g1_setup(p):
    t0, t1, t2, t3 = 192, 193, 194, 195
    p(f'''v_lshrrev_b32 v{t0}, 3, v{vL}
    v_and_b32 v{t1}, 7, v{vL}
    v_lshrrev_b32 v{t2}, 1, v{t0}
    v_xor_b32 v{t3}, v{t1}, v{t2}
    v_lshlrev_b32 v{t3}, 4, v{t3}
    v_lshl_add_u32 v{t3}, v{t0}, 10, v{t3}
    s_lshl_b32 s{sT0}, s{sMI}, 2
    s_add_u32 s{sT0}, s{sT0}, s{sW}
    s_lshl_b32 s{sT0}, s{sT0}, 16
    v_add_u32 v{G1_DX}, s{sT0}, v{t3}
    v_xor_b32 v{G1_DX+1}, 64, v{G1_DX}''')
    for i in range(7, 0, -1):
        p(f'v_add_u32 v{G1_DX+i}, {8192*i - 1024*(i&3)}, v{G1_DX+(i&1)}')
    p(f'''v_and_b32 v{t2}, 1, v{t2}
    v_lshlrev_b32 v{t2}, 2, v{t2}
    v_xor_b32 v{t2}, v{t1}, v{t2}
    v_lshlrev_b32 v{t2}, 4, v{t2}
    v_mul_u32_u24 v{t0}, 3584, v{t0}
    s_mul_i32 s{sT0}, s{sW}, {16*3584}
    s_lshl_b32 s{sT1}, s{sFI}, 7
    s_add_u32 s{sT0}, s{sT0}, s{sT1}
    v_add3_u32 v{G1_DW}, v{t0}, v{t2}, s{sT0}
    v_add_u32 v{G1_DW+1}, {8*3584-1024}, v{G1_DW}
    s_lshl_b32 s{sXM}, s{sW}, 13
    s_lshl_b32 s{sWM}, s{sW}, 11
    s_add_u32 s{sWM}, s{sWM}, 98304''')
MOD = dict(x='', w='', p='', d='', sx='', hs='sc1')
def g1_dma(t):
    sl = t % 3; o = []
    o.append(f's_add_u32 s{sT0}, s{sROT}, {t}\ns_and_b32 s{sT0}, s{sT0}, 7\ns_lshl_b32 s{sKX}, s{sT0}, 7\ns_mul_i32 s{sKW}, s{sT0}, {64*3584}')
    for mat, S in ((0, S_WG), (1, S_WU)):
        o.append(f's_add_u32 m0, s{sWM}, {sl*16384 + mat*8192}')
        for i in range(2): o.append(f'buffer_load_dwordx4 v{G1_DW+i}, {srd(S)}, s{sKW} offen offset:{1024*i} {MOD["w"]} lds')
    for i in range(8):
        if i % 4 == 0: o.append(f's_add_u32 m0, s{sXM}, {sl*32768 + 1024*i}')
        o.append(f'buffer_load_dwordx4 v{G1_DX+i}, {srd(S_X)}, s{sKX} offen offset:{1024*(i&3)} {MOD["x"]} lds')
    o[-1] = (o[-1], f'dma{t}')
    return o
vTX, vTW, vTD = 248, 249, 250
def touch_setup(p):
    t0, t1 = 192, 193
    p(f'''v_lshrrev_b32 v{t0}, 1, v{vL}
    v_min_u32 v{t0}, 9, v{t0}
    s_mul_i32 s{sT1}, s{sDT}, 10
    v_add_u32 v{t0}, s{sT1}, v{t0}
    v_min_u32 v{t0}, 63, v{t0}
    v_and_b32 v{t1}, 1, v{vL}
    v_lshlrev_b32 v{t1}, 7, v{t1}
    v_lshl_add_u32 v{t0}, v{t0}, 10, v{t1}
    s_lshl_b32 s{sT0}, s{sMI}, 2
    s_add_u32 s{sT0}, s{sT0}, s{sW}
    s_lshl_b32 s{sT0}, s{sT0}, 16
    v_add_u32 v{vTX}, s{sT0}, v{t0}
    v_and_b32 v{t0}, 3, v{vL}
    v_bfe_u32 v{t1}, v{vL}, 2, 1
    v_lshl_add_u32 v{t0}, v{t1}, 6, v{t0}
    s_and_b32 s{sT0}, s{sJ}, 3
    s_lshl_b32 s{sT0}, s{sT0}, 2
    s_add_u32 s{sT0}, s{sT0}, s{sW}
    s_lshl_b32 s{sT0}, s{sT0}, 2
    v_add_u32 v{t0}, s{sT0}, v{t0}
    v_mul_u32_u24 v{t0}, 3584, v{t0}
    s_lshl_b32 s{sT1}, s{sFI}, 7
    v_add_u32 v{vTW}, s{sT1}, v{t0}''')
def touch(c):
    return [f's_add_u32 s{sT4}, s{sROT}, {c}\ns_and_b32 s{sT4}, s{sT4}, 7\ns_lshl_b32 s{sT5}, s{sT4}, 7\ns_mul_i32 s{sT4}, s{sT4}, {64*3584}',
            f's_mov_b64 exec, 0xff\nbuffer_load_dword v{vTD}, v{vTW}, {srd(S_WG)}, s{sT4} offen {MOD["w"]}\nbuffer_load_dword v{vTD+1}, v{vTW}, {srd(S_WU)}, s{sT4} offen {MOD["w"]}\ns_mov_b64 exec, 0xfffff\nbuffer_load_dword v{vTD+2}, v{vTX}, {srd(S_X)}, s{sT5} offen {MOD["x"]}\ns_mov_b64 exec, -1']
def touch_wd(p):
    t0 = 253
    p(f'''s_mul_i32 s{sT0}, s{sJ}, 37
    s_lshr_b32 s{sT0}, s{sT0}, 8
    s_mul_i32 s{sT1}, s{sT0}, 7
    s_sub_u32 s{sT1}, s{sJ}, s{sT1}
    s_lshl_b32 s{sT1}, s{sT1}, 2
    s_add_u32 s{sT1}, s{sT1}, s{sW}
    s_lshl_b32 s{sT1}, s{sT1}, 4
    s_lshl_b32 s{sT2}, s{sXCD}, 2
    s_add_u32 s{sT0}, s{sT0}, s{sT2}
    s_lshr_b32 s{sT2}, s{sT0}, 3
    s_mul_i32 s{sT2}, s{sT2}, 448
    s_add_u32 s{sT1}, s{sT1}, s{sT2}
    s_lshl_b32 s{sT1}, s{sT1}, 3
    s_and_b32 s{sT0}, s{sT0}, 7
    s_add_u32 s{sT0}, s{sT0}, s{sT1}
    s_lshl_b32 s{sT0}, s{sT0}, 7
    v_and_b32 v{t0}, 15, v{vL}
    v_lshl_add_u32 v{t0}, v{t0}, 10, s{sT0}
    s_mov_b64 exec, 0xffff
    global_load_dword v{vTD}, v{t0}, s[24:25] {MOD["d"]}
    s_mov_b64 exec, -1''')
def g1_setup2(p):
    t0, t1, t2, t3 = 192, 193, 194, 195
    p(f'''v_and_b32 v{t0}, 31, v{vL}
    v_lshrrev_b32 v{t1}, 5, v{vL}
    v_bfe_u32 v{t2}, v{vL}, 1, 3
    v_xor_b32 v{t2}, v{t2}, v{t1}
    v_lshlrev_b32 v{t2}, 4, v{t2}
    v_lshl_add_u32 v{t2}, v{t0}, 7, v{t2}
    v_add_u32 v{G1_XR}, s{sXM}, v{t2}''')
    for s in range(1, 4): p(f'v_xor_b32 v{G1_XR+s}, {32*s}, v{G1_XR}')
    p(f'''v_bfe_u32 v{t0}, v{vL}, 2, 2
    v_lshl_add_u32 v{t0}, v{t1}, 3, v{t0}
    v_bfe_u32 v{t1}, v{vL}, 4, 1
    v_bfe_u32 v{t2}, v{vL}, 1, 1
    v_lshl_add_u32 v{t1}, v{t1}, 1, v{t2}
    v_bfe_u32 v{t2}, v{vL}, 3, 1
    v_lshl_add_u32 v{t1}, v{t2}, 2, v{t1}
    v_and_b32 v{t2}, 1, v{vL}
    v_lshlrev_b32 v{t2}, 3, v{t2}
    v_lshl_add_u32 v{t2}, v{t1}, 4, v{t2}
    v_lshl_add_u32 v{t2}, v{t0}, 7, v{t2}
    v_add_u32 v{G1_WR}, 98304, v{t2}
    v_xor_b32 v{G1_WR+1}, 64, v{G1_WR}''')
def g1_reads(t, s):
    b = (4 * t + s) & 1; sl = t % 3; o = []
    B = lambda st: f'ds_read_b128 {vr(G1_B + 8*b + 4*st, 4)}, v{G1_XR+s} offset:{(sl&1)*32768 + st*4096}'
    tog = f'v_add_u32 v{G1_XR+s}, 0x10000, v{G1_XR+s}\n' if sl == 2 else f'v_subrev_u32 v{G1_XR+s}, 0x10000, v{G1_XR+s}\n' if sl == 0 and t else ''
    o.append(tog + B(0))
    for mat in range(2):
        for ft in range(2):
            r = G1_A + 16 * b + 4 * (2 * mat + ft)
            for h in range(2):
                o.append(f'ds_read_b64_tr_b16 {vr(r+2*h, 2)}, v{G1_WR+ft} offset:{sl*16384 + mat*8192 + s*2048 + h*512}')
    o.append(B(1))
    return o
def g1_mfmas(t, s):
    b = (4 * t + s) & 1; o = []
    for st in range(2):
        for mat in range(2):
            for ft in range(2):
                c = acc1(st, mat, ft)
                src = '0' if (t == 0 and s == 0) else vr(c, 16)
                o.append(f'v_mfma_f32_32x32x16_bf16 {vr(c,16)}, {vr(G1_A + 16*b + 4*(2*mat+ft), 4)}, {vr(G1_B + 8*b + 4*st, 4)}, {src}')
    return o
def g7_B(i, k, st): return (G1_B + 8 * (i & 1) if k == 0 else (182, 192)[i & 1]) + 4 * st
def g7_A(i, k, mat): return G1_A + 16 * (i & 1) + 4 * (2 * k + mat)
def g7_reads(i):
    ft = i >> 1; o = []
    for k in range(2):
        s = 2 * (i & 1) + k
        B = lambda st: f'ds_read_b128 {vr(g7_B(i,k,st), 4)}, v{G1_XR+s} offset:{32768 + st*4096}'
        o.append(B(0))
        for mat in range(2):
            for h in range(2): o.append(f'ds_read_b64_tr_b16 {vr(g7_A(i,k,mat)+2*h, 2)}, v{G1_WR+ft} offset:{16384 + mat*8192 + s*2048 + h*512}')
        o.append(B(1))
    return o
def g7_mfmas(i):
    ft = i >> 1; o = []
    for k in range(2):
        for st in range(2):
            for mat in range(2):
                c = acc1(st, mat, ft)
                o.append(f'v_mfma_f32_32x32x16_bf16 {vr(c,16)}, {vr(g7_A(i,k,mat), 4)}, {vr(g7_B(i,k,st), 4)}, {vr(c,16)}')
    return o
SPLIT = [0]; DS = [0, 0, 1, 0]
def g1_main(p, extra=None, post=None, ini=3, pre=None, fast=0):
    extra = extra or {}; post = post or {}; pre = pre or {}
    p.waitvm('dma0'); p('s_barrier')
    p.extend(g1_reads(0, 0))
    pend = [x for t in range(ini, 3) for x in g1_dma(t)]
    for t in range(8):
        for s in range(4):
            mf = g7_mfmas(s) if t == 7 and SPLIT[0] else g1_mfmas(t, s)
            slots = [[] for _ in range(8)]
            if s < 3:
                rd = g7_reads(s + 1) if t == 7 and SPLIT[0] else g1_reads(t, s + 1)
                for i, x in enumerate(rd): slots[i // 2].append(x)
            elif t < 7:
                slots[1] += pre.get(t, []) + [Ins('s_waitcnt lgkmcnt(0)'), Ins(f'WAITVM dma{t+1}'), 's_barrier']
                rd = g7_reads(0) if t == 6 and SPLIT[0] else g1_reads(t + 1, 0)
                for i, x in enumerate(rd): slots[1 + i // 2].append(x)
                slots[1] += post.get(t, [])
                if t + 3 < 8: pend = g1_dma(t + 3)
            else:
                slots[1] += pre.get(t, []) + [Ins('s_waitcnt lgkmcnt(0)'), 's_barrier'] + post.get(t, [])
            lo = 6 if s == 3 else 5 if (s < 2 and (t or ini > 1)) else 0
            if s == 3: n = min(len(pend), 4)
            elif s < 2: n = min(len(pend), 7) if (t or ini > 1) else 17
            else: n = len(pend)
            if t < fast and s < 2: lo = 0; n = min(len(pend), 11)
            if DS[0] and (t > DS[0] or t == DS[0] and s == 3):
                n = 0
                for m in (6, 7) if s == 3 else (5, 6, 7) if s < 2 else (4, 5, 6, 7):
                    while pend:
                        x = pend.pop(0); slots[m].append(x)
                        if 'buffer_load' in (x[0] if isinstance(x, tuple) else x): break
            for i in range(n): slots[lo + i * (8 - lo) // max(n, 1)].append(pend.pop(0))
            ex = extra.get((t, s), [])
            one = lambda y: DS[2] if y.startswith('buffer_') else 3 if y.startswith('ds_write_b128') else 0 if y.startswith('WAIT') else 1
            cost = lambda x: sum(cost(y) for y in x) if isinstance(x, list) else one(x.text) if isinstance(x, Ins) else sum(one(y.strip()) for y in (x[0] if isinstance(x, tuple) else x).strip().split('\n'))
            wd = extra.get(('w', t, s), [])
            if DS[3]:
                ms = sorted(sorted(range(2 if s == 3 else 0, 8), key=lambda m: (cost(slots[m]), -m))[:len(wd)])
                for m, x in zip(ms, wd): slots[m].append(x)
            elif wd: ex = ex + wd
            if DS[1] and t < DS[1]:
                base = [cost(z) for z in slots]; tot = sum(base) + cost(ex); m = 0
                lvl = max(-(-tot // 8), 1)
                while sum(max(0, lvl - b) for b in base) < cost(ex): lvl += 1
                for x in ex:
                    while m < 7 and base[m] + (cost(x) + 1) // 2 > lvl: m += 1
                    slots[m].append(x); base[m] += cost(x)
                ex = []
            for i, x in enumerate(ex): slots[i * 8 // len(ex)].append(x)
            for m in range(8):
                p(mf[m]); p.extend(slots[m])
    assert not pend
def g1_epilogue(p, fill=(), hook=None):
    fill = list(fill); nf = len(fill)
    H, va = 128, 192
    p(f'''s_lshl_b32 s{sT0}, s{sMI}, 2
    s_add_u32 s{sT0}, s{sT0}, s{sW}
    s_lshl_b32 s{sT0}, s{sT0}, 10
    s_lshl_b32 s{sT1}, s{sFI}, 18
    s_add_u32 s{sT0}, s{sT0}, s{sT1}
    s_add_u32 s{sT0}, s{sT0}, {WS_H}
    v_lshlrev_b32 v{va}, 4, v{vL}''')
    for ft in range(2):
        for q in range(4):
            R = H + 4 * (4 * ft + q)
            for st in range(2):
                g = acc1(st, 0, ft) + 4 * q; u = acc1(st, 1, ft) + 4 * q
                for e in range(4): p(f'v_max_f32 v{g+e}, 0, v{g+e}')
                for e in (0, 2): p(f'v_pk_mul_f32 {vr(g+e,2)}, {vr(g+e,2)}, {vr(u+e,2)}')
                for e in (0, 2): p(f'v_cvt_pk_bf16_f32 v{R + 2*st + e//2}, v{g+e}, v{g+e+1}')
            p(f'v_permlane32_swap_b32 v{R}, v{R+2}\nv_permlane32_swap_b32 v{R+1}, v{R+3}')
            p(f'buffer_store_dwordx4 {vr(R,4)}, v{va}, {srd(S_WS)}, s{sT0} offen {MOD["hs"]}', 'hst')
            if (ft, q) != (1, 3): p(f's_add_u32 s{sT0}, s{sT0}, 32768')
            i = 4 * ft + q
            if i < 7: p.extend(fill[nf * i // 7: nf * (i + 1) // 7])
            if hook: p.extend(hook.get(i, []))

def skew(L):
    o = []
    for i, b in enumerate(L):
        if i: o[-3:-3] = b[:2]; o += b[2:]
        else: o += b
    return o
sHS, vHS = 19, 201
def epi_setup():
    return [f'''s_lshl_b32 s{sHS}, s{sMI}, 2
    s_add_u32 s{sHS}, s{sHS}, s{sW}
    s_lshl_b32 s{sHS}, s{sHS}, 10
    s_lshl_b32 s18, s{sFI}, 18
    s_add_u32 s{sHS}, s{sHS}, s18
    s_add_u32 s{sHS}, s{sHS}, {WS_H}
    v_lshlrev_b32 v{vHS}, 4, v{vL}''']
def epi(ft, q, pk):
    o = []; R = acc1(0, 0, ft) + 4 * q
    for st in range(2):
        g = acc1(st, 0, ft) + 4 * q; u = acc1(st, 1, ft) + 4 * q
        o += [f'v_max_f32 v{g+e}, 0, v{g+e}' for e in range(4)]
        o += [f'v_pk_mul_f32 {vr(g+e,2)}, {vr(g+e,2)}, {vr(u+e,2)}' for e in (0, 2)] if pk else [f'v_mul_f32 v{g+e}, v{g+e}, v{u+e}' for e in range(4)]
    for st in range(2):
        g = acc1(st, 0, ft) + 4 * q
        o += [f'v_cvt_pk_bf16_f32 v{R + 2*st + e//2}, v{g+e}, v{g+e+1}' for e in (0, 2)]
    o += [f'v_permlane32_swap_b32 v{R}, v{R+2}', f'v_permlane32_swap_b32 v{R+1}, v{R+3}']
    o.append(G([(f'buffer_store_dwordx4 {vr(R,4)}, v{vHS}, {srd(S_WS)}, s{sHS} offen {MOD["hs"]}', 'hst')] + ([f's_add_u32 s{sHS}, s{sHS}, 32768'] if (ft, q) != (1, 3) else [])))
    return o
def k_gemm1():
    p = Prog(); prologue(p)
    L = p.label('main')
    p(f's_cmp_lt_u32 s{sJ}, 28\ns_cbranch_scc1 {L}\ns_endpgm\n{L}:')
    g1_setup(p)
    for t in range(3): p.extend(g1_dma(t))
    g1_setup2(p)
    g1_main(p); g1_epilogue(p)
    p('s_endpgm')
    return p

SP_X = 57344
SP_W = 0
def spare_issue_w(p):
    t0, t1, t2, vw = 140, 141, 142, 143
    sT0, sT1 = sT4, sT5
    mk_srd(p, S_P, 24, 1792 * 1024)
    p(f'''s_lshr_b32 s{sT0}, s{sSI}, 3
    s_lshl_b32 s{sT0}, s{sT0}, 2
    s_add_u32 s{sT0}, s{sT0}, s{sW}
    s_mul_i32 s{sT0}, s{sT0}, {112*1024}
    s_and_b32 s{sT1}, s{sSI}, 7
    s_lshl_b32 s{sT1}, s{sT1}, 7
    s_add_u32 s{sT0}, s{sT0}, s{sT1}
    v_lshrrev_b32 v{t0}, 3, v{vL}
    v_and_b32 v{t1}, 7, v{vL}
    v_bfe_u32 v{t2}, v{vL}, 4, 1
    v_lshlrev_b32 v{t2}, 2, v{t2}
    v_xor_b32 v{t2}, v{t1}, v{t2}
    v_lshlrev_b32 v{t2}, 4, v{t2}
    v_lshl_add_u32 v{vw}, v{t0}, 10, v{t2}
    s_mul_i32 s{sWM}, s{sW}, 14336
    s_add_u32 s{sWM}, s{sWM}, {SP_W}''')
    for i in range(14):
        p(f's_add_u32 m0, s{sWM}, {1024*i}')
        p(f'buffer_load_dwordx4 v{vw}, {srd(S_P)}, s{sT0} offen {MOD["d"]} lds', f'wdma{i//2}')
        if i < 13: p(f's_add_u32 s{sT0}, s{sT0}, 8192')
def spare_issue_x(p):
    t0, t1, t2, t3, vw, vx = 1, 2, 3, 4, 8, 10
    p(f'''s_lshl_b32 s{sT1}, s{sW}, 2
    s_and_b32 s{sT1}, s{sT1}, 7
    v_xor_b32 v{t0}, s{sT1}, v{vL}
    v_lshlrev_b32 v{vx}, 4, v{t0}
    v_xor_b32 v{vx+1}, 16, v{vx}
    v_xor_b32 v{vx+2}, 32, v{vx}
    v_xor_b32 v{vx+3}, 48, v{vx}
    s_lshl_b32 s{sT0}, s{sSI}, 2
    s_add_u32 s{sT0}, s{sT0}, s{sW}
    s_lshl_b32 s{sKX}, s{sT0}, 14
    s_mul_i32 s{sXM}, s{sW}, {16*1152}''')
    for i in range(16):
        p(f's_add_u32 m0, s{sXM}, {SP_X + 1152*i}')
        p(f'buffer_load_dwordx4 v{vx + 2*(i>>3) + ((i>>1)&1)}, {srd(S_X)}, s{sKX} offen {MOD["sx"]} lds', 'xdma')
        if i < 15: p(f's_add_u32 s{sKX}, s{sKX}, 1024')
SP_G = 131072
def spare_issue_g(p):
    mk_srd(p, S_WG, 26, 1024)
    p(f's_lshl_b32 s{sT3}, s{sW}, 10\ns_add_u32 m0, s{sT3}, {SP_G}\nv_lshlrev_b32 v5, 4, v{vL}')
    p(f'buffer_load_dwordx4 v5, {srd(S_WG)}, 0 offen lds', 'gdma')
def spare_wd(p, fill=()):
    t0, t1, t2, ra, va = 1, 2, 3, 6, 14
    p(f'''v_lshrrev_b32 v{t1}, 5, v{vL}
    v_bfe_u32 v{t0}, v{vL}, 2, 2
    v_lshl_add_u32 v{t0}, v{t1}, 3, v{t0}
    v_bfe_u32 v{t1}, v{vL}, 4, 1
    v_bfe_u32 v{t2}, v{vL}, 1, 1
    v_lshl_add_u32 v{t1}, v{t1}, 1, v{t2}
    v_bfe_u32 v{t2}, v{vL}, 3, 1
    v_lshl_add_u32 v{t1}, v{t2}, 2, v{t1}
    v_and_b32 v{t2}, 1, v{vL}
    v_lshlrev_b32 v{t2}, 3, v{t2}
    v_lshl_add_u32 v{t2}, v{t1}, 4, v{t2}
    v_lshl_add_u32 v{t2}, v{t0}, 7, v{t2}
    v_add_u32 v{ra}, s{sWM}, v{t2}
    v_xor_b32 v{ra+1}, 64, v{ra}
    v_lshlrev_b32 v{va}, 4, v{vL}
    s_and_b32 s{sT0}, s{sSI}, 7
    s_lshl_b32 s{sT0}, s{sT0}, 2
    s_lshr_b32 s{sT1}, s{sSI}, 3
    s_add_u32 s{sT0}, s{sT0}, s{sT1}
    s_lshl_b32 s{sT0}, s{sT0}, 2
    s_add_u32 s{sT0}, s{sT0}, s{sW}
    s_mul_i32 s{sT0}, s{sT0}, 14336
    s_add_u32 s{sT5}, s{sT0}, {WS_WDT}''')
    def st(i):
        p(f'buffer_store_dwordx4 {vr(16+4*i,4)}, v{va}, {srd(S_WS)}, s{sT5} offen offset:{1024*(i&3)} sc1', 'wst')
        if i & 3 == 3: p(f's_add_u32 s{sT5}, s{sT5}, 4096')
    fill = list(fill); nf = len(fill)
    for s in range(8):
        if s < 7:
            p.waitvm(f'wdma{s}')
            for d in range(2):
                r = 16 + 4 * (2 * s + d)
                for h in range(2): p(f'ds_read_b64_tr_b16 {vr(r+2*h,2)}, v{ra+d} offset:{s*2048 + h*512}')
        if s: st(2 * s - 2); st(2 * s - 1)
        p.extend(fill[nf * s // 8: nf * (s + 1) // 8])
def spare_ut(p, mid=(), fill=()):
    t0, t1, t2, t3, ra, va = 1, 2, 3, 4, 72, 14
    p(f'''v_and_b32 v{t0}, 3, v{vL}
    v_lshrrev_b32 v{t1}, 5, v{vL}
    v_lshl_add_u32 v{t1}, v{t1}, 2, v{t0}
    v_bfe_u32 v{t2}, v{vL}, 2, 2
    v_lshl_add_u32 v{t1}, v{t1}, 3, v{t2}
    v_mul_u32_u24 v{t1}, 1152, v{t1}
    v_bfe_u32 v{t2}, v{vL}, 3, 1
    v_lshl_add_u32 v{t0}, v{t0}, 1, v{t2}
    v_lshl_add_u32 v{t1}, v{t0}, 4, v{t1}
    v_bfe_u32 v{t2}, v{vL}, 4, 1
    v_lshl_add_u32 v{t1}, v{t2}, 3, v{t1}
    s_lshl_b32 s{sT0}, s{sW}, 8
    s_add_u32 s{sT0}, s{sT0}, {SP_X}
    v_add_u32 v{ra}, s{sT0}, v{t1}''')
    for k in range(1, 8): p(f'v_xor_b32 v{ra+k}, {16*k}, v{ra}')
    p(f'''v_and_b32 v{t0}, 15, v{vL}
    v_lshlrev_b32 v{t0}, 4, v{t0}
    v_lshrrev_b32 v{t1}, 5, v{vL}
    v_lshl_add_u32 v{t0}, v{t1}, 8, v{t0}
    v_lshl_add_u32 v{va}, v{t2}, 14, v{t0}
    s_lshl_b32 s{sT0}, s{sW}, 19
    s_lshl_b32 s{sT1}, s{sSI}, 9
    s_add_u32 s{sT0}, s{sT0}, s{sT1}
    s_add_u32 s{sT5}, s{sT0}, {WS_UT}''')
    p.waitvm('xdma'); p('s_barrier')
    for k in range(16):
        r = 16 + 4 * (k % 8) if k < 8 else 80 + 4 * (k % 8)
        for h in range(2): p(f'ds_read_b64_tr_b16 {vr(r+2*h,2)}, v{ra+(k&7)} offset:{(k>>3)*128 + h*4608}')
    p.extend(mid); nf = len(fill)
    for k in range(16):
        r = 16 + 4 * (k % 8) if k < 8 else 80 + 4 * (k % 8)
        p(f'buffer_store_dwordx4 {vr(r,4)}, v{va}, {srd(S_WS)}, s{sT5} offen sc1', 'ust')
        if k < 15: p(f's_add_u32 s{sT5}, s{sT5}, 32768')
        p.extend(fill[nf * k // 16: nf * (k + 1) // 16])
def spare_g(p):
    t0, t1, t2, ra, ac, X, W = 1, 2, 3, 8, 10, 112, 176
    p(f'''s_lshl_b32 s{sT0}, s{sW}, 4
    v_lshrrev_b32 v{t0}, 2, v{vL}
    v_add_u32 v{t0}, s{sT0}, v{t0}
    v_bfe_u32 v{t1}, v{t0}, 3, 2
    v_bfe_u32 v{t2}, v{t0}, 1, 1
    v_lshl_add_u32 v{t1}, v{t1}, 1, v{t2}
    v_and_b32 v{t2}, 3, v{vL}
    v_xor_b32 v{t1}, v{t1}, v{t2}
    v_mul_u32_u24 v{ra}, 1152, v{t0}
    v_lshl_add_u32 v{ra}, v{t1}, 4, v{ra}
    v_add_u32 v{ra}, {SP_X}, v{ra}
    v_xor_b32 v{ra+1}, 64, v{ra}''')
    p(f's_lshl_b32 s{sT3}, s{sW}, 10\ns_add_u32 s{sT3}, s{sT3}, {SP_G}\nv_lshl_add_u32 v{t2}, v{t2}, 4, s{sT3}')
    for e in range(4): p(f'v_mov_b32 v{ac+e}, 0')
    for i in range(16): p(f'ds_read_b128 {vr(X+4*i,4)}, v{ra+(i&1)} offset:{(i>>1)*128}')
    for i in range(20):
        if i < 16: p(f'ds_read_b128 {vr(W+4*(i&3),4)}, v{t2} offset:{64*i}') if i < 4 else None
        if i >= 4:
            for e in range(4): p(f'v_dot2c_f32_bf16 v{ac+e}, v{X+4*(i-4)+e}, v{W+4*(i&3)+e}')
            if i < 16: p(f'ds_read_b128 {vr(W+4*(i&3),4)}, v{t2} offset:{64*i}')
    p(f'''v_add_f32 v{ac}, v{ac}, v{ac+1}
    v_add_f32 v{ac+2}, v{ac+2}, v{ac+3}
    v_add_f32 v{ac}, v{ac}, v{ac+2}
    v_add_f32_dpp v{ac+1}, v{ac}, v{ac} quad_perm:[1,0,3,2] row_mask:0xf bank_mask:0xf
    v_add_f32_dpp v{ac}, v{ac+1}, v{ac+1} quad_perm:[2,3,0,1] row_mask:0xf bank_mask:0xf
    v_cvt_pk_bf16_f32 v{ac}, v{ac}, v{ac}
    v_and_b32 v{ac}, 0xffff0000, v{ac}
    v_mul_f32 v{ac}, 0xbfb8aa3b, v{ac}
    v_exp_f32 v{ac}, v{ac}
    v_add_f32 v{ac}, 1.0, v{ac}
    v_rcp_f32 v{ac}, v{ac}
    v_cvt_pk_bf16_f32 v{ac}, v{ac}, v{ac}
    v_and_b32 v{ac}, 0xffff0000, v{ac}
    s_lshl_b32 s{sT0}, s{sSI}, 8
    s_add_u32 s{sT0}, s{sT0}, {WS_G}
    v_lshlrev_b32 v{t0}, 2, v{t0}''')
    p(f'buffer_store_dword v{ac}, v{t0}, {srd(S_WS)}, s{sT0} offen sc1', 'gst')

def k_spare():
    p = Prog(); prologue(p)
    L = p.label('main')
    p(f's_cmp_ge_u32 s{sJ}, 28\ns_cbranch_scc1 {L}\ns_endpgm\n{L}:')
    spare_issue(p); spare_wd(p); spare_ut(p); spare_g(p)
    p('s_endpgm')
    return p

KT, KTS, KR = 65536, 65536, 528
TL, TLS = 159056, 2064
IMG, IMS = 131072, 8320
UIM, UIS = 147712, 4672
RED = 0
AS = 32768
P2 = 49152
vPAR = 196
vGA = 202
def vE(e): return vGA + 16 if e < 0 else vGA + 8 + (15 - e) // 2 if e & 1 else vGA + (14 - e) // 2
vTA = 219
vZA = 222
vDM = 223
def par_loads(p):
    t0, t1 = 192, 193
    p(f'''s_lshl_b32 s{sT0}, s{sPI}, 2
    s_add_u32 s{sT0}, s{sT0}, s{sW}
    s_lshl_b32 s{sT1}, s{sT0}, 7
    v_lshl_add_u32 v{t0}, v{vL}, 1, s{sT1}
    s_lshr_b32 s{sT0}, s{sT0}, 1
    s_lshl_b32 s{sT0}, s{sT0}, 1
    v_mov_b32 v{t1}, s{sT0}''')
    for i in range(4): p(f'global_load_short_d16_hi v{vPAR+i}, v{t0}, s[{6+2*i}:{7+2*i}] {MOD["p"]}')
    for i in range(2): p(f'global_load_short_d16_hi v{vPAR+4+i}, v{t1}, s[{14+2*i}:{15+2*i}]')
def par_zero(p):
    for i in range(6): p(f'v_mov_b32 v{vPAR+i}, 0')
def rne_off(s, e):
    q, r = divmod(e, 1 << s); h = (1 << s) // 2
    if s and (r > h or (r == h and q & 1)): q += 1
    return q
def tail_setup(p):
    t0, t1, t2, t3, t4 = 192, 193, 194, 195, 234
    p(f'''s_lshr_b32 s{sT0}, s{sW}, 1
    s_and_b32 s{sT1}, s{sW}, 1
    s_mul_i32 s{sT2}, s{sT0}, {TLS}
    s_add_u32 s{sT2}, s{sT2}, {TL}
    s_lshl_b32 s{sT3}, s{sT1}, 6
    s_sub_u32 s{sT3}, 127, s{sT3}
    v_sub_u32 v{t0}, s{sT3}, v{vL}
    v_lshlrev_b32 v{t1}, 4, v{t0}''')
    def idx(dst, src):
        p(f'''v_cvt_f32_u32 v{t3}, v{src}
        v_cvt_pk_bf16_f32 v{t3}, v{t3}, v{t3}
        v_and_b32 v{t3}, 0xffff, v{t3}
        v_subrev_u32 v{t3}, 17024, v{t3}
        v_min_i32 v{t4}, 128, v{src}
        v_max_i32 v{t3}, v{t3}, v{t4}
        v_lshl_add_u32 v{dst}, v{t3}, 1, s{sT2}''')
    idx(vE(0), t1)
    p(f'v_subrev_u32 v{t2}, 1, v{t1}\nv_max_i32 v{t2}, 0, v{t2}')
    idx(vE(-1), t2)
    p(f'''s_add_u32 s{sT3}, s{sT2}, 2048
    v_mov_b32 v{t2}, s{sT3}
    v_cmp_eq_u32 vcc, 0, v{t0}
    v_cndmask_b32 v{vE(-1)}, v{vE(-1)}, v{t2}, vcc
    v_ffbh_u32 v{t2}, v{t0}
    v_min_u32 v{t2}, 28, v{t2}
    v_sub_u32 v{t2}, 28, v{t2}
    v_lshlrev_b32 v{t2}, 3, v{t2}''')
    for e in range(1, 16):
        k = sum((2 * rne_off(s, e)) << (8 * s) for s in range(4))
        p(f's_mov_b32 s{sT3}, {hex(k)}\nv_bfe_u32 v{t3}, s{sT3}, v{t2}, 8\nv_add_u32 v{vE(e)}, v{vE(0)}, v{t3}')
    p(f'''v_and_b32 v{t0}, 15, v{vL}
    s_lshl_b32 s{sT3}, s{sT1}, 4
    v_add_u32 v{t0}, s{sT3}, v{t0}
    v_lshrrev_b32 v{t1}, 4, v{vL}
    v_lshlrev_b32 v{t2}, 3, v{t1}
    v_lshl_add_u32 v{t2}, v{t0}, 4, v{t2}
    v_lshlrev_b32 v{t3}, 3, v{t0}
    v_add_u32 v{t3}, 512, v{t3}
    v_cmp_eq_u32 vcc, 2, v{t1}
    v_cndmask_b32 v{t2}, v{t2}, v{t3}, vcc
    v_lshlrev_b32 v{t3}, 2, v{t0}
    v_add_u32 v{t3}, 768, v{t3}
    v_mov_b32 v{t4}, 4
    v_mov_b32 v{vTA+1}, 128
    v_cmp_eq_u32 vcc, 3, v{t1}
    v_cndmask_b32 v{t2}, v{t2}, v{t3}, vcc
    v_cndmask_b32 v{t4}, v{t4}, v{vTA+1}, vcc
    v_add_u32 v{vTA}, s{sT2}, v{t2}
    v_add_u32 v{vTA+1}, v{vTA}, v{t4}
    v_lshlrev_b32 v{t2}, 8, v{t1}
    v_lshl_add_u32 v{t2}, v{t0}, 1, v{t2}
    v_add_u32 v{vTA+2}, s{sT2}, v{t2}
    v_or_b32 v{t2}, v{t0}, v{t1}
    v_mov_b32 v{t3}, 0
    v_cmp_eq_u32 vcc, 0, v{t2}
    v_cndmask_b32 v{vDM}, v{t3}, 1.0, vcc''')
    p(f'''v_lshrrev_b32 v{t0}, 5, v{vL}
    v_mul_u32_u24 v{t0}, {UIS}, v{t0}
    v_and_b32 v{t1}, 31, v{vL}
    v_lshl_add_u32 v{t0}, v{t1}, 4, v{t0}
    v_add_u32 v{t0}, {UIM}, v{t0}
    v_bfe_u32 v{t1}, v{vL}, 1, 2
    v_mul_u32_u24 v{t1}, 4160, v{t1}
    v_and_b32 v{t2}, 1, v{vL}
    v_lshl_add_u32 v{t1}, v{t2}, 4, v{t1}
    v_add_u32 v{t1}, {IMG + 4096}, v{t1}
    v_mul_u32_u24 v{t2}, {TLS}, v{t2}
    v_add_u32 v{t2}, {TL + 2048}, v{t2}
    v_and_b32 v{t3}, 8, v{vL}
    v_cmp_eq_u32 vcc, 0, v{t3}
    v_cndmask_b32 v{t1}, v{t2}, v{t1}, vcc
    s_cmp_eq_u32 s{sW}, 0
    s_cselect_b64 vcc, -1, 0
    v_cndmask_b32 v{vZA}, v{t1}, v{t0}, vcc''')
HI = [0,1,2,3,4,5,6,7,256,258,260,262,512,516,768,772,1024,1280,1536,1792,2048]
def merge(chains):
    out = []; ch = [list(c) for c in chains]
    while any(ch):
        for c in ch:
            if c: out.append(c.pop(0))
    return out
def cmul(D, X, Y):
    return [f'v_pk_mul_f32 {vr(D,2)}, {vr(X,2)}, {vr(Y,2)} op_sel:[0,0] op_sel_hi:[0,1]',
            f'v_pk_fma_f32 {vr(D,2)}, {vr(X,2)}, {vr(Y,2)}, {vr(D,2)} op_sel:[1,1,0] op_sel_hi:[1,0,1] neg_lo:[0,1,0]']
def kgen_valu(p, fills=()):
    lar, aim, cre, cim, ldt, dsk = range(vPAR, vPAR + 6)
    def expbf(x, t):
        return [f'v_mul_f32 v{t}, 0x3fb8aa3b, v{x}', f'v_fma_f32 v{t+1}, v{x}, s{sT2}, -v{t}', f'v_fmac_f32 v{t+1}, 0x32a57060, v{x}',
                f'v_exp_f32 v{t}, v{t}', f'v_mul_f32 v{t+1}, 0x3f317218, v{t+1}', f'v_fmac_f32 v{t}, v{t}, v{t+1}',
                f'v_cvt_pk_bf16_f32 v{t}, v{t}, v{t}', f'v_and_b32 v{x}, 0xffff0000, v{t}']
    vKA = 13
    p(f'''s_mov_b32 s{sT2}, 0x3fb8aa3b
    s_lshr_b32 s{sT0}, s{sW}, 1
    s_mul_i32 s{sT1}, s{sT0}, {TLS}
    s_add_u32 s{sT1}, s{sT1}, {TL + 2048}
    v_mov_b32 v10, s{sT1}
    s_mul_i32 s{sT0}, s{sT0}, {KTS}
    s_and_b32 s{sT1}, s{sW}, 1
    s_lshl_b32 s{sT1}, s{sT1}, 8
    s_add_u32 s{sT0}, s{sT0}, s{sT1}
    s_add_u32 s{sT0}, s{sT0}, {KT}
    v_lshl_add_u32 v{vKA}, v{vL}, 2, s{sT0}
    v_mov_b32 v11, 0
    v_mov_b32 v12, 0x3f80''')
    p(f'ds_write_b32 v10, v11\nds_write_b32 v{vKA}, v12')
    p0 = p; p = Prog()
    p.extend(merge([expbf(ldt, 0), expbf(lar, 2)]))
    a2, b2 = 4, 5
    Hreg = {h: 16 + 2 * i for i, h in enumerate(HI)}
    Lreg = {k: 58 + 2 * k for k in range(1, 32)}
    Z1, Z2, Z4, Z256 = 122, 124, 126, 128
    p(f'''v_mul_f32 v{a2}, v{lar}, v{ldt}
    v_mul_f32 v{b2}, v{aim}, v{ldt}
    v_mul_f32 v6, v{cre}, v{ldt}
    v_mul_f32 v7, v{cim}, v{ldt}
    v_mul_f32 v{a2}, 0xbfb8aa3b, v{a2}
    v_mul_f32 v{b2}, 0x3e22f983, v{b2}
    v_add_f32 v{Hreg[0]}, v6, v6
    v_add_f32 v{Hreg[0]+1}, v7, v7
    v_mul_f32 v{vDM}, v{vDM}, v{dsk}''')
    def direct(D, pw, t):
        o = []
        if pw != 1: o += [f'v_mul_f32 v{t}, {float(pw)}, v{a2}', f'v_mul_f32 v{t+1}, {float(pw)}, v{b2}', f'v_exp_f32 v{t}, v{t}', f'v_fract_f32 v{t+1}, v{t+1}']
        else: o += [f'v_exp_f32 v{t}, v{a2}', f'v_fract_f32 v{t+1}, v{b2}']
        o += [f'v_cos_f32 v{D}, v{t+1}', f'v_sin_f32 v{D+1}, v{t+1}', f'v_mul_f32 v{D}, v{D}, v{t}', f'v_mul_f32 v{D+1}, v{D+1}, v{t}']
        return o
    p.extend(merge([direct(Lreg[1], 8, 0), direct(Z256, 256, 2), direct(Z1, 1, 8)]))
    cv = [130]
    def put(reg, row, neg):
        t = cv[0]
        return [f'v_cvt_pk_bf16_f32 v{t}, v{reg}, {"-" if neg else ""}v{reg+1}', f'ds_write_b32 v{vKA}, v{t} offset:{row*KR}']
    ph = lambda h: put(Hreg[h], 32 + HI.index(h), True)
    pl = lambda k: put(Lreg[k], k, False)
    cv[0] = 130
    c1 = cmul(Lreg[2], Lreg[1], Lreg[1]) + pl(1) + cmul(Lreg[4], Lreg[2], Lreg[2]) + pl(2)
    cv[0] = 131
    c2 = cmul(Z2, Z1, Z1) + ph(0) + cmul(Lreg[3], Lreg[2], Lreg[1]) + cmul(Z4, Z2, Z2)
    cv[0] = 132
    c3 = cmul(Hreg[256], Hreg[0], Z256) + cmul(Hreg[1], Hreg[0], Z1) + ph(256) + ph(1)
    p.extend(merge([c1, c2, c3]))
    chains = []
    for k0 in range(1, 5):
        c = []; cv[0] = 132 + k0
        for k in range(k0, 32, 4):
            if k + 4 < 32: c += cmul(Lreg[k + 4], Lreg[k], Lreg[4])
            if k > 2: c += pl(k)
        chains.append(c)
    c = []; cv[0] = 137
    for h in range(2, 8): c += cmul(Hreg[h], Hreg[h - 1], Z1) + ph(h)
    for h in (258, 260, 262): c += cmul(Hreg[h], Hreg[h - 2], Z2) + ph(h)
    chains.append(c)
    c = []; cv[0] = 138
    for h in range(512, 2049, 256):
        c += cmul(Hreg[h], Hreg[h - 256], Z256) + ph(h)
        if h in (512, 768): c += cmul(Hreg[h + 4], Hreg[h], Z4) + ph(h + 4)
    chains.append(c)
    p.extend(merge(chains))
    n = len(p.ins); at = [[] for _ in range(n)]
    for a, b, lst in fills:
        for i, x in enumerate(lst): at[min(n - 1, int(n * (a + (b - a) * i / len(lst))))].append(x)
    for I, x in zip(p.ins, at): p0.extend([I]); p0.extend(x)
def kgen_mfma(p, fill=(), part=2):
    ra, rb, rc, t0, t1 = 140, 141, 142, 2, 3
    if part != 1: kgen_mfma_setup(p, ra, rb, rc, t0, t1)
    if part != 0: kgen_mfma_run(p, fill, ra, rb, rc)
def kgen_mfma_setup(p, ra, rb, rc, t0, t1):
    p(f'''s_lshr_b32 s{sT0}, s{sW}, 1
    s_mul_i32 s{sT0}, s{sT0}, {KTS}
    s_add_u32 s{sT0}, s{sT0}, {KT}
    s_and_b32 s{sT1}, s{sW}, 1
    s_mul_i32 s{sT1}, s{sT1}, {16*KR}
    v_and_b32 v{t0}, 15, v{vL}
    v_lshrrev_b32 v{t1}, 4, v{vL}
    v_lshl_add_u32 v{t1}, v{t1}, 4, s{sT0}
    v_mad_u32_u24 v{ra}, v{t0}, {'s'+str(sT3)}, v{t1}
    v_min_u32 v{t0}, 4, v{t0}
    v_mad_u32_u24 v{rc}, v{t0}, {'s'+str(sT3)}, v{t1}
    v_add_u32 v{rb}, s{sT1}, v{ra}'''.replace('v_and_b32', f's_mov_b32 s{sT3}, {KR}\n    v_and_b32', 1))
def kgen_mfma_run(p, fill, ra, rb, rc):
    p('s_waitcnt lgkmcnt(0)\ns_barrier')
    fill = list(fill); nf = len(fill)
    F = lambda ks, i: 16 + 12 * ks + 4 * i
    for ks in range(8):
        p.extend(fill[nf * ks // 8: nf * (ks + 1) // 8])
        p(f'ds_read_b128 {vr(F(ks,0),4)}, v{rb} offset:{64*ks}')
        p(f'ds_read_b128 {vr(F(ks,1),4)}, v{ra} offset:{64*ks + 32*KR}')
        p(f'ds_read_b128 {vr(F(ks,2),4)}, v{rc} offset:{64*ks + 48*KR}')
        if ks >= 3:
            k = ks - 3
            for mt in range(2): p(f'v_mfma_f32_16x16x32_bf16 {vr(4+4*mt,4)}, {vr(F(k,1+mt),4)}, {vr(F(k,0),4)}, {"0" if k == 0 else vr(4+4*mt,4)}')
    for k in range(5, 8):
        for mt in range(2): p(f'v_mfma_f32_16x16x32_bf16 {vr(4+4*mt,4)}, {vr(F(k,1+mt),4)}, {vr(F(k,0),4)}, {vr(4+4*mt,4)}')
    p(f'''v_add_f32 v4, v4, v{vDM}
    v_cvt_pk_bf16_f32 v5, v4, v5
    v_cvt_pk_bf16_f32 v6, v6, v7
    v_cvt_pk_bf16_f32 v8, v8, v9
    v_cvt_pk_bf16_f32 v10, v10, v11
    ds_write_b32 v{vTA}, v5
    ds_write_b32 v{vTA+1}, v6
    ds_write_b16 v{vTA+2}, v8 offset:1024
    ds_write_b16_d16_hi v{vTA+2}, v8 offset:1088
    ds_write_b16 v{vTA+2}, v10 offset:1152
    ds_write_b16_d16_hi v{vTA+2}, v10 offset:1216''')
def zero_fill():
    return ['v_mov_b32 v196, 0\nv_mov_b32 v197, 0', 'v_mov_b32 v198, 0\nv_mov_b32 v199, 0', f'ds_write_b128 v{vZA}, v[196:199]']
def expand():
    B, A, wa = vGA, vGA + 8, 200
    rd = [f'''s_lshr_b32 s{sT0}, s{sW}, 1
    s_mul_i32 s{sT0}, s{sT0}, {IMS}
    s_and_b32 s{sT1}, s{sW}, 1
    s_lshl_b32 s{sT1}, s{sT1}, 11
    s_add_u32 s{sT0}, s{sT0}, s{sT1}
    s_add_u32 s{sT0}, s{sT0}, {IMG}
    v_lshl_add_u32 v{wa}, v{vL}, 5, s{sT0}''']
    for k in range(8): rd += [f'ds_read_u16 v{A+k}, v{A+k}', f'ds_read_u16 v{B+k}, v{B+k}']
    rd.append(f'ds_read_u16 v{A+8}, v{A+8}')
    wr = []
    for k in range(8):
        wr.append(f'v_lshl_or_b32 v{192+k}, v{B+k}, 16, v{A+k}\nv_lshl_or_b32 v{B+k}, v{A+k+1}, 16, v{B+k}')
        if k & 3 == 3: wr += [f'ds_write_b128 v{wa}, {vr(189+k,4)} offset:{4*(k-3)}', f'ds_write_b128 v{wa}, {vr(B+k-3,4)} offset:{4160 + 4*(k-3)}']
    return rd, wr
vU = 224
def u_loads(p):
    t0, t1 = 232, 233
    p(f'''s_lshr_b32 s{sT0}, s{sPI}, 1
    s_lshl_b32 s{sT0}, s{sT0}, 14
    s_and_b32 s{sT1}, s{sPI}, 1
    s_lshl_b32 s{sT1}, s{sT1}, 5
    s_add_u32 s{sT0}, s{sT0}, s{sT1}
    s_lshl_b32 s{sT1}, s{sW}, 11
    s_add_u32 s{sT0}, s{sT0}, s{sT1}
    s_add_u32 s{sT0}, s{sT0}, {WS_UT}
    s_add_u32 s{sT1}, s{sT0}, 8192
    v_lshrrev_b32 v{t0}, 1, v{vL}
    v_and_b32 v{t1}, 1, v{vL}
    v_lshlrev_b32 v{t1}, 4, v{t1}
    v_lshl_add_u32 v{t0}, v{t0}, 6, v{t1}
    buffer_load_dwordx4 {vr(vU,4)}, v{t0}, {srd(S_WS)}, s{sT0} offen sc1
    buffer_load_dwordx4 {vr(vU+4,4)}, v{t0}, {srd(S_WS)}, s{sT1} offen sc1''')
def u_put():
    t0, t1 = 232, 233
    return [f'''s_lshl_b32 s{sT0}, s{sW}, 9
    s_add_u32 s{sT0}, s{sT0}, {UIM + 512}
    v_lshrrev_b32 v{t0}, 1, v{vL}
    v_and_b32 v{t1}, 1, v{vL}''', f'''v_mul_u32_u24 v{t1}, {UIS}, v{t1}
    v_lshl_add_u32 v{t0}, v{t0}, 4, v{t1}
    v_add_u32 v{t0}, s{sT0}, v{t0}''',
    f'ds_write_b128 v{t0}, {vr(vU,4)}', f'ds_write_b128 v{t0}, {vr(vU+4,4)} offset:2048']
AR, BR = 248, 252
CA = lambda b, a: 32 + 64 * b + 4 * a
CB = lambda b, j: 64 + 64 * b + 4 * j
def conv_setup(p):
    t0, t1, t2, t3 = 192, 193, 194, 195
    sT0, sT1, sT2, sT3 = 20, 21, 22, 23
    p(f'''s_lshr_b32 s{sT0}, s{sW}, 1
    s_and_b32 s{sT1}, s{sW}, 1
    s_lshl_b32 s{sT1}, s{sT1}, 8
    s_mul_i32 s{sT2}, s{sT0}, {IMS}
    s_sub_u32 s{sT2}, s{sT2}, s{sT1}
    s_add_u32 s{sT2}, s{sT2}, {IMG + 8220 - 192 - 512}
    s_mul_i32 s{sT3}, s{sT0}, {UIS}
    s_sub_u32 s{sT3}, s{sT3}, s{sT1}
    s_add_u32 s{sT3}, s{sT3}, {UIM + 480 - 192}
    v_and_b32 v{t0}, 15, v{vL}
    v_lshrrev_b32 v{t1}, 4, v{vL}
    v_lshlrev_b32 v{t1}, 4, v{t1}
    v_lshl_add_u32 v{t2}, v{t0}, 5, v{t1}
    v_add_u32 v{BR}, s{sT3}, v{t2}
    v_and_b32 v{t2}, 1, v{vL}
    v_mul_u32_u24 v{t2}, 4158, v{t2}
    v_lshl_add_u32 v{t2}, v{t0}, 1, v{t2}
    v_sub_u32 v{t2}, v{t1}, v{t2}
    v_add_u32 v{AR}, s{sT2}, v{t2}
    v_subrev_u32 v{AR+1}, 1024, v{AR}
    v_subrev_u32 v{AR+2}, 2048, v{AR}
    v_subrev_u32 v{AR+3}, 3072, v{AR}''')
UA = [0]
def conv_reads(d):
    b = d & 1; o = []
    def A(a):
        off = 16 * (3 - d) + (128 if a % 2 == 0 else 0)
        if UA[0] == 1: return [f'ds_read_b128 {vr(CA(b,a),4)}, v{AR+a//2} offset:{4*off}', []]
        if UA[0] == 2: return [f'ds_read_b64 {vr(CA(b,a)+2*h,2)}, v{AR+a//2} offset:{4*off+8*h}' for h in range(2)]
        return [f'ds_read2_b32 {vr(CA(b,a)+2*h,2)}, v{AR+a//2} offset0:{off+2*h} offset1:{off+2*h+1}' for h in range(2)]
    o += A(0)
    for j in range(8): o.append(f'ds_read_b128 {vr(CB(b,j),4)}, v{BR} offset:{512*j + 64*(3-d)}')
    for a in range(1, 8): o += A(a)
    return o
def conv(p, extra=None, done=None):
    rest0 = conv_reads(0)[12:]
    for d in range(4):
        b = d & 1; mf = []; fin = {}
        for a in range(8):
            for j in range(a, 8):
                if d == 3 and j == a: fin[len(mf) + 3] = j
                mf.append(f'v_mfma_f32_16x16x32_bf16 {vr(4*j,4)}, {vr(CA(b,a),4)}, {vr(CB(b,j-a),4)}, {"0" if d == 0 and a == 0 else vr(4*j,4)}')
        if done: mf = [G([x] + (done(fin[i]) if i in fin else [])) for i, x in enumerate(mf)]
        fill = (rest0 if d == 0 else []) + (conv_reads(d + 1) if d < 3 else [])
        weave(p, mf, fill, (extra or {}).get(d, []), end=34)
        if d == 3 and done:
            for i in sorted(fin):
                if i >= len(mf): p.extend(done(fin[i]))
vCW, vCR, vCV, sAT = 246, 247, 234, 13
def conv_done(j): return [f'ds_write_b128 v{vCW}, {vr(4*j,4)} offset:{RED + 1024*j}']
def conv_out_setup(p):
    wa, ra, va, t0, t1 = vCW, vCR, vCV, 192, 193
    sT0, sT1 = 20, 21
    p(f'''s_lshl_b32 s{sT0}, s{sW}, 13
    v_lshrrev_b32 v{t0}, 5, v{vL}
    v_lshlrev_b32 v{t0}, 3, v{t0}
    v_xor_b32 v{t0}, v{t0}, v{vL}
    v_lshl_add_u32 v{wa}, v{t0}, 4, s{sT0}
    s_lshr_b32 s{sT0}, s{sW}, 1
    s_lshl_b32 s{sT0}, s{sT0}, 14
    s_and_b32 s{sT1}, s{sW}, 1
    s_lshl_b32 s{sT1}, s{sT1}, 12
    s_add_u32 s{sT0}, s{sT0}, s{sT1}
    v_and_b32 v{t0}, 1, v{vL}
    v_bfe_u32 v{t1}, v{vL}, 1, 4
    v_lshl_add_u32 v{t1}, v{t0}, 5, v{t1}
    v_lshlrev_b32 v{t0}, 3, v{t0}
    v_xor_b32 v{t1}, v{t1}, v{t0}
    v_lshrrev_b32 v{t0}, 5, v{vL}
    v_lshl_add_u32 v{t1}, v{t0}, 6, v{t1}
    v_lshl_add_u32 v{ra}, v{t1}, 4, s{sT0}
    v_lshlrev_b32 v{va}, 4, v{vL}
    s_lshl_b32 s{sT0}, s{sPI}, 2
    s_add_u32 s{sT0}, s{sT0}, s{sW}
    s_lshl_b32 s{sT0}, s{sT0}, 11
    s_add_u32 s{sAT}, s{sT0}, {WS_AT}''')
def conv_out(p, pre=(), mid=()):
    ra, va = vCR, vCV
    p.extend(pre)
    p('s_waitcnt lgkmcnt(0)\ns_barrier')
    R = lambda i, h, k: 32 + 16 * i + 8 * k + 4 * h
    for i in range(2):
        for h in range(2):
            for k in range(2): p(f'ds_read_b128 {vr(R(i,h,k),4)}, v{ra} offset:{RED + 8192*k + 2048*i + 256*h}')
    p.extend(mid)
    for i in range(2):
        for e in range(0, 8, 2): p(f'v_pk_add_f32 {vr(R(i,0,0)+e,2)}, {vr(R(i,0,0)+e,2)}, {vr(R(i,0,1)+e,2)}')
        for e in range(4): p(f'v_cvt_pk_bf16_f32 v{4*i+e}, v{R(i,0,0)+2*e}, v{R(i,0,0)+2*e+1}')
        p(f'buffer_store_dwordx4 {vr(4*i,4)}, v{va}, {srd(S_WS)}, s{sAT} offen offset:{1024*i} sc1', 'ast')

def k_conv(dbg=False):
    p = Prog(); prologue(p)
    par_zero(p); par_loads(p); u_loads(p); tail_setup(p)
    kgen_valu(p); kgen_mfma(p); u_put(p); expand(p); conv(p); conv_out(p)
    if dbg:
        p(f's_barrier\nv_lshl_add_u32 v0, s{sW}, 6, v{vL}\nv_lshlrev_b32 v0, 4, v0\ns_lshl_b32 s{sT0}, s2, 15\ns_add_u32 s{sT0}, s{sT0}, 0x2000000\nv_add_u32 v1, {TL}, v0')
        for i in range(8):
            p(f'ds_read_b128 v[4:7], v1 offset:{4096*i}\nbuffer_store_dwordx4 v[4:7], v0, {srd(S_WS)}, s{sT0} offen\ns_add_u32 s{sT0}, s{sT0}, 4096\ns_nop 1')
    p('s_endpgm')
    return p

vWA = 236
sWD, sWE, sHX, sHE, sR2 = 4, 5, 6, 7, 8
def rot2_setup(p, on=True):
    if not on: p(f's_mov_b32 s{sR2}, 0'); return
    if on == 2:
        p(f's_add_u32 s{sT0}, s{sJ}, s{sDT}\ns_and_b32 s{sT0}, s{sT0}, 1\ns_mul_i32 s{sR2}, s{sT0}, 7'); return
    if on == 4:
        p(f's_add_u32 s{sT0}, s{sJ}, s{sDT}\ns_and_b32 s{sT0}, s{sT0}, 3\ns_mul_i32 s{sT0}, s{sT0}, 7\ns_lshr_b32 s{sR2}, s{sT0}, 1'); return
    p(f'''s_and_b32 s{sT0}, s{sJ}, 3
    s_mul_i32 s{sT0}, s{sT0}, 7
    s_lshr_b32 s{sT0}, s{sT0}, 1
    s_mul_i32 s{sT1}, s{sDT}, 7
    s_lshr_b32 s{sT1}, s{sT1}, 2
    s_add_u32 s{sT0}, s{sT0}, s{sT1}
    s_sub_u32 s{sT1}, s{sT0}, 14
    s_cmp_ge_u32 s{sT0}, 14
    s_cselect_b32 s{sR2}, s{sT1}, s{sT0}''')
def wd_setup(p):
    p(f'''s_lshl_b32 s{sT0}, s{sDT}, 2
    s_add_u32 s{sT0}, s{sT0}, s{sW}
    s_mul_i32 s{sT0}, s{sT0}, 57344
    s_add_u32 s{sT0}, s{sT0}, {WS_WDT}
    s_add_u32 s{sWE}, s{sT0}, 57344
    s_lshl_b32 s{sT1}, s{sR2}, 12
    s_add_u32 s{sWD}, s{sT0}, s{sT1}
    s_and_b32 s{sT1}, s{sW}, 1
    s_lshl_b32 s{sT1}, s{sT1}, 10
    v_lshl_add_u32 v{vWA}, v{vL}, 4, s{sT1}
    v_xor_b32 v{vWA+1}, 1024, v{vWA}''')
WRAP = [0]
def wrap(r, e, step, span, t):
    if not WRAP[0]: return f'\ns_add_u32 s{r}, s{r}, {step}'
    return f'\ns_add_u32 s{r}, s{r}, {step}\ns_sub_u32 s{t}, s{r}, {span}\ns_cmp_ge_u32 s{r}, s{e}\ns_cselect_b32 s{r}, s{t}, s{r}'
def wd_loads():
    o = []
    for s in range(28):
        for al in range(2):
            o.append(f'buffer_load_dwordx4 {ar(8*s+4*al,4)}, v{vWA+al}, {srd(S_WS)}, s{sWD} offen offset:{2048*(s&1)} sc1')
        if s & 1 and s < 27: o[-1] += wrap(sWD, sWE, 4096, 57344, 9)
    return o
NB = 12
vHB, vHA, vGAa, vG, vAT = 64, 160, 164, 246, 184
def acc2(al, be): return 16 * (al + 2 * be)
def h_setup(p):
    t0, t1 = 182, 183
    p(f'''s_mul_i32 s{sT0}, s{sW}, {56*32768}
    s_lshl_b32 s{sT1}, s{sST}, 10
    s_add_u32 s{sT0}, s{sT0}, s{sT1}
    s_add_u32 s{sT0}, s{sT0}, {WS_H}
    s_add_u32 s{sHE}, s{sT0}, {28*65536}
    s_lshl_b32 s{sT1}, s{sR2}, 17
    s_add_u32 s{sHX}, s{sT0}, s{sT1}
    s_lshr_b32 s{sT1}, s{sW}, 1
    s_lshl_b32 s{sT1}, s{sT1}, 9
    v_lshrrev_b32 v{t0}, 5, v{vL}
    v_and_b32 v{t1}, 31, v{vL}
    v_lshl_add_u32 v{t1}, v{t1}, 4, s{sT1}
    v_lshl_add_u32 v{vHA}, v{t0}, 15, v{t1}
    v_xor_b32 v{vHA+1}, 512, v{vHA}''')
def h_touch():
    t0 = 182
    return [f'''s_lshr_b32 s{sT1}, s{sHE}, 0
    s_sub_u32 s{sT1}, s{sT1}, {28*65536}
    s_lshl_b32 s{sT0}, s{sDT}, 7
    v_min_u32 v{t0}, 55, v{vL}
    v_lshl_add_u32 v{t0}, v{t0}, 15, s{sT0}
    buffer_load_dword v{vTD}, v{t0}, {srd(S_WS)}, s{sT1} offen sc1''']
def h_loads(s):
    o = [f'buffer_load_dwordx4 {vr(vHB + 8*(s%NB) + 4*be, 4)}, v{vHA+be}, {srd(S_WS)}, s{sHX} offen sc1' for be in range(2)]
    if s < 27: o[-1] += wrap(sHX, sHE, 65536, 28*65536, 10) if s & 1 else f'\ns_add_u32 s{sHX}, s{sHX}, 65536'
    return o
def a_loads():
    t0, t1 = 182, 183
    return [f'''s_and_b32 s{sT0}, s{sW}, 1
    s_lshl_b32 s{sT1}, s{sDT}, 1
    s_add_u32 s{sT0}, s{sT0}, s{sT1}
    s_lshl_b32 s{sT0}, s{sT0}, 17
    s_lshr_b32 s{sT1}, s{sW}, 1
    s_lshl_b32 s{sT2}, s{sST}, 1
    s_add_u32 s{sT1}, s{sT1}, s{sT2}
    s_lshl_b32 s{sT2}, s{sT1}, 6
    s_add_u32 s{sT0}, s{sT0}, s{sT2}
    s_add_u32 s11, s{sT0}, {WS_AT}
    s_add_u32 s12, s11, 65536''',
    f'''v_lshrrev_b32 v{t0}, 2, v{vL}
    v_and_b32 v{t1}, 3, v{vL}
    v_lshlrev_b32 v{t1}, 4, v{t1}
    v_lshl_add_u32 v{t0}, v{t0}, 12, v{t1}''',
    f'buffer_load_dwordx4 {vr(vAT,4)}, v{t0}, {srd(S_WS)}, s11 offen sc1',
    f'buffer_load_dwordx4 {vr(vAT+4,4)}, v{t0}, {srd(S_WS)}, s12 offen sc1']
vPC, sFC = 247, 16
def a_clear(R):
    o = [f'''s_lshl_b32 s17, s{sPI}, 2
    s_add_u32 s17, s17, s{sW}
    s_lshl_b32 s17, s17, 11
    s_add_u32 s17, s17, {WS_AT}
    v_lshlrev_b32 v248, 4, v{vL}''', '\n'.join(f'v_accvgpr_write_b32 a{R+i}, -1' for i in range(4))]
    return o + [(f'buffer_store_dwordx4 {ar(R,4)}, v248, {srd(S_WS)}, s17 offen offset:{1024*i} sc1', 'clr') for i in range(2)]
def a_clear_flag():
    return [f's_and_b64 exec, s[{sM0}:{sM0+1}], 1\nbuffer_store_dword v{vONE}, off, {srd(S_WS)}, s{sFC} sc1\ns_mov_b64 exec, -1']
def g_load(p):
    t0 = 235
    p(f'''s_lshr_b32 s{sT1}, s{sW}, 1
    s_lshl_b32 s{sT2}, s{sST}, 1
    s_add_u32 s{sT1}, s{sT1}, s{sT2}
    s_lshl_b32 s{sT1}, s{sT1}, 7
    s_add_u32 s{sT1}, s{sT1}, {WS_G}
    v_and_b32 v{t0}, 31, v{vL}
    v_lshlrev_b32 v{t0}, 2, v{t0}
    buffer_load_dword v{vG}, v{t0}, {srd(S_WS)}, s{sT1} offen sc1''')
def a_use():
    t0, t1, t2 = 182, 183, 162
    o = [f'''s_lshl_b32 s{sT0}, s{sW}, 11
    s_add_u32 s{sT0}, s{sT0}, {AS}
    v_lshl_add_u32 v{t0}, v{vL}, 4, s{sT0}''',
    f'''v_lshrrev_b32 v{t1}, 5, v{vL}
    v_bfe_u32 v{t2}, v{vL}, 2, 2
    v_lshl_add_u32 v{t1}, v{t1}, 2, v{t2}''',
    f'''v_bfe_u32 v{t2}, v{vL}, 4, 1
    v_lshl_add_u32 v{t1}, v{t1}, 1, v{t2}
    v_and_b32 v{t2}, 3, v{vL}''',
    f'''v_lshl_add_u32 v{t1}, v{t1}, 2, v{t2}
    v_lshl_add_u32 v{t1}, v{t1}, 3, s{sT0}''',
    f'ds_write_b128 v{t0}, {vr(vAT,4)}', (f'ds_write_b128 v{t0}, {vr(vAT+4,4)} offset:1024', 'aw')]
    for q in range(4): o.append(f'ds_read_b64_tr_b16 {vr(vAT+2*q,2)}, v{t1} offset:{512*q}')
    o.append(f'v_sub_f32 v{vG+1}, 1.0, v{vG}\nv_cvt_pk_bf16_f32 v{vG+1}, v{vG+1}, v{vG+1}\nv_and_b32 v{vG+1}, 0xffff0000, v{vG+1}')
    for i in range(8):
        o.append(f'v_lshlrev_b32 v{vGAa+2*i}, 16, v{vAT+i}\nv_and_b32 v{vGAa+2*i+1}, 0xffff0000, v{vAT+i}')
        o.append(f'v_mul_f32 v{vGAa+2*i}, v{vG}, v{vGAa+2*i}\nv_mul_f32 v{vGAa+2*i+1}, v{vG}, v{vGAa+2*i+1}')
    return o
def gemm2(p, extra=None, pre=0, late=(), mark=lambda: [], omod='', LA=12, fin=()):
    extra = extra or {}
    PW, PR, ti = 192, 195, 162
    M = lambda s, al, be: f'v_mfma_f32_32x32x16_bf16 {vr(acc2(al,be),16)}, {ar(8*s+4*al,4)}, {vr(vHB+8*(s%NB)+4*be,4)}, {"0" if s == 0 else vr(acc2(al,be),16)}'
    pend = [(s, x) for s in range(pre, 28) for x in h_loads(s)]
    for k in range(1, 4):
        p(f's_xor_b32 s{sT0}, s{sW}, {k}\ns_mul_i32 s{sT0}, s{sT0}, 12288\ns_add_u32 s{sT0}, s{sT0}, {P2 + 4096*(k-1)}\nv_lshl_add_u32 v{PW+k-1}, v{vL}, 4, s{sT0}')
    p(f's_mul_i32 s{sT0}, s{sW}, 12288\ns_add_u32 s{sT0}, s{sT0}, {P2}\nv_lshl_add_u32 v{PR}, v{vL}, 4, s{sT0}')
    for s in range(24):
        mf = [M(s, 0, 0), M(s, 1, 0), M(s, 0, 1), M(s, 1, 1)]
        ex = extra.get(s, [])
        for m in range(4):
            p(mf[m]); p.extend(ex[len(ex) * m // 4: len(ex) * (m + 1) // 4])
            la = min(LA[1], LA[0] + (LA[1] - LA[0]) * s // LA[2]) if isinstance(LA, list) else LA if s < 23 else 5
            if pend and (m & 1 or pend[0][0] < s + la - 1):
                t = pend[0][0]; be = len(pend) & 1
                if t < s + la or (t == s + la and m >= 1 + 2 * be): p.extend([pend.pop(0)[1]])
    assert not pend
    prev = []; late = list(late); nl = len(late)
    for k in (3, 1, 2, 0):
        al, be = k & 1, k >> 1
        mf = [M(s, al, be) for s in range(24, 28)]
        for m in range(4):
            p(mf[m])
            if m >= 1: p.extend(prev[(m - 1) * 2: m * 2])
            for _ in range(-(-nl // 14)):
                if late: p.extend([late.pop(0)])
        prev = [f'ds_write_b128 v{PW+k-1}, {vr(acc2(al,be)+4*q,4)} offset:{1024*q}' for q in range(4)] if k else []
    p.extend(mark())
    t0, t1, va = 182, 183, 196
    p(f'''s_lshr_b32 s{sT1}, s{sW}, 1
    s_lshl_b32 s{sT2}, s{sST}, 1
    s_add_u32 s{sT1}, s{sT1}, s{sT2}
    s_lshl_b32 s{sT1}, s{sT1}, 15
    s_and_b32 s{sT0}, s{sW}, 1
    s_lshl_b32 s{sT2}, s{sDT}, 1
    s_add_u32 s{sT0}, s{sT0}, s{sT2}
    s_lshl_b32 s{sT0}, s{sT0}, 6
    s_add_u32 s{sT0}, s{sT0}, s{sT1}
    v_and_b32 v{t0}, 31, v{vL}
    v_lshrrev_b32 v{t1}, 5, v{vL}
    v_lshlrev_b32 v{t1}, 4, v{t1}
    v_lshl_add_u32 v{va}, v{t0}, 10, v{t1}
    s_waitcnt lgkmcnt(0)
    s_barrier''')
    Q = lambda k, q: 64 + 16 * k + 4 * q
    for q in range(4):
        for k in range(3): p(f'ds_read_b128 {vr(Q(k,q),4)}, v{PR} offset:{4096*k + 1024*q}')
    p.extend(fin)
    for q in range(4):
        for e in (0, 2):
            r = 4 * q + e
            p(f'''v_pk_add_f32 {vr(r,2)}, {vr(r,2)}, {vr(Q(0,q)+e,2)}
            v_pk_add_f32 {vr(Q(1,q)+e,2)}, {vr(Q(1,q)+e,2)}, {vr(Q(2,q)+e,2)}''')
        for e in (0, 2):
            r = 4 * q + e
            p(f'v_pk_add_f32 {vr(r,2)}, {vr(r,2)}, {vr(Q(1,q)+e,2)}')
        for e in (0, 2):
            r = 4 * q + e
            p(f'v_pk_fma_f32 {vr(r,2)}, {vr(r,2)}, {vr(vG,2)}, {vr(vGAa+r,2)} op_sel:[0,1,0] op_sel_hi:[1,1,1]')
        for e in (0, 2):
            r = 4 * q + e
            p(f'v_cvt_pk_bf16_f32 v{16 + 2*q + e//2}, v{r}, v{r+1}')
        if q & 1:
            R = 16 + 2 * (q - 1)
            p(f'v_permlane32_swap_b32 v{R}, v{R+2}\nv_permlane32_swap_b32 v{R+1}, v{R+3}')
            p(f'buffer_store_dwordx4 {vr(R,4)}, v{va}, {srd(S_OUT)}, s{sT0} offen offset:{16*(q-1)} {omod}')

def spread(lst, a, b):
    n = b - a
    return {a + i: lst[len(lst) * i // n: len(lst) * (i + 1) // n] for i in range(n)}
def k_g2():
    p = Prog(); prologue(p)
    wd_setup(p); p.extend(wd_loads()); g_load(p); h_setup(p)
    ex = spread(a_loads(), 2, 4); ex.update(spread(a_use(), 12, 22))
    gemm2(p, ex)
    p('s_endpgm')
    return p

WS_STAMP = 0x3000000
class Fused:
    def __init__(s, stamps=False):
        s.p = Prog(); s.nap = 0; s.slow = []; s.stamps = stamps; s.ns = 0; s.want = stamps or []
    def stamp(s, name=None):
        if not s.stamps or (name is not None and name not in s.want): return []
        o = []
        if s.ns: o.append(f's_mov_b32 s{87 + s.ns}, s100')
        o.append('s_memtime s[100:101]'); s.ns += 1
        return o
    def stamp_out(s):
        if not s.stamps: return
        p = s.p
        p(f's_mov_b32 s{87 + s.ns}, s100\ns_lshl_b32 s{sT0}, s2, 2\ns_add_u32 s{sT0}, s{sT0}, s{sW}\ns_lshl_b32 s{sT0}, s{sT0}, 6\ns_add_u32 s{sT0}, s{sT0}, {WS_STAMP}\ns_mov_b64 exec, 1')
        p(f's_memrealtime s[100:101]\nv_mov_b32 v1, s34\nbuffer_store_dword v1, off, {srd(S_WS)}, s{sT0} offset:48\nv_mov_b32 v1, s100\nbuffer_store_dword v1, off, {srd(S_WS)}, s{sT0} offset:52')
        if 'dbg' in s.want:
            L = p.label('nodbg')
            p(f's_not_b32 s{sT1}, s34\nv_mov_b32 v1, s{sT1}\nv_mov_b32 v2, s100\nbuffer_atomic_umax v1, off, {srd(S_DBG)}, 0 offset:4\nbuffer_atomic_umax v2, off, {srd(S_DBG)}, 0 offset:8')
            p(f'v_mov_b32 v1, s34\nbuffer_atomic_umax v1, off, {srd(S_DBG)}, 0 offset:12')
            p(f's_cmp_lg_u32 s2, 77\ns_cbranch_scc1 {L}\ns_cmp_lg_u32 s{sW}, 1\ns_cbranch_scc1 {L}')
            for i in range(1, s.ns): p(f's_sub_u32 s{sT1}, s{88+i}, s88\nv_mov_b32 v1, s{sT1}\nbuffer_store_dword v1, off, {srd(S_DBG)}, 0 offset:{12+4*i}', 'untracked')
            p(f'{L}:')
            return
        for i in range(s.ns): p(f'v_mov_b32 v1, s{88+i}\nbuffer_store_dword v1, off, {srd(S_WS)}, s{sT0} offset:{4*i}')
    def poll_issue(s, dst, va, S, n=1, m=False):
        x = f'buffer_load_dword{"x2" if n == 2 else ""} {vr(dst,n)}, v{va}, {srd(S)}, 0 offen sc1'
        return [f's_mov_b64 exec, s[{sM0}:{sM0+1}]\n{x}\ns_mov_b64 exec, -1' if m else x]
    def poll_check(s, dst, va, S, n=1, m=False):
        Ls, Lr, Ll = s.p.label('slow'), s.p.label('ret'), s.p.label('spin')
        chk = (f'v_and_b32 v{dst}, v{dst}, v{dst+1}\n' if n == 2 else '') + f'v_cmp_ne_u32 vcc, 1, v{dst}\n'
        s.slow.append(f'''{Ls}:
        s_mov_b32 s{sSP}, 0x4000
        {Ll}:
        {f's_sleep {s.nap}' if s.nap and not s.nap1 else ''}
        {s.poll_issue(dst, va, S, n)[0]}
        s_waitcnt vmcnt(0) lgkmcnt(0)
        {chk}s_cbranch_vccz {Lr}
        {f's_sleep {s.nap}' if s.nap and s.nap1 else ''}
        s_sub_u32 s{sSP}, s{sSP}, 1
        s_cmp_lg_u32 s{sSP}, 0
        s_cbranch_scc1 {Ll}
        s_branch {Lr}''')
        if m: chk = f's_mov_b64 exec, s[{sM0}:{sM0+1}]\n{chk}s_mov_b64 exec, -1\n'
        return [chk + f's_cbranch_vccnz {Ls}\n{Lr}:']
    def a_check(s):
        Ls, Lr, Ll = s.p.label('slow'), s.p.label('ret'), s.p.label('spin'); t = 183
        chk = ''.join(f'v_max3_u32 v{t}, v{vAT+2*i}, v{vAT+2*i+1}, v{t if i else vAT+7}\n' for i in range(3)) + f'v_max_u32 v{t}, v{t}, v{vAT+6}\nv_cmp_eq_u32 vcc, -1, v{t}\n'
        s.slow.append(f'''{Ls}:
        s_mov_b32 s{sSP}, 0x4000
        s_mov_b32 s18, 0
        {Ll}:
        {f's_sleep {s.nap}' if s.nap else ''}
        {a_loads()[2]}
        {a_loads()[3]}
        {s.poll_issue(vF, vPA, S_WS)[0]}
        s_waitcnt vmcnt(0) lgkmcnt(0)
        {chk}s_cbranch_vccz {Lr}
        s_cmp_lg_u32 s18, 0
        s_cbranch_scc1 {Lr}
        v_cmp_ne_u32 vcc, 1, v{vF}
        s_nop 4
        s_cmp_eq_u64 vcc, 0
        s_cselect_b32 s18, 1, 0
        s_sub_u32 s{sSP}, s{sSP}, 1
        s_cmp_lg_u32 s{sSP}, 0
        s_cbranch_scc1 {Ll}
        s_branch {Lr}''')
        return [chk + f's_cbranch_vccnz {Ls}\n{Lr}:']
    def flag(s, sreg, one):
        return [f's_mov_b64 exec, 1\nbuffer_store_dword v{one}, off, {srd(S_WS)}, s{sreg} sc1\ns_mov_b64 exec, -1']

sFH, sFA = 78, 79
sM0 = 14
vFW = 253
vONE, vPGO, vPWD, vPUT, vPH, vPA, vF = 238, 239, 240, 241, 242, 243, 244
def flag_setup(p, spare):
    t0 = 192
    p(f'''s_cmp_eq_u32 s{sW}, 0
    s_cselect_b64 s[{sM0}:{sM0+1}], -1, 0
    v_mov_b32 v{vONE}, 1
    v_mov_b32 v{vPGO}, 0
    s_lshl_b32 s{sT0}, s{sW}, 3
    s_add_u32 s{sT0}, s{sT0}, s{sDT}
    s_add_u32 s{sT0}, s{sT0}, 192
    s_lshl_b32 s{sT0}, s{sT0}, 7
    v_and_b32 v{t0}, 3, v{vL}
    v_lshl_add_u32 v{vPWD}, v{t0}, 2, s{sT0}
    v_lshlrev_b32 v{t0}, 3, v{vL}
    v_add_u32 v{vPUT}, {224*128}, v{t0}
    s_lshl_b32 s{sT0}, s{sST}, 2
    s_add_u32 s{sT0}, s{sT0}, s{sW}
    s_lshl_b32 s{sT0}, s{sT0}, 7
    v_min_u32 v{t0}, 6, v{vL}
    v_lshl_add_u32 v{vPH}, v{t0}, 2, s{sT0}
    s_add_u32 s{sT0}, s{sST}, 192
    s_lshl_b32 s{sT0}, s{sT0}, 7
    s_add_u32 s{sT0}, s{sT0}, 16
    v_and_b32 v{t0}, 3, v{vL}
    v_lshl_add_u32 v{t0}, v{t0}, 2, s{sT0}
    v_cmp_gt_u32 vcc, 32, v{vL}
    v_cndmask_b32 v{vPH}, v{t0}, v{vPH}, vcc
    s_lshr_b32 s{sT0}, s{sST}, 4
    s_lshl_b32 s{sT0}, s{sT0}, 5
    s_lshl_b32 s{sT1}, s{sDT}, 2
    s_add_u32 s{sT0}, s{sT0}, s{sT1}
    s_and_b32 s{sT1}, s{sW}, 1
    s_lshl_b32 s{sT1}, s{sT1}, 1
    s_add_u32 s{sT0}, s{sT0}, s{sT1}
    s_add_u32 s{sT0}, s{sT0}, 128
    s_lshl_b32 s{sT0}, s{sT0}, 7
    v_and_b32 v{t0}, 15, v{vL}
    v_lshl_add_u32 v{vPA}, v{t0}, 2, s{sT0}
    v_bfe_u32 v{t0}, v{vL}, 4, 1
    v_lshl_add_u32 v{vPA}, v{t0}, 7, v{vPA}
    s_lshl_b32 s{sT0}, s{sPI}, 1
    s_lshr_b32 s{sT1}, s{sW}, 1
    s_add_u32 s{sT0}, s{sT0}, s{sT1}
    s_and_b32 s{sT1}, s{sT0}, 15
    s_lshr_b32 s{sT0}, s{sT0}, 4
    s_and_b32 s{sT2}, s{sW}, 1
    s_lshl_b32 s{sT2}, s{sT2}, 5
    s_add_u32 s{sT0}, s{sT0}, s{sT2}
    s_add_u32 s{sT0}, s{sT0}, 128
    s_lshl_b32 s{sT0}, s{sT0}, 5
    s_add_u32 s{sT0}, s{sT0}, s{sT1}
    s_lshl_b32 s{sFA}, s{sT0}, 2''')
    if spare:
        p(f's_lshl_b32 s{sT0}, s{sSI}, 2\ns_add_u32 s{sT0}, s{sT0}, s{sW}\ns_lshl_b32 s{sT0}, s{sT0}, 7\ns_add_u32 s{sFH}, s{sT0}, 0x8000')
    else:
        p(f'''s_lshl_b32 s{sT0}, s{sMI}, 2
        s_add_u32 s{sT0}, s{sT0}, s{sW}
        s_lshl_b32 s{sT0}, s{sT0}, 2
        s_and_b32 s{sT1}, s{sXCD}, 3
        s_add_u32 s{sT0}, s{sT0}, s{sT1}
        s_lshl_b32 s{sT0}, s{sT0}, 5
        s_add_u32 s{sT0}, s{sT0}, s{sDT}
        s_lshl_b32 s{sFH}, s{sT0}, 2''')
def as_list(fn, *a):
    q = Prog(); fn(q, *a); return q.ins

def groups(ins, last):
    o = [[]]
    for I in ins:
        o[-1].append(I)
        if last(I): o.append([])
    return [g for g in o if g]
def flat(l): return [y for x in l for y in (x if isinstance(x, list) else [x])]
def k_fused(stamps=False, cfg=None):
    cfg = dict(rot='t', ct=250, omod='', na=99, la=6, xp=[[[6, 0], [6, 1]], [[6, 2], [6, 3]]], fast=1, hs='sc1', wsb=0, nt='', tch=[0.5, 10, 11], tw=1.5, n0=[8, 20, 34], nap=4, up=2, nw=[8, 10, 12, 6, 0], r2=0, ht=0, hp=[0, 2], xn=6, hflag=55, hpoll=120, sp=1, w3=0, ds=[1, 0, 4, 1], nap1=1, pe=1, ua=0, kh=1, pk1=1, w7=1, e0=4, sn=0, cs=[[1, 2], [2, 0], [2, 1], [2, 2], [2, 3], [3, 0]], av=0, ac=[[1, 2], 3], cpoll=90, ald=18, aflag=3, apoll=17, achk=21, f0=[0.0, 0.3, 0.75], sx=99, pg=[0, 2, 5], cw=[60, 138]) | (cfg or {})
    for k in MOD: MOD[k] = 'nt' if k in cfg['nt'].split(',') else ''
    MOD['hs'] = cfg['hs']; WRAP[0] = cfg['r2']; UA[0] = cfg['ua']; DS[:] = cfg['ds']
    global WS_WDT, WS_UT, WS_G, WS_H, WS_AT
    WS_WDT, WS_UT, WS_G, WS_H, WS_AT = [cfg['wsb'] + x for x in (0x100000, 0x300000, 0x500000, 0x600000, 0xD00000)]
    F = Fused(stamps); p = F.p
    if stamps: p('s_memrealtime s[34:35]')
    p.extend(F.stamp()); prologue(p, cfg['rot'], cfg['ct'], True)
    Lsp, Ltail = p.label('spare'), p.label('tail')
    p(f's_lshl_b32 s{sPI}, s{sXCD}, 5\ns_add_u32 s{sPI}, s{sPI}, s{sJ}')
    p(f's_cmp_ge_u32 s{sJ}, 28\ns_cbranch_scc1 {Lsp}')
    tch = cfg['tch']; F.nap = cfg['nap']; F.nap1 = cfg['nap1']
    if cfg['pe']: par_loads(p); g1_setup(p); srd_bases(p)
    else: g1_setup(p); par_loads(p); srd_bases(p)
    p.extend(F.stamp('pro'))
    T = []
    dm = g1_dma(0) + g1_dma(1); n0, n1, n2 = cfg['n0']; f0, f1, f2 = cfg['f0']
    p.extend(dm[:n0])
    p.extend(F.stamp('dma'))
    prologue2(p, False)
    g1_setup2(p); tail_setup(p); flag_setup(p, False); rot2_setup(p, cfg['r2'])
    if cfg['kh']: kgen_mfma(p, (), 0)
    p.extend(F.stamp('setup'))
    if cfg.get('dbg0'):
        p(f'v_mov_b32 v{vPAR+5}, v{vPAR+5}'); p.extend(F.stamp('x0'))
        p.waitvm('dma0'); p.extend(F.stamp('x1'))
        if n0 > 17: p.waitvm('dma1'); p.extend(F.stamp('x2'))
    if stamps and 'par' in stamps: p(f'v_mov_b32 v{vPAR+5}, v{vPAR+5}'); p.extend(F.stamp('par'))
    kgen_valu(p, [(f0, f1, dm[n0:n1]), (f2, 0.99, dm[n1:n2])]); p.extend(F.stamp('kv'))
    kgen_mfma(p, dm[n2:], 1 if cfg['kh'] else 2)
    if not cfg['kh']: p('s_waitcnt lgkmcnt(0)')
    p.extend(F.stamp('km'))
    if stamps: p.waitvm('dma0'); p.extend(F.stamp('d0'))
    wl = wd_loads(); nw = cfg['nw']; pg, pw, pu = cfg['pg']
    post = {}; pre = {}
    for t in range(8):
        pre[t] = []
        if t == pg + 1: pre[t] += F.poll_check(vF, vPGO, S_DBG, 1, True)
        if t == pu + 1: pre[t] += F.poll_check(vF, vPUT, S_WS, 2, True)
        post[t] = F.stamp(f's{t}') if t < 7 else []
        if t == pg: post[t] += F.poll_issue(vF, vPGO, S_DBG, 1, True)
        if t == pw + 1 and not cfg['w3']: post[t] += F.poll_check(vFW, vPWD, S_WS) + F.stamp('wf') + as_list(wd_setup)
        if t == pu + 1: post[t] += as_list(u_loads)
        if t == pw: post[t] += F.poll_issue(vFW, vPWD, S_WS)
        if t == pu: post[t] += F.poll_issue(vF, vPUT, S_WS, 2, True)
    extra = {}
    def put(keys, lst):
        for i, k in enumerate(keys): extra.setdefault(tuple(k), []).extend(lst[len(lst) * i // len(keys): len(lst) * (i + 1) // len(keys)])
    for a, x in T:
        if a is not None and a >= 10: put([(a - 10, 2)], [G(x)])
    sn = cfg['sn']; assert not sn
    put(cfg['cs'], as_list(conv_setup) + as_list(conv_out_setup))
    if sn: put([cfg['ac'][0]], a_clear(0)); pre[cfg['ac'][1]] += [Ins('WAITVM clr')]; post[cfg['ac'][1]] += a_clear_flag()
    rd, wr = expand()
    xp = cfg['xp']; put([(6, 0)], zero_fill()); put([tuple(k) for k in xp[0]], rd); put([tuple(k) for k in xp[1]], wr); put([(7, cfg['up'])], u_put() if pu < 6 else [])
    k = 0
    SPLIT[0] = sp = cfg['sp']
    if cfg['w3']:
        put([(3, 1)], [[]] * 3 + [G(F.poll_check(vFW, vPWD, S_WS) + as_list(wd_setup))]); k = cfg['w3']; put([('w', 3, 2), ('w', 3, 3)], wl[:k])
    for t, n in zip((4, 5, 6, 7), nw): put([('w', t, s) for s in range(2 if sp and t == 7 and cfg['w7'] else 4)], wl[k:k + n]); k += n
    if sp: put([(7, 1)], epi_setup()); put([(7, 2), (7, 3)], [[]] * cfg['e0'] + skew([epi(0, q, 0) for q in range(4)]))
    g1_main(p, extra, post, 2, pre, cfg['fast']); p.extend(F.stamp('g1'))
    r0 = conv_reads(0)[:12]
    hook = {3: r0[:6] + r0[10:], 4: [r0[6]], 5: [r0[7]], 6: [r0[8]], 7: [r0[9]]} if pu < 6 else None
    if sp:
        p.extend(r0[:6] + r0[10:])
        p.extend(skew([epi(1, q, cfg['pk1'])[:-3] + [r0[6 + q]] + wl[k + nw[4] * q // 4: k + nw[4] * (q + 1) // 4] + epi(1, q, 1)[-3:] for q in range(4)]))
    else: g1_epilogue(p, wl[k:k + nw[4]], hook)
    k += nw[4]
    wrest = wl[k:]
    if pu >= 6: p.extend(u_put()); conv_setup(p); p('s_waitcnt lgkmcnt(0)\ns_barrier'); p.extend(r0)
    p(f'{Ltail}:'); p.extend(F.stamp())
    ex = {d: [[] for _ in range(34)] for d in range(4)}
    n0, n1 = cfg['cw']
    for i, x in enumerate(wrest):
        m = n0 + (n1 - n0) * i // len(wrest); ex[m // 34][m % 34].append(x)
    m = cfg['hflag']; ex[m // 34][m % 34][:0] = F.stamp('h0') + [Ins('WAITVM hst')] + F.stamp('h1') + F.flag(sFH, vONE)
    m = cfg['hpoll']; ex[m // 34][m % 34] += F.poll_issue(vF, vPH, S_WS)
    if sn: m = cfg['cpoll']; ex[m // 34][m % 34] += F.poll_issue(vFW, vPC, S_WS, 1, True)
    st = groups(as_list(h_setup), lambda I: I.kind == 'valu')
    for i, x in enumerate(st): ex[3][4 + 2 * i].append(G(x))
    conv(p, ex, conv_done); p.extend(F.stamp('cv'))
    hp0, hp1 = cfg['hp']
    chk = F.poll_check(vF, vPH, S_WS) + F.stamp('hf')
    if hp0: p.extend(chk); chk = []
    if sn: p.extend(F.poll_check(vFW, vPC, S_WS, 1, True))
    conv_out(p, pre=[x for s in range(hp0) for x in h_loads(s)], mid=chk + (h_touch() if cfg['ht'] == 1 else []) + [x for s in range(hp0, hp1) for x in h_loads(s)] + (h_touch() if cfg['ht'] == 2 else []))
    g_load(p)
    p.extend(F.stamp('co'))
    ex = {}
    for t in range(24):
        ex[t] = F.stamp(f'q{t}')
        if t == cfg['aflag']: ex[t] = ex[t] + [Ins('WAITVM ast')] + F.flag(sFA, vONE)
        if sn:
            if t == cfg['ald']: ex[t] = ex[t] + a_loads()
            if t == cfg['achk']: ex[t] = ex[t] + F.a_check() + F.stamp('af')
            continue
        if t == cfg['apoll']: ex[t] = ex[t] + F.poll_issue(vF, vPA, S_WS)
        if t == cfg['achk']: ex[t] = ex[t] + F.poll_check(vF, vPA, S_WS) + F.stamp('af') + a_loads()
    au = a_use(); na = cfg['na']
    if sn and cfg['achk'] >= 24: au = F.a_check() + F.stamp('af') + au
    if cfg['av']:
        a0, a1 = cfg['av']
        for t in range(a0, a1): ex[t] = ex[t] + au[len(au) * (t - a0) // (a1 - a0): len(au) * (t - a0 + 1) // (a1 - a0)]
        au = []
    gemm2(p, ex, pre=hp1, late=au[:na], fin=au[na:], mark=lambda: F.stamp('g2'), omod=cfg['omod'], LA=cfg['la'])
    p.extend(F.stamp())
    if cfg.get('amp'):
        a, b, mult = cfg['amp']
        p(f'''s_mov_b32 s{87 + F.ns}, s100
        s_sub_u32 s{sT0}, s{88+b}, s{88+a}
        s_mul_i32 s{sT0}, s{sT0}, {mult}
        s_mov_b32 s{sT2}, 0x40000
        L_amp:
        s_memtime s[34:35]
        s_waitcnt lgkmcnt(0)
        s_sub_u32 s{sT1}, s34, s100
        s_sub_u32 s{sT2}, s{sT2}, 1
        s_cmp_eq_u32 s{sT2}, 0
        s_cbranch_scc1 L_ampx
        s_cmp_lt_u32 s{sT1}, s{sT0}
        s_cbranch_scc1 L_amp
        L_ampx:''')
    else: F.stamp_out()
    p('s_endpgm')
    p(f'{Lsp}:')
    def sst(i):
        if stamps and not cfg.get('amp'): p(f's_memtime s[100:101]\ns_waitcnt lgkmcnt(0)\ns_mov_b32 s{88+i}, s100')
        elif stamps: p(f's_mov_b32 s{88+i}, s88')
    if stamps: p('s_mov_b32 s88, s100')
    prologue2(p, True)
    Lk = p.label('noclr'); Lg = p.label('nogo')
    p(f'''s_cmp_lg_u32 s{sSI}, 0
    s_cbranch_scc1 {Lk}
    v_mov_b32 v4, 0
    v_mov_b32 v5, 0
    v_mov_b32 v6, 0
    v_mov_b32 v7, 0
    v_lshlrev_b32 v1, 4, v0''')
    for i in range(8): p(f's_mov_b32 s{sT0}, {4096*i}\nbuffer_store_dwordx4 v[4:7], v1, {srd(S_WS)}, s{sT0} offen sc1', 'untracked')
    p(f'{Lk}:')
    def go(nl):
        p(f's_cmp_lg_u32 s{sSI}, 0\ns_cbranch_scc1 {Lg}')
        p(f's_waitcnt vmcnt({nl})', 'untracked'); p.ins[-1].kind = 'misc'
        p(f's_barrier\ns_cmp_lg_u32 s{sW}, 0\ns_cbranch_scc1 {Lg}\ns_mov_b64 exec, 1')
        p(f'buffer_store_dword v{vONE}, off, {srd(S_DBG)}, 0 sc1', 'untracked')
        p(f's_mov_b64 exec, -1\n{Lg}:')
    def faddr():
        p(f'''s_add_u32 s{sT0}, s{sSI}, 192
        s_lshl_b32 s{sT0}, s{sT0}, 5
        s_add_u32 s{sT0}, s{sT0}, s{sW}
        s_lshl_b32 s11, s{sT0}, 2
        s_add_u32 s{sT1}, s{sW}, 224
        s_lshl_b32 s{sT1}, s{sT1}, 5
        s_add_u32 s{sT1}, s{sT1}, s{sSI}
        s_lshl_b32 s12, s{sT1}, 2''')
    xi = [G(x) for x in groups(as_list(spare_issue_x), lambda I: I.kind == 'vm')]
    spare_issue_w(p); par_loads(p); spare_issue_g(p); flag_setup(p, True); rot2_setup(p, cfg['r2']); faddr()
    go(21)
    sx = cfg['sx']
    spare_wd(p, [[]] * sx + xi if sx < 99 else [])
    sst(1)
    p.extend(F.poll_issue(vF, vPGO, S_DBG))
    if sx >= 99: p.extend(xi[:cfg['xn']])
    tail_setup(p)
    p.extend(F.poll_check(vF, vPGO, S_DBG))
    p.waitvm('wst'); p.extend(F.flag(11, vONE)); sst(2)
    if sx >= 99: p.extend(xi[cfg['xn']:])
    q = Prog()
    if stamps: q(f's_memtime s[100:101]\ns_waitcnt lgkmcnt(0)\ns_mov_b32 s91, s100')
    if sn: p.extend(a_clear(0))
    spare_ut(p, q.ins)
    p.extend(F.poll_issue(vFW, vPWD, S_WS)); wd_setup(p)
    gl = as_list(spare_g); p.extend(gl[:-1])
    p.waitvm('ust'); p.extend(F.flag(12, vONE)); sst(4)
    p.extend(gl[-1:])
    p.extend(F.poll_check(vFW, vPWD, S_WS))
    p('s_barrier')
    if sn: p.extend(a_clear_flag())
    kgen_valu(p, [(0.05, 0.9, wl[:k // 2]), (0.95, 0.95, [G([Ins('WAITVM gst'), f's_add_u32 s11, s11, 16'] + F.flag(11, vONE))]), (0.99, 0.99, F.poll_issue(vF, vPUT, S_WS, 2, True))]); kgen_mfma(p)
    p.extend(F.poll_check(vF, vPUT, S_WS, 2, True))
    p('s_waitcnt lgkmcnt(0)\ns_barrier')
    u_loads(p)
    p.extend(zero_fill()); p.extend(rd); p.extend(wl[k // 2:k // 2 + 4]); p.extend(wr); p.extend(wl[k // 2 + 4:k])
    p.extend(u_put())
    sst(5)
    if stamps: p('s_memtime s[100:101]\ns_waitcnt lgkmcnt(0)')
    conv_setup(p); conv_out_setup(p); p('FORGETVM\ns_waitcnt lgkmcnt(0)\ns_barrier'); p.extend(r0)
    p(f's_waitcnt lgkmcnt(0)\ns_branch {Ltail}')
    for x in F.slow: p(x)
    p('L_end:')
    return p
```

```python
import sys
from core import *
KN = 'gated_mix__ssm_conv_s4d__glu_gated_reglu__prompt'
WS_WDT, WS_UT, WS_G, WS_H, WS_AT = 0x100000, 0x300000, 0x500000, 0x600000, 0xD00000
S_X, S_WG, S_WU, S_WS, S_OUT, S_P, S_DBG = 36, 40, 44, 48, 52, 56, 60
sXCD, sJ, sW, sMI, sFI, sST, sDT, sROT, sKX, sKW, sXM, sWM, sSI, sPI = range(64, 78)
sT0, sT1, sT2, sT3, sT4, sT5 = range(80, 86)
sSP = 86
def srd(i): return f's[{i}:{i+3}]'
def vr(a, n=1): return f'v{a}' if n == 1 else f'v[{a}:{a+n-1}]'
def ar(a, n=1): return f'a{a}' if n == 1 else f'a[{a}:{a+n-1}]'
vL = 255
class G(list): pass

ROT = dict(
  a=f's_lshl_b32 s{sT2}, s{sT0}, 1\ns_add_u32 s{sROT}, s{sT2}, s{sDT}',
  z=f's_mov_b32 s{sROT}, 0',
  t=f's_add_u32 s{sROT}, s{sT0}, s{sDT}\ns_mul_i32 s{sT2}, s{sROT}, 86\ns_lshr_b32 s{sT2}, s{sT2}, 8\ns_mul_i32 s{sT2}, s{sT2}, 3\ns_sub_u32 s{sROT}, s{sROT}, s{sT2}\ns_mul_i32 s{sROT}, s{sROT}, 3',
  g=f's_add_u32 s{sROT}, s{sT0}, s{sDT}\ns_lshl_b32 s{sROT}, s{sROT}, 2',
  h=f's_add_u32 s{sROT}, s{sT0}, s{sDT}\ns_lshl_b32 s{sROT}, s{sROT}, 1',
  x=f's_mov_b32 s{sROT}, s{sXCD}',
  b=f's_add_u32 s{sROT}, s{sT0}, s{sDT}',
  c=f's_lshl_b32 s{sT2}, s{sT0}, 1\ns_add_u32 s{sROT}, s{sT2}, s{sDT}\ns_lshr_b32 s{sT2}, s{sXCD}, 2\ns_add_u32 s{sROT}, s{sROT}, s{sT2}',
  d=f's_add_u32 s{sROT}, s{sT0}, s{sDT}\ns_and_b32 s{sROT}, s{sROT}, 1\ns_add_u32 s{sROT}, s{sROT}, s{sXCD}',
  e=f's_add_u32 s{sROT}, s{sT0}, s{sDT}\ns_and_b32 s{sROT}, s{sROT}, 3\ns_add_u32 s{sROT}, s{sROT}, s{sXCD}',
  f=f's_add_u32 s{sROT}, s{sT0}, s{sDT}\ns_lshr_b32 s{sT2}, s{sXCD}, 2\ns_lshl_b32 s{sT2}, s{sT2}, 2\ns_add_u32 s{sROT}, s{sROT}, s{sT2}',
)
def mk_srd(p, d, ptr, size):
    p(f's_mov_b32 s{d}, s{ptr}\ns_mov_b32 s{d+1}, s{ptr+1}\ns_mov_b32 s{d+2}, {hex(size)}\ns_mov_b32 s{d+3}, 0x00020000')

def prologue(p, rot='z', ctouch=0, defer=False):
    L = p.label('go')
    p(f'''s_cmp_lt_u32 s2, 256
    s_cbranch_scc1 {L}
    s_endpgm
    {L}:
    s_load_dwordx16 s[4:19], s[0:1], 0
    s_load_dwordx8 s[20:27], s[0:1], 64
    s_load_dwordx4 s[28:31], s[0:1], 96
    s_load_dwordx2 s[32:33], s[0:1], 112
    s_lshr_b32 s{sJ}, s2, 3''')
    if ctouch:
        p(f'''s_getpc_b64 s[{sT2}:{sT3}]
        L_pc:
        v_and_b32 v2, 7, v0
        v_lshl_add_u32 v2, s{sJ}, 3, v2
        v_min_u32 v2, (L_end-L_pc-4)/128, v2
        v_lshlrev_b32 v2, 7, v2
        v_mov_b32 v3, s{sT3}
        v_add_co_u32 v2, vcc, s{sT2}, v2
        v_addc_co_u32 v3, vcc, 0, v3, vcc''')
        p('global_load_dword v254, v[2:3], off', 'untracked')
    p(f'''v_lshrrev_b32 v1, 6, v0
    v_and_b32 v{vL}, 63, v0
    v_readfirstlane_b32 s{sW}, v1
    s_and_b32 s{sXCD}, s2, 7
    s_and_b32 s{sT0}, s{sJ}, 3
    s_lshr_b32 s{sDT}, s{sJ}, 2
    s_lshr_b32 s{sT1}, s{sXCD}, 2
    s_lshl_b32 s{sT1}, s{sT1}, 2
    s_add_u32 s{sMI}, s{sT1}, s{sT0}
    s_and_b32 s{sT1}, s{sXCD}, 3
    s_mul_i32 s{sT1}, s{sT1}, 7
    s_add_u32 s{sFI}, s{sT1}, s{sDT}
    s_lshl_b32 s{sT1}, s{sXCD}, 2
    s_add_u32 s{sST}, s{sT1}, s{sT0}
    {ROT[rot]}
    s_and_b32 s{sROT}, s{sROT}, 7''')
    for d, n in ((S_X, 2048 * 1024), (S_WG, 512 * 3584), (S_WU, 512 * 3584)): p(f's_mov_b32 s{d+2}, {hex(n)}\ns_mov_b32 s{d+3}, 0x00020000')
    if not defer: prologue2(p)
def srd_bases(p):
    for d, ptr in ((S_X, 4), (S_WG, 20), (S_WU, 22)): p(f's_mov_b64 s[{d}:{d+1}], s[{ptr}:{ptr+1}]')
def prologue2(p, bases=True):
    if bases: srd_bases(p)
    p(f's_mov_b32 s{sSI}, s{sST}')
    mk_srd(p, S_WS, 32, 0x10000000); mk_srd(p, S_OUT, 28, 2048 * 1024); mk_srd(p, S_DBG, 30, 256)

G1_B, G1_A, G1_XR, G1_WR, G1_DX, G1_DW = 128, 144, 176, 180, 182, 190
def acc1(st, mat, ft): return 16 * (4 * st + 2 * mat + ft)
def g1_setup(p):
    t0, t1, t2, t3 = 192, 193, 194, 195
    p(f'''v_lshrrev_b32 v{t0}, 3, v{vL}
    v_and_b32 v{t1}, 7, v{vL}
    v_lshrrev_b32 v{t2}, 1, v{t0}
    v_xor_b32 v{t3}, v{t1}, v{t2}
    v_lshlrev_b32 v{t3}, 4, v{t3}
    v_lshl_add_u32 v{t3}, v{t0}, 10, v{t3}
    s_lshl_b32 s{sT0}, s{sMI}, 2
    s_add_u32 s{sT0}, s{sT0}, s{sW}
    s_lshl_b32 s{sT0}, s{sT0}, 16
    v_add_u32 v{G1_DX}, s{sT0}, v{t3}
    v_xor_b32 v{G1_DX+1}, 64, v{G1_DX}''')
    for i in range(7, 0, -1):
        p(f'v_add_u32 v{G1_DX+i}, {8192*i - 1024*(i&3)}, v{G1_DX+(i&1)}')
    p(f'''v_and_b32 v{t2}, 1, v{t2}
    v_lshlrev_b32 v{t2}, 2, v{t2}
    v_xor_b32 v{t2}, v{t1}, v{t2}
    v_lshlrev_b32 v{t2}, 4, v{t2}
    v_mul_u32_u24 v{t0}, 3584, v{t0}
    s_mul_i32 s{sT0}, s{sW}, {16*3584}
    s_lshl_b32 s{sT1}, s{sFI}, 7
    s_add_u32 s{sT0}, s{sT0}, s{sT1}
    v_add3_u32 v{G1_DW}, v{t0}, v{t2}, s{sT0}
    v_add_u32 v{G1_DW+1}, {8*3584-1024}, v{G1_DW}
    s_lshl_b32 s{sXM}, s{sW}, 13
    s_lshl_b32 s{sWM}, s{sW}, 11
    s_add_u32 s{sWM}, s{sWM}, 98304''')
MOD = dict(x='', w='', p='', d='', sx='', hs='sc1')
def g1_dma(t):
    sl = t % 3; o = []
    o.append(f's_add_u32 s{sT0}, s{sROT}, {t}\ns_and_b32 s{sT0}, s{sT0}, 7\ns_lshl_b32 s{sKX}, s{sT0}, 7\ns_mul_i32 s{sKW}, s{sT0}, {64*3584}')
    for mat, S in ((0, S_WG), (1, S_WU)):
        o.append(f's_add_u32 m0, s{sWM}, {sl*16384 + mat*8192}')
        for i in range(2): o.append(f'buffer_load_dwordx4 v{G1_DW+i}, {srd(S)}, s{sKW} offen offset:{1024*i} {MOD["w"]} lds')
    for i in range(8):
        if i % 4 == 0: o.append(f's_add_u32 m0, s{sXM}, {sl*32768 + 1024*i}')
        o.append(f'buffer_load_dwordx4 v{G1_DX+i}, {srd(S_X)}, s{sKX} offen offset:{1024*(i&3)} {MOD["x"]} lds')
    o[-1] = (o[-1], f'dma{t}')
    return o
vTX, vTW, vTD = 248, 249, 250
def touch_setup(p):
    t0, t1 = 192, 193
    p(f'''v_lshrrev_b32 v{t0}, 1, v{vL}
    v_min_u32 v{t0}, 9, v{t0}
    s_mul_i32 s{sT1}, s{sDT}, 10
    v_add_u32 v{t0}, s{sT1}, v{t0}
    v_min_u32 v{t0}, 63, v{t0}
    v_and_b32 v{t1}, 1, v{vL}
    v_lshlrev_b32 v{t1}, 7, v{t1}
    v_lshl_add_u32 v{t0}, v{t0}, 10, v{t1}
    s_lshl_b32 s{sT0}, s{sMI}, 2
    s_add_u32 s{sT0}, s{sT0}, s{sW}
    s_lshl_b32 s{sT0}, s{sT0}, 16
    v_add_u32 v{vTX}, s{sT0}, v{t0}
    v_and_b32 v{t0}, 3, v{vL}
    v_bfe_u32 v{t1}, v{vL}, 2, 1
    v_lshl_add_u32 v{t0}, v{t1}, 6, v{t0}
    s_and_b32 s{sT0}, s{sJ}, 3
    s_lshl_b32 s{sT0}, s{sT0}, 2
    s_add_u32 s{sT0}, s{sT0}, s{sW}
    s_lshl_b32 s{sT0}, s{sT0}, 2
    v_add_u32 v{t0}, s{sT0}, v{t0}
    v_mul_u32_u24 v{t0}, 3584, v{t0}
    s_lshl_b32 s{sT1}, s{sFI}, 7
    v_add_u32 v{vTW}, s{sT1}, v{t0}''')
def touch(c):
    return [f's_add_u32 s{sT4}, s{sROT}, {c}\ns_and_b32 s{sT4}, s{sT4}, 7\ns_lshl_b32 s{sT5}, s{sT4}, 7\ns_mul_i32 s{sT4}, s{sT4}, {64*3584}',
            f's_mov_b64 exec, 0xff\nbuffer_load_dword v{vTD}, v{vTW}, {srd(S_WG)}, s{sT4} offen {MOD["w"]}\nbuffer_load_dword v{vTD+1}, v{vTW}, {srd(S_WU)}, s{sT4} offen {MOD["w"]}\ns_mov_b64 exec, 0xfffff\nbuffer_load_dword v{vTD+2}, v{vTX}, {srd(S_X)}, s{sT5} offen {MOD["x"]}\ns_mov_b64 exec, -1']
def touch_wd(p):
    t0 = 253
    p(f'''s_mul_i32 s{sT0}, s{sJ}, 37
    s_lshr_b32 s{sT0}, s{sT0}, 8
    s_mul_i32 s{sT1}, s{sT0}, 7
    s_sub_u32 s{sT1}, s{sJ}, s{sT1}
    s_lshl_b32 s{sT1}, s{sT1}, 2
    s_add_u32 s{sT1}, s{sT1}, s{sW}
    s_lshl_b32 s{sT1}, s{sT1}, 4
    s_lshl_b32 s{sT2}, s{sXCD}, 2
    s_add_u32 s{sT0}, s{sT0}, s{sT2}
    s_lshr_b32 s{sT2}, s{sT0}, 3
    s_mul_i32 s{sT2}, s{sT2}, 448
    s_add_u32 s{sT1}, s{sT1}, s{sT2}
    s_lshl_b32 s{sT1}, s{sT1}, 3
    s_and_b32 s{sT0}, s{sT0}, 7
    s_add_u32 s{sT0}, s{sT0}, s{sT1}
    s_lshl_b32 s{sT0}, s{sT0}, 7
    v_and_b32 v{t0}, 15, v{vL}
    v_lshl_add_u32 v{t0}, v{t0}, 10, s{sT0}
    s_mov_b64 exec, 0xffff
    global_load_dword v{vTD}, v{t0}, s[24:25] {MOD["d"]}
    s_mov_b64 exec, -1''')
def g1_setup2(p):
    t0, t1, t2, t3 = 192, 193, 194, 195
    p(f'''v_and_b32 v{t0}, 31, v{vL}
    v_lshrrev_b32 v{t1}, 5, v{vL}
    v_bfe_u32 v{t2}, v{vL}, 1, 3
    v_xor_b32 v{t2}, v{t2}, v{t1}
    v_lshlrev_b32 v{t2}, 4, v{t2}
    v_lshl_add_u32 v{t2}, v{t0}, 7, v{t2}
    v_add_u32 v{G1_XR}, s{sXM}, v{t2}''')
    for s in range(1, 4): p(f'v_xor_b32 v{G1_XR+s}, {32*s}, v{G1_XR}')
    p(f'''v_bfe_u32 v{t0}, v{vL}, 2, 2
    v_lshl_add_u32 v{t0}, v{t1}, 3, v{t0}
    v_bfe_u32 v{t1}, v{vL}, 4, 1
    v_bfe_u32 v{t2}, v{vL}, 1, 1
    v_lshl_add_u32 v{t1}, v{t1}, 1, v{t2}
    v_bfe_u32 v{t2}, v{vL}, 3, 1
    v_lshl_add_u32 v{t1}, v{t2}, 2, v{t1}
    v_and_b32 v{t2}, 1, v{vL}
    v_lshlrev_b32 v{t2}, 3, v{t2}
    v_lshl_add_u32 v{t2}, v{t1}, 4, v{t2}
    v_lshl_add_u32 v{t2}, v{t0}, 7, v{t2}
    v_add_u32 v{G1_WR}, 98304, v{t2}
    v_xor_b32 v{G1_WR+1}, 64, v{G1_WR}''')
def g1_reads(t, s):
    b = (4 * t + s) & 1; sl = t % 3; o = []
    B = lambda st: f'ds_read_b128 {vr(G1_B + 8*b + 4*st, 4)}, v{G1_XR+s} offset:{(sl&1)*32768 + st*4096}'
    tog = f'v_add_u32 v{G1_XR+s}, 0x10000, v{G1_XR+s}\n' if sl == 2 else f'v_subrev_u32 v{G1_XR+s}, 0x10000, v{G1_XR+s}\n' if sl == 0 and t else ''
    o.append(tog + B(0))
    for mat in range(2):
        for ft in range(2):
            r = G1_A + 16 * b + 4 * (2 * mat + ft)
            for h in range(2):
                o.append(f'ds_read_b64_tr_b16 {vr(r+2*h, 2)}, v{G1_WR+ft} offset:{sl*16384 + mat*8192 + s*2048 + h*512}')
    o.append(B(1))
    return o
def g1_mfmas(t, s):
    b = (4 * t + s) & 1; o = []
    for st in range(2):
        for mat in range(2):
            for ft in range(2):
                c = acc1(st, mat, ft)
                src = '0' if (t == 0 and s == 0) else vr(c, 16)
                o.append(f'v_mfma_f32_32x32x16_bf16 {vr(c,16)}, {vr(G1_A + 16*b + 4*(2*mat+ft), 4)}, {vr(G1_B + 8*b + 4*st, 4)}, {src}')
    return o
def g7_B(i, k, st): return (G1_B + 8 * (i & 1) if k == 0 else (182, 192)[i & 1]) + 4 * st
def g7_A(i, k, mat): return G1_A + 16 * (i & 1) + 4 * (2 * k + mat)
def g7_reads(i):
    ft = i >> 1; o = []
    for k in range(2):
        s = 2 * (i & 1) + k
        B = lambda st: f'ds_read_b128 {vr(g7_B(i,k,st), 4)}, v{G1_XR+s} offset:{32768 + st*4096}'
        o.append(B(0))
        for mat in range(2):
            for h in range(2): o.append(f'ds_read_b64_tr_b16 {vr(g7_A(i,k,mat)+2*h, 2)}, v{G1_WR+ft} offset:{16384 + mat*8192 + s*2048 + h*512}')
        o.append(B(1))
    return o
def g7_mfmas(i):
    ft = i >> 1; o = []
    for k in range(2):
        for st in range(2):
            for mat in range(2):
                c = acc1(st, mat, ft)
                o.append(f'v_mfma_f32_32x32x16_bf16 {vr(c,16)}, {vr(g7_A(i,k,mat), 4)}, {vr(g7_B(i,k,st), 4)}, {vr(c,16)}')
    return o
SPLIT = [0]; DS = [0, 0, 1, 0]
def g1_main(p, extra=None, post=None, ini=3, pre=None, fast=0):
    extra = extra or {}; post = post or {}; pre = pre or {}
    p.waitvm('dma0'); p('s_barrier')
    p.extend(g1_reads(0, 0))
    pend = [x for t in range(ini, 3) for x in g1_dma(t)]
    for t in range(8):
        for s in range(4):
            mf = g7_mfmas(s) if t == 7 and SPLIT[0] else g1_mfmas(t, s)
            slots = [[] for _ in range(8)]
            if s < 3:
                rd = g7_reads(s + 1) if t == 7 and SPLIT[0] else g1_reads(t, s + 1)
                for i, x in enumerate(rd): slots[i // 2].append(x)
            elif t < 7:
                slots[1] += pre.get(t, []) + [Ins('s_waitcnt lgkmcnt(0)'), Ins(f'WAITVM dma{t+1}'), 's_barrier']
                rd = g7_reads(0) if t == 6 and SPLIT[0] else g1_reads(t + 1, 0)
                for i, x in enumerate(rd): slots[1 + i // 2].append(x)
                slots[1] += post.get(t, [])
                if t + 3 < 8: pend = g1_dma(t + 3)
            else:
                slots[1] += pre.get(t, []) + [Ins('s_waitcnt lgkmcnt(0)'), 's_barrier'] + post.get(t, [])
            lo = 6 if s == 3 else 5 if (s < 2 and (t or ini > 1)) else 0
            if s == 3: n = min(len(pend), 4)
            elif s < 2: n = min(len(pend), 7) if (t or ini > 1) else 17
            else: n = len(pend)
            if t < fast and s < 2: lo = 0; n = min(len(pend), 11)
            if DS[0] and (t > DS[0] or t == DS[0] and s == 3):
                n = 0
                for m in (6, 7) if s == 3 else (5, 6, 7) if s < 2 else (4, 5, 6, 7):
                    while pend:
                        x = pend.pop(0); slots[m].append(x)
                        if 'buffer_load' in (x[0] if isinstance(x, tuple) else x): break
            for i in range(n): slots[lo + i * (8 - lo) // max(n, 1)].append(pend.pop(0))
            ex = extra.get((t, s), [])
            one = lambda y: DS[2] if y.startswith('buffer_') else 3 if y.startswith('ds_write_b128') else 0 if y.startswith('WAIT') else 1
            cost = lambda x: sum(cost(y) for y in x) if isinstance(x, list) else one(x.text) if isinstance(x, Ins) else sum(one(y.strip()) for y in (x[0] if isinstance(x, tuple) else x).strip().split('\n'))
            wd = extra.get(('w', t, s), [])
            if DS[3]:
                ms = sorted(sorted(range(2 if s == 3 else 0, 8), key=lambda m: (cost(slots[m]), -m))[:len(wd)])
                for m, x in zip(ms, wd): slots[m].append(x)
            elif wd: ex = ex + wd
            if DS[1] and t < DS[1]:
                base = [cost(z) for z in slots]; tot = sum(base) + cost(ex); m = 0
                lvl = max(-(-tot // 8), 1)
                while sum(max(0, lvl - b) for b in base) < cost(ex): lvl += 1
                for x in ex:
                    while m < 7 and base[m] + (cost(x) + 1) // 2 > lvl: m += 1
                    slots[m].append(x); base[m] += cost(x)
                ex = []
            for i, x in enumerate(ex): slots[i * 8 // len(ex)].append(x)
            for m in range(8):
                p(mf[m]); p.extend(slots[m])
    assert not pend
def g1_epilogue(p, fill=(), hook=None):
    fill = list(fill); nf = len(fill)
    H, va = 128, 192
    p(f'''s_lshl_b32 s{sT0}, s{sMI}, 2
    s_add_u32 s{sT0}, s{sT0}, s{sW}
    s_lshl_b32 s{sT0}, s{sT0}, 10
    s_lshl_b32 s{sT1}, s{sFI}, 18
    s_add_u32 s{sT0}, s{sT0}, s{sT1}
    s_add_u32 s{sT0}, s{sT0}, {WS_H}
    v_lshlrev_b32 v{va}, 4, v{vL}''')
    for ft in range(2):
        for q in range(4):
            R = H + 4 * (4 * ft + q)
            for st in range(2):
                g = acc1(st, 0, ft) + 4 * q; u = acc1(st, 1, ft) + 4 * q
                for e in range(4): p(f'v_max_f32 v{g+e}, 0, v{g+e}')
                for e in (0, 2): p(f'v_pk_mul_f32 {vr(g+e,2)}, {vr(g+e,2)}, {vr(u+e,2)}')
                for e in (0, 2): p(f'v_cvt_pk_bf16_f32 v{R + 2*st + e//2}, v{g+e}, v{g+e+1}')
            p(f'v_permlane32_swap_b32 v{R}, v{R+2}\nv_permlane32_swap_b32 v{R+1}, v{R+3}')
            p(f'buffer_store_dwordx4 {vr(R,4)}, v{va}, {srd(S_WS)}, s{sT0} offen {MOD["hs"]}', 'hst')
            if (ft, q) != (1, 3): p(f's_add_u32 s{sT0}, s{sT0}, 32768')
            i = 4 * ft + q
            if i < 7: p.extend(fill[nf * i // 7: nf * (i + 1) // 7])
            if hook: p.extend(hook.get(i, []))

def skew(L):
    o = []
    for i, b in enumerate(L):
        if i: o[-3:-3] = b[:2]; o += b[2:]
        else: o += b
    return o
sHS, vHS = 19, 201
def epi_setup():
    return [f'''s_lshl_b32 s{sHS}, s{sMI}, 2
    s_add_u32 s{sHS}, s{sHS}, s{sW}
    s_lshl_b32 s{sHS}, s{sHS}, 10
    s_lshl_b32 s18, s{sFI}, 18
    s_add_u32 s{sHS}, s{sHS}, s18
    s_add_u32 s{sHS}, s{sHS}, {WS_H}
    v_lshlrev_b32 v{vHS}, 4, v{vL}''']
def epi(ft, q, pk):
    o = []; R = acc1(0, 0, ft) + 4 * q
    for st in range(2):
        g = acc1(st, 0, ft) + 4 * q; u = acc1(st, 1, ft) + 4 * q
        o += [f'v_max_f32 v{g+e}, 0, v{g+e}' for e in range(4)]
        o += [f'v_pk_mul_f32 {vr(g+e,2)}, {vr(g+e,2)}, {vr(u+e,2)}' for e in (0, 2)] if pk else [f'v_mul_f32 v{g+e}, v{g+e}, v{u+e}' for e in range(4)]
    for st in range(2):
        g = acc1(st, 0, ft) + 4 * q
        o += [f'v_cvt_pk_bf16_f32 v{R + 2*st + e//2}, v{g+e}, v{g+e+1}' for e in (0, 2)]
    o += [f'v_permlane32_swap_b32 v{R}, v{R+2}', f'v_permlane32_swap_b32 v{R+1}, v{R+3}']
    o.append(G([(f'buffer_store_dwordx4 {vr(R,4)}, v{vHS}, {srd(S_WS)}, s{sHS} offen {MOD["hs"]}', 'hst')] + ([f's_add_u32 s{sHS}, s{sHS}, 32768'] if (ft, q) != (1, 3) else [])))
    return o
def k_gemm1():
    p = Prog(); prologue(p)
    L = p.label('main')
    p(f's_cmp_lt_u32 s{sJ}, 28\ns_cbranch_scc1 {L}\ns_endpgm\n{L}:')
    g1_setup(p)
    for t in range(3): p.extend(g1_dma(t))
    g1_setup2(p)
    g1_main(p); g1_epilogue(p)
    p('s_endpgm')
    return p

SP_X = 57344
SP_W = 0
def spare_issue_w(p):
    t0, t1, t2, vw = 140, 141, 142, 143
    sT0, sT1 = sT4, sT5
    mk_srd(p, S_P, 24, 1792 * 1024)
    p(f'''s_lshr_b32 s{sT0}, s{sSI}, 3
    s_lshl_b32 s{sT0}, s{sT0}, 2
    s_add_u32 s{sT0}, s{sT0}, s{sW}
    s_mul_i32 s{sT0}, s{sT0}, {112*1024}
    s_and_b32 s{sT1}, s{sSI}, 7
    s_lshl_b32 s{sT1}, s{sT1}, 7
    s_add_u32 s{sT0}, s{sT0}, s{sT1}
    v_lshrrev_b32 v{t0}, 3, v{vL}
    v_and_b32 v{t1}, 7, v{vL}
    v_bfe_u32 v{t2}, v{vL}, 4, 1
    v_lshlrev_b32 v{t2}, 2, v{t2}
    v_xor_b32 v{t2}, v{t1}, v{t2}
    v_lshlrev_b32 v{t2}, 4, v{t2}
    v_lshl_add_u32 v{vw}, v{t0}, 10, v{t2}
    s_mul_i32 s{sWM}, s{sW}, 14336
    s_add_u32 s{sWM}, s{sWM}, {SP_W}''')
    for i in range(14):
        p(f's_add_u32 m0, s{sWM}, {1024*i}')
        p(f'buffer_load_dwordx4 v{vw}, {srd(S_P)}, s{sT0} offen {MOD["d"]} lds', f'wdma{i//2}')
        if i < 13: p(f's_add_u32 s{sT0}, s{sT0}, 8192')
def spare_issue_x(p):
    t0, t1, t2, t3, vw, vx = 1, 2, 3, 4, 8, 10
    p(f'''s_lshl_b32 s{sT1}, s{sW}, 2
    s_and_b32 s{sT1}, s{sT1}, 7
    v_xor_b32 v{t0}, s{sT1}, v{vL}
    v_lshlrev_b32 v{vx}, 4, v{t0}
    v_xor_b32 v{vx+1}, 16, v{vx}
    v_xor_b32 v{vx+2}, 32, v{vx}
    v_xor_b32 v{vx+3}, 48, v{vx}
    s_lshl_b32 s{sT0}, s{sSI}, 2
    s_add_u32 s{sT0}, s{sT0}, s{sW}
    s_lshl_b32 s{sKX}, s{sT0}, 14
    s_mul_i32 s{sXM}, s{sW}, {16*1152}''')
    for i in range(16):
        p(f's_add_u32 m0, s{sXM}, {SP_X + 1152*i}')
        p(f'buffer_load_dwordx4 v{vx + 2*(i>>3) + ((i>>1)&1)}, {srd(S_X)}, s{sKX} offen {MOD["sx"]} lds', 'xdma')
        if i < 15: p(f's_add_u32 s{sKX}, s{sKX}, 1024')
SP_G = 131072
def spare_issue_g(p):
    mk_srd(p, S_WG, 26, 1024)
    p(f's_lshl_b32 s{sT3}, s{sW}, 10\ns_add_u32 m0, s{sT3}, {SP_G}\nv_lshlrev_b32 v5, 4, v{vL}')
    p(f'buffer_load_dwordx4 v5, {srd(S_WG)}, 0 offen lds', 'gdma')
def spare_wd(p, fill=()):
    t0, t1, t2, ra, va = 1, 2, 3, 6, 14
    p(f'''v_lshrrev_b32 v{t1}, 5, v{vL}
    v_bfe_u32 v{t0}, v{vL}, 2, 2
    v_lshl_add_u32 v{t0}, v{t1}, 3, v{t0}
    v_bfe_u32 v{t1}, v{vL}, 4, 1
    v_bfe_u32 v{t2}, v{vL}, 1, 1
    v_lshl_add_u32 v{t1}, v{t1}, 1, v{t2}
    v_bfe_u32 v{t2}, v{vL}, 3, 1
    v_lshl_add_u32 v{t1}, v{t2}, 2, v{t1}
    v_and_b32 v{t2}, 1, v{vL}
    v_lshlrev_b32 v{t2}, 3, v{t2}
    v_lshl_add_u32 v{t2}, v{t1}, 4, v{t2}
    v_lshl_add_u32 v{t2}, v{t0}, 7, v{t2}
    v_add_u32 v{ra}, s{sWM}, v{t2}
    v_xor_b32 v{ra+1}, 64, v{ra}
    v_lshlrev_b32 v{va}, 4, v{vL}
    s_and_b32 s{sT0}, s{sSI}, 7
    s_lshl_b32 s{sT0}, s{sT0}, 2
    s_lshr_b32 s{sT1}, s{sSI}, 3
    s_add_u32 s{sT0}, s{sT0}, s{sT1}
    s_lshl_b32 s{sT0}, s{sT0}, 2
    s_add_u32 s{sT0}, s{sT0}, s{sW}
    s_mul_i32 s{sT0}, s{sT0}, 14336
    s_add_u32 s{sT5}, s{sT0}, {WS_WDT}''')
    def st(i):
        p(f'buffer_store_dwordx4 {vr(16+4*i,4)}, v{va}, {srd(S_WS)}, s{sT5} offen offset:{1024*(i&3)} sc1', 'wst')
        if i & 3 == 3: p(f's_add_u32 s{sT5}, s{sT5}, 4096')
    fill = list(fill); nf = len(fill)
    for s in range(8):
        if s < 7:
            p.waitvm(f'wdma{s}')
            for d in range(2):
                r = 16 + 4 * (2 * s + d)
                for h in range(2): p(f'ds_read_b64_tr_b16 {vr(r+2*h,2)}, v{ra+d} offset:{s*2048 + h*512}')
        if s: st(2 * s - 2); st(2 * s - 1)
        p.extend(fill[nf * s // 8: nf * (s + 1) // 8])
def spare_ut(p, mid=(), fill=()):
    t0, t1, t2, t3, ra, va = 1, 2, 3, 4, 72, 14
    p(f'''v_and_b32 v{t0}, 3, v{vL}
    v_lshrrev_b32 v{t1}, 5, v{vL}
    v_lshl_add_u32 v{t1}, v{t1}, 2, v{t0}
    v_bfe_u32 v{t2}, v{vL}, 2, 2
    v_lshl_add_u32 v{t1}, v{t1}, 3, v{t2}
    v_mul_u32_u24 v{t1}, 1152, v{t1}
    v_bfe_u32 v{t2}, v{vL}, 3, 1
    v_lshl_add_u32 v{t0}, v{t0}, 1, v{t2}
    v_lshl_add_u32 v{t1}, v{t0}, 4, v{t1}
    v_bfe_u32 v{t2}, v{vL}, 4, 1
    v_lshl_add_u32 v{t1}, v{t2}, 3, v{t1}
    s_lshl_b32 s{sT0}, s{sW}, 8
    s_add_u32 s{sT0}, s{sT0}, {SP_X}
    v_add_u32 v{ra}, s{sT0}, v{t1}''')
    for k in range(1, 8): p(f'v_xor_b32 v{ra+k}, {16*k}, v{ra}')
    p(f'''v_and_b32 v{t0}, 15, v{vL}
    v_lshlrev_b32 v{t0}, 4, v{t0}
    v_lshrrev_b32 v{t1}, 5, v{vL}
    v_lshl_add_u32 v{t0}, v{t1}, 8, v{t0}
    v_lshl_add_u32 v{va}, v{t2}, 14, v{t0}
    s_lshl_b32 s{sT0}, s{sW}, 19
    s_lshl_b32 s{sT1}, s{sSI}, 9
    s_add_u32 s{sT0}, s{sT0}, s{sT1}
    s_add_u32 s{sT5}, s{sT0}, {WS_UT}''')
    p.waitvm('xdma'); p('s_barrier')
    for k in range(16):
        r = 16 + 4 * (k % 8) if k < 8 else 80 + 4 * (k % 8)
        for h in range(2): p(f'ds_read_b64_tr_b16 {vr(r+2*h,2)}, v{ra+(k&7)} offset:{(k>>3)*128 + h*4608}')
    p.extend(mid); nf = len(fill)
    for k in range(16):
        r = 16 + 4 * (k % 8) if k < 8 else 80 + 4 * (k % 8)
        p(f'buffer_store_dwordx4 {vr(r,4)}, v{va}, {srd(S_WS)}, s{sT5} offen sc1', 'ust')
        if k < 15: p(f's_add_u32 s{sT5}, s{sT5}, 32768')
        p.extend(fill[nf * k // 16: nf * (k + 1) // 16])
def spare_g(p):
    t0, t1, t2, ra, ac, X, W = 1, 2, 3, 8, 10, 112, 176
    p(f'''s_lshl_b32 s{sT0}, s{sW}, 4
    v_lshrrev_b32 v{t0}, 2, v{vL}
    v_add_u32 v{t0}, s{sT0}, v{t0}
    v_bfe_u32 v{t1}, v{t0}, 3, 2
    v_bfe_u32 v{t2}, v{t0}, 1, 1
    v_lshl_add_u32 v{t1}, v{t1}, 1, v{t2}
    v_and_b32 v{t2}, 3, v{vL}
    v_xor_b32 v{t1}, v{t1}, v{t2}
    v_mul_u32_u24 v{ra}, 1152, v{t0}
    v_lshl_add_u32 v{ra}, v{t1}, 4, v{ra}
    v_add_u32 v{ra}, {SP_X}, v{ra}
    v_xor_b32 v{ra+1}, 64, v{ra}''')
    p(f's_lshl_b32 s{sT3}, s{sW}, 10\ns_add_u32 s{sT3}, s{sT3}, {SP_G}\nv_lshl_add_u32 v{t2}, v{t2}, 4, s{sT3}')
    for e in range(4): p(f'v_mov_b32 v{ac+e}, 0')
    for i in range(16): p(f'ds_read_b128 {vr(X+4*i,4)}, v{ra+(i&1)} offset:{(i>>1)*128}')
    for i in range(20):
        if i < 16: p(f'ds_read_b128 {vr(W+4*(i&3),4)}, v{t2} offset:{64*i}') if i < 4 else None
        if i >= 4:
            for e in range(4): p(f'v_dot2c_f32_bf16 v{ac+e}, v{X+4*(i-4)+e}, v{W+4*(i&3)+e}')
            if i < 16: p(f'ds_read_b128 {vr(W+4*(i&3),4)}, v{t2} offset:{64*i}')
    p(f'''v_add_f32 v{ac}, v{ac}, v{ac+1}
    v_add_f32 v{ac+2}, v{ac+2}, v{ac+3}
    v_add_f32 v{ac}, v{ac}, v{ac+2}
    v_add_f32_dpp v{ac+1}, v{ac}, v{ac} quad_perm:[1,0,3,2] row_mask:0xf bank_mask:0xf
    v_add_f32_dpp v{ac}, v{ac+1}, v{ac+1} quad_perm:[2,3,0,1] row_mask:0xf bank_mask:0xf
    v_cvt_pk_bf16_f32 v{ac}, v{ac}, v{ac}
    v_and_b32 v{ac}, 0xffff0000, v{ac}
    v_mul_f32 v{ac}, 0xbfb8aa3b, v{ac}
    v_exp_f32 v{ac}, v{ac}
    v_add_f32 v{ac}, 1.0, v{ac}
    v_rcp_f32 v{ac}, v{ac}
    v_cvt_pk_bf16_f32 v{ac}, v{ac}, v{ac}
    v_and_b32 v{ac}, 0xffff0000, v{ac}
    s_lshl_b32 s{sT0}, s{sSI}, 8
    s_add_u32 s{sT0}, s{sT0}, {WS_G}
    v_lshlrev_b32 v{t0}, 2, v{t0}''')
    p(f'buffer_store_dword v{ac}, v{t0}, {srd(S_WS)}, s{sT0} offen sc1', 'gst')

def k_spare():
    p = Prog(); prologue(p)
    L = p.label('main')
    p(f's_cmp_ge_u32 s{sJ}, 28\ns_cbranch_scc1 {L}\ns_endpgm\n{L}:')
    spare_issue(p); spare_wd(p); spare_ut(p); spare_g(p)
    p('s_endpgm')
    return p

KT, KTS, KR = 65536, 65536, 528
TL, TLS = 159056, 2064
IMG, IMS = 131072, 8320
UIM, UIS = 147712, 4672
RED = 0
AS = 32768
P2 = 49152
vPAR = 196
vGA = 202
def vE(e): return vGA + 16 if e < 0 else vGA + 8 + (15 - e) // 2 if e & 1 else vGA + (14 - e) // 2
vTA = 219
vZA = 222
vDM = 223
def par_loads(p):
    t0, t1 = 192, 193
    p(f'''s_lshl_b32 s{sT0}, s{sPI}, 2
    s_add_u32 s{sT0}, s{sT0}, s{sW}
    s_lshl_b32 s{sT1}, s{sT0}, 7
    v_lshl_add_u32 v{t0}, v{vL}, 1, s{sT1}
    s_lshr_b32 s{sT0}, s{sT0}, 1
    s_lshl_b32 s{sT0}, s{sT0}, 1
    v_mov_b32 v{t1}, s{sT0}''')
    for i in range(4): p(f'global_load_short_d16_hi v{vPAR+i}, v{t0}, s[{6+2*i}:{7+2*i}] {MOD["p"]}')
    for i in range(2): p(f'global_load_short_d16_hi v{vPAR+4+i}, v{t1}, s[{14+2*i}:{15+2*i}]')
def par_zero(p):
    for i in range(6): p(f'v_mov_b32 v{vPAR+i}, 0')
def rne_off(s, e):
    q, r = divmod(e, 1 << s); h = (1 << s) // 2
    if s and (r > h or (r == h and q & 1)): q += 1
    return q
def tail_setup(p):
    t0, t1, t2, t3, t4 = 192, 193, 194, 195, 234
    p(f'''s_lshr_b32 s{sT0}, s{sW}, 1
    s_and_b32 s{sT1}, s{sW}, 1
    s_mul_i32 s{sT2}, s{sT0}, {TLS}
    s_add_u32 s{sT2}, s{sT2}, {TL}
    s_lshl_b32 s{sT3}, s{sT1}, 6
    s_sub_u32 s{sT3}, 127, s{sT3}
    v_sub_u32 v{t0}, s{sT3}, v{vL}
    v_lshlrev_b32 v{t1}, 4, v{t0}''')
    def idx(dst, src):
        p(f'''v_cvt_f32_u32 v{t3}, v{src}
        v_cvt_pk_bf16_f32 v{t3}, v{t3}, v{t3}
        v_and_b32 v{t3}, 0xffff, v{t3}
        v_subrev_u32 v{t3}, 17024, v{t3}
        v_min_i32 v{t4}, 128, v{src}
        v_max_i32 v{t3}, v{t3}, v{t4}
        v_lshl_add_u32 v{dst}, v{t3}, 1, s{sT2}''')
    idx(vE(0), t1)
    p(f'v_subrev_u32 v{t2}, 1, v{t1}\nv_max_i32 v{t2}, 0, v{t2}')
    idx(vE(-1), t2)
    p(f'''s_add_u32 s{sT3}, s{sT2}, 2048
    v_mov_b32 v{t2}, s{sT3}
    v_cmp_eq_u32 vcc, 0, v{t0}
    v_cndmask_b32 v{vE(-1)}, v{vE(-1)}, v{t2}, vcc
    v_ffbh_u32 v{t2}, v{t0}
    v_min_u32 v{t2}, 28, v{t2}
    v_sub_u32 v{t2}, 28, v{t2}
    v_lshlrev_b32 v{t2}, 3, v{t2}''')
    for e in range(1, 16):
        k = sum((2 * rne_off(s, e)) << (8 * s) for s in range(4))
        p(f's_mov_b32 s{sT3}, {hex(k)}\nv_bfe_u32 v{t3}, s{sT3}, v{t2}, 8\nv_add_u32 v{vE(e)}, v{vE(0)}, v{t3}')
    p(f'''v_and_b32 v{t0}, 15, v{vL}
    s_lshl_b32 s{sT3}, s{sT1}, 4
    v_add_u32 v{t0}, s{sT3}, v{t0}
    v_lshrrev_b32 v{t1}, 4, v{vL}
    v_lshlrev_b32 v{t2}, 3, v{t1}
    v_lshl_add_u32 v{t2}, v{t0}, 4, v{t2}
    v_lshlrev_b32 v{t3}, 3, v{t0}
    v_add_u32 v{t3}, 512, v{t3}
    v_cmp_eq_u32 vcc, 2, v{t1}
    v_cndmask_b32 v{t2}, v{t2}, v{t3}, vcc
    v_lshlrev_b32 v{t3}, 2, v{t0}
    v_add_u32 v{t3}, 768, v{t3}
    v_mov_b32 v{t4}, 4
    v_mov_b32 v{vTA+1}, 128
    v_cmp_eq_u32 vcc, 3, v{t1}
    v_cndmask_b32 v{t2}, v{t2}, v{t3}, vcc
    v_cndmask_b32 v{t4}, v{t4}, v{vTA+1}, vcc
    v_add_u32 v{vTA}, s{sT2}, v{t2}
    v_add_u32 v{vTA+1}, v{vTA}, v{t4}
    v_lshlrev_b32 v{t2}, 8, v{t1}
    v_lshl_add_u32 v{t2}, v{t0}, 1, v{t2}
    v_add_u32 v{vTA+2}, s{sT2}, v{t2}
    v_or_b32 v{t2}, v{t0}, v{t1}
    v_mov_b32 v{t3}, 0
    v_cmp_eq_u32 vcc, 0, v{t2}
    v_cndmask_b32 v{vDM}, v{t3}, 1.0, vcc''')
    p(f'''v_lshrrev_b32 v{t0}, 5, v{vL}
    v_mul_u32_u24 v{t0}, {UIS}, v{t0}
    v_and_b32 v{t1}, 31, v{vL}
    v_lshl_add_u32 v{t0}, v{t1}, 4, v{t0}
    v_add_u32 v{t0}, {UIM}, v{t0}
    v_bfe_u32 v{t1}, v{vL}, 1, 2
    v_mul_u32_u24 v{t1}, 4160, v{t1}
    v_and_b32 v{t2}, 1, v{vL}
    v_lshl_add_u32 v{t1}, v{t2}, 4, v{t1}
    v_add_u32 v{t1}, {IMG + 4096}, v{t1}
    v_mul_u32_u24 v{t2}, {TLS}, v{t2}
    v_add_u32 v{t2}, {TL + 2048}, v{t2}
    v_and_b32 v{t3}, 8, v{vL}
    v_cmp_eq_u32 vcc, 0, v{t3}
    v_cndmask_b32 v{t1}, v{t2}, v{t1}, vcc
    s_cmp_eq_u32 s{sW}, 0
    s_cselect_b64 vcc, -1, 0
    v_cndmask_b32 v{vZA}, v{t1}, v{t0}, vcc''')
HI = [0,1,2,3,4,5,6,7,256,258,260,262,512,516,768,772,1024,1280,1536,1792,2048]
def merge(chains):
    out = []; ch = [list(c) for c in chains]
    while any(ch):
        for c in ch:
            if c: out.append(c.pop(0))
    return out
def cmul(D, X, Y):
    return [f'v_pk_mul_f32 {vr(D,2)}, {vr(X,2)}, {vr(Y,2)} op_sel:[0,0] op_sel_hi:[0,1]',
            f'v_pk_fma_f32 {vr(D,2)}, {vr(X,2)}, {vr(Y,2)}, {vr(D,2)} op_sel:[1,1,0] op_sel_hi:[1,0,1] neg_lo:[0,1,0]']
def kgen_valu(p, fills=()):
    lar, aim, cre, cim, ldt, dsk = range(vPAR, vPAR + 6)
    def expbf(x, t):
        return [f'v_mul_f32 v{t}, 0x3fb8aa3b, v{x}', f'v_fma_f32 v{t+1}, v{x}, s{sT2}, -v{t}', f'v_fmac_f32 v{t+1}, 0x32a57060, v{x}',
                f'v_exp_f32 v{t}, v{t}', f'v_mul_f32 v{t+1}, 0x3f317218, v{t+1}', f'v_fmac_f32 v{t}, v{t}, v{t+1}',
                f'v_cvt_pk_bf16_f32 v{t}, v{t}, v{t}', f'v_and_b32 v{x}, 0xffff0000, v{t}']
    vKA = 13
    p(f'''s_mov_b32 s{sT2}, 0x3fb8aa3b
    s_lshr_b32 s{sT0}, s{sW}, 1
    s_mul_i32 s{sT1}, s{sT0}, {TLS}
    s_add_u32 s{sT1}, s{sT1}, {TL + 2048}
    v_mov_b32 v10, s{sT1}
    s_mul_i32 s{sT0}, s{sT0}, {KTS}
    s_and_b32 s{sT1}, s{sW}, 1
    s_lshl_b32 s{sT1}, s{sT1}, 8
    s_add_u32 s{sT0}, s{sT0}, s{sT1}
    s_add_u32 s{sT0}, s{sT0}, {KT}
    v_lshl_add_u32 v{vKA}, v{vL}, 2, s{sT0}
    v_mov_b32 v11, 0
    v_mov_b32 v12, 0x3f80''')
    p(f'ds_write_b32 v10, v11\nds_write_b32 v{vKA}, v12')
    p0 = p; p = Prog()
    p.extend(merge([expbf(ldt, 0), expbf(lar, 2)]))
    a2, b2 = 4, 5
    Hreg = {h: 16 + 2 * i for i, h in enumerate(HI)}
    Lreg = {k: 58 + 2 * k for k in range(1, 32)}
    Z1, Z2, Z4, Z256 = 122, 124, 126, 128
    p(f'''v_mul_f32 v{a2}, v{lar}, v{ldt}
    v_mul_f32 v{b2}, v{aim}, v{ldt}
    v_mul_f32 v6, v{cre}, v{ldt}
    v_mul_f32 v7, v{cim}, v{ldt}
    v_mul_f32 v{a2}, 0xbfb8aa3b, v{a2}
    v_mul_f32 v{b2}, 0x3e22f983, v{b2}
    v_add_f32 v{Hreg[0]}, v6, v6
    v_add_f32 v{Hreg[0]+1}, v7, v7
    v_mul_f32 v{vDM}, v{vDM}, v{dsk}''')
    def direct(D, pw, t):
        o = []
        if pw != 1: o += [f'v_mul_f32 v{t}, {float(pw)}, v{a2}', f'v_mul_f32 v{t+1}, {float(pw)}, v{b2}', f'v_exp_f32 v{t}, v{t}', f'v_fract_f32 v{t+1}, v{t+1}']
        else: o += [f'v_exp_f32 v{t}, v{a2}', f'v_fract_f32 v{t+1}, v{b2}']
        o += [f'v_cos_f32 v{D}, v{t+1}', f'v_sin_f32 v{D+1}, v{t+1}', f'v_mul_f32 v{D}, v{D}, v{t}', f'v_mul_f32 v{D+1}, v{D+1}, v{t}']
        return o
    p.extend(merge([direct(Lreg[1], 8, 0), direct(Z256, 256, 2), direct(Z1, 1, 8)]))
    cv = [130]
    def put(reg, row, neg):
        t = cv[0]
        return [f'v_cvt_pk_bf16_f32 v{t}, v{reg}, {"-" if neg else ""}v{reg+1}', f'ds_write_b32 v{vKA}, v{t} offset:{row*KR}']
    ph = lambda h: put(Hreg[h], 32 + HI.index(h), True)
    pl = lambda k: put(Lreg[k], k, False)
    cv[0] = 130
    c1 = cmul(Lreg[2], Lreg[1], Lreg[1]) + pl(1) + cmul(Lreg[4], Lreg[2], Lreg[2]) + pl(2)
    cv[0] = 131
    c2 = cmul(Z2, Z1, Z1) + ph(0) + cmul(Lreg[3], Lreg[2], Lreg[1]) + cmul(Z4, Z2, Z2)
    cv[0] = 132
    c3 = cmul(Hreg[256], Hreg[0], Z256) + cmul(Hreg[1], Hreg[0], Z1) + ph(256) + ph(1)
    p.extend(merge([c1, c2, c3]))
    chains = []
    for k0 in range(1, 5):
        c = []; cv[0] = 132 + k0
        for k in range(k0, 32, 4):
            if k + 4 < 32: c += cmul(Lreg[k + 4], Lreg[k], Lreg[4])
            if k > 2: c += pl(k)
        chains.append(c)
    c = []; cv[0] = 137
    for h in range(2, 8): c += cmul(Hreg[h], Hreg[h - 1], Z1) + ph(h)
    for h in (258, 260, 262): c += cmul(Hreg[h], Hreg[h - 2], Z2) + ph(h)
    chains.append(c)
    c = []; cv[0] = 138
    for h in range(512, 2049, 256):
        c += cmul(Hreg[h], Hreg[h - 256], Z256) + ph(h)
        if h in (512, 768): c += cmul(Hreg[h + 4], Hreg[h], Z4) + ph(h + 4)
    chains.append(c)
    p.extend(merge(chains))
    n = len(p.ins); at = [[] for _ in range(n)]
    for a, b, lst in fills:
        for i, x in enumerate(lst): at[min(n - 1, int(n * (a + (b - a) * i / len(lst))))].append(x)
    for I, x in zip(p.ins, at): p0.extend([I]); p0.extend(x)
def kgen_mfma(p, fill=(), part=2):
    ra, rb, rc, t0, t1 = 140, 141, 142, 2, 3
    if part != 1: kgen_mfma_setup(p, ra, rb, rc, t0, t1)
    if part != 0: kgen_mfma_run(p, fill, ra, rb, rc)
def kgen_mfma_setup(p, ra, rb, rc, t0, t1):
    p(f'''s_lshr_b32 s{sT0}, s{sW}, 1
    s_mul_i32 s{sT0}, s{sT0}, {KTS}
    s_add_u32 s{sT0}, s{sT0}, {KT}
    s_and_b32 s{sT1}, s{sW}, 1
    s_mul_i32 s{sT1}, s{sT1}, {16*KR}
    v_and_b32 v{t0}, 15, v{vL}
    v_lshrrev_b32 v{t1}, 4, v{vL}
    v_lshl_add_u32 v{t1}, v{t1}, 4, s{sT0}
    v_mad_u32_u24 v{ra}, v{t0}, {'s'+str(sT3)}, v{t1}
    v_min_u32 v{t0}, 4, v{t0}
    v_mad_u32_u24 v{rc}, v{t0}, {'s'+str(sT3)}, v{t1}
    v_add_u32 v{rb}, s{sT1}, v{ra}'''.replace('v_and_b32', f's_mov_b32 s{sT3}, {KR}\n    v_and_b32', 1))
def kgen_mfma_run(p, fill, ra, rb, rc):
    p('s_waitcnt lgkmcnt(0)\ns_barrier')
    fill = list(fill); nf = len(fill)
    F = lambda ks, i: 16 + 12 * ks + 4 * i
    for ks in range(8):
        p.extend(fill[nf * ks // 8: nf * (ks + 1) // 8])
        p(f'ds_read_b128 {vr(F(ks,0),4)}, v{rb} offset:{64*ks}')
        p(f'ds_read_b128 {vr(F(ks,1),4)}, v{ra} offset:{64*ks + 32*KR}')
        p(f'ds_read_b128 {vr(F(ks,2),4)}, v{rc} offset:{64*ks + 48*KR}')
        if ks >= 3:
            k = ks - 3
            for mt in range(2): p(f'v_mfma_f32_16x16x32_bf16 {vr(4+4*mt,4)}, {vr(F(k,1+mt),4)}, {vr(F(k,0),4)}, {"0" if k == 0 else vr(4+4*mt,4)}')
    for k in range(5, 8):
        for mt in range(2): p(f'v_mfma_f32_16x16x32_bf16 {vr(4+4*mt,4)}, {vr(F(k,1+mt),4)}, {vr(F(k,0),4)}, {vr(4+4*mt,4)}')
    p(f'''v_add_f32 v4, v4, v{vDM}
    v_cvt_pk_bf16_f32 v5, v4, v5
    v_cvt_pk_bf16_f32 v6, v6, v7
    v_cvt_pk_bf16_f32 v8, v8, v9
    v_cvt_pk_bf16_f32 v10, v10, v11
    ds_write_b32 v{vTA}, v5
    ds_write_b32 v{vTA+1}, v6
    ds_write_b16 v{vTA+2}, v8 offset:1024
    ds_write_b16_d16_hi v{vTA+2}, v8 offset:1088
    ds_write_b16 v{vTA+2}, v10 offset:1152
    ds_write_b16_d16_hi v{vTA+2}, v10 offset:1216''')
def zero_fill():
    return ['v_mov_b32 v196, 0\nv_mov_b32 v197, 0', 'v_mov_b32 v198, 0\nv_mov_b32 v199, 0', f'ds_write_b128 v{vZA}, v[196:199]']
def expand():
    B, A, wa = vGA, vGA + 8, 200
    rd = [f'''s_lshr_b32 s{sT0}, s{sW}, 1
    s_mul_i32 s{sT0}, s{sT0}, {IMS}
    s_and_b32 s{sT1}, s{sW}, 1
    s_lshl_b32 s{sT1}, s{sT1}, 11
    s_add_u32 s{sT0}, s{sT0}, s{sT1}
    s_add_u32 s{sT0}, s{sT0}, {IMG}
    v_lshl_add_u32 v{wa}, v{vL}, 5, s{sT0}''']
    for k in range(8): rd += [f'ds_read_u16 v{A+k}, v{A+k}', f'ds_read_u16 v{B+k}, v{B+k}']
    rd.append(f'ds_read_u16 v{A+8}, v{A+8}')
    wr = []
    for k in range(8):
        wr.append(f'v_lshl_or_b32 v{192+k}, v{B+k}, 16, v{A+k}\nv_lshl_or_b32 v{B+k}, v{A+k+1}, 16, v{B+k}')
        if k & 3 == 3: wr += [f'ds_write_b128 v{wa}, {vr(189+k,4)} offset:{4*(k-3)}', f'ds_write_b128 v{wa}, {vr(B+k-3,4)} offset:{4160 + 4*(k-3)}']
    return rd, wr
vU = 224
def u_loads(p):
    t0, t1 = 232, 233
    p(f'''s_lshr_b32 s{sT0}, s{sPI}, 1
    s_lshl_b32 s{sT0}, s{sT0}, 14
    s_and_b32 s{sT1}, s{sPI}, 1
    s_lshl_b32 s{sT1}, s{sT1}, 5
    s_add_u32 s{sT0}, s{sT0}, s{sT1}
    s_lshl_b32 s{sT1}, s{sW}, 11
    s_add_u32 s{sT0}, s{sT0}, s{sT1}
    s_add_u32 s{sT0}, s{sT0}, {WS_UT}
    s_add_u32 s{sT1}, s{sT0}, 8192
    v_lshrrev_b32 v{t0}, 1, v{vL}
    v_and_b32 v{t1}, 1, v{vL}
    v_lshlrev_b32 v{t1}, 4, v{t1}
    v_lshl_add_u32 v{t0}, v{t0}, 6, v{t1}
    buffer_load_dwordx4 {vr(vU,4)}, v{t0}, {srd(S_WS)}, s{sT0} offen sc1
    buffer_load_dwordx4 {vr(vU+4,4)}, v{t0}, {srd(S_WS)}, s{sT1} offen sc1''')
def u_put():
    t0, t1 = 232, 233
    return [f'''s_lshl_b32 s{sT0}, s{sW}, 9
    s_add_u32 s{sT0}, s{sT0}, {UIM + 512}
    v_lshrrev_b32 v{t0}, 1, v{vL}
    v_and_b32 v{t1}, 1, v{vL}''', f'''v_mul_u32_u24 v{t1}, {UIS}, v{t1}
    v_lshl_add_u32 v{t0}, v{t0}, 4, v{t1}
    v_add_u32 v{t0}, s{sT0}, v{t0}''',
    f'ds_write_b128 v{t0}, {vr(vU,4)}', f'ds_write_b128 v{t0}, {vr(vU+4,4)} offset:2048']
AR, BR = 248, 252
CA = lambda b, a: 32 + 64 * b + 4 * a
CB = lambda b, j: 64 + 64 * b + 4 * j
def conv_setup(p):
    t0, t1, t2, t3 = 192, 193, 194, 195
    sT0, sT1, sT2, sT3 = 20, 21, 22, 23
    p(f'''s_lshr_b32 s{sT0}, s{sW}, 1
    s_and_b32 s{sT1}, s{sW}, 1
    s_lshl_b32 s{sT1}, s{sT1}, 8
    s_mul_i32 s{sT2}, s{sT0}, {IMS}
    s_sub_u32 s{sT2}, s{sT2}, s{sT1}
    s_add_u32 s{sT2}, s{sT2}, {IMG + 8220 - 192 - 512}
    s_mul_i32 s{sT3}, s{sT0}, {UIS}
    s_sub_u32 s{sT3}, s{sT3}, s{sT1}
    s_add_u32 s{sT3}, s{sT3}, {UIM + 480 - 192}
    v_and_b32 v{t0}, 15, v{vL}
    v_lshrrev_b32 v{t1}, 4, v{vL}
    v_lshlrev_b32 v{t1}, 4, v{t1}
    v_lshl_add_u32 v{t2}, v{t0}, 5, v{t1}
    v_add_u32 v{BR}, s{sT3}, v{t2}
    v_and_b32 v{t2}, 1, v{vL}
    v_mul_u32_u24 v{t2}, 4158, v{t2}
    v_lshl_add_u32 v{t2}, v{t0}, 1, v{t2}
    v_sub_u32 v{t2}, v{t1}, v{t2}
    v_add_u32 v{AR}, s{sT2}, v{t2}
    v_subrev_u32 v{AR+1}, 1024, v{AR}
    v_subrev_u32 v{AR+2}, 2048, v{AR}
    v_subrev_u32 v{AR+3}, 3072, v{AR}''')
UA = [0]
def conv_reads(d):
    b = d & 1; o = []
    def A(a):
        off = 16 * (3 - d) + (128 if a % 2 == 0 else 0)
        if UA[0] == 1: return [f'ds_read_b128 {vr(CA(b,a),4)}, v{AR+a//2} offset:{4*off}', []]
        if UA[0] == 2: return [f'ds_read_b64 {vr(CA(b,a)+2*h,2)}, v{AR+a//2} offset:{4*off+8*h}' for h in range(2)]
        return [f'ds_read2_b32 {vr(CA(b,a)+2*h,2)}, v{AR+a//2} offset0:{off+2*h} offset1:{off+2*h+1}' for h in range(2)]
    o += A(0)
    for j in range(8): o.append(f'ds_read_b128 {vr(CB(b,j),4)}, v{BR} offset:{512*j + 64*(3-d)}')
    for a in range(1, 8): o += A(a)
    return o
def conv(p, extra=None, done=None):
    rest0 = conv_reads(0)[12:]
    for d in range(4):
        b = d & 1; mf = []; fin = {}
        for a in range(8):
            for j in range(a, 8):
                if d == 3 and j == a: fin[len(mf) + 3] = j
                mf.append(f'v_mfma_f32_16x16x32_bf16 {vr(4*j,4)}, {vr(CA(b,a),4)}, {vr(CB(b,j-a),4)}, {"0" if d == 0 and a == 0 else vr(4*j,4)}')
        if done: mf = [G([x] + (done(fin[i]) if i in fin else [])) for i, x in enumerate(mf)]
        fill = (rest0 if d == 0 else []) + (conv_reads(d + 1) if d < 3 else [])
        weave(p, mf, fill, (extra or {}).get(d, []), end=34)
        if d == 3 and done:
            for i in sorted(fin):
                if i >= len(mf): p.extend(done(fin[i]))
vCW, vCR, vCV, sAT = 246, 247, 234, 13
def conv_done(j): return [f'ds_write_b128 v{vCW}, {vr(4*j,4)} offset:{RED + 1024*j}']
def conv_out_setup(p):
    wa, ra, va, t0, t1 = vCW, vCR, vCV, 192, 193
    sT0, sT1 = 20, 21
    p(f'''s_lshl_b32 s{sT0}, s{sW}, 13
    v_lshrrev_b32 v{t0}, 5, v{vL}
    v_lshlrev_b32 v{t0}, 3, v{t0}
    v_xor_b32 v{t0}, v{t0}, v{vL}
    v_lshl_add_u32 v{wa}, v{t0}, 4, s{sT0}
    s_lshr_b32 s{sT0}, s{sW}, 1
    s_lshl_b32 s{sT0}, s{sT0}, 14
    s_and_b32 s{sT1}, s{sW}, 1
    s_lshl_b32 s{sT1}, s{sT1}, 12
    s_add_u32 s{sT0}, s{sT0}, s{sT1}
    v_and_b32 v{t0}, 1, v{vL}
    v_bfe_u32 v{t1}, v{vL}, 1, 4
    v_lshl_add_u32 v{t1}, v{t0}, 5, v{t1}
    v_lshlrev_b32 v{t0}, 3, v{t0}
    v_xor_b32 v{t1}, v{t1}, v{t0}
    v_lshrrev_b32 v{t0}, 5, v{vL}
    v_lshl_add_u32 v{t1}, v{t0}, 6, v{t1}
    v_lshl_add_u32 v{ra}, v{t1}, 4, s{sT0}
    v_lshlrev_b32 v{va}, 4, v{vL}
    s_lshl_b32 s{sT0}, s{sPI}, 2
    s_add_u32 s{sT0}, s{sT0}, s{sW}
    s_lshl_b32 s{sT0}, s{sT0}, 11
    s_add_u32 s{sAT}, s{sT0}, {WS_AT}''')
def conv_out(p, pre=(), mid=()):
    ra, va = vCR, vCV
    p.extend(pre)
    p('s_waitcnt lgkmcnt(0)\ns_barrier')
    R = lambda i, h, k: 32 + 16 * i + 8 * k + 4 * h
    for i in range(2):
        for h in range(2):
            for k in range(2): p(f'ds_read_b128 {vr(R(i,h,k),4)}, v{ra} offset:{RED + 8192*k + 2048*i + 256*h}')
    p.extend(mid)
    for i in range(2):
        for e in range(0, 8, 2): p(f'v_pk_add_f32 {vr(R(i,0,0)+e,2)}, {vr(R(i,0,0)+e,2)}, {vr(R(i,0,1)+e,2)}')
        for e in range(4): p(f'v_cvt_pk_bf16_f32 v{4*i+e}, v{R(i,0,0)+2*e}, v{R(i,0,0)+2*e+1}')
        p(f'buffer_store_dwordx4 {vr(4*i,4)}, v{va}, {srd(S_WS)}, s{sAT} offen offset:{1024*i} sc1', 'ast')

def k_conv(dbg=False):
    p = Prog(); prologue(p)
    par_zero(p); par_loads(p); u_loads(p); tail_setup(p)
    kgen_valu(p); kgen_mfma(p); u_put(p); expand(p); conv(p); conv_out(p)
    if dbg:
        p(f's_barrier\nv_lshl_add_u32 v0, s{sW}, 6, v{vL}\nv_lshlrev_b32 v0, 4, v0\ns_lshl_b32 s{sT0}, s2, 15\ns_add_u32 s{sT0}, s{sT0}, 0x2000000\nv_add_u32 v1, {TL}, v0')
        for i in range(8):
            p(f'ds_read_b128 v[4:7], v1 offset:{4096*i}\nbuffer_store_dwordx4 v[4:7], v0, {srd(S_WS)}, s{sT0} offen\ns_add_u32 s{sT0}, s{sT0}, 4096\ns_nop 1')
    p('s_endpgm')
    return p

vWA = 236
sWD, sWE, sHX, sHE, sR2 = 4, 5, 6, 7, 8
def rot2_setup(p, on=True):
    if not on: p(f's_mov_b32 s{sR2}, 0'); return
    if on == 2:
        p(f's_add_u32 s{sT0}, s{sJ}, s{sDT}\ns_and_b32 s{sT0}, s{sT0}, 1\ns_mul_i32 s{sR2}, s{sT0}, 7'); return
    if on == 4:
        p(f's_add_u32 s{sT0}, s{sJ}, s{sDT}\ns_and_b32 s{sT0}, s{sT0}, 3\ns_mul_i32 s{sT0}, s{sT0}, 7\ns_lshr_b32 s{sR2}, s{sT0}, 1'); return
    p(f'''s_and_b32 s{sT0}, s{sJ}, 3
    s_mul_i32 s{sT0}, s{sT0}, 7
    s_lshr_b32 s{sT0}, s{sT0}, 1
    s_mul_i32 s{sT1}, s{sDT}, 7
    s_lshr_b32 s{sT1}, s{sT1}, 2
    s_add_u32 s{sT0}, s{sT0}, s{sT1}
    s_sub_u32 s{sT1}, s{sT0}, 14
    s_cmp_ge_u32 s{sT0}, 14
    s_cselect_b32 s{sR2}, s{sT1}, s{sT0}''')
def wd_setup(p):
    p(f'''s_lshl_b32 s{sT0}, s{sDT}, 2
    s_add_u32 s{sT0}, s{sT0}, s{sW}
    s_mul_i32 s{sT0}, s{sT0}, 57344
    s_add_u32 s{sT0}, s{sT0}, {WS_WDT}
    s_add_u32 s{sWE}, s{sT0}, 57344
    s_lshl_b32 s{sT1}, s{sR2}, 12
    s_add_u32 s{sWD}, s{sT0}, s{sT1}
    s_and_b32 s{sT1}, s{sW}, 1
    s_lshl_b32 s{sT1}, s{sT1}, 10
    v_lshl_add_u32 v{vWA}, v{vL}, 4, s{sT1}
    v_xor_b32 v{vWA+1}, 1024, v{vWA}''')
WRAP = [0]
def wrap(r, e, step, span, t):
    if not WRAP[0]: return f'\ns_add_u32 s{r}, s{r}, {step}'
    return f'\ns_add_u32 s{r}, s{r}, {step}\ns_sub_u32 s{t}, s{r}, {span}\ns_cmp_ge_u32 s{r}, s{e}\ns_cselect_b32 s{r}, s{t}, s{r}'
def wd_loads():
    o = []
    for s in range(28):
        for al in range(2):
            o.append(f'buffer_load_dwordx4 {ar(8*s+4*al,4)}, v{vWA+al}, {srd(S_WS)}, s{sWD} offen offset:{2048*(s&1)} sc1')
        if s & 1 and s < 27: o[-1] += wrap(sWD, sWE, 4096, 57344, 9)
    return o
NB = 12
vHB, vHA, vGAa, vG, vAT = 64, 160, 164, 246, 184
def acc2(al, be): return 16 * (al + 2 * be)
def h_setup(p):
    t0, t1 = 182, 183
    p(f'''s_mul_i32 s{sT0}, s{sW}, {56*32768}
    s_lshl_b32 s{sT1}, s{sST}, 10
    s_add_u32 s{sT0}, s{sT0}, s{sT1}
    s_add_u32 s{sT0}, s{sT0}, {WS_H}
    s_add_u32 s{sHE}, s{sT0}, {28*65536}
    s_lshl_b32 s{sT1}, s{sR2}, 17
    s_add_u32 s{sHX}, s{sT0}, s{sT1}
    s_lshr_b32 s{sT1}, s{sW}, 1
    s_lshl_b32 s{sT1}, s{sT1}, 9
    v_lshrrev_b32 v{t0}, 5, v{vL}
    v_and_b32 v{t1}, 31, v{vL}
    v_lshl_add_u32 v{t1}, v{t1}, 4, s{sT1}
    v_lshl_add_u32 v{vHA}, v{t0}, 15, v{t1}
    v_xor_b32 v{vHA+1}, 512, v{vHA}''')
def h_touch():
    t0 = 182
    return [f'''s_lshr_b32 s{sT1}, s{sHE}, 0
    s_sub_u32 s{sT1}, s{sT1}, {28*65536}
    s_lshl_b32 s{sT0}, s{sDT}, 7
    v_min_u32 v{t0}, 55, v{vL}
    v_lshl_add_u32 v{t0}, v{t0}, 15, s{sT0}
    buffer_load_dword v{vTD}, v{t0}, {srd(S_WS)}, s{sT1} offen sc1''']
def h_loads(s):
    o = [f'buffer_load_dwordx4 {vr(vHB + 8*(s%NB) + 4*be, 4)}, v{vHA+be}, {srd(S_WS)}, s{sHX} offen sc1' for be in range(2)]
    if s < 27: o[-1] += wrap(sHX, sHE, 65536, 28*65536, 10) if s & 1 else f'\ns_add_u32 s{sHX}, s{sHX}, 65536'
    return o
def a_loads():
    t0, t1 = 182, 183
    return [f'''s_and_b32 s{sT0}, s{sW}, 1
    s_lshl_b32 s{sT1}, s{sDT}, 1
    s_add_u32 s{sT0}, s{sT0}, s{sT1}
    s_lshl_b32 s{sT0}, s{sT0}, 17
    s_lshr_b32 s{sT1}, s{sW}, 1
    s_lshl_b32 s{sT2}, s{sST}, 1
    s_add_u32 s{sT1}, s{sT1}, s{sT2}
    s_lshl_b32 s{sT2}, s{sT1}, 6
    s_add_u32 s{sT0}, s{sT0}, s{sT2}
    s_add_u32 s11, s{sT0}, {WS_AT}
    s_add_u32 s12, s11, 65536''',
    f'''v_lshrrev_b32 v{t0}, 2, v{vL}
    v_and_b32 v{t1}, 3, v{vL}
    v_lshlrev_b32 v{t1}, 4, v{t1}
    v_lshl_add_u32 v{t0}, v{t0}, 12, v{t1}''',
    f'buffer_load_dwordx4 {vr(vAT,4)}, v{t0}, {srd(S_WS)}, s11 offen sc1',
    f'buffer_load_dwordx4 {vr(vAT+4,4)}, v{t0}, {srd(S_WS)}, s12 offen sc1']
vPC, sFC = 247, 16
def a_clear(R):
    o = [f'''s_lshl_b32 s17, s{sPI}, 2
    s_add_u32 s17, s17, s{sW}
    s_lshl_b32 s17, s17, 11
    s_add_u32 s17, s17, {WS_AT}
    v_lshlrev_b32 v248, 4, v{vL}''', '\n'.join(f'v_accvgpr_write_b32 a{R+i}, -1' for i in range(4))]
    return o + [(f'buffer_store_dwordx4 {ar(R,4)}, v248, {srd(S_WS)}, s17 offen offset:{1024*i} sc1', 'clr') for i in range(2)]
def a_clear_flag():
    return [f's_and_b64 exec, s[{sM0}:{sM0+1}], 1\nbuffer_store_dword v{vONE}, off, {srd(S_WS)}, s{sFC} sc1\ns_mov_b64 exec, -1']
def g_load(p):
    t0 = 235
    p(f'''s_lshr_b32 s{sT1}, s{sW}, 1
    s_lshl_b32 s{sT2}, s{sST}, 1
    s_add_u32 s{sT1}, s{sT1}, s{sT2}
    s_lshl_b32 s{sT1}, s{sT1}, 7
    s_add_u32 s{sT1}, s{sT1}, {WS_G}
    v_and_b32 v{t0}, 31, v{vL}
    v_lshlrev_b32 v{t0}, 2, v{t0}
    buffer_load_dword v{vG}, v{t0}, {srd(S_WS)}, s{sT1} offen sc1''')
def a_use():
    t0, t1, t2 = 182, 183, 162
    o = [f'''s_lshl_b32 s{sT0}, s{sW}, 11
    s_add_u32 s{sT0}, s{sT0}, {AS}
    v_lshl_add_u32 v{t0}, v{vL}, 4, s{sT0}''',
    f'''v_lshrrev_b32 v{t1}, 5, v{vL}
    v_bfe_u32 v{t2}, v{vL}, 2, 2
    v_lshl_add_u32 v{t1}, v{t1}, 2, v{t2}''',
    f'''v_bfe_u32 v{t2}, v{vL}, 4, 1
    v_lshl_add_u32 v{t1}, v{t1}, 1, v{t2}
    v_and_b32 v{t2}, 3, v{vL}''',
    f'''v_lshl_add_u32 v{t1}, v{t1}, 2, v{t2}
    v_lshl_add_u32 v{t1}, v{t1}, 3, s{sT0}''',
    f'ds_write_b128 v{t0}, {vr(vAT,4)}', (f'ds_write_b128 v{t0}, {vr(vAT+4,4)} offset:1024', 'aw')]
    for q in range(4): o.append(f'ds_read_b64_tr_b16 {vr(vAT+2*q,2)}, v{t1} offset:{512*q}')
    o.append(f'v_sub_f32 v{vG+1}, 1.0, v{vG}\nv_cvt_pk_bf16_f32 v{vG+1}, v{vG+1}, v{vG+1}\nv_and_b32 v{vG+1}, 0xffff0000, v{vG+1}')
    for i in range(8):
        o.append(f'v_lshlrev_b32 v{vGAa+2*i}, 16, v{vAT+i}\nv_and_b32 v{vGAa+2*i+1}, 0xffff0000, v{vAT+i}')
        o.append(f'v_mul_f32 v{vGAa+2*i}, v{vG}, v{vGAa+2*i}\nv_mul_f32 v{vGAa+2*i+1}, v{vG}, v{vGAa+2*i+1}')
    return o
def gemm2(p, extra=None, pre=0, late=(), mark=lambda: [], omod='', LA=12, fin=(), tl=0, oa=0, mk=lambda n: [], fz=0):
    extra = extra or {}
    PW, PR, ti = 192, 195, 162
    M = lambda s, al, be: f'v_mfma_f32_32x32x16_bf16 {vr(acc2(al,be),16)}, {ar(8*s+4*al,4)}, {vr(vHB+8*(s%NB)+4*be,4)}, {"0" if s == 0 else vr(acc2(al,be),16)}'
    pend = [(s, x) for s in range(pre, 28) for x in h_loads(s)]
    for k in range(1, 4):
        p(f's_xor_b32 s{sT0}, s{sW}, {k}\ns_mul_i32 s{sT0}, s{sT0}, 12288\ns_add_u32 s{sT0}, s{sT0}, {P2 + 4096*(k-1)}\nv_lshl_add_u32 v{PW+k-1}, v{vL}, 4, s{sT0}')
    p(f's_mul_i32 s{sT0}, s{sW}, 12288\ns_add_u32 s{sT0}, s{sT0}, {P2}\nv_lshl_add_u32 v{PR}, v{vL}, 4, s{sT0}')
    t0, t1, va = 182, 183, 196
    oaddr = f'''s_lshr_b32 s{sT1}, s{sW}, 1
    s_lshl_b32 s{sT2}, s{sST}, 1
    s_add_u32 s{sT1}, s{sT1}, s{sT2}
    s_lshl_b32 s{sT1}, s{sT1}, 15
    s_and_b32 s{sT0}, s{sW}, 1
    s_lshl_b32 s{sT2}, s{sDT}, 1
    s_add_u32 s{sT0}, s{sT0}, s{sT2}
    s_lshl_b32 s{sT0}, s{sT0}, 6
    s_add_u32 s{sT0}, s{sT0}, s{sT1}
    v_and_b32 v{t0}, 31, v{vL}
    v_lshrrev_b32 v{t1}, 5, v{vL}
    v_lshl_add_u32 v{t1}, v{t1}, 4, s{sT0}
    v_lshl_add_u32 v{va}, v{t0}, 10, v{t1}'''
    if oa: p(oaddr)
    for s in range(28 - tl if tl else 24):
        mf = [M(s, 0, 0), M(s, 1, 0), M(s, 0, 1), M(s, 1, 1)]
        ex = extra.get(s, [])
        for m in range(4):
            p(mf[m]); p.extend(ex[len(ex) * m // 4: len(ex) * (m + 1) // 4])
            la = min(LA[1], LA[0] + (LA[1] - LA[0]) * s // LA[2]) if isinstance(LA, list) else LA if s < 23 else 5
            if pend and (m & 1 or pend[0][0] < s + la - 1):
                t = pend[0][0]; be = len(pend) & 1
                if t < s + la or (t == s + la and m >= 1 + 2 * be): p.extend([pend.pop(0)[1]])
    assert not pend
    W = lambda k: [f'ds_write_b128 v{PW+k-1}, {vr(acc2(k&1,k>>1)+4*q,4)} offset:{1024*q}' for q in range(4)]
    late = list(late); nl = len(late)
    if tl:
        seq = [(s, k) for s in range(28 - tl, 28) for k in (1, 3, 2)] + [(s, 0) for s in range(28 - tl, 28)]
        n3 = 3 * tl; ws = W(1) + W(3) + W(2)
        for i, (s, k) in enumerate(seq):
            p(M(s, k & 1, k >> 1))
            if n3 - 3 <= i < n3:
                for _ in range((2, 2, 1)[i - n3 + 3]):
                    if late: p.extend([late.pop(0)])
            elif i < n3 - 3:
                for _ in range(-(-(nl - 5) // (n3 - 3))):
                    if len(late) > 5: p.extend([late.pop(0)])
            if i >= n3 - 1:
                j = i - (n3 - 1)
                n = 12 if i == len(seq) - 1 else min(4 * (j + 1), 12)
                while 12 - len(ws) < n: p(ws.pop(0))
        p.extend(late)
    else:
        prev = []
        for k in (3, 1, 2, 0):
            al, be = k & 1, k >> 1
            mf = [M(s, al, be) for s in range(24, 28)]
            for m in range(4):
                p(mf[m])
                if m >= 1: p.extend(prev[(m - 1) * 2: m * 2])
                for _ in range(-(-nl // 14)):
                    if late: p.extend([late.pop(0)])
            prev = W(k) if k else []
    p.extend(mark())
    if not oa: p(oaddr)
    p('s_waitcnt lgkmcnt(0)'); p.extend(mk('b1')); p('s_barrier'); p.extend(mk('b2'))
    Q = lambda k, q: 64 + 16 * k + 4 * q
    if fz:
        assert not fin
        sel = 'op_sel:[0,1,0] op_sel_hi:[1,1,1]'
        R = lambda q: [(f'ds_read_b128 {vr(Q(k,q),4)}, v{PR} offset:{4096*k + 1024*q}', f'xq{q}') for k in range(3)]
        own = [f'v_pk_fma_f32 {vr(r,2)}, {vr(r,2)}, {vr(vG,2)}, {vr(vGAa+r,2)} {sel}' for r in range(0, 16, 2)]
        def C(q):
            o = [f'v_pk_fma_f32 {vr(4*q+e,2)}, {vr(Q(k,q)+e,2)}, {vr(vG,2)}, {vr(4*q+e,2)} {sel}' for k in range(3) for e in (0, 2)]
            o += [f'v_cvt_pk_bf16_f32 v{16 + 2*q + e//2}, v{4*q+e}, v{4*q+e+1}' for e in (0, 2)] + mk(f'r{q}')
            if q & 1:
                D = 16 + 2 * (q - 1)
                o += [f'v_permlane32_swap_b32 v{D}, v{D+2}', f'v_permlane32_swap_b32 v{D+1}, v{D+3}',
                      f'buffer_store_dwordx4 {vr(D,4)}, v{va}, {srd(S_OUT)}, 0 offen offset:{16*(q-1)} {omod}']
            return o
        rd = R(0) + R(1) + R(2) + R(3); n0, n1, fw = fz; n2 = 12 - n0 - n1; Wq = lambda q: [Ins(f'WAITLG xq{q}')] if fw else []
        p.extend(rd[:n0])
        for i in range(n1):
            p.extend(own[8 * i // n1: 8 * (i + 1) // n1] + [rd[n0 + i]])
        if not n1: p.extend(own)
        c = C(0); p.extend(Wq(0))
        for i in range(n2):
            p.extend(c[8 * i // n2: 8 * (i + 1) // n2] + [rd[n0 + n1 + i]])
        p.extend(c[8 if n2 else 0:] + Wq(1) + C(1) + Wq(fw) + C(2) + Wq(3) + C(3))
        return
    for q in range(4):
        for k in range(3): p(f'ds_read_b128 {vr(Q(k,q),4)}, v{PR} offset:{4096*k + 1024*q}')
    p.extend(fin)
    for q in range(4):
        for e in (0, 2):
            r = 4 * q + e
            p(f'''v_pk_add_f32 {vr(r,2)}, {vr(r,2)}, {vr(Q(0,q)+e,2)}
            v_pk_add_f32 {vr(Q(1,q)+e,2)}, {vr(Q(1,q)+e,2)}, {vr(Q(2,q)+e,2)}''')
        for e in (0, 2):
            r = 4 * q + e
            p(f'v_pk_add_f32 {vr(r,2)}, {vr(r,2)}, {vr(Q(1,q)+e,2)}')
        for e in (0, 2):
            r = 4 * q + e
            p(f'v_pk_fma_f32 {vr(r,2)}, {vr(r,2)}, {vr(vG,2)}, {vr(vGAa+r,2)} op_sel:[0,1,0] op_sel_hi:[1,1,1]')
        for e in (0, 2):
            r = 4 * q + e
            p(f'v_cvt_pk_bf16_f32 v{16 + 2*q + e//2}, v{r}, v{r+1}')
        p.extend(mk(f'r{q}'))
        if q & 1:
            R = 16 + 2 * (q - 1)
            p(f'v_permlane32_swap_b32 v{R}, v{R+2}\nv_permlane32_swap_b32 v{R+1}, v{R+3}')
            p(f'buffer_store_dwordx4 {vr(R,4)}, v{va}, {srd(S_OUT)}, 0 offen offset:{16*(q-1)} {omod}')

def spread(lst, a, b):
    n = b - a
    return {a + i: lst[len(lst) * i // n: len(lst) * (i + 1) // n] for i in range(n)}
def k_g2():
    p = Prog(); prologue(p)
    wd_setup(p); p.extend(wd_loads()); g_load(p); h_setup(p)
    ex = spread(a_loads(), 2, 4); ex.update(spread(a_use(), 12, 22))
    gemm2(p, ex)
    p('s_endpgm')
    return p

WS_STAMP = 0x3000000
class Fused:
    def __init__(s, stamps=False):
        s.p = Prog(); s.nap = 0; s.slow = []; s.stamps = stamps; s.ns = 0; s.want = stamps or []
    def stamp(s, name=None):
        if not s.stamps or (name is not None and name not in s.want): return []
        o = []
        if s.ns: o.append(f's_mov_b32 s{87 + s.ns}, s100')
        o.append('s_memtime s[100:101]'); s.ns += 1
        return o
    def stamp_out(s):
        if not s.stamps: return
        p = s.p
        p(f's_mov_b32 s{87 + s.ns}, s100\ns_lshl_b32 s{sT0}, s2, 2\ns_add_u32 s{sT0}, s{sT0}, s{sW}\ns_lshl_b32 s{sT0}, s{sT0}, 6\ns_add_u32 s{sT0}, s{sT0}, {WS_STAMP}\ns_mov_b64 exec, 1')
        p(f's_memrealtime s[100:101]\nv_mov_b32 v1, s34\nbuffer_store_dword v1, off, {srd(S_WS)}, s{sT0} offset:48\nv_mov_b32 v1, s100\nbuffer_store_dword v1, off, {srd(S_WS)}, s{sT0} offset:52')
        if 'dbg' in s.want:
            L = p.label('nodbg')
            p(f's_not_b32 s{sT1}, s34\nv_mov_b32 v1, s{sT1}\nv_mov_b32 v2, s100\nbuffer_atomic_umax v1, off, {srd(S_DBG)}, 0 offset:4\nbuffer_atomic_umax v2, off, {srd(S_DBG)}, 0 offset:8')
            p(f'v_mov_b32 v1, s34\nbuffer_atomic_umax v1, off, {srd(S_DBG)}, 0 offset:12')
            p(f's_cmp_lg_u32 s2, 77\ns_cbranch_scc1 {L}\ns_cmp_lg_u32 s{sW}, 1\ns_cbranch_scc1 {L}')
            for i in range(1, s.ns): p(f's_sub_u32 s{sT1}, s{88+i}, s88\nv_mov_b32 v1, s{sT1}\nbuffer_store_dword v1, off, {srd(S_DBG)}, 0 offset:{12+4*i}', 'untracked')
            p(f'{L}:')
            return
        for i in range(s.ns): p(f'v_mov_b32 v1, s{88+i}\nbuffer_store_dword v1, off, {srd(S_WS)}, s{sT0} offset:{4*i}')
    def poll_issue(s, dst, va, S, n=1, m=False):
        x = f'buffer_load_dword{"x2" if n == 2 else ""} {vr(dst,n)}, v{va}, {srd(S)}, 0 offen sc1'
        return [f's_mov_b64 exec, s[{sM0}:{sM0+1}]\n{x}\ns_mov_b64 exec, -1' if m else x]
    def poll_check(s, dst, va, S, n=1, m=False):
        Ls, Lr, Ll = s.p.label('slow'), s.p.label('ret'), s.p.label('spin')
        chk = (f'v_and_b32 v{dst}, v{dst}, v{dst+1}\n' if n == 2 else '') + f'v_cmp_ne_u32 vcc, 1, v{dst}\n'
        s.slow.append(f'''{Ls}:
        s_mov_b32 s{sSP}, 0x4000
        {Ll}:
        {f's_sleep {s.nap}' if s.nap and not s.nap1 else ''}
        {s.poll_issue(dst, va, S, n)[0]}
        s_waitcnt vmcnt(0) lgkmcnt(0)
        {chk}s_cbranch_vccz {Lr}
        {f's_sleep {s.nap}' if s.nap and s.nap1 else ''}
        s_sub_u32 s{sSP}, s{sSP}, 1
        s_cmp_lg_u32 s{sSP}, 0
        s_cbranch_scc1 {Ll}
        s_branch {Lr}''')
        if m: chk = f's_mov_b64 exec, s[{sM0}:{sM0+1}]\n{chk}s_mov_b64 exec, -1\n'
        return [chk + f's_cbranch_vccnz {Ls}\n{Lr}:']
    def a_check(s):
        Ls, Lr, Ll = s.p.label('slow'), s.p.label('ret'), s.p.label('spin'); t = 183
        chk = ''.join(f'v_max3_u32 v{t}, v{vAT+2*i}, v{vAT+2*i+1}, v{t if i else vAT+7}\n' for i in range(3)) + f'v_max_u32 v{t}, v{t}, v{vAT+6}\nv_cmp_eq_u32 vcc, -1, v{t}\n'
        s.slow.append(f'''{Ls}:
        s_mov_b32 s{sSP}, 0x4000
        s_mov_b32 s18, 0
        {Ll}:
        {f's_sleep {s.nap}' if s.nap else ''}
        {a_loads()[2]}
        {a_loads()[3]}
        {s.poll_issue(vF, vPA, S_WS)[0]}
        s_waitcnt vmcnt(0) lgkmcnt(0)
        {chk}s_cbranch_vccz {Lr}
        s_cmp_lg_u32 s18, 0
        s_cbranch_scc1 {Lr}
        v_cmp_ne_u32 vcc, 1, v{vF}
        s_nop 4
        s_cmp_eq_u64 vcc, 0
        s_cselect_b32 s18, 1, 0
        s_sub_u32 s{sSP}, s{sSP}, 1
        s_cmp_lg_u32 s{sSP}, 0
        s_cbranch_scc1 {Ll}
        s_branch {Lr}''')
        return [chk + f's_cbranch_vccnz {Ls}\n{Lr}:']
    def flag(s, sreg, one):
        return [f's_mov_b64 exec, 1\nbuffer_store_dword v{one}, off, {srd(S_WS)}, s{sreg} sc1\ns_mov_b64 exec, -1']

sFH, sFA = 78, 79
sM0 = 14
vFW = 253
vONE, vPGO, vPWD, vPUT, vPH, vPA, vF = 238, 239, 240, 241, 242, 243, 244
def flag_setup(p, spare):
    t0 = 192
    p(f'''s_cmp_eq_u32 s{sW}, 0
    s_cselect_b64 s[{sM0}:{sM0+1}], -1, 0
    v_mov_b32 v{vONE}, 1
    v_mov_b32 v{vPGO}, 0
    s_lshl_b32 s{sT0}, s{sW}, 3
    s_add_u32 s{sT0}, s{sT0}, s{sDT}
    s_add_u32 s{sT0}, s{sT0}, 192
    s_lshl_b32 s{sT0}, s{sT0}, 7
    v_and_b32 v{t0}, 3, v{vL}
    v_lshl_add_u32 v{vPWD}, v{t0}, 2, s{sT0}
    v_lshlrev_b32 v{t0}, 3, v{vL}
    v_add_u32 v{vPUT}, {224*128}, v{t0}
    s_lshl_b32 s{sT0}, s{sST}, 2
    s_add_u32 s{sT0}, s{sT0}, s{sW}
    s_lshl_b32 s{sT0}, s{sT0}, 7
    v_min_u32 v{t0}, 6, v{vL}
    v_lshl_add_u32 v{vPH}, v{t0}, 2, s{sT0}
    s_add_u32 s{sT0}, s{sST}, 192
    s_lshl_b32 s{sT0}, s{sT0}, 7
    s_add_u32 s{sT0}, s{sT0}, 16
    v_and_b32 v{t0}, 3, v{vL}
    v_lshl_add_u32 v{t0}, v{t0}, 2, s{sT0}
    v_cmp_gt_u32 vcc, 32, v{vL}
    v_cndmask_b32 v{vPH}, v{t0}, v{vPH}, vcc
    s_lshr_b32 s{sT0}, s{sST}, 4
    s_lshl_b32 s{sT0}, s{sT0}, 5
    s_lshl_b32 s{sT1}, s{sDT}, 2
    s_add_u32 s{sT0}, s{sT0}, s{sT1}
    s_and_b32 s{sT1}, s{sW}, 1
    s_lshl_b32 s{sT1}, s{sT1}, 1
    s_add_u32 s{sT0}, s{sT0}, s{sT1}
    s_add_u32 s{sT0}, s{sT0}, 128
    s_lshl_b32 s{sT0}, s{sT0}, 7
    v_and_b32 v{t0}, 15, v{vL}
    v_lshl_add_u32 v{vPA}, v{t0}, 2, s{sT0}
    v_bfe_u32 v{t0}, v{vL}, 4, 1
    v_lshl_add_u32 v{vPA}, v{t0}, 7, v{vPA}
    s_lshl_b32 s{sT0}, s{sPI}, 1
    s_lshr_b32 s{sT1}, s{sW}, 1
    s_add_u32 s{sT0}, s{sT0}, s{sT1}
    s_and_b32 s{sT1}, s{sT0}, 15
    s_lshr_b32 s{sT0}, s{sT0}, 4
    s_and_b32 s{sT2}, s{sW}, 1
    s_lshl_b32 s{sT2}, s{sT2}, 5
    s_add_u32 s{sT0}, s{sT0}, s{sT2}
    s_add_u32 s{sT0}, s{sT0}, 128
    s_lshl_b32 s{sT0}, s{sT0}, 5
    s_add_u32 s{sT0}, s{sT0}, s{sT1}
    s_lshl_b32 s{sFA}, s{sT0}, 2''')
    if spare:
        p(f's_lshl_b32 s{sT0}, s{sSI}, 2\ns_add_u32 s{sT0}, s{sT0}, s{sW}\ns_lshl_b32 s{sT0}, s{sT0}, 7\ns_add_u32 s{sFH}, s{sT0}, 0x8000')
    else:
        p(f'''s_lshl_b32 s{sT0}, s{sMI}, 2
        s_add_u32 s{sT0}, s{sT0}, s{sW}
        s_lshl_b32 s{sT0}, s{sT0}, 2
        s_and_b32 s{sT1}, s{sXCD}, 3
        s_add_u32 s{sT0}, s{sT0}, s{sT1}
        s_lshl_b32 s{sT0}, s{sT0}, 5
        s_add_u32 s{sT0}, s{sT0}, s{sDT}
        s_lshl_b32 s{sFH}, s{sT0}, 2''')
def as_list(fn, *a):
    q = Prog(); fn(q, *a); return q.ins

def groups(ins, last):
    o = [[]]
    for I in ins:
        o[-1].append(I)
        if last(I): o.append([])
    return [g for g in o if g]
def flat(l): return [y for x in l for y in (x if isinstance(x, list) else [x])]
def k_fused(stamps=False, cfg=None):
    cfg = dict(tl=0, oa=1, fz=0, rot='t', ct=250, omod='', na=99, la=6, xp=[[[6, 0], [6, 1]], [[6, 2], [6, 3]]], fast=1, hs='sc1', wsb=0, nt='', tch=[0.5, 10, 11], tw=1.5, n0=[8, 20, 34], nap=4, up=2, nw=[8, 10, 12, 6, 0], r2=0, ht=0, hp=[0, 2], xn=6, hflag=55, hpoll=120, sp=1, w3=0, ds=[1, 0, 4, 1], nap1=1, pe=1, ua=0, kh=1, pk1=1, w7=1, e0=4, sn=0, cs=[[1, 2], [2, 0], [2, 1], [2, 2], [2, 3], [3, 0]], av=0, ac=[[1, 2], 3], cpoll=90, ald=18, aflag=3, apoll=17, achk=21, f0=[0.0, 0.3, 0.75], sx=99, pg=[0, 2, 5], cw=[60, 138]) | (cfg or {})
    for k in MOD: MOD[k] = 'nt' if k in cfg['nt'].split(',') else ''
    MOD['hs'] = cfg['hs']; WRAP[0] = cfg['r2']; UA[0] = cfg['ua']; DS[:] = cfg['ds']
    global WS_WDT, WS_UT, WS_G, WS_H, WS_AT
    WS_WDT, WS_UT, WS_G, WS_H, WS_AT = [cfg['wsb'] + x for x in (0x100000, 0x300000, 0x500000, 0x600000, 0xD00000)]
    F = Fused(stamps); p = F.p
    if stamps: p('s_memrealtime s[34:35]')
    p.extend(F.stamp()); prologue(p, cfg['rot'], cfg['ct'], True)
    Lsp, Ltail = p.label('spare'), p.label('tail')
    p(f's_lshl_b32 s{sPI}, s{sXCD}, 5\ns_add_u32 s{sPI}, s{sPI}, s{sJ}')
    p(f's_cmp_ge_u32 s{sJ}, 28\ns_cbranch_scc1 {Lsp}')
    tch = cfg['tch']; F.nap = cfg['nap']; F.nap1 = cfg['nap1']
    if cfg['pe']: par_loads(p); g1_setup(p); srd_bases(p)
    else: g1_setup(p); par_loads(p); srd_bases(p)
    p.extend(F.stamp('pro'))
    T = []
    dm = g1_dma(0) + g1_dma(1); n0, n1, n2 = cfg['n0']; f0, f1, f2 = cfg['f0']
    p.extend(dm[:n0])
    p.extend(F.stamp('dma'))
    prologue2(p, False)
    g1_setup2(p); tail_setup(p); flag_setup(p, False); rot2_setup(p, cfg['r2'])
    if cfg['kh']: kgen_mfma(p, (), 0)
    p.extend(F.stamp('setup'))
    if cfg.get('dbg0'):
        p(f'v_mov_b32 v{vPAR+5}, v{vPAR+5}'); p.extend(F.stamp('x0'))
        p.waitvm('dma0'); p.extend(F.stamp('x1'))
        if n0 > 17: p.waitvm('dma1'); p.extend(F.stamp('x2'))
    if stamps and 'par' in stamps: p(f'v_mov_b32 v{vPAR+5}, v{vPAR+5}'); p.extend(F.stamp('par'))
    kgen_valu(p, [(f0, f1, dm[n0:n1]), (f2, 0.99, dm[n1:n2])]); p.extend(F.stamp('kv'))
    kgen_mfma(p, dm[n2:], 1 if cfg['kh'] else 2)
    if not cfg['kh']: p('s_waitcnt lgkmcnt(0)')
    p.extend(F.stamp('km'))
    if stamps: p.waitvm('dma0'); p.extend(F.stamp('d0'))
    wl = wd_loads(); nw = cfg['nw']; pg, pw, pu = cfg['pg']
    post = {}; pre = {}
    for t in range(8):
        pre[t] = []
        if t == pg + 1: pre[t] += F.poll_check(vF, vPGO, S_DBG, 1, True)
        if t == pu + 1: pre[t] += F.poll_check(vF, vPUT, S_WS, 2, True)
        post[t] = F.stamp(f's{t}') if t < 7 else []
        if t == pg: post[t] += F.poll_issue(vF, vPGO, S_DBG, 1, True)
        if t == pw + 1 and not cfg['w3']: post[t] += F.poll_check(vFW, vPWD, S_WS) + F.stamp('wf') + as_list(wd_setup)
        if t == pu + 1: post[t] += as_list(u_loads)
        if t == pw: post[t] += F.poll_issue(vFW, vPWD, S_WS)
        if t == pu: post[t] += F.poll_issue(vF, vPUT, S_WS, 2, True)
    extra = {}
    def put(keys, lst):
        for i, k in enumerate(keys): extra.setdefault(tuple(k), []).extend(lst[len(lst) * i // len(keys): len(lst) * (i + 1) // len(keys)])
    for a, x in T:
        if a is not None and a >= 10: put([(a - 10, 2)], [G(x)])
    sn = cfg['sn']; assert not sn
    put(cfg['cs'], as_list(conv_setup) + as_list(conv_out_setup))
    if sn: put([cfg['ac'][0]], a_clear(0)); pre[cfg['ac'][1]] += [Ins('WAITVM clr')]; post[cfg['ac'][1]] += a_clear_flag()
    rd, wr = expand()
    xp = cfg['xp']; put([(6, 0)], zero_fill()); put([tuple(k) for k in xp[0]], rd); put([tuple(k) for k in xp[1]], wr); put([(7, cfg['up'])], u_put() if pu < 6 else [])
    k = 0
    SPLIT[0] = sp = cfg['sp']
    if cfg['w3']:
        put([(3, 1)], [[]] * 3 + [G(F.poll_check(vFW, vPWD, S_WS) + as_list(wd_setup))]); k = cfg['w3']; put([('w', 3, 2), ('w', 3, 3)], wl[:k])
    for t, n in zip((4, 5, 6, 7), nw): put([('w', t, s) for s in range(2 if sp and t == 7 and cfg['w7'] else 4)], wl[k:k + n]); k += n
    if sp: put([(7, 1)], epi_setup()); put([(7, 2), (7, 3)], [[]] * cfg['e0'] + skew([epi(0, q, 0) for q in range(4)]))
    g1_main(p, extra, post, 2, pre, cfg['fast']); p.extend(F.stamp('g1'))
    r0 = conv_reads(0)[:12]
    hook = {3: r0[:6] + r0[10:], 4: [r0[6]], 5: [r0[7]], 6: [r0[8]], 7: [r0[9]]} if pu < 6 else None
    if sp:
        p.extend(r0[:6] + r0[10:])
        p.extend(skew([epi(1, q, cfg['pk1'])[:-3] + [r0[6 + q]] + wl[k + nw[4] * q // 4: k + nw[4] * (q + 1) // 4] + epi(1, q, 1)[-3:] for q in range(4)]))
    else: g1_epilogue(p, wl[k:k + nw[4]], hook)
    k += nw[4]
    wrest = wl[k:]
    if pu >= 6: p.extend(u_put()); conv_setup(p); p('s_waitcnt lgkmcnt(0)\ns_barrier'); p.extend(r0)
    p(f'{Ltail}:'); p.extend(F.stamp())
    ex = {d: [[] for _ in range(34)] for d in range(4)}
    n0, n1 = cfg['cw']
    for i, x in enumerate(wrest):
        m = n0 + (n1 - n0) * i // len(wrest); ex[m // 34][m % 34].append(x)
    m = cfg['hflag']; ex[m // 34][m % 34][:0] = F.stamp('h0') + [Ins('WAITVM hst')] + F.stamp('h1') + F.flag(sFH, vONE)
    m = cfg['hpoll']; ex[m // 34][m % 34] += F.poll_issue(vF, vPH, S_WS)
    if sn: m = cfg['cpoll']; ex[m // 34][m % 34] += F.poll_issue(vFW, vPC, S_WS, 1, True)
    st = groups(as_list(h_setup), lambda I: I.kind == 'valu')
    for i, x in enumerate(st): ex[3][4 + 2 * i].append(G(x))
    conv(p, ex, conv_done); p.extend(F.stamp('cv'))
    hp0, hp1 = cfg['hp']
    chk = F.poll_check(vF, vPH, S_WS) + F.stamp('hf')
    if hp0: p.extend(chk); chk = []
    if sn: p.extend(F.poll_check(vFW, vPC, S_WS, 1, True))
    conv_out(p, pre=[x for s in range(hp0) for x in h_loads(s)], mid=chk + (h_touch() if cfg['ht'] == 1 else []) + [x for s in range(hp0, hp1) for x in h_loads(s)] + (h_touch() if cfg['ht'] == 2 else []))
    g_load(p)
    p.extend(F.stamp('co'))
    ex = {}
    for t in range(28 - cfg['tl'] if cfg['tl'] else 24):
        ex[t] = F.stamp(f'q{t}')
        if t == cfg['aflag']: ex[t] = ex[t] + [Ins('WAITVM ast')] + F.flag(sFA, vONE)
        if sn:
            if t == cfg['ald']: ex[t] = ex[t] + a_loads()
            if t == cfg['achk']: ex[t] = ex[t] + F.a_check() + F.stamp('af')
            continue
        if t == cfg['apoll']: ex[t] = ex[t] + F.poll_issue(vF, vPA, S_WS)
        if t == cfg['achk']: ex[t] = ex[t] + F.poll_check(vF, vPA, S_WS) + F.stamp('af') + a_loads()
    au = a_use(); na = cfg['na']
    if sn and cfg['achk'] >= 24: au = F.a_check() + F.stamp('af') + au
    if cfg['av']:
        a0, a1 = cfg['av']; lt = cfg.get('lt', 5); nu = len(au) - lt
        for t in range(a0, a1): ex[t] = ex[t] + au[nu * (t - a0) // (a1 - a0): nu * (t - a0 + 1) // (a1 - a0)]
        au = au[nu:]
    gemm2(p, ex, pre=hp1, late=au[:na], fin=au[na:], mark=lambda: F.stamp('g2'), omod=cfg['omod'], LA=cfg['la'], tl=cfg['tl'], oa=cfg['oa'], mk=F.stamp, fz=cfg['fz'])
    p.extend(F.stamp())
    if cfg.get('amp'):
        a, b, mult = cfg['amp']
        p(f'''s_mov_b32 s{87 + F.ns}, s100
        s_sub_u32 s{sT0}, s{88+b}, s{88+a}
        s_mul_i32 s{sT0}, s{sT0}, {mult}
        s_mov_b32 s{sT2}, 0x40000
        L_amp:
        s_memtime s[34:35]
        s_waitcnt lgkmcnt(0)
        s_sub_u32 s{sT1}, s34, s100
        s_sub_u32 s{sT2}, s{sT2}, 1
        s_cmp_eq_u32 s{sT2}, 0
        s_cbranch_scc1 L_ampx
        s_cmp_lt_u32 s{sT1}, s{sT0}
        s_cbranch_scc1 L_amp
        L_ampx:''')
    else: F.stamp_out()
    p('s_endpgm')
    p(f'{Lsp}:')
    def sst(i):
        if stamps and not cfg.get('amp'): p(f's_memtime s[100:101]\ns_waitcnt lgkmcnt(0)\ns_mov_b32 s{88+i}, s100')
        elif stamps: p(f's_mov_b32 s{88+i}, s88')
    if stamps: p('s_mov_b32 s88, s100')
    prologue2(p, True)
    Lk = p.label('noclr'); Lg = p.label('nogo')
    p(f'''s_cmp_lg_u32 s{sSI}, 0
    s_cbranch_scc1 {Lk}
    v_mov_b32 v4, 0
    v_mov_b32 v5, 0
    v_mov_b32 v6, 0
    v_mov_b32 v7, 0
    v_lshlrev_b32 v1, 4, v0''')
    for i in range(8): p(f's_mov_b32 s{sT0}, {4096*i}\nbuffer_store_dwordx4 v[4:7], v1, {srd(S_WS)}, s{sT0} offen sc1', 'untracked')
    p(f'{Lk}:')
    def go(nl):
        p(f's_cmp_lg_u32 s{sSI}, 0\ns_cbranch_scc1 {Lg}')
        p(f's_waitcnt vmcnt({nl})', 'untracked'); p.ins[-1].kind = 'misc'
        p(f's_barrier\ns_cmp_lg_u32 s{sW}, 0\ns_cbranch_scc1 {Lg}\ns_mov_b64 exec, 1')
        p(f'buffer_store_dword v{vONE}, off, {srd(S_DBG)}, 0 sc1', 'untracked')
        p(f's_mov_b64 exec, -1\n{Lg}:')
    def faddr():
        p(f'''s_add_u32 s{sT0}, s{sSI}, 192
        s_lshl_b32 s{sT0}, s{sT0}, 5
        s_add_u32 s{sT0}, s{sT0}, s{sW}
        s_lshl_b32 s11, s{sT0}, 2
        s_add_u32 s{sT1}, s{sW}, 224
        s_lshl_b32 s{sT1}, s{sT1}, 5
        s_add_u32 s{sT1}, s{sT1}, s{sSI}
        s_lshl_b32 s12, s{sT1}, 2''')
    xi = [G(x) for x in groups(as_list(spare_issue_x), lambda I: I.kind == 'vm')]
    spare_issue_w(p); par_loads(p); spare_issue_g(p); flag_setup(p, True); rot2_setup(p, cfg['r2']); faddr()
    go(21)
    sx = cfg['sx']
    spare_wd(p, [[]] * sx + xi if sx < 99 else [])
    sst(1)
    p.extend(F.poll_issue(vF, vPGO, S_DBG))
    if sx >= 99: p.extend(xi[:cfg['xn']])
    tail_setup(p)
    p.extend(F.poll_check(vF, vPGO, S_DBG))
    p.waitvm('wst'); p.extend(F.flag(11, vONE)); sst(2)
    if sx >= 99: p.extend(xi[cfg['xn']:])
    q = Prog()
    if stamps: q(f's_memtime s[100:101]\ns_waitcnt lgkmcnt(0)\ns_mov_b32 s91, s100')
    if sn: p.extend(a_clear(0))
    spare_ut(p, q.ins)
    p.extend(F.poll_issue(vFW, vPWD, S_WS)); wd_setup(p)
    gl = as_list(spare_g); p.extend(gl[:-1])
    p.waitvm('ust'); p.extend(F.flag(12, vONE)); sst(4)
    p.extend(gl[-1:])
    p.extend(F.poll_check(vFW, vPWD, S_WS))
    p('s_barrier')
    if sn: p.extend(a_clear_flag())
    kgen_valu(p, [(0.05, 0.9, wl[:k // 2]), (0.95, 0.95, [G([Ins('WAITVM gst'), f's_add_u32 s11, s11, 16'] + F.flag(11, vONE))]), (0.99, 0.99, F.poll_issue(vF, vPUT, S_WS, 2, True))]); kgen_mfma(p)
    p.extend(F.poll_check(vF, vPUT, S_WS, 2, True))
    p('s_waitcnt lgkmcnt(0)\ns_barrier')
    u_loads(p)
    p.extend(zero_fill()); p.extend(rd); p.extend(wl[k // 2:k // 2 + 4]); p.extend(wr); p.extend(wl[k // 2 + 4:k])
    p.extend(u_put())
    sst(5)
    if stamps: p('s_memtime s[100:101]\ns_waitcnt lgkmcnt(0)')
    conv_setup(p); conv_out_setup(p); p('FORGETVM\ns_waitcnt lgkmcnt(0)\ns_barrier'); p.extend(r0)
    p(f's_waitcnt lgkmcnt(0)\ns_branch {Ltail}')
    for x in F.slow: p(x)
    p('L_end:')
    return p
```

```python
import re
import sys
from core import *
KN = 'gated_mix__ssm_conv_s4d__glu_gated_reglu__prompt'
WS_WDT, WS_UT, WS_G, WS_H, WS_AT = 0x100000, 0x300000, 0x500000, 0x600000, 0xD00000
S_X, S_WG, S_WU, S_WS, S_OUT, S_P, S_DBG = 36, 40, 44, 48, 52, 56, 60
sXCD, sJ, sW, sMI, sFI, sST, sDT, sROT, sKX, sKW, sXM, sWM, sSI, sPI = range(64, 78)
sT0, sT1, sT2, sT3, sT4, sT5 = range(80, 86)
sSP = 86
def srd(i): return f's[{i}:{i+3}]'
def vr(a, n=1): return f'v{a}' if n == 1 else f'v[{a}:{a+n-1}]'
def ar(a, n=1): return f'a{a}' if n == 1 else f'a[{a}:{a+n-1}]'
vL = 255
class G(list): pass

ROT = dict(
  a=f's_lshl_b32 s{sT2}, s{sT0}, 1\ns_add_u32 s{sROT}, s{sT2}, s{sDT}',
  z=f's_mov_b32 s{sROT}, 0',
  t=f's_add_u32 s{sROT}, s{sT0}, s{sDT}\ns_mul_i32 s{sT2}, s{sROT}, 86\ns_lshr_b32 s{sT2}, s{sT2}, 8\ns_mul_i32 s{sT2}, s{sT2}, 3\ns_sub_u32 s{sROT}, s{sROT}, s{sT2}\ns_mul_i32 s{sROT}, s{sROT}, 3',
  g=f's_add_u32 s{sROT}, s{sT0}, s{sDT}\ns_lshl_b32 s{sROT}, s{sROT}, 2',
  h=f's_add_u32 s{sROT}, s{sT0}, s{sDT}\ns_lshl_b32 s{sROT}, s{sROT}, 1',
  x=f's_mov_b32 s{sROT}, s{sXCD}',
  b=f's_add_u32 s{sROT}, s{sT0}, s{sDT}',
  c=f's_lshl_b32 s{sT2}, s{sT0}, 1\ns_add_u32 s{sROT}, s{sT2}, s{sDT}\ns_lshr_b32 s{sT2}, s{sXCD}, 2\ns_add_u32 s{sROT}, s{sROT}, s{sT2}',
  d=f's_add_u32 s{sROT}, s{sT0}, s{sDT}\ns_and_b32 s{sROT}, s{sROT}, 1\ns_add_u32 s{sROT}, s{sROT}, s{sXCD}',
  e=f's_add_u32 s{sROT}, s{sT0}, s{sDT}\ns_and_b32 s{sROT}, s{sROT}, 3\ns_add_u32 s{sROT}, s{sROT}, s{sXCD}',
  f=f's_add_u32 s{sROT}, s{sT0}, s{sDT}\ns_lshr_b32 s{sT2}, s{sXCD}, 2\ns_lshl_b32 s{sT2}, s{sT2}, 2\ns_add_u32 s{sROT}, s{sROT}, s{sT2}',
)
def mk_srd(p, d, ptr, size):
    p(f's_mov_b32 s{d}, s{ptr}\ns_mov_b32 s{d+1}, s{ptr+1}\ns_mov_b32 s{d+2}, {hex(size)}\ns_mov_b32 s{d+3}, 0x00020000')

SJ = [0]
def prologue(p, rot='z', ctouch=0, defer=False):
    L = p.label('go')
    p(f'''s_cmp_lt_u32 s2, 256
    s_cbranch_scc1 {L}
    s_endpgm
    {L}:
    s_load_dwordx16 s[4:19], s[0:1], 0
    s_load_dwordx8 s[20:27], s[0:1], 64
    s_load_dwordx4 s[28:31], s[0:1], 96
    s_load_dwordx2 s[32:33], s[0:1], 112
    s_lshr_b32 s{sJ}, s2, 3''')
    if SJ[0]: p(f's_add_u32 s{sJ}, s{sJ}, {SJ[0]}\ns_and_b32 s{sJ}, s{sJ}, 31')
    if ctouch:
        p(f'''s_getpc_b64 s[{sT2}:{sT3}]
        L_pc:
        v_and_b32 v2, 7, v0
        v_lshl_add_u32 v2, s{sJ}, 3, v2
        v_min_u32 v2, (L_end-L_pc-4)/128, v2
        v_lshlrev_b32 v2, 7, v2
        v_mov_b32 v3, s{sT3}
        v_add_co_u32 v2, vcc, s{sT2}, v2
        v_addc_co_u32 v3, vcc, 0, v3, vcc''')
        p('global_load_dword v254, v[2:3], off', 'untracked')
    p(f'''v_lshrrev_b32 v1, 6, v0
    v_and_b32 v{vL}, 63, v0
    v_readfirstlane_b32 s{sW}, v1
    s_and_b32 s{sXCD}, s2, 7
    s_and_b32 s{sT0}, s{sJ}, 3
    s_lshr_b32 s{sDT}, s{sJ}, 2
    s_lshr_b32 s{sT1}, s{sXCD}, 2
    s_lshl_b32 s{sT1}, s{sT1}, 2
    s_add_u32 s{sMI}, s{sT1}, s{sT0}
    s_and_b32 s{sT1}, s{sXCD}, 3
    s_mul_i32 s{sT1}, s{sT1}, 7
    s_add_u32 s{sFI}, s{sT1}, s{sDT}
    s_lshl_b32 s{sT1}, s{sXCD}, 2
    s_add_u32 s{sST}, s{sT1}, s{sT0}
    {ROT[rot]}
    s_and_b32 s{sROT}, s{sROT}, 7''')
    for d, n in ((S_X, 2048 * 1024), (S_WG, 512 * 3584), (S_WU, 512 * 3584)): p(f's_mov_b32 s{d+2}, {hex(n)}\ns_mov_b32 s{d+3}, 0x00020000')
    if not defer: prologue2(p)
def srd_bases(p):
    for d, ptr in ((S_X, 4), (S_WG, 20), (S_WU, 22)): p(f's_mov_b64 s[{d}:{d+1}], s[{ptr}:{ptr+1}]')
def prologue2(p, bases=True):
    if bases: srd_bases(p)
    p(f's_mov_b32 s{sSI}, s{sST}')
    mk_srd(p, S_WS, 32, 0x10000000); mk_srd(p, S_OUT, 28, 2048 * 1024); mk_srd(p, S_DBG, 30, 256)

G1_B, G1_A, G1_XR, G1_WR, G1_DX, G1_DW = 128, 144, 176, 180, 182, 190
def acc1(st, mat, ft): return 16 * (4 * st + 2 * mat + ft)
def g1_setup(p):
    t0, t1, t2, t3 = 192, 193, 194, 195
    p(f'''v_lshrrev_b32 v{t0}, 3, v{vL}
    v_and_b32 v{t1}, 7, v{vL}
    v_lshrrev_b32 v{t2}, 1, v{t0}
    v_xor_b32 v{t3}, v{t1}, v{t2}
    v_lshlrev_b32 v{t3}, 4, v{t3}
    v_lshl_add_u32 v{t3}, v{t0}, 10, v{t3}
    s_lshl_b32 s{sT0}, s{sMI}, 2
    s_add_u32 s{sT0}, s{sT0}, s{sW}
    s_lshl_b32 s{sT0}, s{sT0}, 16
    v_add_u32 v{G1_DX}, s{sT0}, v{t3}
    v_xor_b32 v{G1_DX+1}, 64, v{G1_DX}''')
    for i in range(7, 0, -1):
        p(f'v_add_u32 v{G1_DX+i}, {8192*i - 1024*(i&3)}, v{G1_DX+(i&1)}')
    p(f'''v_and_b32 v{t2}, 1, v{t2}
    v_lshlrev_b32 v{t2}, 2, v{t2}
    v_xor_b32 v{t2}, v{t1}, v{t2}
    v_lshlrev_b32 v{t2}, 4, v{t2}
    v_mul_u32_u24 v{t0}, 3584, v{t0}
    s_mul_i32 s{sT0}, s{sW}, {16*3584}
    s_lshl_b32 s{sT1}, s{sFI}, 7
    s_add_u32 s{sT0}, s{sT0}, s{sT1}
    v_add3_u32 v{G1_DW}, v{t0}, v{t2}, s{sT0}
    v_add_u32 v{G1_DW+1}, {8*3584-1024}, v{G1_DW}
    s_lshl_b32 s{sXM}, s{sW}, 13
    s_lshl_b32 s{sWM}, s{sW}, 11
    s_add_u32 s{sWM}, s{sWM}, 98304''')
MOD = dict(x='', w='', p='', d='', sx='', hs='sc1')
def g1_dma(t):
    sl = t % 3; o = []
    o.append(f's_add_u32 s{sT0}, s{sROT}, {t}\ns_and_b32 s{sT0}, s{sT0}, 7\ns_lshl_b32 s{sKX}, s{sT0}, 7\ns_mul_i32 s{sKW}, s{sT0}, {64*3584}')
    for mat, S in ((0, S_WG), (1, S_WU)):
        o.append(f's_add_u32 m0, s{sWM}, {sl*16384 + mat*8192}')
        for i in range(2): o.append(f'buffer_load_dwordx4 v{G1_DW+i}, {srd(S)}, s{sKW} offen offset:{1024*i} {MOD["w"]} lds')
    for i in range(8):
        if i % 4 == 0: o.append(f's_add_u32 m0, s{sXM}, {sl*32768 + 1024*i}')
        o.append(f'buffer_load_dwordx4 v{G1_DX+i}, {srd(S_X)}, s{sKX} offen offset:{1024*(i&3)} {MOD["x"]} lds')
    o[-1] = (o[-1], f'dma{t}')
    return o
vTX, vTW, vTD = 248, 249, 250
def touch_setup(p):
    t0, t1 = 192, 193
    p(f'''v_lshrrev_b32 v{t0}, 1, v{vL}
    v_min_u32 v{t0}, 9, v{t0}
    s_mul_i32 s{sT1}, s{sDT}, 10
    v_add_u32 v{t0}, s{sT1}, v{t0}
    v_min_u32 v{t0}, 63, v{t0}
    v_and_b32 v{t1}, 1, v{vL}
    v_lshlrev_b32 v{t1}, 7, v{t1}
    v_lshl_add_u32 v{t0}, v{t0}, 10, v{t1}
    s_lshl_b32 s{sT0}, s{sMI}, 2
    s_add_u32 s{sT0}, s{sT0}, s{sW}
    s_lshl_b32 s{sT0}, s{sT0}, 16
    v_add_u32 v{vTX}, s{sT0}, v{t0}
    v_and_b32 v{t0}, 3, v{vL}
    v_bfe_u32 v{t1}, v{vL}, 2, 1
    v_lshl_add_u32 v{t0}, v{t1}, 6, v{t0}
    s_and_b32 s{sT0}, s{sJ}, 3
    s_lshl_b32 s{sT0}, s{sT0}, 2
    s_add_u32 s{sT0}, s{sT0}, s{sW}
    s_lshl_b32 s{sT0}, s{sT0}, 2
    v_add_u32 v{t0}, s{sT0}, v{t0}
    v_mul_u32_u24 v{t0}, 3584, v{t0}
    s_lshl_b32 s{sT1}, s{sFI}, 7
    v_add_u32 v{vTW}, s{sT1}, v{t0}''')
def touch(c):
    return [f's_add_u32 s{sT4}, s{sROT}, {c}\ns_and_b32 s{sT4}, s{sT4}, 7\ns_lshl_b32 s{sT5}, s{sT4}, 7\ns_mul_i32 s{sT4}, s{sT4}, {64*3584}',
            f's_mov_b64 exec, 0xff\nbuffer_load_dword v{vTD}, v{vTW}, {srd(S_WG)}, s{sT4} offen {MOD["w"]}\nbuffer_load_dword v{vTD+1}, v{vTW}, {srd(S_WU)}, s{sT4} offen {MOD["w"]}\ns_mov_b64 exec, 0xfffff\nbuffer_load_dword v{vTD+2}, v{vTX}, {srd(S_X)}, s{sT5} offen {MOD["x"]}\ns_mov_b64 exec, -1']
def touch_wd(p):
    t0 = 253
    p(f'''s_mul_i32 s{sT0}, s{sJ}, 37
    s_lshr_b32 s{sT0}, s{sT0}, 8
    s_mul_i32 s{sT1}, s{sT0}, 7
    s_sub_u32 s{sT1}, s{sJ}, s{sT1}
    s_lshl_b32 s{sT1}, s{sT1}, 2
    s_add_u32 s{sT1}, s{sT1}, s{sW}
    s_lshl_b32 s{sT1}, s{sT1}, 4
    s_lshl_b32 s{sT2}, s{sXCD}, 2
    s_add_u32 s{sT0}, s{sT0}, s{sT2}
    s_lshr_b32 s{sT2}, s{sT0}, 3
    s_mul_i32 s{sT2}, s{sT2}, 448
    s_add_u32 s{sT1}, s{sT1}, s{sT2}
    s_lshl_b32 s{sT1}, s{sT1}, 3
    s_and_b32 s{sT0}, s{sT0}, 7
    s_add_u32 s{sT0}, s{sT0}, s{sT1}
    s_lshl_b32 s{sT0}, s{sT0}, 7
    v_and_b32 v{t0}, 15, v{vL}
    v_lshl_add_u32 v{t0}, v{t0}, 10, s{sT0}
    s_mov_b64 exec, 0xffff
    global_load_dword v{vTD}, v{t0}, s[24:25] {MOD["d"]}
    s_mov_b64 exec, -1''')
def g1_setup2(p):
    t0, t1, t2, t3 = 192, 193, 194, 195
    p(f'''v_and_b32 v{t0}, 31, v{vL}
    v_lshrrev_b32 v{t1}, 5, v{vL}
    v_bfe_u32 v{t2}, v{vL}, 1, 3
    v_xor_b32 v{t2}, v{t2}, v{t1}
    v_lshlrev_b32 v{t2}, 4, v{t2}
    v_lshl_add_u32 v{t2}, v{t0}, 7, v{t2}
    v_add_u32 v{G1_XR}, s{sXM}, v{t2}''')
    for s in range(1, 4): p(f'v_xor_b32 v{G1_XR+s}, {32*s}, v{G1_XR}')
    p(f'''v_bfe_u32 v{t0}, v{vL}, 2, 2
    v_lshl_add_u32 v{t0}, v{t1}, 3, v{t0}
    v_bfe_u32 v{t1}, v{vL}, 4, 1
    v_bfe_u32 v{t2}, v{vL}, 1, 1
    v_lshl_add_u32 v{t1}, v{t1}, 1, v{t2}
    v_bfe_u32 v{t2}, v{vL}, 3, 1
    v_lshl_add_u32 v{t1}, v{t2}, 2, v{t1}
    v_and_b32 v{t2}, 1, v{vL}
    v_lshlrev_b32 v{t2}, 3, v{t2}
    v_lshl_add_u32 v{t2}, v{t1}, 4, v{t2}
    v_lshl_add_u32 v{t2}, v{t0}, 7, v{t2}
    v_add_u32 v{G1_WR}, 98304, v{t2}
    v_xor_b32 v{G1_WR+1}, 64, v{G1_WR}''')
def g1_reads(t, s):
    b = (4 * t + s) & 1; sl = t % 3; o = []
    B = lambda st: f'ds_read_b128 {vr(G1_B + 8*b + 4*st, 4)}, v{G1_XR+s} offset:{(sl&1)*32768 + st*4096}'
    tog = f'v_add_u32 v{G1_XR+s}, 0x10000, v{G1_XR+s}\n' if sl == 2 else f'v_subrev_u32 v{G1_XR+s}, 0x10000, v{G1_XR+s}\n' if sl == 0 and t else ''
    o.append(tog + B(0))
    for mat in range(2):
        for ft in range(2):
            r = G1_A + 16 * b + 4 * (2 * mat + ft)
            for h in range(2):
                o.append(f'ds_read_b64_tr_b16 {vr(r+2*h, 2)}, v{G1_WR+ft} offset:{sl*16384 + mat*8192 + s*2048 + h*512}')
    o.append(B(1))
    return o
def g1_mfmas(t, s):
    b = (4 * t + s) & 1; o = []
    for st in range(2):
        for mat in range(2):
            for ft in range(2):
                c = acc1(st, mat, ft)
                src = '0' if (t == 0 and s == 0) else vr(c, 16)
                o.append(f'v_mfma_f32_32x32x16_bf16 {vr(c,16)}, {vr(G1_A + 16*b + 4*(2*mat+ft), 4)}, {vr(G1_B + 8*b + 4*st, 4)}, {src}')
    return o
def g7_B(i, k, st): return (G1_B + 8 * (i & 1) if k == 0 else (182, 192)[i & 1]) + 4 * st
def g7_A(i, k, mat): return G1_A + 16 * (i & 1) + 4 * (2 * k + mat)
def g7_reads(i):
    ft = i >> 1; o = []
    for k in range(2):
        s = 2 * (i & 1) + k
        B = lambda st: f'ds_read_b128 {vr(g7_B(i,k,st), 4)}, v{G1_XR+s} offset:{32768 + st*4096}'
        o.append(B(0))
        for mat in range(2):
            for h in range(2): o.append(f'ds_read_b64_tr_b16 {vr(g7_A(i,k,mat)+2*h, 2)}, v{G1_WR+ft} offset:{16384 + mat*8192 + s*2048 + h*512}')
        o.append(B(1))
    return o
def g7_mfmas(i):
    ft = i >> 1; o = []
    for k in range(2):
        for st in range(2):
            for mat in range(2):
                c = acc1(st, mat, ft)
                o.append(f'v_mfma_f32_32x32x16_bf16 {vr(c,16)}, {vr(g7_A(i,k,mat), 4)}, {vr(g7_B(i,k,st), 4)}, {vr(c,16)}')
    return o
SPLIT = [0]; DS = [0, 0, 1, 0]
def g1_head(): return [Ins('WAITVM dma0'), 's_barrier'] + g1_reads(0, 0)
def g1_main(p, extra=None, post=None, ini=3, pre=None, fast=0, head=True):
    extra = extra or {}; post = post or {}; pre = pre or {}
    if head: p.extend(g1_head())
    pend = [x for t in range(ini, 3) for x in g1_dma(t)]
    for t in range(8):
        for s in range(4):
            mf = g7_mfmas(s) if t == 7 and SPLIT[0] else g1_mfmas(t, s)
            slots = [[] for _ in range(8)]
            if s < 3:
                rd = g7_reads(s + 1) if t == 7 and SPLIT[0] else g1_reads(t, s + 1)
                for i, x in enumerate(rd): slots[i // 2].append(x)
            elif t < 7:
                slots[1] += pre.get(t, []) + [Ins('s_waitcnt lgkmcnt(0)'), Ins(f'WAITVM dma{t+1}'), 's_barrier']
                rd = g7_reads(0) if t == 6 and SPLIT[0] else g1_reads(t + 1, 0)
                for i, x in enumerate(rd): slots[1 + i // 2].append(x)
                slots[1] += post.get(t, [])
                if t + 3 < 8: pend = g1_dma(t + 3)
            else:
                slots[1] += pre.get(t, []) + [Ins('s_waitcnt lgkmcnt(0)'), 's_barrier'] + post.get(t, [])
            lo = 6 if s == 3 else 5 if (s < 2 and (t or ini > 1)) else 0
            if s == 3: n = min(len(pend), 4)
            elif s < 2: n = min(len(pend), 7) if (t or ini > 1) else 17
            else: n = len(pend)
            if t < fast and s < 2: lo = 0; n = min(len(pend), 11)
            if DS[0] and (t > DS[0] or t == DS[0] and s == 3):
                n = 0
                for m in (6, 7) if s == 3 else (5, 6, 7) if s < 2 else (4, 5, 6, 7):
                    while pend:
                        x = pend.pop(0); slots[m].append(x)
                        if 'buffer_load' in (x[0] if isinstance(x, tuple) else x): break
            for i in range(n): slots[lo + i * (8 - lo) // max(n, 1)].append(pend.pop(0))
            ex = extra.get((t, s), [])
            one = lambda y: DS[2] if y.startswith('buffer_') else 3 if y.startswith('ds_write_b128') else 0 if y.startswith('WAIT') else 1
            cost = lambda x: sum(cost(y) for y in x) if isinstance(x, list) else one(x.text) if isinstance(x, Ins) else sum(one(y.strip()) for y in (x[0] if isinstance(x, tuple) else x).strip().split('\n'))
            wd = extra.get(('w', t, s), [])
            if DS[3]:
                ms = sorted(sorted(range(2 if s == 3 else 0, 8), key=lambda m: (cost(slots[m]), -m))[:len(wd)])
                for m, x in zip(ms, wd): slots[m].append(x)
            elif wd: ex = ex + wd
            if DS[1] and t < DS[1]:
                base = [cost(z) for z in slots]; tot = sum(base) + cost(ex); m = 0
                lvl = max(-(-tot // 8), 1)
                while sum(max(0, lvl - b) for b in base) < cost(ex): lvl += 1
                for x in ex:
                    while m < 7 and base[m] + (cost(x) + 1) // 2 > lvl: m += 1
                    slots[m].append(x); base[m] += cost(x)
                ex = []
            for i, x in enumerate(ex): slots[i * 8 // len(ex)].append(x)
            for m in range(8):
                p(mf[m]); p.extend(slots[m])
    assert not pend
def g1_epilogue(p, fill=(), hook=None):
    fill = list(fill); nf = len(fill)
    H, va = 128, 192
    p(f'''s_lshl_b32 s{sT0}, s{sMI}, 2
    s_add_u32 s{sT0}, s{sT0}, s{sW}
    s_lshl_b32 s{sT0}, s{sT0}, 10
    s_lshl_b32 s{sT1}, s{sFI}, 18
    s_add_u32 s{sT0}, s{sT0}, s{sT1}
    s_add_u32 s{sT0}, s{sT0}, {WS_H}
    v_lshlrev_b32 v{va}, 4, v{vL}''')
    for ft in range(2):
        for q in range(4):
            R = H + 4 * (4 * ft + q)
            for st in range(2):
                g = acc1(st, 0, ft) + 4 * q; u = acc1(st, 1, ft) + 4 * q
                for e in range(4): p(f'v_max_f32 v{g+e}, 0, v{g+e}')
                for e in (0, 2): p(f'v_pk_mul_f32 {vr(g+e,2)}, {vr(g+e,2)}, {vr(u+e,2)}')
                for e in (0, 2): p(f'v_cvt_pk_bf16_f32 v{R + 2*st + e//2}, v{g+e}, v{g+e+1}')
            p(f'v_permlane32_swap_b32 v{R}, v{R+2}\nv_permlane32_swap_b32 v{R+1}, v{R+3}')
            p(f'buffer_store_dwordx4 {vr(R,4)}, v{va}, {srd(S_WS)}, s{sT0} offen {MOD["hs"]}', 'hst')
            if (ft, q) != (1, 3): p(f's_add_u32 s{sT0}, s{sT0}, 32768')
            i = 4 * ft + q
            if i < 7: p.extend(fill[nf * i // 7: nf * (i + 1) // 7])
            if hook: p.extend(hook.get(i, []))

def skew(L):
    o = []
    for i, b in enumerate(L):
        if i: o[-3:-3] = b[:2]; o += b[2:]
        else: o += b
    return o
sHS, vHS = 19, 201
def epi_setup():
    return [f'''s_lshl_b32 s{sHS}, s{sMI}, 2
    s_add_u32 s{sHS}, s{sHS}, s{sW}
    s_lshl_b32 s{sHS}, s{sHS}, 10
    s_lshl_b32 s18, s{sFI}, 18
    s_add_u32 s{sHS}, s{sHS}, s18
    s_add_u32 s{sHS}, s{sHS}, {WS_H}
    v_lshlrev_b32 v{vHS}, 4, v{vL}''']
def epi(ft, q, pk):
    o = []; R = acc1(0, 0, ft) + 4 * q
    for st in range(2):
        g = acc1(st, 0, ft) + 4 * q; u = acc1(st, 1, ft) + 4 * q
        o += [f'v_max_f32 v{g+e}, 0, v{g+e}' for e in range(4)]
        o += [f'v_pk_mul_f32 {vr(g+e,2)}, {vr(g+e,2)}, {vr(u+e,2)}' for e in (0, 2)] if pk else [f'v_mul_f32 v{g+e}, v{g+e}, v{u+e}' for e in range(4)]
    for st in range(2):
        g = acc1(st, 0, ft) + 4 * q
        o += [f'v_cvt_pk_bf16_f32 v{R + 2*st + e//2}, v{g+e}, v{g+e+1}' for e in (0, 2)]
    o += [f'v_permlane32_swap_b32 v{R}, v{R+2}', f'v_permlane32_swap_b32 v{R+1}, v{R+3}']
    o.append(G([(f'buffer_store_dwordx4 {vr(R,4)}, v{vHS}, {srd(S_WS)}, s{sHS} offen {MOD["hs"]}', 'hst')] + ([f's_add_u32 s{sHS}, s{sHS}, 32768'] if (ft, q) != (1, 3) else [])))
    return o
def k_gemm1():
    p = Prog(); prologue(p)
    L = p.label('main')
    p(f's_cmp_lt_u32 s{sJ}, 28\ns_cbranch_scc1 {L}\ns_endpgm\n{L}:')
    g1_setup(p)
    for t in range(3): p.extend(g1_dma(t))
    g1_setup2(p)
    g1_main(p); g1_epilogue(p)
    p('s_endpgm')
    return p

SP_X = 57344
SP_W = 0
def spare_issue_w(p):
    t0, t1, t2, vw = 140, 141, 142, 143
    sT0, sT1 = sT4, sT5
    mk_srd(p, S_P, 24, 1792 * 1024)
    p(f'''s_lshr_b32 s{sT0}, s{sSI}, 3
    s_lshl_b32 s{sT0}, s{sT0}, 2
    s_add_u32 s{sT0}, s{sT0}, s{sW}
    s_mul_i32 s{sT0}, s{sT0}, {112*1024}
    s_and_b32 s{sT1}, s{sSI}, 7
    s_lshl_b32 s{sT1}, s{sT1}, 7
    s_add_u32 s{sT0}, s{sT0}, s{sT1}
    v_lshrrev_b32 v{t0}, 3, v{vL}
    v_and_b32 v{t1}, 7, v{vL}
    v_bfe_u32 v{t2}, v{vL}, 4, 1
    v_lshlrev_b32 v{t2}, 2, v{t2}
    v_xor_b32 v{t2}, v{t1}, v{t2}
    v_lshlrev_b32 v{t2}, 4, v{t2}
    v_lshl_add_u32 v{vw}, v{t0}, 10, v{t2}
    s_mul_i32 s{sWM}, s{sW}, 14336
    s_add_u32 s{sWM}, s{sWM}, {SP_W}''')
    for i in range(14):
        p(f's_add_u32 m0, s{sWM}, {1024*i}')
        p(f'buffer_load_dwordx4 v{vw}, {srd(S_P)}, s{sT0} offen {MOD["d"]} lds', f'wdma{i//2}')
        if i < 13: p(f's_add_u32 s{sT0}, s{sT0}, 8192')
def spare_issue_x(p):
    t0, t1, t2, t3, vw, vx = 1, 2, 3, 4, 8, 10
    p(f'''s_lshl_b32 s{sT1}, s{sW}, 2
    s_and_b32 s{sT1}, s{sT1}, 7
    v_xor_b32 v{t0}, s{sT1}, v{vL}
    v_lshlrev_b32 v{vx}, 4, v{t0}
    v_xor_b32 v{vx+1}, 16, v{vx}
    v_xor_b32 v{vx+2}, 32, v{vx}
    v_xor_b32 v{vx+3}, 48, v{vx}
    s_lshl_b32 s{sT0}, s{sSI}, 2
    s_add_u32 s{sT0}, s{sT0}, s{sW}
    s_lshl_b32 s{sKX}, s{sT0}, 14
    s_mul_i32 s{sXM}, s{sW}, {16*1152}''')
    for i in range(16):
        p(f's_add_u32 m0, s{sXM}, {SP_X + 1152*i}')
        p(f'buffer_load_dwordx4 v{vx + 2*(i>>3) + ((i>>1)&1)}, {srd(S_X)}, s{sKX} offen {MOD["sx"]} lds', 'xdma')
        if i < 15: p(f's_add_u32 s{sKX}, s{sKX}, 1024')
SP_G = 131072
def spare_issue_g(p):
    mk_srd(p, S_WG, 26, 1024)
    p(f's_lshl_b32 s{sT3}, s{sW}, 10\ns_add_u32 m0, s{sT3}, {SP_G}\nv_lshlrev_b32 v5, 4, v{vL}')
    p(f'buffer_load_dwordx4 v5, {srd(S_WG)}, 0 offen lds', 'gdma')
def spare_wd(p, fill=()):
    t0, t1, t2, ra, va = 1, 2, 3, 6, 14
    p(f'''v_lshrrev_b32 v{t1}, 5, v{vL}
    v_bfe_u32 v{t0}, v{vL}, 2, 2
    v_lshl_add_u32 v{t0}, v{t1}, 3, v{t0}
    v_bfe_u32 v{t1}, v{vL}, 4, 1
    v_bfe_u32 v{t2}, v{vL}, 1, 1
    v_lshl_add_u32 v{t1}, v{t1}, 1, v{t2}
    v_bfe_u32 v{t2}, v{vL}, 3, 1
    v_lshl_add_u32 v{t1}, v{t2}, 2, v{t1}
    v_and_b32 v{t2}, 1, v{vL}
    v_lshlrev_b32 v{t2}, 3, v{t2}
    v_lshl_add_u32 v{t2}, v{t1}, 4, v{t2}
    v_lshl_add_u32 v{t2}, v{t0}, 7, v{t2}
    v_add_u32 v{ra}, s{sWM}, v{t2}
    v_xor_b32 v{ra+1}, 64, v{ra}
    v_lshlrev_b32 v{va}, 4, v{vL}
    s_and_b32 s{sT0}, s{sSI}, 7
    s_lshl_b32 s{sT0}, s{sT0}, 2
    s_lshr_b32 s{sT1}, s{sSI}, 3
    s_add_u32 s{sT0}, s{sT0}, s{sT1}
    s_lshl_b32 s{sT0}, s{sT0}, 2
    s_add_u32 s{sT0}, s{sT0}, s{sW}
    s_mul_i32 s{sT0}, s{sT0}, 14336
    s_add_u32 s{sT5}, s{sT0}, {WS_WDT}''')
    def st(i):
        p(f'buffer_store_dwordx4 {vr(16+4*i,4)}, v{va}, {srd(S_WS)}, s{sT5} offen offset:{1024*(i&3)} sc1', 'wst')
        if i & 3 == 3: p(f's_add_u32 s{sT5}, s{sT5}, 4096')
    fill = list(fill); nf = len(fill)
    for s in range(8):
        if s < 7:
            p.waitvm(f'wdma{s}')
            for d in range(2):
                r = 16 + 4 * (2 * s + d)
                for h in range(2): p(f'ds_read_b64_tr_b16 {vr(r+2*h,2)}, v{ra+d} offset:{s*2048 + h*512}')
        if s: st(2 * s - 2); st(2 * s - 1)
        p.extend(fill[nf * s // 8: nf * (s + 1) // 8])
def spare_ut(p, mid=(), fill=()):
    t0, t1, t2, t3, ra, va = 1, 2, 3, 4, 72, 14
    p(f'''v_and_b32 v{t0}, 3, v{vL}
    v_lshrrev_b32 v{t1}, 5, v{vL}
    v_lshl_add_u32 v{t1}, v{t1}, 2, v{t0}
    v_bfe_u32 v{t2}, v{vL}, 2, 2
    v_lshl_add_u32 v{t1}, v{t1}, 3, v{t2}
    v_mul_u32_u24 v{t1}, 1152, v{t1}
    v_bfe_u32 v{t2}, v{vL}, 3, 1
    v_lshl_add_u32 v{t0}, v{t0}, 1, v{t2}
    v_lshl_add_u32 v{t1}, v{t0}, 4, v{t1}
    v_bfe_u32 v{t2}, v{vL}, 4, 1
    v_lshl_add_u32 v{t1}, v{t2}, 3, v{t1}
    s_lshl_b32 s{sT0}, s{sW}, 8
    s_add_u32 s{sT0}, s{sT0}, {SP_X}
    v_add_u32 v{ra}, s{sT0}, v{t1}''')
    for k in range(1, 8): p(f'v_xor_b32 v{ra+k}, {16*k}, v{ra}')
    p(f'''v_and_b32 v{t0}, 15, v{vL}
    v_lshlrev_b32 v{t0}, 4, v{t0}
    v_lshrrev_b32 v{t1}, 5, v{vL}
    v_lshl_add_u32 v{t0}, v{t1}, 8, v{t0}
    v_lshl_add_u32 v{va}, v{t2}, 14, v{t0}
    s_lshl_b32 s{sT0}, s{sW}, 19
    s_lshl_b32 s{sT1}, s{sSI}, 9
    s_add_u32 s{sT0}, s{sT0}, s{sT1}
    s_add_u32 s{sT5}, s{sT0}, {WS_UT}''')
    p.waitvm('xdma'); p('s_barrier')
    for k in range(16):
        r = 16 + 4 * (k % 8) if k < 8 else 80 + 4 * (k % 8)
        for h in range(2): p(f'ds_read_b64_tr_b16 {vr(r+2*h,2)}, v{ra+(k&7)} offset:{(k>>3)*128 + h*4608}')
    p.extend(mid); nf = len(fill)
    for k in range(16):
        r = 16 + 4 * (k % 8) if k < 8 else 80 + 4 * (k % 8)
        p(f'buffer_store_dwordx4 {vr(r,4)}, v{va}, {srd(S_WS)}, s{sT5} offen sc1', 'ust')
        if k < 15: p(f's_add_u32 s{sT5}, s{sT5}, 32768')
        p.extend(fill[nf * k // 16: nf * (k + 1) // 16])
def spare_g(p):
    t0, t1, t2, ra, ac, X, W = 1, 2, 3, 8, 10, 112, 176
    p(f'''s_lshl_b32 s{sT0}, s{sW}, 4
    v_lshrrev_b32 v{t0}, 2, v{vL}
    v_add_u32 v{t0}, s{sT0}, v{t0}
    v_bfe_u32 v{t1}, v{t0}, 3, 2
    v_bfe_u32 v{t2}, v{t0}, 1, 1
    v_lshl_add_u32 v{t1}, v{t1}, 1, v{t2}
    v_and_b32 v{t2}, 3, v{vL}
    v_xor_b32 v{t1}, v{t1}, v{t2}
    v_mul_u32_u24 v{ra}, 1152, v{t0}
    v_lshl_add_u32 v{ra}, v{t1}, 4, v{ra}
    v_add_u32 v{ra}, {SP_X}, v{ra}
    v_xor_b32 v{ra+1}, 64, v{ra}''')
    p(f's_lshl_b32 s{sT3}, s{sW}, 10\ns_add_u32 s{sT3}, s{sT3}, {SP_G}\nv_lshl_add_u32 v{t2}, v{t2}, 4, s{sT3}')
    for e in range(4): p(f'v_mov_b32 v{ac+e}, 0')
    for i in range(16): p(f'ds_read_b128 {vr(X+4*i,4)}, v{ra+(i&1)} offset:{(i>>1)*128}')
    for i in range(20):
        if i < 16: p(f'ds_read_b128 {vr(W+4*(i&3),4)}, v{t2} offset:{64*i}') if i < 4 else None
        if i >= 4:
            for e in range(4): p(f'v_dot2c_f32_bf16 v{ac+e}, v{X+4*(i-4)+e}, v{W+4*(i&3)+e}')
            if i < 16: p(f'ds_read_b128 {vr(W+4*(i&3),4)}, v{t2} offset:{64*i}')
    p(f'''v_add_f32 v{ac}, v{ac}, v{ac+1}
    v_add_f32 v{ac+2}, v{ac+2}, v{ac+3}
    v_add_f32 v{ac}, v{ac}, v{ac+2}
    v_add_f32_dpp v{ac+1}, v{ac}, v{ac} quad_perm:[1,0,3,2] row_mask:0xf bank_mask:0xf
    v_add_f32_dpp v{ac}, v{ac+1}, v{ac+1} quad_perm:[2,3,0,1] row_mask:0xf bank_mask:0xf
    v_cvt_pk_bf16_f32 v{ac}, v{ac}, v{ac}
    v_and_b32 v{ac}, 0xffff0000, v{ac}
    v_mul_f32 v{ac}, 0xbfb8aa3b, v{ac}
    v_exp_f32 v{ac}, v{ac}
    v_add_f32 v{ac}, 1.0, v{ac}
    v_rcp_f32 v{ac}, v{ac}
    v_cvt_pk_bf16_f32 v{ac}, v{ac}, v{ac}
    v_and_b32 v{ac}, 0xffff0000, v{ac}
    s_lshl_b32 s{sT0}, s{sSI}, 8
    s_add_u32 s{sT0}, s{sT0}, {WS_G}
    v_lshlrev_b32 v{t0}, 2, v{t0}''')
    p(f'buffer_store_dword v{ac}, v{t0}, {srd(S_WS)}, s{sT0} offen sc1', 'gst')

def k_spare():
    p = Prog(); prologue(p)
    L = p.label('main')
    p(f's_cmp_ge_u32 s{sJ}, 28\ns_cbranch_scc1 {L}\ns_endpgm\n{L}:')
    spare_issue(p); spare_wd(p); spare_ut(p); spare_g(p)
    p('s_endpgm')
    return p

KT, KTS, KR = 65536, 65536, 528
TL, TLS = 159056, 2064
IMG, IMS = 131072, 8320
UIM, UIS = 147712, 4672
RED = 0
AS = 32768
P2 = 49152
vPAR = 196
vGA = 202
def vE(e): return vGA + 16 if e < 0 else vGA + 8 + (15 - e) // 2 if e & 1 else vGA + (14 - e) // 2
vTA = 219
vZA = 222
vDM = 223
def par_loads(p):
    t0, t1 = 192, 193
    p(f'''s_lshl_b32 s{sT0}, s{sPI}, 2
    s_add_u32 s{sT0}, s{sT0}, s{sW}
    s_lshl_b32 s{sT1}, s{sT0}, 7
    v_lshl_add_u32 v{t0}, v{vL}, 1, s{sT1}
    s_lshr_b32 s{sT0}, s{sT0}, 1
    s_lshl_b32 s{sT0}, s{sT0}, 1
    v_mov_b32 v{t1}, s{sT0}''')
    for i in range(4): p(f'global_load_short_d16_hi v{vPAR+i}, v{t0}, s[{6+2*i}:{7+2*i}] {MOD["p"]}')
    for i in range(2): p(f'global_load_short_d16_hi v{vPAR+4+i}, v{t1}, s[{14+2*i}:{15+2*i}]')
def par_zero(p):
    for i in range(6): p(f'v_mov_b32 v{vPAR+i}, 0')
def rne_off(s, e):
    q, r = divmod(e, 1 << s); h = (1 << s) // 2
    if s and (r > h or (r == h and q & 1)): q += 1
    return q
def tail_setup(p, parts='eaz'):
    t0, t1, t2, t3, t4 = 192, 193, 194, 195, 234
    if 'e' in parts or 'a' in parts: p(f'''s_lshr_b32 s{sT0}, s{sW}, 1
    s_and_b32 s{sT1}, s{sW}, 1
    s_mul_i32 s{sT2}, s{sT0}, {TLS}
    s_add_u32 s{sT2}, s{sT2}, {TL}''')
    if 'e' in parts: tail_e(p)
    if 'a' in parts: tail_a(p)
    if 'z' in parts: tail_z(p)
def tail_e(p):
    t0, t1, t2, t3, t4 = 192, 193, 194, 195, 234
    p(f'''s_lshl_b32 s{sT3}, s{sT1}, 6
    s_sub_u32 s{sT3}, 127, s{sT3}
    v_sub_u32 v{t0}, s{sT3}, v{vL}
    v_lshlrev_b32 v{t1}, 4, v{t0}''')
    def idx(dst, src):
        p(f'''v_cvt_f32_u32 v{t3}, v{src}
        v_cvt_pk_bf16_f32 v{t3}, v{t3}, v{t3}
        v_and_b32 v{t3}, 0xffff, v{t3}
        v_subrev_u32 v{t3}, 17024, v{t3}
        v_min_i32 v{t4}, 128, v{src}
        v_max_i32 v{t3}, v{t3}, v{t4}
        v_lshl_add_u32 v{dst}, v{t3}, 1, s{sT2}''')
    idx(vE(0), t1)
    p(f'v_subrev_u32 v{t2}, 1, v{t1}\nv_max_i32 v{t2}, 0, v{t2}')
    idx(vE(-1), t2)
    p(f'''s_add_u32 s{sT3}, s{sT2}, 2048
    v_mov_b32 v{t2}, s{sT3}
    v_cmp_eq_u32 vcc, 0, v{t0}
    v_cndmask_b32 v{vE(-1)}, v{vE(-1)}, v{t2}, vcc
    v_ffbh_u32 v{t2}, v{t0}
    v_min_u32 v{t2}, 28, v{t2}
    v_sub_u32 v{t2}, 28, v{t2}
    v_lshlrev_b32 v{t2}, 3, v{t2}''')
    for e in range(1, 16):
        k = sum((2 * rne_off(s, e)) << (8 * s) for s in range(4))
        p(f's_mov_b32 s{sT3}, {hex(k)}\nv_bfe_u32 v{t3}, s{sT3}, v{t2}, 8\nv_add_u32 v{vE(e)}, v{vE(0)}, v{t3}')
def tail_a(p):
    t0, t1, t2, t3, t4 = 192, 193, 194, 195, 234
    p(f'''v_and_b32 v{t0}, 15, v{vL}
    s_lshl_b32 s{sT3}, s{sT1}, 4
    v_add_u32 v{t0}, s{sT3}, v{t0}
    v_lshrrev_b32 v{t1}, 4, v{vL}
    v_lshlrev_b32 v{t2}, 3, v{t1}
    v_lshl_add_u32 v{t2}, v{t0}, 4, v{t2}
    v_lshlrev_b32 v{t3}, 3, v{t0}
    v_add_u32 v{t3}, 512, v{t3}
    v_cmp_eq_u32 vcc, 2, v{t1}
    v_cndmask_b32 v{t2}, v{t2}, v{t3}, vcc
    v_lshlrev_b32 v{t3}, 2, v{t0}
    v_add_u32 v{t3}, 768, v{t3}
    v_mov_b32 v{t4}, 4
    v_mov_b32 v{vTA+1}, 128
    v_cmp_eq_u32 vcc, 3, v{t1}
    v_cndmask_b32 v{t2}, v{t2}, v{t3}, vcc
    v_cndmask_b32 v{t4}, v{t4}, v{vTA+1}, vcc
    v_add_u32 v{vTA}, s{sT2}, v{t2}
    v_add_u32 v{vTA+1}, v{vTA}, v{t4}
    v_lshlrev_b32 v{t2}, 8, v{t1}
    v_lshl_add_u32 v{t2}, v{t0}, 1, v{t2}
    v_add_u32 v{vTA+2}, s{sT2}, v{t2}
    v_or_b32 v{t2}, v{t0}, v{t1}
    v_mov_b32 v{t3}, 0
    v_cmp_eq_u32 vcc, 0, v{t2}
    v_cndmask_b32 v{vDM}, v{t3}, 1.0, vcc''')
def tail_z(p):
    t0, t1, t2, t3 = 192, 193, 194, 195
    p(f'''v_lshrrev_b32 v{t0}, 5, v{vL}
    v_mul_u32_u24 v{t0}, {UIS}, v{t0}
    v_and_b32 v{t1}, 31, v{vL}
    v_lshl_add_u32 v{t0}, v{t1}, 4, v{t0}
    v_add_u32 v{t0}, {UIM}, v{t0}
    v_bfe_u32 v{t1}, v{vL}, 1, 2
    v_mul_u32_u24 v{t1}, 4160, v{t1}
    v_and_b32 v{t2}, 1, v{vL}
    v_lshl_add_u32 v{t1}, v{t2}, 4, v{t1}
    v_add_u32 v{t1}, {IMG + 4096}, v{t1}
    v_mul_u32_u24 v{t2}, {TLS}, v{t2}
    v_add_u32 v{t2}, {TL + 2048}, v{t2}
    v_and_b32 v{t3}, 8, v{vL}
    v_cmp_eq_u32 vcc, 0, v{t3}
    v_cndmask_b32 v{t1}, v{t2}, v{t1}, vcc
    s_cmp_eq_u32 s{sW}, 0
    s_cselect_b64 vcc, -1, 0
    v_cndmask_b32 v{vZA}, v{t1}, v{t0}, vcc''')
HI = [0,1,2,3,4,5,6,7,256,258,260,262,512,516,768,772,1024,1280,1536,1792,2048]
def merge(chains):
    out = []; ch = [list(c) for c in chains]
    while any(ch):
        for c in ch:
            if c: out.append(c.pop(0))
    return out
def cmul(D, X, Y):
    return [f'v_pk_mul_f32 {vr(D,2)}, {vr(X,2)}, {vr(Y,2)} op_sel:[0,0] op_sel_hi:[0,1]',
            f'v_pk_fma_f32 {vr(D,2)}, {vr(X,2)}, {vr(Y,2)}, {vr(D,2)} op_sel:[1,1,0] op_sel_hi:[1,0,1] neg_lo:[0,1,0]']
def kgen_valu(p, fills=()):
    lar, aim, cre, cim, ldt, dsk = range(vPAR, vPAR + 6)
    def expbf(x, t):
        return [f'v_mul_f32 v{t}, 0x3fb8aa3b, v{x}', f'v_fma_f32 v{t+1}, v{x}, s{sT2}, -v{t}', f'v_fmac_f32 v{t+1}, 0x32a57060, v{x}',
                f'v_exp_f32 v{t}, v{t}', f'v_mul_f32 v{t+1}, 0x3f317218, v{t+1}', f'v_fmac_f32 v{t}, v{t}, v{t+1}',
                f'v_cvt_pk_bf16_f32 v{t}, v{t}, v{t}', f'v_and_b32 v{x}, 0xffff0000, v{t}']
    vKA = 13
    p(f'''s_mov_b32 s{sT2}, 0x3fb8aa3b
    s_lshr_b32 s{sT0}, s{sW}, 1
    s_mul_i32 s{sT1}, s{sT0}, {TLS}
    s_add_u32 s{sT1}, s{sT1}, {TL + 2048}
    v_mov_b32 v10, s{sT1}
    s_mul_i32 s{sT0}, s{sT0}, {KTS}
    s_and_b32 s{sT1}, s{sW}, 1
    s_lshl_b32 s{sT1}, s{sT1}, 8
    s_add_u32 s{sT0}, s{sT0}, s{sT1}
    s_add_u32 s{sT0}, s{sT0}, {KT}
    v_lshl_add_u32 v{vKA}, v{vL}, 2, s{sT0}
    v_mov_b32 v11, 0
    v_mov_b32 v12, 0x3f80''')
    p(f'ds_write_b32 v10, v11\nds_write_b32 v{vKA}, v12')
    p0 = p; p = Prog()
    p.extend(merge([expbf(ldt, 0), expbf(lar, 2)]))
    a2, b2 = 4, 5
    Hreg = {h: 16 + 2 * i for i, h in enumerate(HI)}
    Lreg = {k: 58 + 2 * k for k in range(1, 32)}
    Z1, Z2, Z4, Z256 = 122, 124, 126, 128
    p(f'''v_mul_f32 v{a2}, v{lar}, v{ldt}
    v_mul_f32 v{b2}, v{aim}, v{ldt}
    v_mul_f32 v6, v{cre}, v{ldt}
    v_mul_f32 v7, v{cim}, v{ldt}
    v_mul_f32 v{a2}, 0xbfb8aa3b, v{a2}
    v_mul_f32 v{b2}, 0x3e22f983, v{b2}
    v_add_f32 v{Hreg[0]}, v6, v6
    v_add_f32 v{Hreg[0]+1}, v7, v7
    v_mul_f32 v{vDM}, v{vDM}, v{dsk}''')
    def direct(D, pw, t):
        o = []
        if pw != 1: o += [f'v_mul_f32 v{t}, {float(pw)}, v{a2}', f'v_mul_f32 v{t+1}, {float(pw)}, v{b2}', f'v_exp_f32 v{t}, v{t}', f'v_fract_f32 v{t+1}, v{t+1}']
        else: o += [f'v_exp_f32 v{t}, v{a2}', f'v_fract_f32 v{t+1}, v{b2}']
        o += [f'v_cos_f32 v{D}, v{t+1}', f'v_sin_f32 v{D+1}, v{t+1}', f'v_mul_f32 v{D}, v{D}, v{t}', f'v_mul_f32 v{D+1}, v{D+1}, v{t}']
        return o
    p.extend(merge([direct(Lreg[1], 8, 0), direct(Z256, 256, 2), direct(Z1, 1, 8)]))
    cv = [130]
    def put(reg, row, neg):
        t = cv[0]
        return [f'v_cvt_pk_bf16_f32 v{t}, v{reg}, {"-" if neg else ""}v{reg+1}', f'ds_write_b32 v{vKA}, v{t} offset:{row*KR}']
    ph = lambda h: put(Hreg[h], 32 + HI.index(h), True)
    pl = lambda k: put(Lreg[k], k, False)
    cv[0] = 130
    c1 = cmul(Lreg[2], Lreg[1], Lreg[1]) + pl(1) + cmul(Lreg[4], Lreg[2], Lreg[2]) + pl(2)
    cv[0] = 131
    c2 = cmul(Z2, Z1, Z1) + ph(0) + cmul(Lreg[3], Lreg[2], Lreg[1]) + cmul(Z4, Z2, Z2)
    cv[0] = 132
    c3 = cmul(Hreg[256], Hreg[0], Z256) + cmul(Hreg[1], Hreg[0], Z1) + ph(256) + ph(1)
    p.extend(merge([c1, c2, c3]))
    chains = []
    for k0 in range(1, 5):
        c = []; cv[0] = 132 + k0
        for k in range(k0, 32, 4):
            if k + 4 < 32: c += cmul(Lreg[k + 4], Lreg[k], Lreg[4])
            if k > 2: c += pl(k)
        chains.append(c)
    c = []; cv[0] = 137
    for h in range(2, 8): c += cmul(Hreg[h], Hreg[h - 1], Z1) + ph(h)
    for h in (258, 260, 262): c += cmul(Hreg[h], Hreg[h - 2], Z2) + ph(h)
    chains.append(c)
    c = []; cv[0] = 138
    for h in range(512, 2049, 256):
        c += cmul(Hreg[h], Hreg[h - 256], Z256) + ph(h)
        if h in (512, 768): c += cmul(Hreg[h + 4], Hreg[h], Z4) + ph(h + 4)
    chains.append(c)
    p.extend(merge(chains))
    n = len(p.ins); at = [[] for _ in range(n)]
    for a, b, lst in fills:
        for i, x in enumerate(lst): at[min(n - 1, int(n * (a + (b - a) * i / len(lst))))].append(x)
    for I, x in zip(p.ins, at): p0.extend([I]); p0.extend(x)
def kgen_mfma(p, fill=(), part=2, mid=()):
    ra, rb, rc, t0, t1 = 140, 141, 142, 2, 3
    if part != 1: kgen_mfma_setup(p, ra, rb, rc, t0, t1)
    if part != 0: kgen_mfma_run(p, fill, ra, rb, rc, mid)
def kgen_mfma_setup(p, ra, rb, rc, t0, t1):
    p(f'''s_lshr_b32 s{sT0}, s{sW}, 1
    s_mul_i32 s{sT0}, s{sT0}, {KTS}
    s_add_u32 s{sT0}, s{sT0}, {KT}
    s_and_b32 s{sT1}, s{sW}, 1
    s_mul_i32 s{sT1}, s{sT1}, {16*KR}
    v_and_b32 v{t0}, 15, v{vL}
    v_lshrrev_b32 v{t1}, 4, v{vL}
    v_lshl_add_u32 v{t1}, v{t1}, 4, s{sT0}
    v_mad_u32_u24 v{ra}, v{t0}, {'s'+str(sT3)}, v{t1}
    v_min_u32 v{t0}, 4, v{t0}
    v_mad_u32_u24 v{rc}, v{t0}, {'s'+str(sT3)}, v{t1}
    v_add_u32 v{rb}, s{sT1}, v{ra}'''.replace('v_and_b32', f's_mov_b32 s{sT3}, {KR}\n    v_and_b32', 1))
def kgen_mfma_run(p, fill, ra, rb, rc, mid=()):
    p('s_waitcnt lgkmcnt(0)\ns_barrier')
    fill = list(fill); nf = len(fill)
    F = lambda ks, i: 16 + 12 * ks + 4 * i
    for ks in range(8):
        for j, (r, off) in enumerate(((rb, 0), (ra, 32 * KR), (rc, 48 * KR))):
            p(f'ds_read_b128 {vr(F(ks,j),4)}, v{r} offset:{64*ks + off}')
            i = 3 * ks + j; p.extend(fill[nf * i // 24: nf * (i + 1) // 24])
        if ks >= 3:
            k = ks - 3
            for mt in range(2): p(f'v_mfma_f32_16x16x32_bf16 {vr(4+4*mt,4)}, {vr(F(k,1+mt),4)}, {vr(F(k,0),4)}, {"0" if k == 0 else vr(4+4*mt,4)}')
    for k in range(5, 8):
        for mt in range(2): p(f'v_mfma_f32_16x16x32_bf16 {vr(4+4*mt,4)}, {vr(F(k,1+mt),4)}, {vr(F(k,0),4)}, {vr(4+4*mt,4)}')
    p.extend(mid)
    p(f'''v_add_f32 v4, v4, v{vDM}
    v_cvt_pk_bf16_f32 v5, v4, v5
    v_cvt_pk_bf16_f32 v6, v6, v7
    v_cvt_pk_bf16_f32 v8, v8, v9
    v_cvt_pk_bf16_f32 v10, v10, v11
    ds_write_b32 v{vTA}, v5
    ds_write_b32 v{vTA+1}, v6
    ds_write_b16 v{vTA+2}, v8 offset:1024
    ds_write_b16_d16_hi v{vTA+2}, v8 offset:1088
    ds_write_b16 v{vTA+2}, v10 offset:1152
    ds_write_b16_d16_hi v{vTA+2}, v10 offset:1216''')
def zero_fill():
    return ['v_mov_b32 v196, 0\nv_mov_b32 v197, 0', 'v_mov_b32 v198, 0\nv_mov_b32 v199, 0', f'ds_write_b128 v{vZA}, v[196:199]']
def expand():
    B, A, wa = vGA, vGA + 8, 200
    rd = [f'''s_lshr_b32 s{sT0}, s{sW}, 1
    s_mul_i32 s{sT0}, s{sT0}, {IMS}
    s_and_b32 s{sT1}, s{sW}, 1
    s_lshl_b32 s{sT1}, s{sT1}, 11
    s_add_u32 s{sT0}, s{sT0}, s{sT1}
    s_add_u32 s{sT0}, s{sT0}, {IMG}
    v_lshl_add_u32 v{wa}, v{vL}, 5, s{sT0}''']
    for k in range(8): rd += [f'ds_read_u16 v{A+k}, v{A+k}', f'ds_read_u16 v{B+k}, v{B+k}']
    rd.append(f'ds_read_u16 v{A+8}, v{A+8}')
    wr = []
    for k in range(8):
        wr.append(f'v_lshl_or_b32 v{192+k}, v{B+k}, 16, v{A+k}\nv_lshl_or_b32 v{B+k}, v{A+k+1}, 16, v{B+k}')
        if k & 3 == 3: wr += [f'ds_write_b128 v{wa}, {vr(189+k,4)} offset:{4*(k-3)}', f'ds_write_b128 v{wa}, {vr(B+k-3,4)} offset:{4160 + 4*(k-3)}']
    return rd, wr
vU = 224
def u_loads(p):
    t0, t1 = 232, 233
    p(f'''s_lshr_b32 s{sT0}, s{sPI}, 1
    s_lshl_b32 s{sT0}, s{sT0}, 14
    s_and_b32 s{sT1}, s{sPI}, 1
    s_lshl_b32 s{sT1}, s{sT1}, 5
    s_add_u32 s{sT0}, s{sT0}, s{sT1}
    s_lshl_b32 s{sT1}, s{sW}, 11
    s_add_u32 s{sT0}, s{sT0}, s{sT1}
    s_add_u32 s{sT0}, s{sT0}, {WS_UT}
    s_add_u32 s{sT1}, s{sT0}, 8192
    v_lshrrev_b32 v{t0}, 1, v{vL}
    v_and_b32 v{t1}, 1, v{vL}
    v_lshlrev_b32 v{t1}, 4, v{t1}
    v_lshl_add_u32 v{t0}, v{t0}, 6, v{t1}
    buffer_load_dwordx4 {vr(vU,4)}, v{t0}, {srd(S_WS)}, s{sT0} offen sc1
    buffer_load_dwordx4 {vr(vU+4,4)}, v{t0}, {srd(S_WS)}, s{sT1} offen sc1''')
def u_put():
    t0, t1 = 232, 233
    return [f'''s_lshl_b32 s{sT0}, s{sW}, 9
    s_add_u32 s{sT0}, s{sT0}, {UIM + 512}
    v_lshrrev_b32 v{t0}, 1, v{vL}
    v_and_b32 v{t1}, 1, v{vL}''', f'''v_mul_u32_u24 v{t1}, {UIS}, v{t1}
    v_lshl_add_u32 v{t0}, v{t0}, 4, v{t1}
    v_add_u32 v{t0}, s{sT0}, v{t0}''',
    f'ds_write_b128 v{t0}, {vr(vU,4)}', f'ds_write_b128 v{t0}, {vr(vU+4,4)} offset:2048']
AR, BR = 248, 252
CA = lambda b, a: 32 + 64 * b + 4 * a
CB = lambda b, j: 64 + 64 * b + 4 * j
def conv_setup(p):
    t0, t1, t2, t3 = 192, 193, 194, 195
    sT0, sT1, sT2, sT3 = 20, 21, 22, 23
    p(f'''s_lshr_b32 s{sT0}, s{sW}, 1
    s_and_b32 s{sT1}, s{sW}, 1
    s_lshl_b32 s{sT1}, s{sT1}, 8
    s_mul_i32 s{sT2}, s{sT0}, {IMS}
    s_sub_u32 s{sT2}, s{sT2}, s{sT1}
    s_add_u32 s{sT2}, s{sT2}, {IMG + 8220 - 192 - 512}
    s_mul_i32 s{sT3}, s{sT0}, {UIS}
    s_sub_u32 s{sT3}, s{sT3}, s{sT1}
    s_add_u32 s{sT3}, s{sT3}, {UIM + 480 - 192}
    v_and_b32 v{t0}, 15, v{vL}
    v_lshrrev_b32 v{t1}, 4, v{vL}
    v_lshlrev_b32 v{t1}, 4, v{t1}
    v_lshl_add_u32 v{t2}, v{t0}, 5, v{t1}
    v_add_u32 v{BR}, s{sT3}, v{t2}
    v_and_b32 v{t2}, 1, v{vL}
    v_mul_u32_u24 v{t2}, 4158, v{t2}
    v_lshl_add_u32 v{t2}, v{t0}, 1, v{t2}
    v_sub_u32 v{t2}, v{t1}, v{t2}
    v_add_u32 v{AR}, s{sT2}, v{t2}
    v_subrev_u32 v{AR+1}, 1024, v{AR}
    v_subrev_u32 v{AR+2}, 2048, v{AR}
    v_subrev_u32 v{AR+3}, 3072, v{AR}''')
UA = [0]
def conv_reads(d):
    b = d & 1; o = []
    def A(a):
        off = 16 * (3 - d) + (128 if a % 2 == 0 else 0)
        if UA[0] == 1: return [f'ds_read_b128 {vr(CA(b,a),4)}, v{AR+a//2} offset:{4*off}', []]
        if UA[0] == 2: return [f'ds_read_b64 {vr(CA(b,a)+2*h,2)}, v{AR+a//2} offset:{4*off+8*h}' for h in range(2)]
        return [f'ds_read2_b32 {vr(CA(b,a)+2*h,2)}, v{AR+a//2} offset0:{off+2*h} offset1:{off+2*h+1}' for h in range(2)]
    o += A(0)
    for j in range(8): o.append(f'ds_read_b128 {vr(CB(b,j),4)}, v{BR} offset:{512*j + 64*(3-d)}')
    for a in range(1, 8): o += A(a)
    return o
def conv(p, extra=None, done=None):
    rest0 = conv_reads(0)[12:]
    for d in range(4):
        b = d & 1; mf = []; fin = {}
        for a in range(8):
            for j in range(a, 8):
                if d == 3 and j == a: fin[len(mf) + 3] = j
                mf.append(f'v_mfma_f32_16x16x32_bf16 {vr(4*j,4)}, {vr(CA(b,a),4)}, {vr(CB(b,j-a),4)}, {"0" if d == 0 and a == 0 else vr(4*j,4)}')
        if done: mf = [G([x] + (done(fin[i]) if i in fin else [])) for i, x in enumerate(mf)]
        fill = (rest0 if d == 0 else []) + (conv_reads(d + 1) if d < 3 else [])
        weave(p, mf, fill, (extra or {}).get(d, []), end=34)
        if d == 3 and done:
            for i in sorted(fin):
                if i >= len(mf): p.extend(done(fin[i]))
vCW, vCR, vCV, sAT = 246, 247, 234, 13
def conv_done(j): return [f'ds_write_b128 v{vCW}, {vr(4*j,4)} offset:{RED + 1024*j}']
def conv_out_setup(p):
    wa, ra, va, t0, t1 = vCW, vCR, vCV, 192, 193
    sT0, sT1 = 20, 21
    p(f'''s_lshl_b32 s{sT0}, s{sW}, 13
    v_lshrrev_b32 v{t0}, 5, v{vL}
    v_lshlrev_b32 v{t0}, 3, v{t0}
    v_xor_b32 v{t0}, v{t0}, v{vL}
    v_lshl_add_u32 v{wa}, v{t0}, 4, s{sT0}
    s_lshr_b32 s{sT0}, s{sW}, 1
    s_lshl_b32 s{sT0}, s{sT0}, 14
    s_and_b32 s{sT1}, s{sW}, 1
    s_lshl_b32 s{sT1}, s{sT1}, 12
    s_add_u32 s{sT0}, s{sT0}, s{sT1}
    v_and_b32 v{t0}, 1, v{vL}
    v_bfe_u32 v{t1}, v{vL}, 1, 4
    v_lshl_add_u32 v{t1}, v{t0}, 5, v{t1}
    v_lshlrev_b32 v{t0}, 3, v{t0}
    v_xor_b32 v{t1}, v{t1}, v{t0}
    v_lshrrev_b32 v{t0}, 5, v{vL}
    v_lshl_add_u32 v{t1}, v{t0}, 6, v{t1}
    v_lshl_add_u32 v{ra}, v{t1}, 4, s{sT0}
    v_lshlrev_b32 v{va}, 4, v{vL}
    s_lshl_b32 s{sT0}, s{sPI}, 2
    s_add_u32 s{sT0}, s{sT0}, s{sW}
    s_lshl_b32 s{sT0}, s{sT0}, 11
    s_add_u32 s{sAT}, s{sT0}, {WS_AT}''')
def conv_out(p, pre=(), mid=()):
    ra, va = vCR, vCV
    p.extend(pre)
    p('s_waitcnt lgkmcnt(0)\ns_barrier')
    R = lambda i, h, k: 32 + 16 * i + 8 * k + 4 * h
    for i in range(2):
        for h in range(2):
            for k in range(2): p(f'ds_read_b128 {vr(R(i,h,k),4)}, v{ra} offset:{RED + 8192*k + 2048*i + 256*h}')
    p.extend(mid)
    for i in range(2):
        for e in range(0, 8, 2): p(f'v_pk_add_f32 {vr(R(i,0,0)+e,2)}, {vr(R(i,0,0)+e,2)}, {vr(R(i,0,1)+e,2)}')
        for e in range(4): p(f'v_cvt_pk_bf16_f32 v{4*i+e}, v{R(i,0,0)+2*e}, v{R(i,0,0)+2*e+1}')
        p(f'buffer_store_dwordx4 {vr(4*i,4)}, v{va}, {srd(S_WS)}, s{sAT} offen offset:{1024*i} sc1', 'ast')

def k_conv(dbg=False):
    p = Prog(); prologue(p)
    par_zero(p); par_loads(p); u_loads(p); tail_setup(p)
    kgen_valu(p); kgen_mfma(p); u_put(p); expand(p); conv(p); conv_out(p)
    if dbg:
        p(f's_barrier\nv_lshl_add_u32 v0, s{sW}, 6, v{vL}\nv_lshlrev_b32 v0, 4, v0\ns_lshl_b32 s{sT0}, s2, 15\ns_add_u32 s{sT0}, s{sT0}, 0x2000000\nv_add_u32 v1, {TL}, v0')
        for i in range(8):
            p(f'ds_read_b128 v[4:7], v1 offset:{4096*i}\nbuffer_store_dwordx4 v[4:7], v0, {srd(S_WS)}, s{sT0} offen\ns_add_u32 s{sT0}, s{sT0}, 4096\ns_nop 1')
    p('s_endpgm')
    return p

vWA = 236
sWD, sWE, sHX, sHE, sR2 = 4, 5, 6, 7, 8
def rot2_setup(p, on=True):
    if not on: p(f's_mov_b32 s{sR2}, 0'); return
    if on == 2:
        p(f's_add_u32 s{sT0}, s{sJ}, s{sDT}\ns_and_b32 s{sT0}, s{sT0}, 1\ns_mul_i32 s{sR2}, s{sT0}, 7'); return
    if on == 4:
        p(f's_add_u32 s{sT0}, s{sJ}, s{sDT}\ns_and_b32 s{sT0}, s{sT0}, 3\ns_mul_i32 s{sT0}, s{sT0}, 7\ns_lshr_b32 s{sR2}, s{sT0}, 1'); return
    p(f'''s_and_b32 s{sT0}, s{sJ}, 3
    s_mul_i32 s{sT0}, s{sT0}, 7
    s_lshr_b32 s{sT0}, s{sT0}, 1
    s_mul_i32 s{sT1}, s{sDT}, 7
    s_lshr_b32 s{sT1}, s{sT1}, 2
    s_add_u32 s{sT0}, s{sT0}, s{sT1}
    s_sub_u32 s{sT1}, s{sT0}, 14
    s_cmp_ge_u32 s{sT0}, 14
    s_cselect_b32 s{sR2}, s{sT1}, s{sT0}''')
def wd_setup(p):
    p(f'''s_lshl_b32 s{sT0}, s{sDT}, 2
    s_add_u32 s{sT0}, s{sT0}, s{sW}
    s_mul_i32 s{sT0}, s{sT0}, 57344
    s_add_u32 s{sT0}, s{sT0}, {WS_WDT}
    s_add_u32 s{sWE}, s{sT0}, 57344
    s_lshl_b32 s{sT1}, s{sR2}, 12
    s_add_u32 s{sWD}, s{sT0}, s{sT1}
    s_and_b32 s{sT1}, s{sW}, 1
    s_lshl_b32 s{sT1}, s{sT1}, 10
    v_lshl_add_u32 v{vWA}, v{vL}, 4, s{sT1}
    v_xor_b32 v{vWA+1}, 1024, v{vWA}''')
WRAP = [0]
def wrap(r, e, step, span, t):
    if not WRAP[0]: return f'\ns_add_u32 s{r}, s{r}, {step}'
    return f'\ns_add_u32 s{r}, s{r}, {step}\ns_sub_u32 s{t}, s{r}, {span}\ns_cmp_ge_u32 s{r}, s{e}\ns_cselect_b32 s{r}, s{t}, s{r}'
def wd_loads():
    o = []
    for s in range(28):
        for al in range(2):
            o.append(f'buffer_load_dwordx4 {ar(8*s+4*al,4)}, v{vWA+al}, {srd(S_WS)}, s{sWD} offen offset:{2048*(s&1)} sc1')
        if s & 1 and s < 27: o[-1] += wrap(sWD, sWE, 4096, 57344, 9)
    return o
NB = 12
vHB, vHA, vGAa, vG, vAT = 64, 160, 164, 246, 184
def acc2(al, be): return 16 * (al + 2 * be)
def h_setup(p):
    t0, t1 = 182, 183
    p(f'''s_mul_i32 s{sT0}, s{sW}, {56*32768}
    s_lshl_b32 s{sT1}, s{sST}, 10
    s_add_u32 s{sT0}, s{sT0}, s{sT1}
    s_add_u32 s{sT0}, s{sT0}, {WS_H}
    s_add_u32 s{sHE}, s{sT0}, {28*65536}
    s_lshl_b32 s{sT1}, s{sR2}, 17
    s_add_u32 s{sHX}, s{sT0}, s{sT1}
    s_lshr_b32 s{sT1}, s{sW}, 1
    s_lshl_b32 s{sT1}, s{sT1}, 9
    v_lshrrev_b32 v{t0}, 5, v{vL}
    v_and_b32 v{t1}, 31, v{vL}
    v_lshl_add_u32 v{t1}, v{t1}, 4, s{sT1}
    v_lshl_add_u32 v{vHA}, v{t0}, 15, v{t1}
    v_xor_b32 v{vHA+1}, 512, v{vHA}''')
def h_touch():
    t0 = 182
    return [f'''s_lshr_b32 s{sT1}, s{sHE}, 0
    s_sub_u32 s{sT1}, s{sT1}, {28*65536}
    s_lshl_b32 s{sT0}, s{sDT}, 7
    v_min_u32 v{t0}, 55, v{vL}
    v_lshl_add_u32 v{t0}, v{t0}, 15, s{sT0}
    buffer_load_dword v{vTD}, v{t0}, {srd(S_WS)}, s{sT1} offen sc1''']
def h_loads(s):
    o = [f'buffer_load_dwordx4 {vr(vHB + 8*(s%NB) + 4*be, 4)}, v{vHA+be}, {srd(S_WS)}, s{sHX} offen sc1' for be in range(2)]
    if s < 27: o[-1] += wrap(sHX, sHE, 65536, 28*65536, 10) if s & 1 else f'\ns_add_u32 s{sHX}, s{sHX}, 65536'
    return o
def a_loads():
    t0, t1 = 182, 183
    return [f'''s_and_b32 s{sT0}, s{sW}, 1
    s_lshl_b32 s{sT1}, s{sDT}, 1
    s_add_u32 s{sT0}, s{sT0}, s{sT1}
    s_lshl_b32 s{sT0}, s{sT0}, 17
    s_lshr_b32 s{sT1}, s{sW}, 1
    s_lshl_b32 s{sT2}, s{sST}, 1
    s_add_u32 s{sT1}, s{sT1}, s{sT2}
    s_lshl_b32 s{sT2}, s{sT1}, 6
    s_add_u32 s{sT0}, s{sT0}, s{sT2}
    s_add_u32 s11, s{sT0}, {WS_AT}
    s_add_u32 s12, s11, 65536''',
    f'''v_lshrrev_b32 v{t0}, 2, v{vL}
    v_and_b32 v{t1}, 3, v{vL}
    v_lshlrev_b32 v{t1}, 4, v{t1}
    v_lshl_add_u32 v{t0}, v{t0}, 12, v{t1}''',
    f'buffer_load_dwordx4 {vr(vAT,4)}, v{t0}, {srd(S_WS)}, s11 offen sc1',
    f'buffer_load_dwordx4 {vr(vAT+4,4)}, v{t0}, {srd(S_WS)}, s12 offen sc1']
vPC, sFC = 247, 16
def a_clear(R):
    o = [f'''s_lshl_b32 s17, s{sPI}, 2
    s_add_u32 s17, s17, s{sW}
    s_lshl_b32 s17, s17, 11
    s_add_u32 s17, s17, {WS_AT}
    v_lshlrev_b32 v248, 4, v{vL}''', '\n'.join(f'v_accvgpr_write_b32 a{R+i}, -1' for i in range(4))]
    return o + [(f'buffer_store_dwordx4 {ar(R,4)}, v248, {srd(S_WS)}, s17 offen offset:{1024*i} sc1', 'clr') for i in range(2)]
def a_clear_flag():
    return [f's_and_b64 exec, s[{sM0}:{sM0+1}], 1\nbuffer_store_dword v{vONE}, off, {srd(S_WS)}, s{sFC} sc1\ns_mov_b64 exec, -1']
def g_load(p):
    t0 = 235
    p(f'''s_lshr_b32 s{sT1}, s{sW}, 1
    s_lshl_b32 s{sT2}, s{sST}, 1
    s_add_u32 s{sT1}, s{sT1}, s{sT2}
    s_lshl_b32 s{sT1}, s{sT1}, 7
    s_add_u32 s{sT1}, s{sT1}, {WS_G}
    v_and_b32 v{t0}, 31, v{vL}
    v_lshlrev_b32 v{t0}, 2, v{t0}
    buffer_load_dword v{vG}, v{t0}, {srd(S_WS)}, s{sT1} offen sc1''')
def a_use():
    t0, t1, t2 = 182, 183, 162
    o = [f'''s_lshl_b32 s{sT0}, s{sW}, 11
    s_add_u32 s{sT0}, s{sT0}, {AS}
    v_lshl_add_u32 v{t0}, v{vL}, 4, s{sT0}''',
    f'''v_lshrrev_b32 v{t1}, 5, v{vL}
    v_bfe_u32 v{t2}, v{vL}, 2, 2
    v_lshl_add_u32 v{t1}, v{t1}, 2, v{t2}''',
    f'''v_bfe_u32 v{t2}, v{vL}, 4, 1
    v_lshl_add_u32 v{t1}, v{t1}, 1, v{t2}
    v_and_b32 v{t2}, 3, v{vL}''',
    f'''v_lshl_add_u32 v{t1}, v{t1}, 2, v{t2}
    v_lshl_add_u32 v{t1}, v{t1}, 3, s{sT0}''',
    f'ds_write_b128 v{t0}, {vr(vAT,4)}', (f'ds_write_b128 v{t0}, {vr(vAT+4,4)} offset:1024', 'aw')]
    for q in range(4): o.append(f'ds_read_b64_tr_b16 {vr(vAT+2*q,2)}, v{t1} offset:{512*q}')
    o.append(f'v_sub_f32 v{vG+1}, 1.0, v{vG}\nv_cvt_pk_bf16_f32 v{vG+1}, v{vG+1}, v{vG+1}\nv_and_b32 v{vG+1}, 0xffff0000, v{vG+1}')
    for i in range(8):
        o.append(f'v_lshlrev_b32 v{vGAa+2*i}, 16, v{vAT+i}\nv_and_b32 v{vGAa+2*i+1}, 0xffff0000, v{vAT+i}')
        o.append(f'v_mul_f32 v{vGAa+2*i}, v{vG}, v{vGAa+2*i}\nv_mul_f32 v{vGAa+2*i+1}, v{vG}, v{vGAa+2*i+1}')
    return o
def gemm2(p, extra=None, pre=0, late=(), mark=lambda: [], omod='', LA=12, fin=(), tl=0, oa=0, mk=lambda n: [], fz=0):
    extra = extra or {}
    PW, PR, ti = 192, 195, 162
    M = lambda s, al, be: f'v_mfma_f32_32x32x16_bf16 {vr(acc2(al,be),16)}, {ar(8*s+4*al,4)}, {vr(vHB+8*(s%NB)+4*be,4)}, {"0" if s == 0 else vr(acc2(al,be),16)}'
    pend = [(s, x) for s in range(pre, 28) for x in h_loads(s)]
    for k in range(1, 4):
        p(f's_xor_b32 s{sT0}, s{sW}, {k}\ns_mul_i32 s{sT0}, s{sT0}, 12288\ns_add_u32 s{sT0}, s{sT0}, {P2 + 4096*(k-1)}\nv_lshl_add_u32 v{PW+k-1}, v{vL}, 4, s{sT0}')
    p(f's_mul_i32 s{sT0}, s{sW}, 12288\ns_add_u32 s{sT0}, s{sT0}, {P2}\nv_lshl_add_u32 v{PR}, v{vL}, 4, s{sT0}')
    t0, t1, va = 182, 183, 196
    oaddr = f'''s_lshr_b32 s{sT1}, s{sW}, 1
    s_lshl_b32 s{sT2}, s{sST}, 1
    s_add_u32 s{sT1}, s{sT1}, s{sT2}
    s_lshl_b32 s{sT1}, s{sT1}, 15
    s_and_b32 s{sT0}, s{sW}, 1
    s_lshl_b32 s{sT2}, s{sDT}, 1
    s_add_u32 s{sT0}, s{sT0}, s{sT2}
    s_lshl_b32 s{sT0}, s{sT0}, 6
    s_add_u32 s{sT0}, s{sT0}, s{sT1}
    v_and_b32 v{t0}, 31, v{vL}
    v_lshrrev_b32 v{t1}, 5, v{vL}
    v_lshl_add_u32 v{t1}, v{t1}, 4, s{sT0}
    v_lshl_add_u32 v{va}, v{t0}, 10, v{t1}'''
    if oa: p(oaddr)
    for s in range(28 - tl if tl else 24):
        mf = [M(s, 0, 0), M(s, 1, 0), M(s, 0, 1), M(s, 1, 1)]
        ex = extra.get(s, [])
        for m in range(4):
            p(mf[m]); p.extend(ex[len(ex) * m // 4: len(ex) * (m + 1) // 4])
            la = min(LA[1], LA[0] + (LA[1] - LA[0]) * s // LA[2]) if isinstance(LA, list) else LA if s < 23 else 5
            if pend and (m & 1 or pend[0][0] < s + la - 1):
                t = pend[0][0]; be = len(pend) & 1
                if t < s + la or (t == s + la and m >= 1 + 2 * be): p.extend([pend.pop(0)[1]])
    assert not pend
    W = lambda k: [f'ds_write_b128 v{PW+k-1}, {vr(acc2(k&1,k>>1)+4*q,4)} offset:{1024*q}' for q in range(4)]
    late = list(late); nl = len(late)
    if tl:
        seq = [(s, k) for s in range(28 - tl, 28) for k in (1, 3, 2)] + [(s, 0) for s in range(28 - tl, 28)]
        n3 = 3 * tl; ws = W(1) + W(3) + W(2)
        for i, (s, k) in enumerate(seq):
            p(M(s, k & 1, k >> 1))
            if n3 - 3 <= i < n3:
                for _ in range((2, 2, 1)[i - n3 + 3]):
                    if late: p.extend([late.pop(0)])
            elif i < n3 - 3:
                for _ in range(-(-(nl - 5) // (n3 - 3))):
                    if len(late) > 5: p.extend([late.pop(0)])
            if i >= n3 - 1:
                j = i - (n3 - 1)
                n = 12 if i == len(seq) - 1 else min(4 * (j + 1), 12)
                while 12 - len(ws) < n: p(ws.pop(0))
        p.extend(late)
    else:
        prev = []
        for k in (3, 1, 2, 0):
            al, be = k & 1, k >> 1
            mf = [M(s, al, be) for s in range(24, 28)]
            for m in range(4):
                p(mf[m])
                if m >= 1: p.extend(prev[(m - 1) * 2: m * 2])
                for _ in range(-(-nl // 14)):
                    if late: p.extend([late.pop(0)])
            prev = W(k) if k else []
    p.extend(mark())
    if not oa: p(oaddr)
    p('s_waitcnt lgkmcnt(0)'); p.extend(mk('b1')); p('s_barrier'); p.extend(mk('b2'))
    Q = lambda k, q: 64 + 16 * k + 4 * q
    if fz:
        assert not fin
        sel = 'op_sel:[0,1,0] op_sel_hi:[1,1,1]'
        R = lambda q: [(f'ds_read_b128 {vr(Q(k,q),4)}, v{PR} offset:{4096*k + 1024*q}', f'xq{q}') for k in range(3)]
        own = [f'v_pk_fma_f32 {vr(r,2)}, {vr(r,2)}, {vr(vG,2)}, {vr(vGAa+r,2)} {sel}' for r in range(0, 16, 2)]
        def C(q):
            o = [f'v_pk_fma_f32 {vr(4*q+e,2)}, {vr(Q(k,q)+e,2)}, {vr(vG,2)}, {vr(4*q+e,2)} {sel}' for k in range(3) for e in (0, 2)]
            o += [f'v_cvt_pk_bf16_f32 v{16 + 2*q + e//2}, v{4*q+e}, v{4*q+e+1}' for e in (0, 2)] + mk(f'r{q}')
            if q & 1:
                D = 16 + 2 * (q - 1)
                o += [f'v_permlane32_swap_b32 v{D}, v{D+2}', f'v_permlane32_swap_b32 v{D+1}, v{D+3}',
                      f'buffer_store_dwordx4 {vr(D,4)}, v{va}, {srd(S_OUT)}, 0 offen offset:{16*(q-1)} {omod}']
            return o
        rd = R(0) + R(1) + R(2) + R(3); n0, n1, fw = fz; n2 = 12 - n0 - n1; Wq = lambda q: [Ins(f'WAITLG xq{q}')] if fw else []
        p.extend(rd[:n0])
        for i in range(n1):
            p.extend(own[8 * i // n1: 8 * (i + 1) // n1] + [rd[n0 + i]])
        if not n1: p.extend(own)
        c = C(0); p.extend(Wq(0))
        for i in range(n2):
            p.extend(c[8 * i // n2: 8 * (i + 1) // n2] + [rd[n0 + n1 + i]])
        p.extend(c[8 if n2 else 0:] + Wq(1) + C(1) + Wq(fw) + C(2) + Wq(3) + C(3))
        return
    for q in range(4):
        for k in range(3): p(f'ds_read_b128 {vr(Q(k,q),4)}, v{PR} offset:{4096*k + 1024*q}')
    p.extend(fin)
    for q in range(4):
        for e in (0, 2):
            r = 4 * q + e
            p(f'''v_pk_add_f32 {vr(r,2)}, {vr(r,2)}, {vr(Q(0,q)+e,2)}
            v_pk_add_f32 {vr(Q(1,q)+e,2)}, {vr(Q(1,q)+e,2)}, {vr(Q(2,q)+e,2)}''')
        for e in (0, 2):
            r = 4 * q + e
            p(f'v_pk_add_f32 {vr(r,2)}, {vr(r,2)}, {vr(Q(1,q)+e,2)}')
        for e in (0, 2):
            r = 4 * q + e
            p(f'v_pk_fma_f32 {vr(r,2)}, {vr(r,2)}, {vr(vG,2)}, {vr(vGAa+r,2)} op_sel:[0,1,0] op_sel_hi:[1,1,1]')
        for e in (0, 2):
            r = 4 * q + e
            p(f'v_cvt_pk_bf16_f32 v{16 + 2*q + e//2}, v{r}, v{r+1}')
        p.extend(mk(f'r{q}'))
        if q & 1:
            R = 16 + 2 * (q - 1)
            p(f'v_permlane32_swap_b32 v{R}, v{R+2}\nv_permlane32_swap_b32 v{R+1}, v{R+3}')
            p(f'buffer_store_dwordx4 {vr(R,4)}, v{va}, {srd(S_OUT)}, 0 offen offset:{16*(q-1)} {omod}')

def spread(lst, a, b):
    n = b - a
    return {a + i: lst[len(lst) * i // n: len(lst) * (i + 1) // n] for i in range(n)}
def k_g2():
    p = Prog(); prologue(p)
    wd_setup(p); p.extend(wd_loads()); g_load(p); h_setup(p)
    ex = spread(a_loads(), 2, 4); ex.update(spread(a_use(), 12, 22))
    gemm2(p, ex)
    p('s_endpgm')
    return p

WS_STAMP = 0x3000000
class Fused:
    def __init__(s, stamps=False):
        s.p = Prog(); s.nap = 0; s.slow = []; s.stamps = stamps; s.ns = 0; s.want = stamps or []
    def stamp(s, name=None):
        if not s.stamps or (name is not None and name not in s.want): return []
        o = []
        if s.ns: o.append(f's_mov_b32 s{87 + s.ns}, s100')
        o.append('s_memtime s[100:101]'); s.ns += 1
        return o
    def stamp_out(s):
        if not s.stamps: return
        p = s.p
        p(f's_mov_b32 s{87 + s.ns}, s100\ns_lshl_b32 s{sT0}, s2, 2\ns_add_u32 s{sT0}, s{sT0}, s{sW}\ns_lshl_b32 s{sT0}, s{sT0}, 6\ns_add_u32 s{sT0}, s{sT0}, {WS_STAMP}\ns_mov_b64 exec, 1')
        p(f's_memrealtime s[100:101]\nv_mov_b32 v1, s34\nbuffer_store_dword v1, off, {srd(S_WS)}, s{sT0} offset:48\nv_mov_b32 v1, s100\nbuffer_store_dword v1, off, {srd(S_WS)}, s{sT0} offset:52')
        if 'dbg' in s.want:
            L = p.label('nodbg')
            p(f's_not_b32 s{sT1}, s34\nv_mov_b32 v1, s{sT1}\nv_mov_b32 v2, s100\nbuffer_atomic_umax v1, off, {srd(S_DBG)}, 0 offset:4\nbuffer_atomic_umax v2, off, {srd(S_DBG)}, 0 offset:8')
            p(f'v_mov_b32 v1, s34\nbuffer_atomic_umax v1, off, {srd(S_DBG)}, 0 offset:12')
            p(f's_cmp_lg_u32 s2, 77\ns_cbranch_scc1 {L}\ns_cmp_lg_u32 s{sW}, 1\ns_cbranch_scc1 {L}')
            for i in range(1, s.ns): p(f's_sub_u32 s{sT1}, s{88+i}, s88\nv_mov_b32 v1, s{sT1}\nbuffer_store_dword v1, off, {srd(S_DBG)}, 0 offset:{12+4*i}', 'untracked')
            p(f'{L}:')
            return
        for i in range(s.ns): p(f'v_mov_b32 v1, s{88+i}\nbuffer_store_dword v1, off, {srd(S_WS)}, s{sT0} offset:{4*i}')
    def poll_issue(s, dst, va, S, n=1, m=False):
        x = f'buffer_load_dword{"x2" if n == 2 else ""} {vr(dst,n)}, v{va}, {srd(S)}, 0 offen sc1'
        return [f's_mov_b64 exec, s[{sM0}:{sM0+1}]\n{x}\ns_mov_b64 exec, -1' if m else x]
    def poll_check(s, dst, va, S, n=1, m=False):
        Ls, Lr, Ll = s.p.label('slow'), s.p.label('ret'), s.p.label('spin')
        chk = (f'v_and_b32 v{dst}, v{dst}, v{dst+1}\n' if n == 2 else '') + f'v_cmp_ne_u32 vcc, 1, v{dst}\n'
        s.slow.append(f'''{Ls}:
        s_mov_b32 s{sSP}, 0x4000
        {Ll}:
        {f's_sleep {s.nap}' if s.nap and not s.nap1 else ''}
        {s.poll_issue(dst, va, S, n)[0]}
        s_waitcnt vmcnt(0) lgkmcnt(0)
        {chk}s_cbranch_vccz {Lr}
        {f's_sleep {s.nap}' if s.nap and s.nap1 else ''}
        s_sub_u32 s{sSP}, s{sSP}, 1
        s_cmp_lg_u32 s{sSP}, 0
        s_cbranch_scc1 {Ll}
        s_branch {Lr}''')
        if m: chk = f's_mov_b64 exec, s[{sM0}:{sM0+1}]\n{chk}s_mov_b64 exec, -1\n'
        return [chk + f's_cbranch_vccnz {Ls}\n{Lr}:']
    def a_check(s):
        Ls, Lr, Ll = s.p.label('slow'), s.p.label('ret'), s.p.label('spin'); t = 183
        chk = ''.join(f'v_max3_u32 v{t}, v{vAT+2*i}, v{vAT+2*i+1}, v{t if i else vAT+7}\n' for i in range(3)) + f'v_max_u32 v{t}, v{t}, v{vAT+6}\nv_cmp_eq_u32 vcc, -1, v{t}\n'
        s.slow.append(f'''{Ls}:
        s_mov_b32 s{sSP}, 0x4000
        s_mov_b32 s18, 0
        {Ll}:
        {f's_sleep {s.nap}' if s.nap else ''}
        {a_loads()[2]}
        {a_loads()[3]}
        {s.poll_issue(vF, vPA, S_WS)[0]}
        s_waitcnt vmcnt(0) lgkmcnt(0)
        {chk}s_cbranch_vccz {Lr}
        s_cmp_lg_u32 s18, 0
        s_cbranch_scc1 {Lr}
        v_cmp_ne_u32 vcc, 1, v{vF}
        s_nop 4
        s_cmp_eq_u64 vcc, 0
        s_cselect_b32 s18, 1, 0
        s_sub_u32 s{sSP}, s{sSP}, 1
        s_cmp_lg_u32 s{sSP}, 0
        s_cbranch_scc1 {Ll}
        s_branch {Lr}''')
        return [chk + f's_cbranch_vccnz {Ls}\n{Lr}:']
    def flag(s, sreg, one):
        return [f's_mov_b64 exec, 1\nbuffer_store_dword v{one}, off, {srd(S_WS)}, s{sreg} sc1\ns_mov_b64 exec, -1']

sFH, sFA = 78, 79
sM0 = 14
vFW = 253
vONE, vPGO, vPWD, vPUT, vPH, vPA, vF = 238, 239, 240, 241, 242, 243, 244
def flag_mask(p):
    p(f's_cmp_eq_u32 s{sW}, 0\ns_cselect_b64 s[{sM0}:{sM0+1}], -1, 0')
def flag_setup(p, spare, mask=True):
    t0 = 192
    if mask: flag_mask(p)
    p(f'''v_mov_b32 v{vONE}, 1
    v_mov_b32 v{vPGO}, 0
    s_lshl_b32 s{sT0}, s{sW}, 3
    s_add_u32 s{sT0}, s{sT0}, s{sDT}
    s_add_u32 s{sT0}, s{sT0}, 192
    s_lshl_b32 s{sT0}, s{sT0}, 7
    v_and_b32 v{t0}, 3, v{vL}
    v_lshl_add_u32 v{vPWD}, v{t0}, 2, s{sT0}
    v_lshlrev_b32 v{t0}, 3, v{vL}
    v_add_u32 v{vPUT}, {224*128}, v{t0}
    s_lshl_b32 s{sT0}, s{sST}, 2
    s_add_u32 s{sT0}, s{sT0}, s{sW}
    s_lshl_b32 s{sT0}, s{sT0}, 7
    v_min_u32 v{t0}, 6, v{vL}
    v_lshl_add_u32 v{vPH}, v{t0}, 2, s{sT0}
    s_add_u32 s{sT0}, s{sST}, 192
    s_lshl_b32 s{sT0}, s{sT0}, 7
    s_add_u32 s{sT0}, s{sT0}, 16
    v_and_b32 v{t0}, 3, v{vL}
    v_lshl_add_u32 v{t0}, v{t0}, 2, s{sT0}
    v_cmp_gt_u32 vcc, 32, v{vL}
    v_cndmask_b32 v{vPH}, v{t0}, v{vPH}, vcc
    s_lshr_b32 s{sT0}, s{sST}, 4
    s_lshl_b32 s{sT0}, s{sT0}, 5
    s_lshl_b32 s{sT1}, s{sDT}, 2
    s_add_u32 s{sT0}, s{sT0}, s{sT1}
    s_and_b32 s{sT1}, s{sW}, 1
    s_lshl_b32 s{sT1}, s{sT1}, 1
    s_add_u32 s{sT0}, s{sT0}, s{sT1}
    s_add_u32 s{sT0}, s{sT0}, 128
    s_lshl_b32 s{sT0}, s{sT0}, 7
    v_and_b32 v{t0}, 15, v{vL}
    v_lshl_add_u32 v{vPA}, v{t0}, 2, s{sT0}
    v_bfe_u32 v{t0}, v{vL}, 4, 1
    v_lshl_add_u32 v{vPA}, v{t0}, 7, v{vPA}
    s_lshl_b32 s{sT0}, s{sPI}, 1
    s_lshr_b32 s{sT1}, s{sW}, 1
    s_add_u32 s{sT0}, s{sT0}, s{sT1}
    s_and_b32 s{sT1}, s{sT0}, 15
    s_lshr_b32 s{sT0}, s{sT0}, 4
    s_and_b32 s{sT2}, s{sW}, 1
    s_lshl_b32 s{sT2}, s{sT2}, 5
    s_add_u32 s{sT0}, s{sT0}, s{sT2}
    s_add_u32 s{sT0}, s{sT0}, 128
    s_lshl_b32 s{sT0}, s{sT0}, 5
    s_add_u32 s{sT0}, s{sT0}, s{sT1}
    s_lshl_b32 s{sFA}, s{sT0}, 2''')
    if spare:
        p(f's_lshl_b32 s{sT0}, s{sSI}, 2\ns_add_u32 s{sT0}, s{sT0}, s{sW}\ns_lshl_b32 s{sT0}, s{sT0}, 7\ns_add_u32 s{sFH}, s{sT0}, 0x8000')
    else:
        p(f'''s_lshl_b32 s{sT0}, s{sMI}, 2
        s_add_u32 s{sT0}, s{sT0}, s{sW}
        s_lshl_b32 s{sT0}, s{sT0}, 2
        s_and_b32 s{sT1}, s{sXCD}, 3
        s_add_u32 s{sT0}, s{sT0}, s{sT1}
        s_lshl_b32 s{sT0}, s{sT0}, 5
        s_add_u32 s{sT0}, s{sT0}, s{sDT}
        s_lshl_b32 s{sFH}, s{sT0}, 2''')
def deferred(fn, *a):
    mp = {f's{sT0}': 's9', f's{sT1}': 's10', f's{sT2}': 's16', f's{sT3}': 's17', 'v192': 'v196', 'v193': 'v197', 'v194': 'v198', 'v195': 'v199', 'v234': 'v200'}
    o = []; glue = False
    for I in as_list(fn, *a):
        x = re.sub(r'\b[sv]\d+\b', lambda m: mp.get(m.group(0), m.group(0)), I.text)
        if glue or x.startswith('v_cndmask'): o[-1] += '\n' + x
        else: o.append(x)
        glue = x.startswith(('v_cmp', 's_cmp', 's_cselect'))
    return o
def as_list(fn, *a):
    q = Prog(); fn(q, *a); return q.ins

def groups(ins, last):
    o = [[]]
    for I in ins:
        o[-1].append(I)
        if last(I): o.append([])
    return [g for g in o if g]
def flat(l): return [y for x in l for y in (x if isinstance(x, list) else [x])]
def k_fused(stamps=False, cfg=None):
    cfg = dict(db=12, gh=1, gl=0, sj=0, h0='', dm=999, df='fz', dk=[[0, 0], [0, 1], [0, 2], [1, 0], [1, 1]], tl=0, oa=1, fz=[5, 4, 3], hp2=6, rot='t', ct=250, omod='', na=99, la=6, xp=[[[6, 0], [6, 1]], [[6, 2], [6, 3]]], fast=1, hs='sc1', wsb=0, nt='', tch=[0.5, 10, 11], tw=1.5, n0=[8, 20, 34], nap=4, up=2, nw=[8, 10, 12, 6, 0], r2=0, ht=0, hp=[0, 4], xn=6, hflag=55, hpoll=120, sp=1, w3=0, ds=[1, 0, 4, 1], nap1=1, pe=1, ua=0, kh=1, pk1=1, w7=1, e0=4, sn=0, cs=[[1, 2], [2, 0], [2, 1], [2, 2], [2, 3], [3, 0]], av=0, ac=[[1, 2], 3], cpoll=90, ald=18, aflag=3, apoll=17, achk=21, f0=[0.0, 0.3, 0.75], sx=99, pg=[0, 2, 5], cw=[60, 138]) | (cfg or {})
    for k in MOD: MOD[k] = 'nt' if k in cfg['nt'].split(',') else ''
    SJ[0] = cfg['sj']; MOD['hs'] = cfg['hs']; WRAP[0] = cfg['r2']; UA[0] = cfg['ua']; DS[:] = cfg['ds']
    global WS_WDT, WS_UT, WS_G, WS_H, WS_AT
    WS_WDT, WS_UT, WS_G, WS_H, WS_AT = [cfg['wsb'] + x for x in (0x100000, 0x300000, 0x500000, 0x600000, 0xD00000)]
    F = Fused(stamps); p = F.p
    if stamps: p('s_memrealtime s[34:35]')
    p.extend(F.stamp()); prologue(p, cfg['rot'], cfg['ct'], True)
    Lsp, Ltail = p.label('spare'), p.label('tail')
    p(f's_lshl_b32 s{sPI}, s{sXCD}, 5\ns_add_u32 s{sPI}, s{sPI}, s{sJ}')
    p(f's_cmp_ge_u32 s{sJ}, 28\ns_cbranch_scc1 {Lsp}')
    tch = cfg['tch']; F.nap = cfg['nap']; F.nap1 = cfg['nap1']
    h0 = cfg['h0']
    SU = dict(g=g1_setup, r=g1_setup2, t=tail_setup, f=lambda p: flag_setup(p, False, False), k=lambda p: kgen_mfma(p, (), 0))
    for c in h0: SU[c](p)
    p.extend(F.stamp('h0e'))
    if cfg['pe'] or 'g' in h0:
        par_loads(p)
        if 'g' not in h0: g1_setup(p)
        srd_bases(p)
    else: g1_setup(p); par_loads(p); srd_bases(p)
    p.extend(F.stamp('pro'))
    T = []
    dm = g1_dma(0) + g1_dma(1); n0, n1, n2 = cfg['n0']; f0, f1, f2 = cfg['f0']
    p.extend(dm[:n0])
    p.extend(F.stamp('dma'))
    if cfg.get('pw'): p(f'v_mov_b32 v{vPAR+5}, v{vPAR+5}'); p.extend(F.stamp('pw'))
    prologue2(p, False)
    df = cfg['df']
    SU['t'] = lambda p: tail_setup(p, ''.join(c for c in 'eaz' if c not in df))
    for c in 'rtf':
        if c not in h0 and c not in df: SU[c](p)
    if 'f' in df: p(f'v_mov_b32 v{vPGO}, 0')
    flag_mask(p); rot2_setup(p, cfg['r2'])
    if cfg['kh'] and 'k' not in h0: kgen_mfma(p, (), 0)
    p.extend(F.stamp('setup'))
    if cfg.get('dbg0'):
        p(f'v_mov_b32 v{vPAR+5}, v{vPAR+5}'); p.extend(F.stamp('x0'))
        p.waitvm('dma0'); p.extend(F.stamp('x1'))
        if n0 > 17: p.waitvm('dma1'); p.extend(F.stamp('x2'))
    if stamps and 'par' in stamps: p(f'v_mov_b32 v{vPAR+5}, v{vPAR+5}'); p.extend(F.stamp('par'))
    kgen_valu(p, [(f0, f1, dm[n0:n1]), (f2, 0.99, dm[n1:n2])]); p.extend(F.stamp('kv'))
    dfl = [x for c in df for x in (deferred(flag_setup, False, False) if c == 'f' else deferred(tail_setup, c))]
    p.extend(dfl[:cfg['db']]); dfl = dfl[cfg['db']:]
    kgen_mfma(p, dm[n2:] + dfl[:cfg['dm']], 1 if cfg['kh'] else 2, g1_head() if cfg['gh'] else ()); dfl = dfl[cfg['dm']:]
    if not cfg['kh']: p('s_waitcnt lgkmcnt(0)')
    p.extend(F.stamp('km'))
    if stamps: p.waitvm('dma0'); p.extend(F.stamp('d0'))
    wl = wd_loads(); nw = cfg['nw']; pg, pw, pu = cfg['pg']
    post = {}; pre = {}
    for t in range(8):
        pre[t] = []
        if t == pg + 1: pre[t] += F.poll_check(vF, vPGO, S_DBG, 1, True)
        if t == pu + 1: pre[t] += F.poll_check(vF, vPUT, S_WS, 2, True)
        post[t] = F.stamp(f's{t}') if t < 7 else []
        if t == pg: post[t] += F.poll_issue(vF, vPGO, S_DBG, 1, True)
        if t == pw + 1 and not cfg['w3']: post[t] += F.poll_check(vFW, vPWD, S_WS) + F.stamp('wf') + as_list(wd_setup)
        if t == pu + 1: post[t] += as_list(u_loads)
        if t == pw: post[t] += F.poll_issue(vFW, vPWD, S_WS)
        if t == pu: post[t] += F.poll_issue(vF, vPUT, S_WS, 2, True)
    extra = {}
    def put(keys, lst):
        for i, k in enumerate(keys): extra.setdefault(tuple(k), []).extend(lst[len(lst) * i // len(keys): len(lst) * (i + 1) // len(keys)])
    for a, x in T:
        if a is not None and a >= 10: put([(a - 10, 2)], [G(x)])
    sn = cfg['sn']; assert not sn
    assert 't' not in h0 or not df
    put(cfg['dk'], dfl)
    put(cfg['cs'], as_list(conv_setup) + as_list(conv_out_setup))
    if sn: put([cfg['ac'][0]], a_clear(0)); pre[cfg['ac'][1]] += [Ins('WAITVM clr')]; post[cfg['ac'][1]] += a_clear_flag()
    rd, wr = expand()
    xp = cfg['xp']; put([(6, 0)], zero_fill()); put([tuple(k) for k in xp[0]], rd); put([tuple(k) for k in xp[1]], wr); put([(7, cfg['up'])], u_put() if pu < 6 else [])
    k = 0
    SPLIT[0] = sp = cfg['sp']
    if cfg['w3']:
        put([(3, 1)], [[]] * 3 + [G(F.poll_check(vFW, vPWD, S_WS) + as_list(wd_setup))]); k = cfg['w3']; put([('w', 3, 2), ('w', 3, 3)], wl[:k])
    for t, n in zip((4, 5, 6, 7), nw): put([('w', t, s) for s in range(2 if sp and t == 7 and cfg['w7'] else 4)], wl[k:k + n]); k += n
    if sp: put([(7, 1)], epi_setup()); put([(7, 2), (7, 3)], [[]] * cfg['e0'] + skew([epi(0, q, 0) for q in range(4)]))
    g1_main(p, extra, post, 2, pre, cfg['fast'], not cfg['gh']); p.extend(F.stamp('g1'))
    r0 = conv_reads(0)[:12]
    hook = {3: r0[:6] + r0[10:], 4: [r0[6]], 5: [r0[7]], 6: [r0[8]], 7: [r0[9]]} if pu < 6 else None
    if sp:
        p.extend(r0[:6] + r0[10:])
        p.extend(skew([epi(1, q, cfg['pk1'])[:-3] + [r0[6 + q]] + wl[k + nw[4] * q // 4: k + nw[4] * (q + 1) // 4] + epi(1, q, 1)[-3:] for q in range(4)]))
    else: g1_epilogue(p, wl[k:k + nw[4]], hook)
    k += nw[4]
    wrest = wl[k:]
    if pu >= 6: p.extend(u_put()); conv_setup(p); p('s_waitcnt lgkmcnt(0)\ns_barrier'); p.extend(r0)
    p(f'{Ltail}:'); p.extend(F.stamp())
    ex = {d: [[] for _ in range(34)] for d in range(4)}
    n0, n1 = cfg['cw']
    for i, x in enumerate(wrest):
        m = n0 + (n1 - n0) * i // len(wrest); ex[m // 34][m % 34].append(x)
    m = cfg['hflag']; ex[m // 34][m % 34][:0] = F.stamp('h0') + [Ins('WAITVM hst')] + F.stamp('h1') + F.flag(sFH, vONE)
    m = cfg['hpoll']; ex[m // 34][m % 34] += F.poll_issue(vF, vPH, S_WS)
    if sn: m = cfg['cpoll']; ex[m // 34][m % 34] += F.poll_issue(vFW, vPC, S_WS, 1, True)
    st = groups(as_list(h_setup), lambda I: I.kind == 'valu')
    for i, x in enumerate(st): ex[3][4 + 2 * i].append(G(x))
    conv(p, ex, conv_done); p.extend(F.stamp('cv'))
    hp0, hp1 = cfg['hp']
    chk = F.poll_check(vF, vPH, S_WS) + F.stamp('hf')
    if hp0: p.extend(chk); chk = []
    if sn: p.extend(F.poll_check(vFW, vPC, S_WS, 1, True))
    conv_out(p, pre=[x for s in range(hp0) for x in h_loads(s)], mid=chk + (h_touch() if cfg['ht'] == 1 else []) + [x for s in range(hp0, hp1) for x in h_loads(s)] + (h_touch() if cfg['ht'] == 2 else []))
    if not cfg['gl']: g_load(p)
    for s_ in range(hp1, cfg['hp2']): p.extend(h_loads(s_))
    if cfg['gl']: g_load(p)
    hp1 = max(hp1, cfg['hp2'])
    p.extend(F.stamp('co'))
    ex = {}
    for t in range(28 - cfg['tl'] if cfg['tl'] else 24):
        ex[t] = F.stamp(f'q{t}')
        if t == cfg['aflag']: ex[t] = ex[t] + [Ins('WAITVM ast')] + F.flag(sFA, vONE)
        if sn:
            if t == cfg['ald']: ex[t] = ex[t] + a_loads()
            if t == cfg['achk']: ex[t] = ex[t] + F.a_check() + F.stamp('af')
            continue
        if t == cfg['apoll']: ex[t] = ex[t] + F.poll_issue(vF, vPA, S_WS)
        if t == cfg['achk']: ex[t] = ex[t] + F.poll_check(vF, vPA, S_WS) + F.stamp('af') + a_loads()
    au = a_use(); na = cfg['na']
    if sn and cfg['achk'] >= 24: au = F.a_check() + F.stamp('af') + au
    if cfg['av']:
        a0, a1 = cfg['av']; lt = cfg.get('lt', 5); nu = len(au) - lt
        for t in range(a0, a1): ex[t] = ex[t] + au[nu * (t - a0) // (a1 - a0): nu * (t - a0 + 1) // (a1 - a0)]
        au = au[nu:]
    gemm2(p, ex, pre=hp1, late=au[:na], fin=au[na:], mark=lambda: F.stamp('g2'), omod=cfg['omod'], LA=cfg['la'], tl=cfg['tl'], oa=cfg['oa'], mk=F.stamp, fz=cfg['fz'])
    p.extend(F.stamp())
    if cfg.get('amp'):
        a, b, mult = cfg['amp']
        p(f'''s_mov_b32 s{87 + F.ns}, s100
        s_sub_u32 s{sT0}, s{88+b}, s{88+a}
        s_mul_i32 s{sT0}, s{sT0}, {mult}
        s_mov_b32 s{sT2}, 0x40000
        L_amp:
        s_memtime s[34:35]
        s_waitcnt lgkmcnt(0)
        s_sub_u32 s{sT1}, s34, s100
        s_sub_u32 s{sT2}, s{sT2}, 1
        s_cmp_eq_u32 s{sT2}, 0
        s_cbranch_scc1 L_ampx
        s_cmp_lt_u32 s{sT1}, s{sT0}
        s_cbranch_scc1 L_amp
        L_ampx:''')
    else: F.stamp_out()
    p('s_endpgm')
    p(f'{Lsp}:')
    def sst(i):
        if stamps and not cfg.get('amp'): p(f's_memtime s[100:101]\ns_waitcnt lgkmcnt(0)\ns_mov_b32 s{88+i}, s100')
        elif stamps: p(f's_mov_b32 s{88+i}, s88')
    if stamps: p('s_mov_b32 s88, s100')
    prologue2(p, True)
    Lk = p.label('noclr'); Lg = p.label('nogo')
    p(f'''s_cmp_lg_u32 s{sSI}, 0
    s_cbranch_scc1 {Lk}
    v_mov_b32 v4, 0
    v_mov_b32 v5, 0
    v_mov_b32 v6, 0
    v_mov_b32 v7, 0
    v_lshlrev_b32 v1, 4, v0''')
    for i in range(8): p(f's_mov_b32 s{sT0}, {4096*i}\nbuffer_store_dwordx4 v[4:7], v1, {srd(S_WS)}, s{sT0} offen sc1', 'untracked')
    p(f'{Lk}:')
    def go(nl):
        p(f's_cmp_lg_u32 s{sSI}, 0\ns_cbranch_scc1 {Lg}')
        p(f's_waitcnt vmcnt({nl})', 'untracked'); p.ins[-1].kind = 'misc'
        p(f's_barrier\ns_cmp_lg_u32 s{sW}, 0\ns_cbranch_scc1 {Lg}\ns_mov_b64 exec, 1')
        p(f'buffer_store_dword v{vONE}, off, {srd(S_DBG)}, 0 sc1', 'untracked')
        p(f's_mov_b64 exec, -1\n{Lg}:')
    def faddr():
        p(f'''s_add_u32 s{sT0}, s{sSI}, 192
        s_lshl_b32 s{sT0}, s{sT0}, 5
        s_add_u32 s{sT0}, s{sT0}, s{sW}
        s_lshl_b32 s11, s{sT0}, 2
        s_add_u32 s{sT1}, s{sW}, 224
        s_lshl_b32 s{sT1}, s{sT1}, 5
        s_add_u32 s{sT1}, s{sT1}, s{sSI}
        s_lshl_b32 s12, s{sT1}, 2''')
    xi = [G(x) for x in groups(as_list(spare_issue_x), lambda I: I.kind == 'vm')]
    spare_issue_w(p); par_loads(p); spare_issue_g(p); flag_setup(p, True); rot2_setup(p, cfg['r2']); faddr()
    go(21)
    sx = cfg['sx']
    spare_wd(p, [[]] * sx + xi if sx < 99 else [])
    sst(1)
    p.extend(F.poll_issue(vF, vPGO, S_DBG))
    if sx >= 99: p.extend(xi[:cfg['xn']])
    tail_setup(p)
    p.extend(F.poll_check(vF, vPGO, S_DBG))
    p.waitvm('wst'); p.extend(F.flag(11, vONE)); sst(2)
    if sx >= 99: p.extend(xi[cfg['xn']:])
    q = Prog()
    if stamps: q(f's_memtime s[100:101]\ns_waitcnt lgkmcnt(0)\ns_mov_b32 s91, s100')
    if sn: p.extend(a_clear(0))
    spare_ut(p, q.ins)
    p.extend(F.poll_issue(vFW, vPWD, S_WS)); wd_setup(p)
    gl = as_list(spare_g); p.extend(gl[:-1])
    p.waitvm('ust'); p.extend(F.flag(12, vONE)); sst(4)
    p.extend(gl[-1:])
    p.extend(F.poll_check(vFW, vPWD, S_WS))
    p('s_barrier')
    if sn: p.extend(a_clear_flag())
    kgen_valu(p, [(0.05, 0.9, wl[:k // 2]), (0.95, 0.95, [G([Ins('WAITVM gst'), f's_add_u32 s11, s11, 16'] + F.flag(11, vONE))]), (0.99, 0.99, F.poll_issue(vF, vPUT, S_WS, 2, True))]); kgen_mfma(p)
    p.extend(F.poll_check(vF, vPUT, S_WS, 2, True))
    p('s_waitcnt lgkmcnt(0)\ns_barrier')
    u_loads(p)
    p.extend(zero_fill()); p.extend(rd); p.extend(wl[k // 2:k // 2 + 4]); p.extend(wr); p.extend(wl[k // 2 + 4:k])
    p.extend(u_put())
    sst(5)
    if stamps: p('s_memtime s[100:101]\ns_waitcnt lgkmcnt(0)')
    conv_setup(p); conv_out_setup(p); p('FORGETVM\ns_waitcnt lgkmcnt(0)\ns_barrier'); p.extend(r0)
    p(f's_waitcnt lgkmcnt(0)\ns_branch {Ltail}')
    for x in F.slow: p(x)
    p('L_end:')
    return p
```
